```python
import torch

def _softmax(x, axis=-1):
    return torch.softmax(x, dim=axis)
def _gelu(x):
    return torch.nn.functional.gelu(x, approximate="tanh")
def _silu(x):
    return torch.nn.functional.silu(x)
def _sigmoid(x):
    return torch.sigmoid(x)
def _layernorm(x, axis=-1, eps=1e-5):
    m = x.mean(dim=axis, keepdim=True)
    v = x.var(dim=axis, keepdim=True, unbiased=False)
    return (x - m) / torch.sqrt(v + eps)
def _scatter_add(tgt, idx, src, axis=0):
    return tgt.clone().index_add_(axis, idx, src)
def _segment_sum(src, seg, n):
    out = torch.zeros((n,) + src.shape[1:], dtype=src.dtype)
    return out.index_add_(0, seg, src)
def _pad(x, pw):
    flat = tuple(v for pair in reversed(pw) for v in pair)
    return torch.nn.functional.pad(x, flat)

kernel_name = 'interleave_layers__linear_attn_block__sliding_block__prompt'

def setup_inputs():

    _w = (lambda a: (lambda t: t.to(torch.bfloat16) if t.is_floating_point() else t)(torch.as_tensor(a)))
    def _A_setup():
        B, S, D = 1, 2048, 640
        return {
            "x": _w((lambda *s: torch.randn(*s, dtype=torch.bfloat16) * 0.05)(B, S, D)),
            "wqkv": _w((lambda *s: torch.randn(*s, dtype=torch.bfloat16) * 0.05)(D, 3 * D)),
            "wo": _w((lambda *s: torch.randn(*s, dtype=torch.bfloat16) * 0.05)(D, D)),
        }
    _A_in = _A_setup()

    def _B_setup():
        B, S, D = 1, 2048, 640
        return {
            "x": _w((lambda *s: torch.randn(*s, dtype=torch.bfloat16) * 0.05)(B, S, D)),
            "wqkv": _w((lambda *s: torch.randn(*s, dtype=torch.bfloat16) * 0.05)(D, 3 * D)),
            "wo": _w((lambda *s: torch.randn(*s, dtype=torch.bfloat16) * 0.1)(D, D)),
        }
    _B_in = _B_setup()

    return {
        "A_x": _A_in["x"],
        "A_wqkv": _A_in["wqkv"],
        "A_wo": _A_in["wo"],
        "B_x": _B_in["x"],
        "B_wqkv": _B_in["wqkv"],
        "B_wo": _B_in["wo"],
    }

def reference(A_x, A_wqkv, A_wo, B_x, B_wqkv, B_wo):
    def _A_ref(x, wqkv, wo):
        B, S, D = x.shape
        H = 32; Dh = D // H
        qkv = (lambda x, *d: x.permute(*d))((x @ wqkv).reshape(B, S, 3, H, Dh), 2, 0, 3, 1, 4)
        q, k, v = qkv[0], qkv[1], qkv[2]
        phi = lambda t: torch.where(t > 0, t + 1, torch.exp(t)) + 1e-6
        pq, pk = phi(q), phi(k)
        kv = torch.einsum("bhsd,bhse->bhde", pk, v)
        z = torch.einsum("bhsd->bhd", pk)
        num = torch.einsum("bhqd,bhde->bhqe", pq, kv)
        den = torch.einsum("bhqd,bhd->bhq", pq, z)[..., None] + 1e-6
        o = num / den
        return (lambda x, *d: x.permute(*d))(o, 0, 2, 1, 3).reshape(B, S, D) @ wo

    def _B_ref(x, wqkv, wo):
        B, S, D = x.shape
        H = 32; Dh = D // H; W = 256
        qkv = (lambda x, *d: x.permute(*d))((x @ wqkv).reshape(B, S, 3, H, Dh), 2, 0, 3, 1, 4)
        q, k, v = qkv[0], qkv[1], qkv[2]
        scores = torch.einsum("bhqd,bhkd->bhqk", q, k) * (Dh ** -0.5)
        idx = torch.arange(S)
        mask = (idx[:, None] - idx[None, :] >= 0) & (idx[:, None] - idx[None, :] < W)
        scores = torch.where(mask[None, None], scores, -1e9)
        p = _softmax(scores, axis=-1)
        o = torch.einsum("bhqk,bhkd->bhqd", p, v)
        return (lambda x, *d: x.permute(*d))(o, 0, 2, 1, 3).reshape(B, S, D) @ wo

    x = A_x
    x = x + _A_ref(_layernorm(x, axis=-1), A_wqkv, A_wo)
    x = x + _B_ref(_layernorm(x, axis=-1), B_wqkv, B_wo)
    x = x + _A_ref(_layernorm(x, axis=-1), A_wqkv, A_wo)
    x = x + _B_ref(_layernorm(x, axis=-1), B_wqkv, B_wo)
    return x
```

```python
import re

def parse_regs(tok):
    tok = tok.strip()
    neg = tok.lstrip('-')
    if neg.startswith('abs(') or neg.startswith('|'):
        neg = neg.replace('abs(', '').replace(')', '').replace('|', '')
    t = neg
    m = re.fullmatch(r'([vsa])\[(\d+):(\d+)\]', t)
    if m: return [(m.group(1), i) for i in range(int(m.group(2)), int(m.group(3)) + 1)]
    m = re.fullmatch(r'([vsa])(\d+)', t)
    if m: return [(m.group(1), int(m.group(2)))]
    if t == 'vcc': return [('s', 106), ('s', 107)]
    if t == 'vcc_lo': return [('s', 106)]
    if t == 'vcc_hi': return [('s', 107)]
    if t == 'exec': return [('x', 0)]
    if t == 'm0': return [('m', 0)]
    return []

TRANS = ('v_exp_', 'v_log_', 'v_rcp_', 'v_rsq_', 'v_sqrt_', 'v_sin_', 'v_cos_')

class Ins:
    __slots__ = ('text', 'mn', 'ops', 'mods', 'kind', 'w', 'r', 'passes', 'states', 'srcC')
    def __init__(self, text):
        self.text = text
        t = text.split(';')[0].strip()
        parts = t.split(None, 1)
        self.mn = parts[0]
        rest = parts[1] if len(parts) > 1 else ''
        ops = []; cur = ''; depth = 0
        for ch in rest:
            if ch in '[(': depth += 1
            if ch in '])': depth -= 1
            if ch == ',' and depth == 0: ops.append(cur.strip()); cur = ''
            else: cur += ch
        if cur.strip(): ops.append(cur.strip())
        mods = ''
        if ops:
            sp = ops[-1].split(None, 1)
            ops[-1] = sp[0]
            if len(sp) > 1: mods = sp[1]
        self.ops = ops; self.mods = mods
        self.w = set(); self.r = set(); self.passes = 0; self.srcC = set()
        self.states = 1
        mn = self.mn
        R = lambda i: parse_regs(ops[i]) if i < len(ops) else []
        if mn == 's_nop':
            self.kind = 'nop'; self.states = int(ops[0], 0) + 1
        elif mn.startswith('v_mfma'):
            self.kind = 'mfma'
            self.w |= set(R(0)); self.r |= set(R(1)) | set(R(2)) | set(R(3)); self.srcC = set(R(3))
            self.passes = 8 if '32x32x16' in mn or '32x32x8' in mn else 4 if ('16x16x32' in mn or '16x16x16' in mn) else 16
        elif mn.startswith('v_cmp'):
            self.kind = 'valu'
            self.w |= set(R(0));
            for i in range(1, len(ops)): self.r |= set(R(i))
            if mn.startswith('v_cmpx'): self.w.add(('x', 0))
        elif mn.startswith('v_readfirstlane') or mn.startswith('v_readlane'):
            self.kind = 'valu'; self.w |= set(R(0))
            for i in range(1, len(ops)): self.r |= set(R(i))
        elif mn.startswith('v_permlane') and 'swap' in mn:
            self.kind = 'valu'; self.w |= set(R(0)) | set(R(1)); self.r |= set(R(0)) | set(R(1))
        elif mn.startswith('v_add_co') or mn.startswith('v_sub_co') or mn.startswith('v_addc_co') or mn.startswith('v_subb_co') or mn.startswith('v_mad_u64') or mn.startswith('v_div_scale'):
            self.kind = 'valu'; self.w |= set(R(0)) | set(R(1))
            for i in range(2, len(ops)): self.r |= set(R(i))
        elif mn.startswith('v_'):
            self.kind = 'valu'; self.w |= set(R(0))
            for i in range(1, len(ops)): self.r |= set(R(i))
            if mn.startswith(('v_fmac', 'v_dot2c', 'v_pk_fmac', 'v_mac', 'v_writelane')): self.r |= set(R(0))
            if mn.startswith('v_cndmask') and len(ops) == 3: self.r |= {('s', 106), ('s', 107)}
            if 'dpp' in mn or 'row_' in mods or 'quad_perm' in mods: self.r |= set(R(0))
        elif mn.startswith('ds_'):
            self.kind = 'ds'
            if mn.startswith('ds_read') or mn.startswith('ds_bpermute') or mn.startswith('ds_permute') or mn.startswith('ds_swizzle') or '_rtn' in mn:
                self.w |= set(R(0))
                for i in range(1, len(ops)): self.r |= set(R(i))
            else:
                for i in range(len(ops)): self.r |= set(R(i))
        elif mn.startswith(('buffer_', 'global_', 'flat_')):
            self.kind = 'vmem'
            lds = ' lds' in (' ' + mods) or '_lds_' in mn
            if mn in ('buffer_wbl2', 'buffer_inv'):
                pass
            elif 'load' in mn and not lds:
                self.w |= set(R(0))
                for i in range(1, len(ops)): self.r |= set(R(i))
            elif 'atomic' in mn and 'sc0' in mods:
                self.w |= set(R(0))
                for i in range(0, len(ops)): self.r |= set(R(i))
            else:
                for i in range(len(ops)): self.r |= set(R(i))
            if lds: self.r.add(('m', 0))
        elif mn.startswith('s_'):
            self.kind = 'salu'
            nodst = ('s_cmp', 's_cbranch', 's_branch', 's_waitcnt', 's_barrier', 's_endpgm', 's_sleep', 's_setprio', 's_setpc', 's_bitcmp')
            if mn.startswith(nodst):
                for i in range(len(ops)): self.r |= set(R(i))
            else:
                self.w |= set(R(0))
                for i in range(1, len(ops)): self.r |= set(R(i))
                if 'saveexec' in mn: self.w.add(('x', 0)); self.r.add(('x', 0))
                if mn.startswith(('s_addk', 's_mulk', 's_cmov', 's_bitset')): self.r |= set(R(0))
        else:
            raise ValueError('unknown instr ' + text)

    def is_trans(self): return self.mn.startswith(TRANS)
    def is_wide_store(self):
        return self.kind == 'vmem' and ('store' in self.mn) and ('x4' in self.mn or 'x3' in self.mn)
    def is_dpp(self): return self.kind == 'valu' and ('_dpp' in self.mn or 'row_' in self.mods or 'quad_perm' in self.mods or 'row_bcast' in self.mods)
    def is_permlane(self): return self.mn.startswith('v_permlane')

def vg(s): return {x for x in s if x[0] in 'va'}
def sg(s): return {x for x in s if x[0] == 's'}

def need(prod, cons):
    n = 0
    pv, cv = prod.kind == 'valu', cons.kind == 'valu'
    if prod.kind == 'mfma':
        P = prod.passes
        D = prod.w
        if cons.kind == 'mfma':
            if D & cons.srcC:
                if not (D == cons.srcC and P == cons.passes):
                    n = max(n, {2: 4, 4: 6, 8: 10, 16: 18}[P])
            ab = cons.r - cons.srcC
            abregs = set(parse_regs(cons.ops[1])) | set(parse_regs(cons.ops[2]))
            if D & abregs: n = max(n, {2: 5, 4: 8, 8: 12, 16: 20}[P])
            if (D & cons.w) and D != cons.w: n = max(n, {2: 4, 4: 6, 8: 10, 16: 18}[P])
            if (D & cons.w) and D == cons.w and not (D & cons.srcC): n = max(n, {2: 5, 4: 8, 8: 12, 16: 20}[P])
        elif cons.kind in ('valu', 'vmem', 'ds'):
            if D & (cons.r | cons.w): n = max(n, {2: 5, 4: 8, 8: 12, 16: 20}[P])
        if cv and (prod.srcC & cons.w): n = max(n, {2: 1, 4: 3, 8: 7, 16: 15}[P])
        if cons.kind in ('ds', 'vmem') and (prod.srcC & cons.w): n = max(n, {2: 1, 4: 3, 8: 7, 16: 15}[P])
    if pv:
        if cons.kind == 'mfma' and (vg(prod.w) & cons.r): n = max(n, 2)
        if cons.kind == 'mfma' and ('x', 0) in prod.w: n = max(n, 4)
        if cons.kind == 'vmem' and (sg(prod.w) & cons.r): n = max(n, 5)
        if cv and (sg(prod.w) & cons.r):
            if cons.mn.startswith(('v_readlane', 'v_writelane')): n = max(n, 4)
            else: n = max(n, 2)
        if cons.kind == 'salu' and (sg(prod.w) & cons.r): n = max(n, 4)
        if cons.mn.startswith('s_cbranch_vcc') and (prod.w & {('s', 106), ('s', 107)}): n = max(n, 5)
        if cons.mn.startswith('s_cbranch_exec') and ('x', 0) in prod.w: n = max(n, 5)
        if cons.mn.startswith(('v_readlane', 'v_readfirstlane')) and (vg(prod.w) & cons.r): n = max(n, 1)
        if prod.is_trans() and cons.kind in ('valu', 'mfma') and (vg(prod.w) & cons.r) and not cons.is_trans(): n = max(n, 1)
        if prod.is_trans() and cons.is_trans() and (vg(prod.w) & cons.r): n = max(n, 1)
        if cons.is_dpp() and (vg(prod.w) & cons.r): n = max(n, 2)
        if cons.is_dpp() and ('x', 0) in prod.w: n = max(n, 5)
        if cons.is_permlane() and (vg(prod.w) & (cons.r | cons.w)): n = max(n, 2)
        if ('x', 0) in prod.w and cons.mn.startswith(('v_readlane', 'v_readfirstlane', 'v_writelane', 'v_permlane')): n = max(n, 4)
        if prod.mn.startswith('v_dot2') and cons.kind == 'valu' and (vg(prod.w) & (cons.r | cons.w)) and cons.mn != prod.mn: n = max(n, 3)
        if ('sdwa' in prod.mn or 'op_sel' in prod.mods) and cv and (vg(prod.w) & cons.r): n = max(n, 1)
    if prod.is_wide_store():
        data = set(parse_regs(prod.ops[0])) if prod.mn.startswith('buffer') else set(parse_regs(prod.ops[1]))
        if cv and (data & cons.w): n = max(n, 2)
        elif cons.kind in ('ds', 'vmem') and (data & cons.w): n = max(n, 1)
    if prod.kind == 'salu' and ('m', 0) in prod.w and ('m', 0) in cons.r and cons.kind in ('vmem', 'ds'): n = max(n, 1)
    if prod.kind == 'salu' and ('x', 0) in prod.w and cons.kind == 'mfma': n = max(n, 1)
    return n

MAXD = 20

class Asm:
    def __init__(self):
        self.lines = []
        self.uid = 0
    def __call__(self, text):
        for ln in text.split('\n'):
            t = ln.strip()
            if not t: continue
            if t.startswith(';') or t.startswith('.'):
                self.lines.append(('raw', t))
            elif t.endswith(':'):
                self.lines.append(('l', t[:-1]))
            else:
                self.lines.append(('i', t))
    def label(self, name): self.lines.append(('l', name))
    def newlabel(self, base='L'):
        self.uid += 1
        return f'{base}_{self.uid}'
    def comment(self, t): self.lines.append(('raw', '; ' + t))

    def finalize(self, verbose=False):
        items = []
        for k, p in self.lines:
            items.append((k, Ins(p) if k == 'i' else p))
        changed = True
        ninserted = 0
        def window_before(lst, idx):
            w = []; j = idx - 1; dist = 0
            while j >= 0 and dist < MAXD:
                k, it = lst[j]
                if k == 'i':
                    if it.mn in ('s_branch', 's_endpgm', 's_setpc_b64'): break
                    w.append(it); dist += it.states
                j -= 1
            return w
        def required(win, cons):
            d = 0; req = 0
            for p in win:
                n = need(p, cons)
                if n > d: req = max(req, n - d)
                d += p.states
            return req
        out = []
        for k, it in items:
            if k == 'i':
                win = window_before(out, len(out))
                r = required(win, it)
                while r > 0:
                    c = min(r, 16)
                    out.append(('i', Ins(f's_nop {c-1}'))); ninserted += 1
                    r -= c
            out.append((k, it))
        labels = {it: i for i, (k, it) in enumerate(out) if k == 'l'}
        problems = []
        fix = {}
        for i, (k, it) in enumerate(out):
            if k == 'i' and (it.mn.startswith('s_cbranch') or it.mn == 's_branch'):
                tgt = it.ops[0]
                if tgt not in labels: raise ValueError('missing label ' + tgt)
                win = [it] + window_before(out, i)
                j = labels[tgt]; seq = []; dist = 0
                wcur = list(win)
                while j < len(out) and dist < MAXD:
                    kk, c = out[j]
                    if kk == 'i':
                        r = required(wcur, c)
                        if r > 0:
                            fix[i] = max(fix.get(i, 0), r)
                        wcur = [c] + wcur; dist += c.states
                        if c.mn in ('s_branch', 's_endpgm', 's_setpc_b64'): break
                    j += 1
        if fix:
            new = []
            for i, e in enumerate(out):
                if i in fix:
                    r = fix[i]
                    while r > 0:
                        c = min(r, 16); new.append(('i', Ins(f's_nop {c-1}'))); r -= c; ninserted += 1
                new.append(e)
            out = new
        if verbose: print('nops inserted:', ninserted)
        txt = []
        for k, it in out:
            if k == 'i': txt.append('    ' + it.text)
            elif k == 'l': txt.append(it + ':')
            else: txt.append(it)
        return '\n'.join(txt) + '\n'
```

```python
import sys, argparse
sys.path.insert(0, 'gen')
from asmlib import Asm

KNAME = "interleave_layers__linear_attn_block__sliding_block__prompt_kernel"

WS_LFLAG = 0x0000
WS_XFLAG = 0x4000
WS_XF = 0x100000;  XF_SZ = 0x280000
WS_OF = 0x1000000
WS_ST = 0x2000000; ST_SZ = 0x20000
WS_KVX = 0x2200000; KVX_SZ = 0x600000
WS_KVP = 0x3000000; KVP_SZ = 0x100000
WS_DBG = 0x8000000

WK, WQ, WV = 0, 30768, 61536
R_O = 61440
KIMG, VIMG = 0, 24576
SCR = 40960
L_CS = 92416
L_MISC = 49152
LDS_BYTES = 163840

S_WS, S_X0, S_WQA, S_WOA, S_WQB, S_WOB, S_OUT, S_DBG = 4, 8, 12, 16, 20, 24, 28, 32
sJ, sH, sW, sMODE, sDEAD, sEPOCH, sLAYER, sRB = 36, 37, 38, 39, 40, 41, 42, 43
sLO32 = 44
sXF, sOF, sST = 46, 47, 48
sT0 = 50
sXCC = 49

def srd(n): return f's[{n}:{n+3}]'

QUADS = {
    0: [(('q', 0), ('q', 1)), (('q', 2), ('q', 3)), (('q', 4), ('q', 5)), (('k', 4), ('k', 3))],
    1: [(('k', 0), ('k', 1)), (('v', 0), ('v', 1)), (('v', 2), ('v', 3)), (('k', 2), ('v', 4))],
}
def quad_lds_off(sec, i):
    if sec == 'k': return WK + (i + 1) * 8
    if sec == 'q': return WQ + i * 8
    return WV + i * 8

class G:
    def __init__(self, args):
        self.a = Asm(); self.args = args

    def vsel_hi(self, dst, lo_val, hi_val, tmp):
        a = self.a
        a(f'v_mov_b32 {dst}, {hi_val}')
        a(f'v_mov_b32 {tmp}, {lo_val}')
        a(f'v_cndmask_b32 {dst}, {dst}, {tmp}, s[{sLO32}:{sLO32+1}]')

    def dbg_dump(self, regs, slot, voff='v2', stride=None):
        a = self.a
        n = len(regs)
        a(f's_mul_i32 s50, s2, {8*n*1024}')
        a(f's_mul_i32 s51, s{sW}, {n*1024}')
        a('s_add_u32 s50, s50, s51')
        a(f's_add_u32 s50, s50, {WS_DBG + slot}')
        for i, r in enumerate(regs):
            a(f'buffer_store_dwordx4 v[{r}:{r+3}], v2, {srd(S_WS)}, s50 offen')
            a('s_add_u32 s50, s50, 1024')
        a('s_waitcnt vmcnt(0)')

    def entry(self):
        a = self.a
        a('s_cmp_ge_u32 s2, 256')
        a('s_cbranch_scc1 L_END')
        a('s_load_dwordx16 s[64:79], s[0:1], 0')
        a('s_load_dwordx2 s[80:81], s[0:1], 64')
        a(f's_getreg_b32 s{sXCC}, hwreg(HW_REG_XCC_ID, 0, 4)')
        a(f's_and_b32 s{sJ}, s2, 7')
        a(f's_lshr_b32 s{sH}, s2, 3')
        a('v_lshrrev_b32 v3, 6, v0')
        a('v_and_b32 v1, 63, v0')
        a(f'v_readfirstlane_b32 s{sW}, v3')
        a('v_lshlrev_b32 v2, 4, v1')
        a(f's_mov_b32 s{sLO32}, -1')
        a(f's_mov_b32 s{sLO32+1}, 0')
        a(f's_mov_b32 s{sMODE}, 0')
        a(f's_mov_b32 s{sDEAD}, 0')
        a(f's_mov_b32 s{sEPOCH}, 0')
        a(f's_mov_b32 s{sLAYER}, 0')
        a(f's_sub_u32 s50, 11, s{sW}')
        a(f's_cmp_lt_u32 s{sW}, 4')
        a(f's_cselect_b32 s{sRB}, s{sW}, s50')
        a('s_waitcnt lgkmcnt(0)')
        def mk(dst, src, size):
            a(f's_mov_b32 s{dst}, s{src}')
            a(f's_and_b32 s{dst+1}, s{src+1}, 0xffff')
            a(f's_mov_b32 s{dst+2}, {size}')
            a(f's_mov_b32 s{dst+3}, 0x20000')
        mk(S_X0, 64, 2621440); mk(S_WQA, 66, 2457600); mk(S_WOA, 68, 819200)
        mk(S_WQB, 72, 2457600); mk(S_WOB, 74, 819200); mk(S_OUT, 76, 2621440); mk(S_DBG, 78, 256)
        mk(S_WS, 80, 0x10000000)
        a(f's_mul_i32 s50, s{sH}, 40')
        for u in range(3):
            d = f'v{4+u}'
            a(f'v_add_u32 v10, {64*u}, v1')
            a('v_mul_u32_u24 v11, 21846, v10')
            a('v_lshrrev_b32 v11, 16, v11')
            a('v_mul_u32_u24 v12, 3, v11')
            a('v_sub_u32 v12, v10, v12')
            a('v_lshlrev_b32 v12, 4, v12')
            a('v_and_b32 v13, 0x30, v11')
            a('v_and_b32 v14, 3, v11')
            a('v_lshlrev_b32 v14, 2, v14')
            a('v_add_u32 v13, v13, v14')
            a('v_bfe_u32 v14, v11, 2, 2')
            a('v_add_u32 v13, v13, v14')
            a('v_mul_u32_u24 v13, 3840, v13')
            a('v_add_u32 v13, v13, v12')
            a(f'v_add_u32 {d}, s50, v13')
        for B in range(2):
            d = f'v{7+B}'
            offs = [quad_lds_off(*QUADS[B][t >> 1][t & 1]) for t in range(8)]
            a('v_bfe_u32 v10, v1, 4, 1')
            a('v_lshlrev_b32 v10, 2, v10')
            a('v_and_b32 v11, 3, v1')
            a('v_add_u32 v10, v10, v11')
            a(f'v_mov_b32 {d}, {offs[0]}')
            for t in range(1, 8):
                a(f'v_cmp_eq_u32 vcc, {t}, v10')
                a(f'v_mov_b32 v12, {offs[t]}')
                a(f'v_cndmask_b32 {d}, {d}, v12, vcc')
            a('v_bfe_u32 v11, v1, 2, 2')
            a('v_mul_u32_u24 v11, 192, v11')
            a('v_lshrrev_b32 v12, 5, v1')
            a('v_mul_u32_u24 v12, 96, v12')
            a('v_add_u32 v11, v11, v12')
            a(f'v_add_u32 {d}, {d}, v11')
        a(f's_cmp_lg_u32 s{sW}, 0')
        a('s_cbranch_scc1 L_INIT_DONE')
        a('v_mov_b32 v10, 0')
        a(f's_lshl_b32 s50, s{sJ}, 8')
        a(f's_lshl_b32 s51, s{sH}, 2')
        a('s_add_u32 s50, s50, s51')
        a(f's_add_u32 s50, s50, {WS_LFLAG}')
        a('s_lshl_b32 s51, s2, 6')
        a(f's_add_u32 s51, s51, {WS_XFLAG}')
        a('v_lshlrev_b32 v11, 2, v1')
        a('s_mov_b64 exec, 0xffff')
        a(f'buffer_store_dword v10, v11, {srd(S_WS)}, s51 offen sc1')
        a('s_mov_b64 exec, 1')
        a(f'buffer_store_dword v10, v11, {srd(S_WS)}, s50 offen sc1')
        a('s_waitcnt vmcnt(0)')
        a(f's_or_b32 s50, s{sXCC}, 0x80')
        a('v_mov_b32 v10, s50')
        a('v_mov_b32 v11, s2')
        a(f'buffer_store_byte v10, v11, {srd(S_DBG)}, 0 offen sc1')
        a('s_mov_b64 exec, -1')
        a('L_INIT_DONE:')

    def dma_wqkv(self, srdW, secs):
        a = self.a
        base = {'k': WK, 'q': WQ, 'v': WV}
        soff = {'k': 1280 - 8, 'q': 0, 'v': 2560}
        for sec, Gs in secs:
            for Gi in Gs:
                for u in range(3):
                    a(f's_mov_b32 m0, {base[sec] + (Gi*3 + u)*1024}')
                    a(f's_mov_b32 s50, {Gi*64*3840 + soff[sec]}')
                    a(f'buffer_load_dwordx4 v{4+u}, {srd(srdW)}, s50 offen lds')

    def dma_wqkv_waves(self, srdW, assign):
        a = self.a
        done = a.newlabel('DMAQ_DONE')
        for w, secs in assign.items():
            nxt = a.newlabel('DMAQ_N')
            a(f's_cmp_lg_u32 s{sW}, {w}')
            a(f's_cbranch_scc1 {nxt}')
            self.dma_wqkv(srdW, secs)
            a(f's_branch {done}')
            a.label(nxt)
        a.label(done)

    def dma_wo(self, srdW):
        a = self.a
        done = a.newlabel('DMAO_DONE')
        a(f's_cmp_lt_u32 s{sW}, 4')
        a(f's_cbranch_scc1 {done}')
        a(f's_and_b32 s50, s{sH}, 7')
        a('s_mul_i32 s50, s50, 160')
        for u in range(5):
            d = f'v{10+u}'
            a(f'v_add_u32 v15, {64*u}, v1')
            a('v_mul_u32_u24 v16, 6554, v15')
            a('v_lshrrev_b32 v16, 16, v16')
            a(f'v_mul_u32_u24 {d}, 10, v16')
            a(f'v_sub_u32 {d}, v15, {d}')
            a(f'v_lshlrev_b32 {d}, 4, {d}')
            a('v_mul_u32_u24 v16, 1280, v16')
            a(f'v_add_u32 {d}, {d}, v16')
            a(f'v_add_u32 {d}, s50, {d}')
        a(f's_sub_u32 s51, s{sW}, 4')
        a('s_mul_i32 s52, s51, 5120')
        a(f's_add_u32 s52, s52, {R_O}')
        a('s_mul_i32 s53, s51, 40960')
        for n in range(5):
            for u in range(5):
                a(f's_add_u32 m0, s52, {n*4*5120 + u*1024}')
                a(f's_add_u32 s54, s53, {n*4*40960}')
                a(f'buffer_load_dwordx4 {"v%d" % (10+u)}, {srd(srdW)}, s54 offen lds')
        a.label(done)

    def poll(self, vaddr, soff, nlanes, target_s, flags='sc1', shift=None):
        a = self.a
        L = a.newlabel('POLL'); D = a.newlabel('POLLD')
        a(f's_cmp_lg_u32 s{sDEAD}, 0')
        a(f's_cbranch_scc1 {D}')
        a('s_mov_b32 s60, 0')
        mask = (1 << nlanes) - 1
        a.label(L)
        a(f'buffer_load_dword v12, {vaddr}, {srd(S_WS)}, {soff} offen {flags}')
        a('s_waitcnt vmcnt(0)')
        a(f'v_cmp_gt_u32 vcc, {target_s}, v12')
        a(f's_and_b32 s61, vcc_lo, {hex(mask & 0xffffffff)}')
        a('s_cmp_eq_u32 s61, 0')
        a(f's_cbranch_scc1 {D}')
        a('s_add_u32 s60, s60, 1')
        a(f's_cmp_lt_u32 s60, {self.args.spin}')
        a(f's_cbranch_scc1 {L}')
        a(f's_mov_b32 s{sDEAD}, 1')
        a.label(D)

    def check_hello(self):
        a = self.a
        L = a.newlabel('HELLO'); D = a.newlabel('HELLOD')
        a('s_mov_b32 s60, 0')
        a('v_lshlrev_b32 v11, 2, v1')
        a.label(L)
        a(f'buffer_load_dword v12, v11, {srd(S_DBG)}, 0 offen sc1')
        a('s_waitcnt vmcnt(0)')
        a('v_and_b32 v13, 0x80808080, v12')
        a('v_cmp_ne_u32 vcc, 0x80808080, v13')
        a('s_cmp_eq_u64 vcc, 0')
        a(f's_cbranch_scc1 {D}')
        a('s_add_u32 s60, s60, 1')
        a(f's_cmp_lt_u32 s60, {self.args.spin}')
        a(f's_cbranch_scc1 {L}')
        a(f's_mov_b32 s{sDEAD}, 1')
        a.label(D)
        a(f's_and_b32 s50, s{sJ}, 3')
        a('s_lshl_b32 s50, s50, 3')
        a('v_lshrrev_b32 v13, s50, v12')
        a('v_and_b32 v13, 0xf, v13')
        a(f's_lshr_b32 s51, s{sJ}, 2')
        a('v_and_b32 v14, 1, v1')
        a(f'v_cmp_eq_u32 s[52:53], s51, v14')
        a(f'v_cmp_ne_u32 vcc, s{sXCC}, v13')
        a('s_and_b64 s[52:53], s[52:53], vcc')
        a('s_cmp_lg_u64 s[52:53], 0')
        a(f's_cselect_b32 s{sMODE}, 1, 0')
        if self.args.force_generic:
            a(f's_mov_b32 s{sMODE}, 1')

    def lbar(self, first=False, between=None, after_poll=None):
        a = self.a
        a('s_barrier')
        a(f's_add_u32 s{sEPOCH}, s{sEPOCH}, 1')
        W0 = a.newlabel('LB_NOT0'); E = a.newlabel('LB_END')
        a(f's_cmp_lg_u32 s{sW}, 0')
        a(f's_cbranch_scc1 {W0}')
        if first:
            self.check_hello()
        G1 = a.newlabel('LB_GEN'); G2 = a.newlabel('LB_ST')
        a(f's_lshl_b32 s50, s{sJ}, 8')
        a(f's_add_u32 s50, s50, {WS_LFLAG}')
        a(f's_lshl_b32 s51, s{sH}, 2')
        a('s_add_u32 s51, s51, s50')
        a(f'v_mov_b32 v10, s{sEPOCH}')
        a('v_mov_b32 v11, 0')
        a(f's_cmp_lg_u32 s{sMODE}, 0')
        a(f's_cbranch_scc1 {G1}')
        a('s_mov_b64 exec, 1')
        a(f'buffer_store_dword v10, v11, {srd(S_WS)}, s51 offen')
        a('s_mov_b64 exec, -1')
        a(f's_branch {G2}')
        a.label(G1)
        a('buffer_wbl2 sc1')
        a('s_waitcnt vmcnt(0)')
        a('s_mov_b64 exec, 1')
        a(f'buffer_store_dword v10, v11, {srd(S_WS)}, s51 offen sc1')
        a('s_mov_b64 exec, -1')
        a.label(G2)
        a('v_and_b32 v11, 31, v1')
        a('v_lshlrev_b32 v11, 2, v11')
        self.poll('v11', 's50', 32, f's{sEPOCH}')
        G3 = a.newlabel('LB_NOINV')
        a(f's_cmp_eq_u32 s{sMODE}, 0')
        a(f's_cbranch_scc1 {G3}')
        a('buffer_inv sc1')
        a('s_waitcnt vmcnt(0)')
        a.label(G3)
        if first:
            a(f'v_mov_b32 v10, s{sMODE}')
            a(f'v_mov_b32 v11, {LDS_BYTES-16}')
            a('ds_write_b32 v11, v10')
            a('s_waitcnt lgkmcnt(0)')
        a(f's_branch {E}')
        a.label(W0)
        if between: between()
        a('s_waitcnt vmcnt(0)')
        a.label(E)
        a('s_barrier')
        if first:
            a(f'v_mov_b32 v11, {LDS_BYTES-16}')
            a('ds_read_b32 v10, v11')
            a('s_waitcnt lgkmcnt(0)')
            a(f'v_readfirstlane_b32 s{sMODE}, v10')

    def p0(self):
        a = self.a
        self.dma_wqkv_waves(S_WQA, {2: [('k', range(0, 5))], 3: [('k', range(5, 10))], 4: [('q', range(0, 5))],
                                    5: [('q', range(5, 10))], 6: [('v', range(0, 5))], 7: [('v', range(5, 10))]})
        a(f's_lshl_b32 s50, s{sJ}, 8')
        a(f's_lshl_b32 s51, s{sH}, 3')
        a('s_add_u32 s50, s50, s51')
        a('s_mul_i32 s52, s50, 1280')
        a('v_and_b32 v10, 7, v0')
        a('v_lshrrev_b32 v11, 3, v0')
        a('v_mul_u32_u24 v12, 1280, v10')
        a('v_lshlrev_b32 v13, 4, v11')
        a('v_add_u32 v12, v12, v13')
        a(f'buffer_load_dwordx4 v[16:19], v12, {srd(S_X0)}, s52 offen')
        a('v_mov_b32 v20, 0\nv_mov_b32 v21, 0\nv_mov_b32 v22, 0\nv_mov_b32 v23, 0')
        R2 = a.newlabel('P0_NOR2')
        a(f's_cmp_ge_u32 s{sW}, 2')
        a(f's_cbranch_scc1 {R2}')
        a(f'buffer_load_dwordx4 v[20:23], v12, {srd(S_X0)}, s52 offen offset:1024')
        a.label(R2)
        a(f's_lshl_b32 s53, s{sJ}, 3')
        a(f's_lshr_b32 s54, s{sH}, 2')
        a('s_add_u32 s53, s53, s54')
        a('s_mul_i32 s53, s53, 40960')
        a(f's_and_b32 s54, s{sH}, 3')
        a('s_lshl_b32 s54, s54, 7')
        a('s_add_u32 s53, s53, s54')
        a(f's_add_u32 s53, s53, {WS_XF}')
        a('v_lshrrev_b32 v13, 1, v11')
        a('v_lshlrev_b32 v13, 10, v13')
        a('v_and_b32 v14, 1, v11')
        a('v_lshlrev_b32 v14, 9, v14')
        a('v_add_u32 v13, v13, v14')
        a('v_lshlrev_b32 v14, 4, v10')
        a('v_add_u32 v13, v13, v14')
        a('s_add_u32 s54, s53, 32768')
        a('s_waitcnt vmcnt(0)')
        a(f'buffer_store_dwordx4 v[16:19], v13, {srd(S_WS)}, s53 offen')
        R3 = a.newlabel('P0_NOR2B')
        a(f's_cmp_ge_u32 s{sW}, 2')
        a(f's_cbranch_scc1 {R3}')
        a(f'buffer_store_dwordx4 v[20:23], v13, {srd(S_WS)}, s54 offen')
        a.label(R3)
        a('v_mov_b32 v24, 0\nv_mov_b32 v25, 0')
        for r in range(16, 24):
            a(f'v_lshlrev_b32 v26, 16, v{r}')
            a(f'v_and_b32 v27, 0xffff0000, v{r}')
            a('v_add_f32 v24, v24, v26')
            a('v_fmac_f32 v25, v26, v26')
            a('v_add_f32 v24, v24, v27')
            a('v_fmac_f32 v25, v27, v27')
        for reg in (24, 25):
            a(f'v_mov_b32_dpp v26, v{reg} row_ror:8 row_mask:0xf bank_mask:0xf')
            a(f'v_add_f32 v{reg}, v{reg}, v26')
            a(f'v_mov_b32 v26, v{reg}')
            a(f'v_permlane16_swap_b32 v{reg}, v26')
            a(f'v_add_f32 v{reg}, v{reg}, v26')
            a(f'v_mov_b32 v26, v{reg}')
            a(f'v_permlane32_swap_b32 v{reg}, v26')
            a(f'v_add_f32 v{reg}, v{reg}, v26')
        P0S = 160000
        a(f's_lshl_b32 s50, s{sW}, 6')
        a('v_lshlrev_b32 v26, 3, v1')
        a('v_add_u32 v26, s50, v26')
        a(f'v_add_u32 v26, {P0S}, v26')
        a('s_mov_b64 exec, 0xff')
        a('ds_write_b64 v26, v[24:25]')
        a('s_mov_b64 exec, -1')
        a('s_waitcnt lgkmcnt(0)')
        a('s_barrier')
        SK = a.newlabel('P0_ST')
        a(f's_cmp_lg_u32 s{sW}, 0')
        a(f's_cbranch_scc1 {SK}')
        a('v_lshrrev_b32 v10, 2, v1')
        a('v_and_b32 v10, 7, v10')
        a('v_lshlrev_b32 v11, 3, v10')
        a(f'v_add_u32 v11, {P0S}, v11')
        for w in range(8):
            a(f'ds_read_b64 v[{28+2*w}:{29+2*w}], v11 offset:{w*64}')
        a('s_waitcnt lgkmcnt(0)')
        for w in range(1, 8):
            a(f'v_add_f32 v28, v28, v{28+2*w}')
            a(f'v_add_f32 v29, v29, v{29+2*w}')
        a('v_and_b32 v12, 3, v1')
        a('v_cmp_eq_u32 vcc, 0, v12')
        a('v_mov_b32 v30, 0\nv_mov_b32 v31, 0')
        a('v_cndmask_b32 v28, v30, v28, vcc')
        a('v_cndmask_b32 v29, v30, v29, vcc')
        a(f's_lshl_b32 s50, s{sJ}, 8')
        a(f's_lshl_b32 s51, s{sH}, 3')
        a('s_add_u32 s50, s50, s51')
        a('s_lshl_b32 s50, s50, 6')
        a(f's_add_u32 s50, s50, {WS_ST}')
        a('s_mov_b64 exec, 0xffffffff')
        a(f'buffer_store_dwordx4 v[28:31], v2, {srd(S_WS)}, s50 offen')
        a('s_mov_b64 exec, -1')
        a.label(SK)
        self.zero_cs()
        a('s_waitcnt vmcnt(0) lgkmcnt(0)')

    def zero_cs(self):
        a = self.a
        a('v_mov_b32 v10, 0')
        a('v_lshlrev_b32 v11, 2, v1')
        a(f'v_add_u32 v11, {L_CS}, v11')
        a('ds_write_b32 v11, v10')

    ACC0, ACC1 = 16, 32
    XR = 48
    WB = 80
    def qkv_main(self):
        a = self.a
        A0, A1, XR, WB = self.ACC0, self.ACC1, self.XR, self.WB
        a(f's_lshl_b32 s50, s{sJ}, 3')
        a(f's_add_u32 s50, s50, s{sRB}')
        a(f's_lshl_b32 s51, s50, 11')
        a('s_mul_i32 s50, s50, 40960')
        a(f's_add_u32 s50, s50, s{sXF}')
        a(f's_add_u32 s51, s51, s{sST}')
        a('v_and_b32 v10, 31, v1')
        a('v_lshlrev_b32 v10, 6, v10')
        a('v_lshrrev_b32 v11, 5, v1')
        a('v_lshlrev_b32 v11, 5, v11')
        a('v_add_u32 v10, v10, v11')
        a(f'buffer_load_dwordx4 v[100:103], v10, {srd(S_WS)}, s51 offen')
        a(f'buffer_load_dwordx4 v[104:107], v10, {srd(S_WS)}, s51 offen offset:16')
        def xload(ks):
            r = XR + 4 * (ks % 8)
            if ks % 4 == 0 and ks > 0: a('s_add_u32 s50, s50, 4096')
            a(f'buffer_load_dwordx4 v[{r}:{r+3}], v2, {srd(S_WS)}, s50 offen offset:{(ks % 4) * 1024}')
        for ks in range(8): xload(ks)
        a(f's_mul_i32 s52, s{sW}, 768')
        a('v_add_u32 v12, s52, v7')
        a('v_add_u32 v13, s52, v8')
        a('v_mov_b32 v108, 0x3f803f80\nv_mov_b32 v109, 0x3f803f80\nv_mov_b32 v110, 0x3f803f80\nv_mov_b32 v111, 0x3f803f80')
        for i in range(5):
            s = WB + 8 * (i % 2)
            a(f'ds_read_b64_tr_b16 v[{s}:{s+1}], v12 offset:{i*6144}')
            a(f'ds_read_b64_tr_b16 v[{s+2}:{s+3}], v12 offset:{i*6144+48}')
            a(f'ds_read_b64_tr_b16 v[{s+4}:{s+5}], v13 offset:{i*6144}')
            a(f'ds_read_b64_tr_b16 v[{s+6}:{s+7}], v13 offset:{i*6144+48}')
            a('s_waitcnt lgkmcnt(0)')
            c0 = '0' if i == 0 else 'v[112:127]'
            c1 = '0' if i == 0 else 'v[128:143]'
            a(f'v_mfma_f32_32x32x16_bf16 v[112:127], v[108:111], v[{s}:{s+3}], {c0}')
            a(f'v_mfma_f32_32x32x16_bf16 v[128:143], v[108:111], v[{s+4}:{s+7}], {c1}')
        a('v_and_b32 v12, 31, v1')
        a('v_lshlrev_b32 v12, 2, v12')
        a(f'v_add_u32 v12, {L_CS}, v12')
        a('s_mov_b64 exec, 0xffffffff')
        a('ds_add_f32 v12, v112')
        a('ds_add_f32 v12, v128 offset:128')
        a('s_mov_b64 exec, -1')
        def wread(ks):
            s = WB + 8 * (ks % 2)
            a(f'ds_read_b64_tr_b16 v[{s}:{s+1}], v7 offset:{ks*768}')
            a(f'ds_read_b64_tr_b16 v[{s+2}:{s+3}], v7 offset:{ks*768+48}')
            a(f'ds_read_b64_tr_b16 v[{s+4}:{s+5}], v8 offset:{ks*768}')
            a(f'ds_read_b64_tr_b16 v[{s+6}:{s+7}], v8 offset:{ks*768+48}')
        wread(0)
        for ks in range(40):
            if ks + 1 < 40:
                wread(ks + 1)
                a('s_waitcnt lgkmcnt(4)')
            else:
                a('s_waitcnt lgkmcnt(0)')
            outstanding = min(7, 39 - ks)
            a(f's_waitcnt vmcnt({outstanding})')
            s = WB + 8 * (ks % 2); x = XR + 4 * (ks % 8)
            c0 = '0' if ks == 0 else f'v[{A0}:{A0+15}]'
            c1 = '0' if ks == 0 else f'v[{A1}:{A1+15}]'
            a(f'v_mfma_f32_32x32x16_bf16 v[{A0}:{A0+15}], v[{s}:{s+3}], v[{x}:{x+3}], {c0}')
            a(f'v_mfma_f32_32x32x16_bf16 v[{A1}:{A1+15}], v[{s+4}:{s+7}], v[{x}:{x+3}], {c1}')
            if ks + 8 < 40: xload(ks + 8)
        a('s_barrier')
        a('v_and_b32 v12, 31, v1')
        a('v_lshlrev_b32 v12, 2, v12')
        a(f'v_add_u32 v12, {L_CS}, v12')
        a('ds_read_b32 v112, v12')
        a('ds_read_b32 v113, v12 offset:128')
        a('v_add_f32 v100, v100, v102\nv_add_f32 v101, v101, v103\nv_add_f32 v104, v104, v106\nv_add_f32 v105, v105, v107')
        a('v_add_f32 v100, v100, v104\nv_add_f32 v101, v101, v105')
        a('v_mov_b32 v102, v100\nv_mov_b32 v103, v101')
        a('v_permlane32_swap_b32 v100, v102')
        a('v_permlane32_swap_b32 v101, v103')
        a('v_add_f32 v100, v100, v102\nv_add_f32 v101, v101, v103')
        a('s_mov_b32 s52, 0x3acccccd')
        a('v_mul_f32 v100, s52, v100')
        a('v_mul_f32 v101, s52, v101')
        a('v_fma_f32 v101, -v100, v100, v101')
        a('v_add_f32 v101, 0x3727c5ac, v101')
        a('v_rsq_f32 v101, v101')
        a('v_sub_f32 v102, 0, v100')
        a('v_cvt_pk_bf16_f32 v104, v102, v102')
        a('v_lshlrev_b32 v103, 16, v104')
        a('v_sub_f32 v103, v102, v103')
        a('v_mov_b32 v106, 0\nv_mov_b32 v107, 0')
        a('v_cvt_pk_bf16_f32 v105, v103, v106')
        a(f'v_cndmask_b32 v104, v106, v104, s[{sLO32}:{sLO32+1}]')
        a(f'v_cndmask_b32 v105, v106, v105, s[{sLO32}:{sLO32+1}]')
        a('s_waitcnt lgkmcnt(0)')
        for B, (src, dst) in enumerate(((112, 116), (113, 120))):
            a(f'v_cvt_pk_bf16_f32 v108, v{src}, v{src}')
            a('v_lshlrev_b32 v108, 16, v108')
            a(f'v_sub_f32 v109, v{src}, v108')
            a(f'v_cvt_pk_bf16_f32 v{dst}, v108, v109')
            a(f'v_cvt_pk_bf16_f32 v{dst+1}, v108, v106')
            a(f'v_cndmask_b32 v{dst}, v106, v{dst}, s[{sLO32}:{sLO32+1}]')
            a(f'v_cndmask_b32 v{dst+1}, v106, v{dst+1}, s[{sLO32}:{sLO32+1}]')
            a(f'v_mov_b32 v{dst+2}, 0\nv_mov_b32 v{dst+3}, 0')
        a(f'v_mfma_f32_32x32x16_bf16 v[{A0}:{A0+15}], v[116:119], v[104:107], v[{A0}:{A0+15}]')
        a(f'v_mfma_f32_32x32x16_bf16 v[{A1}:{A1+15}], v[120:123], v[104:107], v[{A1}:{A1+15}]')


    def img_addr_regs(self):
        a = self.a
        a('v_and_b32 v10, 31, v1')
        a(f's_lshl_b32 s50, s{sRB}, 5')
        a('s_add_u32 s50, s50, 256')
        a('v_add_u32 v10, s50, v10')
        a('v_mul_u32_u24 v10, 48, v10')
        a('v_lshrrev_b32 v11, 5, v1')
        a('v_lshlrev_b32 v12, 4, v11')
        a(f'v_add_u32 v120, v10, v12')
        a('v_lshlrev_b32 v12, 3, v11')
        a('v_sub_u32 v121, v10, v12')
        a('v_add_u32 v121, 32, v121')
        a('v_add_u32 v122, v10, v12')
        a(f'v_add_u32 v122, {VIMG}, v122')
        a(f'v_mul_u32_u24 v12, {VIMG + 32 - 8}, v11')
        a('v_add_u32 v123, v10, v12')
        a('v_add_u32 v123, 8, v123')
        a(f'v_mul_u32_u24 v12, {VIMG}, v11')
        a('v_add_u32 v124, v10, v12')
        a('v_add_u32 v124, 40, v124')

    def write_img(self, regs):
        a = self.a
        a(f'ds_write_b64 v120, v[{regs["B1g0"]}:{regs["B1g0"]+1}]')
        a(f'ds_write_b64 v121, v[{regs["B0g3"]}:{regs["B0g3"]+1}]')
        a(f'ds_write_b64 v122, v[{regs["B1g1"]}:{regs["B1g1"]+1}]')
        a(f'ds_write_b64 v122, v[{regs["B1g2"]}:{regs["B1g2"]+1}] offset:16')
        a(f'ds_write_b64 v123, v[{regs["B1g3"]}:{regs["B1g3"]+1}]')
        a('v_mov_b32 v12, 0x3f80')
        a('v_mov_b32 v13, 0')
        a(f'v_cndmask_b32 v12, v12, v13, s[{sLO32}:{sLO32+1}]')
        a('ds_write_b64 v124, v[12:13]')

    QA, QB = 96, 100
    def epi_B(self):
        a = self.a
        A0, A1 = self.ACC0, self.ACC1
        QA, QB = self.QA, self.QB
        a('s_mov_b32 s52, 0x3ea52b5c')
        a('v_mul_f32 v102, s52, v101')
        for r in range(0, 12): a(f'v_mul_f32 v{A0+r}, v102, v{A0+r}')
        for r in range(12, 16): a(f'v_mul_f32 v{A0+r}, v101, v{A0+r}')
        for r in range(16): a(f'v_mul_f32 v{A1+r}, v101, v{A1+r}')
        for j in range(4): a(f'v_cvt_pk_bf16_f32 v{QA+j}, v{A0+2*j}, v{A0+2*j+1}')
        a(f'v_cvt_pk_bf16_f32 v{QB}, v{A0+8}, v{A0+9}')
        a(f'v_cvt_pk_bf16_f32 v{QB+1}, v{A0+10}, v{A0+11}')
        a('v_mov_b32 v13, 0')
        a(f'v_mov_b32 v{QB+2}, 0x3f80')
        a(f'v_mov_b32 v{QB+3}, 0')
        for j in range(3): a(f'v_cndmask_b32 v{QB+j}, v13, v{QB+j}, s[{sLO32}:{sLO32+1}]')
        pk = {'B0g3': (104, A0+12), 'B1g0': (106, A1), 'B1g1': (108, A1+4), 'B1g2': (110, A1+8), 'B1g3': (112, A1+12)}
        for n, (d, s_) in pk.items():
            a(f'v_cvt_pk_bf16_f32 v{d}, v{s_}, v{s_+1}')
            a(f'v_cvt_pk_bf16_f32 v{d+1}, v{s_+2}, v{s_+3}')
        self.img_addr_regs()
        self.write_img({n: d for n, (d, _) in pk.items()})
        a('s_waitcnt lgkmcnt(0)')
        a('s_barrier')

    def wo_dma_layer(self):
        a = self.a
        LB = a.newlabel('WOD_B'); LE = a.newlabel('WOD_E')
        a(f's_bitcmp1_b32 s{sLAYER}, 0')
        a(f's_cbranch_scc1 {LB}')
        self.dma_wo(S_WOA)
        a(f's_branch {LE}')
        a.label(LB)
        self.dma_wo(S_WOB)
        a.label(LE)

    def xflag_addr(self, dst, wg_s):
        a = self.a
        a(f's_lshl_b32 {dst}, {wg_s}, 6')
        a(f's_add_u32 {dst}, {dst}, {WS_XFLAG}')

    def halo_exchange(self):
        a = self.a
        E = a.newlabel('HX_END')
        a(f's_cmp_ge_u32 s{sW}, 4')
        a(f's_cbranch_scc1 {E}')
        a('v_lshlrev_b32 v10, 4, v0')
        a(f's_lshr_b32 s50, s{sLAYER}, 1')
        a(f's_mul_i32 s50, s50, {KVX_SZ}')
        a(f's_add_u32 s50, s50, {WS_KVX}')
        NOEXP = a.newlabel('HX_NOEXP')
        a(f's_cmp_eq_u32 s{sJ}, 7')
        a(f's_cbranch_scc1 {NOEXP}')
        for n in range(6):
            base = (KIMG + 12288 + n * 4096) if n < 3 else (VIMG + 12288 + (n - 3) * 4096)
            a(f'ds_read_b128 v[{16+4*n}:{19+4*n}], v10 offset:{base}')
        a('s_mul_i32 s51, s2, 24576')
        a('s_add_u32 s51, s51, s50')
        a('s_waitcnt lgkmcnt(0)')
        for n in range(6):
            a(f'buffer_store_dwordx4 v[{16+4*n}:{19+4*n}], v10, {srd(S_WS)}, s51 offen sc1')
            a('s_add_u32 s51, s51, 4096')
        a('s_waitcnt vmcnt(0)')
        self.xflag_addr('s52', 's2')
        a(f's_lshl_b32 s53, s{sW}, 2')
        a('s_add_u32 s52, s52, s53')
        a(f's_add_u32 s53, s{sLAYER}, 1')
        a('v_mov_b32 v11, s53')
        a('v_mov_b32 v12, 0')
        a('s_mov_b64 exec, 1')
        a(f'buffer_store_dword v11, v12, {srd(S_WS)}, s52 offen sc1')
        a('s_mov_b64 exec, -1')
        a.label(NOEXP)
        FILL = a.newlabel('HX_FILL')
        a(f's_cmp_eq_u32 s{sJ}, 0')
        a(f's_cbranch_scc1 {FILL}')
        a('s_sub_u32 s54, s2, 1')
        self.xflag_addr('s52', 's54')
        a(f's_add_u32 s53, s{sLAYER}, 1')
        a('v_and_b32 v11, 3, v1')
        a('v_lshlrev_b32 v11, 2, v11')
        self.poll('v11', 's52', 4, 's53')
        a('s_mul_i32 s51, s54, 24576')
        a('s_add_u32 s51, s51, s50')
        for n in range(6):
            a(f'buffer_load_dwordx4 v[{16+4*n}:{19+4*n}], v10, {srd(S_WS)}, s51 offen sc1')
            a('s_add_u32 s51, s51, 4096')
        for n in range(6):
            a(f's_waitcnt vmcnt({5-n})')
            base = (KIMG + n * 4096) if n < 3 else (VIMG + (n - 3) * 4096)
            a(f'ds_write_b128 v10, v[{16+4*n}:{19+4*n}] offset:{base}')
        a(f's_branch {E}')
        a.label(FILL)
        for r in range(16, 24): a(f'v_mov_b32 v{r}, 0')
        for n in range(3):
            a(f'v_add_u32 v11, {n*256}, v0')
            a('v_mul_u32_u24 v12, 21846, v11')
            a('v_lshrrev_b32 v12, 16, v12')
            a('v_mul_u32_u24 v12, 3, v12')
            a('v_sub_u32 v12, v11, v12')
            a('v_cmp_eq_u32 vcc, 2, v12')
            a('v_mov_b32 v13, 0xf14a')
            a('v_cndmask_b32 v18, v16, v13, vcc')
            a(f'ds_write_b128 v10, v[16:19] offset:{KIMG + n*4096}')
            a(f'ds_write_b128 v10, v[20:23] offset:{VIMG + n*4096}')
        a.label(E)
        a('s_waitcnt lgkmcnt(0)')

    def attn_true(self):
        a = self.a
        QA, QB = self.QA, self.QB
        S0 = 112; O = 16; MD = 32; MF = 48; VF = 64; KF = 80
        a('v_and_b32 v10, 31, v1')
        a(f's_lshl_b32 s50, s{sRB}, 5')
        a('v_add_u32 v10, s50, v10')
        a('v_mul_u32_u24 v10, 48, v10')
        a('v_lshrrev_b32 v11, 5, v1')
        a('v_lshlrev_b32 v12, 4, v11')
        a('v_add_u32 v104, v10, v12')
        a('v_add_u32 v105, 32, v10')
        a('v_bfe_u32 v12, v1, 2, 2')
        a('v_lshlrev_b32 v13, 2, v11')
        a('v_add_u32 v12, v12, v13')
        a('v_add_u32 v12, s50, v12')
        a('v_mul_u32_u24 v12, 48, v12')
        a('v_and_b32 v13, 3, v1')
        a('v_lshlrev_b32 v14, 3, v13')
        a('v_min_u32 v15, 1, v13')
        a('v_lshlrev_b32 v15, 3, v15')
        a('v_add_u32 v15, 32, v15')
        a('v_bfe_u32 v13, v1, 4, 1')
        a('v_cmp_eq_u32 vcc, 1, v13')
        a('v_cndmask_b32 v14, v14, v15, vcc')
        a('v_add_u32 v12, v12, v14')
        a(f'v_add_u32 v106, {VIMG}, v12')
        a('v_and_b32 v10, 31, v1')
        a('v_lshlrev_b32 v13, 2, v11')
        a('v_sub_u32 v10, v10, v13')
        a('v_mov_b32 v14, 0xf149f2ca')
        a('v_mov_b32 v15, 0')
        for r in range(16):
            kk = 8 * (r >> 2) + (r & 3)
            a(f'v_cmp_le_i32 vcc, {kk}, v10')
            a(f'v_cndmask_b32 v{MD+r}, v14, v15, vcc')
            a(f'v_cndmask_b32 v{MF+r}, v15, v14, vcc')
        def kread(n):
            s = KF + 8 * (n % 2)
            a(f'ds_read_b128 v[{s}:{s+3}], v104 offset:{n*1536}')
            a(f'ds_read_b128 v[{s+4}:{s+7}], v105 offset:{n*1536}')
        kread(0)
        for n in range(9):
            if n + 1 < 9:
                kread(n + 1); a('s_waitcnt lgkmcnt(2)')
            else: a('s_waitcnt lgkmcnt(0)')
            s = KF + 8 * (n % 2); d = S0 + 16 * n
            c = f'v[{MF}:{MF+15}]' if n == 0 else f'v[{MD}:{MD+15}]' if n == 8 else '0'
            a(f'v_mfma_f32_32x32x16_bf16 v[{d}:{d+15}], v[{s}:{s+3}], v[{QA}:{QA+3}], {c}')
            a(f'v_mfma_f32_32x32x16_bf16 v[{d}:{d+15}], v[{s+4}:{s+7}], v[{QB}:{QB+3}], v[{d}:{d+15}]')
        def vread(n):
            s = VF + 8 * (n % 2)
            for s2 in range(2):
                for sx in range(2):
                    a(f'ds_read_b64_tr_b16 v[{s+4*s2+2*sx}:{s+4*s2+2*sx+1}], v106 offset:{n*1536 + s2*768 + sx*384}')
        vread(0)
        for i in range(4): a(f'v_max_f32 v{10+i}, v{S0+i*2}, v{S0+i*2+1}')
        k = 8; i = 0
        while k < 144:
            a(f'v_max3_f32 v{10+i}, v{10+i}, v{S0+k}, v{S0+k+1}')
            k += 2; i = (i + 1) % 4
        a('v_max3_f32 v10, v10, v11, v12')
        a('v_max_f32 v10, v10, v13')
        a('v_mov_b32 v11, v10')
        a('v_permlane32_swap_b32 v10, v11')
        a('v_max_f32 v10, v10, v11')
        for n in range(9):
            d = S0 + 16 * n
            for r in range(16): a(f'v_sub_f32 v{d+r}, v{d+r}, v10')
            for r in range(16): a(f'v_exp_f32 v{d+r}, v{d+r}')
            for j in range(8): a(f'v_cvt_pk_bf16_f32 v{d+j}, v{d+2*j}, v{d+2*j+1}')
            if n + 1 < 9:
                vread(n + 1); a('s_waitcnt lgkmcnt(4)')
            else: a('s_waitcnt lgkmcnt(0)')
            s = VF + 8 * (n % 2)
            c = '0' if n == 0 else f'v[{O}:{O+15}]'
            a(f'v_mfma_f32_32x32x16_bf16 v[{O}:{O+15}], v[{s}:{s+3}], v[{d}:{d+3}], {c}')
            a(f'v_mfma_f32_32x32x16_bf16 v[{O}:{O+15}], v[{s+4}:{s+7}], v[{d+4}:{d+7}], v[{O}:{O+15}]')

    def phi(self, r, tA, tB, sel_lo=False):
        a = self.a
        a(f'v_mul_f32 v{tA}, v102, v{r}')
        a(f'v_fma_f32 v{tB}, v101, v{r}, s52')
        a(f'v_exp_f32_e64 v{tA}, v{tA} clamp')
        a(f'v_max_f32 v{tB}, s52, v{tB}')
        if not sel_lo:
            a(f'v_add_f32 v{r}, v{tA}, v{tB}')
        else:
            a(f'v_add_f32 v{tA}, v{tA}, v{tB}')
            a(f'v_mul_f32 v{r}, v101, v{r}')
            a(f'v_cndmask_b32 v{r}, v{r}, v{tA}, s[{sLO32}:{sLO32+1}]')

    def epi_A(self):
        a = self.a
        A0, A1 = self.ACC0, self.ACC1
        QA, QB = self.QA, self.QB
        a('s_mov_b32 s53, 0x3fb8aa3b')
        a('v_mul_f32 v102, s53, v101')
        a('s_mov_b32 s52, 0x358637bd')
        t = 0
        for r in list(range(A0, A0 + 16)) + list(range(A1, A1 + 4)):
            self.phi(r, 104 + 2 * (t % 4), 105 + 2 * (t % 4)); t += 1
        for r in range(A1 + 4, A1 + 12): a(f'v_mul_f32 v{r}, v101, v{r}')
        for r in range(A1 + 12, A1 + 16):
            self.phi(r, 104 + 2 * (t % 4), 105 + 2 * (t % 4), sel_lo=True); t += 1
        for j in range(4): a(f'v_cvt_pk_bf16_f32 v{QA+j}, v{A0+2*j}, v{A0+2*j+1}')
        a(f'v_cvt_pk_bf16_f32 v{QB}, v{A0+8}, v{A0+9}')
        a(f'v_cvt_pk_bf16_f32 v{QB+1}, v{A0+10}, v{A0+11}')
        a('v_mov_b32 v13, 0')
        a(f'v_mov_b32 v{QB+2}, 0')
        a(f'v_mov_b32 v{QB+3}, 0')
        for j in range(2): a(f'v_cndmask_b32 v{QB+j}, v13, v{QB+j}, s[{sLO32}:{sLO32+1}]')
        pk = {'B0g3': (104, A0+12), 'B1g0': (106, A1), 'B1g1': (108, A1+4), 'B1g2': (110, A1+8), 'B1g3': (112, A1+12)}
        for n, (d, s_) in pk.items():
            a(f'v_cvt_pk_bf16_f32 v{d}, v{s_}, v{s_+1}')
            a(f'v_cvt_pk_bf16_f32 v{d+1}, v{s_+2}, v{s_+3}')
        self.img_addr_regs()
        self.write_img({n: d for n, (d, _) in pk.items()})
        a('s_waitcnt lgkmcnt(0)')
        a('s_barrier')

    def linear_attn(self):
        a = self.a
        QA, QB = self.QA, self.QB
        E = a.newlabel('LA_W0END')
        a(f's_cmp_lg_u32 s{sW}, 0')
        a(f's_cbranch_scc1 {E}')
        a('v_lshrrev_b32 v11, 5, v1')
        a('v_bfe_u32 v12, v1, 2, 2')
        a('v_lshlrev_b32 v13, 2, v11')
        a('v_add_u32 v12, v12, v13')
        a('v_add_u32 v12, 256, v12')
        a('v_mul_u32_u24 v12, 48, v12')
        a('v_and_b32 v13, 3, v1')
        a('v_bfe_u32 v17, v1, 4, 1')
        a('v_min_u32 v15, 1, v13')
        a('v_lshlrev_b32 v15, 3, v15')
        a('v_add_u32 v15, 32, v15')
        a('v_lshlrev_b32 v14, 3, v13')
        a('v_and_b32 v16, 1, v13')
        a('v_lshlrev_b32 v16, 4, v16')
        a('v_lshrrev_b32 v18, 1, v13')
        a('v_lshlrev_b32 v18, 3, v18')
        a('v_add_u32 v16, v16, v18')
        a('v_cmp_eq_u32 vcc, 1, v17')
        a('v_cndmask_b32 v14, v14, v15, vcc')
        a('v_cndmask_b32 v16, v16, v15, vcc')
        a('v_add_u32 v104, v12, v16')
        a('v_add_u32 v105, v12, v14')
        a(f'v_add_u32 v105, {VIMG}, v105')
        D = 32
        def rd(s2):
            s = 64 + 8 * (s2 % 2)
            a(f'ds_read_b64_tr_b16 v[{s}:{s+1}], v104 offset:{s2*768}')
            a(f'ds_read_b64_tr_b16 v[{s+2}:{s+3}], v104 offset:{s2*768+384}')
            a(f'ds_read_b64_tr_b16 v[{s+4}:{s+5}], v105 offset:{s2*768}')
            a(f'ds_read_b64_tr_b16 v[{s+6}:{s+7}], v105 offset:{s2*768+384}')
        rd(0)
        for s2 in range(16):
            if s2 + 1 < 16: rd(s2 + 1); a('s_waitcnt lgkmcnt(4)')
            else: a('s_waitcnt lgkmcnt(0)')
            s = 64 + 8 * (s2 % 2)
            c = '0' if s2 == 0 else f'v[{D}:{D+15}]'
            a(f'v_mfma_f32_32x32x16_bf16 v[{D}:{D+15}], v[{s}:{s+3}], v[{s+4}:{s+7}], {c}')
        a(f's_lshr_b32 s50, s{sLAYER}, 1')
        a(f's_mul_i32 s50, s50, {KVP_SZ}')
        a(f's_add_u32 s50, s50, {WS_KVP}')
        a(f's_lshl_b32 s51, s{sH}, 15')
        a('s_add_u32 s50, s50, s51')
        a(f's_lshl_b32 s51, s{sJ}, 12')
        a('s_add_u32 s51, s51, s50')
        for n in range(3):
            a(f'buffer_store_dwordx4 v[{D+4*n}:{D+4*n+3}], v2, {srd(S_WS)}, s51 offen offset:{n*1024} sc1')
        a('s_waitcnt vmcnt(0)')
        self.xflag_addr('s52', 's2')
        a(f's_add_u32 s53, s{sLAYER}, 1')
        a('v_mov_b32 v11, s53')
        a('v_mov_b32 v12, 0')
        a('s_mov_b64 exec, 1')
        a(f'buffer_store_dword v11, v12, {srd(S_WS)}, s52 offen sc1')
        a('s_mov_b64 exec, -1')
        a(f's_lshl_b32 s54, s{sH}, 3')
        self.xflag_addr('s52', 's54')
        a('v_and_b32 v11, 7, v1')
        a('v_lshlrev_b32 v11, 6, v11')
        self.poll('v11', 's52', 8, 's53')
        for j in range(8):
            for n in range(3):
                r = 112 + 12 * j + 4 * n
                a(f'buffer_load_dwordx4 v[{r}:{r+3}], v2, {srd(S_WS)}, s50 offen offset:{n*1024} sc1')
            a('s_add_u32 s50, s50, 4096')
        a('s_waitcnt vmcnt(0)')
        for j in range(1, 8):
            for r in range(12): a(f'v_add_f32 v{112+r}, v{112+r}, v{112+12*j+r}')
        for j in range(6): a(f'v_cvt_pk_bf16_f32 v{64+j}, v{112+2*j}, v{113+2*j}')
        a(f'v_add_u32 v12, {L_MISC}, v2')
        a('ds_write_b128 v12, v[64:67]')
        a('v_lshlrev_b32 v13, 3, v1')
        a(f'v_add_u32 v13, {L_MISC+1024}, v13')
        a('ds_write_b64 v13, v[68:69]')
        a.label(E)
        a('s_waitcnt lgkmcnt(0)')
        a('s_barrier')
        a(f'v_add_u32 v12, {L_MISC}, v2')
        a('v_lshlrev_b32 v13, 3, v1')
        a(f'v_add_u32 v13, {L_MISC+1024}, v13')
        a('ds_read_b128 v[64:67], v12')
        a('ds_read_b64 v[68:69], v13')
        a('v_mov_b32 v70, 0\nv_mov_b32 v71, 0')
        a('s_waitcnt lgkmcnt(0)')
        a(f'v_mfma_f32_32x32x16_bf16 v[16:31], v[64:67], v[{QA}:{QA+3}], 0')
        a(f'v_mfma_f32_32x32x16_bf16 v[16:31], v[68:71], v[{QB}:{QB+3}], v[16:31]')

    def finalize_o(self, eps):
        a = self.a
        a(f'v_cndmask_b32 v10, v24, v28, s[{sLO32}:{sLO32+1}]')
        if eps: a('v_add_f32 v10, 0x358637bd, v10')
        a('v_rcp_f32 v10, v10')
        for r in range(12): a(f'v_mul_f32 v{16+r}, v10, v{16+r}')
        for j in range(6): a(f'v_cvt_pk_bf16_f32 v{32+j}, v{16+2*j}, v{17+2*j}')
        a(f's_lshl_b32 s50, s{sJ}, 4')
        a(f's_lshl_b32 s51, s{sRB}, 1')
        a('s_add_u32 s50, s50, s51')
        a('s_mul_i32 s50, s50, 20480')
        a(f's_add_u32 s50, s50, s{sOF}')
        a('v_bfe_u32 v11, v1, 4, 1')
        a('v_mul_u32_u24 v11, 20480, v11')
        a('v_and_b32 v12, 15, v1')
        a('v_lshlrev_b32 v12, 4, v12')
        a('v_add_u32 v11, v11, v12')
        a('v_lshrrev_b32 v12, 5, v1')
        a(f's_mul_i32 s51, s{sH}, 5')
        a('v_add_u32 v12, s51, v12')
        def qoff(dst, q):
            a(f'v_lshrrev_b32 v14, 3, {q}')
            a(f'v_lshlrev_b32 {dst}, 10, v14')
            a(f'v_bfe_u32 v14, {q}, 2, 1')
            a('v_lshlrev_b32 v14, 9, v14')
            a(f'v_add_u32 {dst}, {dst}, v14')
            a(f'v_and_b32 v14, 1, {q}')
            a('v_lshlrev_b32 v14, 8, v14')
            a(f'v_add_u32 {dst}, {dst}, v14')
            a(f'v_bfe_u32 v14, {q}, 1, 1')
            a('v_lshlrev_b32 v14, 3, v14')
            a(f'v_add_u32 {dst}, {dst}, v14')
            a(f'v_add_u32 {dst}, {dst}, v11')
        qoff('v40', 'v12')
        a('v_add_u32 v13, 2, v12')
        qoff('v41', 'v13')
        a('s_add_u32 s51, s51, 4')
        a('v_mov_b32 v13, s51')
        qoff('v42', 'v13')
        a(f'buffer_store_dwordx2 v[32:33], v40, {srd(S_WS)}, s50 offen')
        a(f'buffer_store_dwordx2 v[34:35], v41, {srd(S_WS)}, s50 offen')
        a('s_mov_b64 exec, 0xffffffff')
        a(f'buffer_store_dwordx2 v[36:37], v42, {srd(S_WS)}, s50 offen')
        a('s_mov_b64 exec, -1')
        a('s_waitcnt vmcnt(0)')

    def wo_phase(self):
        a = self.a
        OFR = 16
        WF = 96
        AC = 136
        XO = 176
        HELP = a.newlabel('WO_HELP'); J1 = a.newlabel('WO_J1')
        a(f's_cmp_ge_u32 s{sW}, 4')
        a(f's_cbranch_scc1 {HELP}')
        a(f's_lshr_b32 s50, s{sH}, 3')
        a(f's_and_b32 s51, s{sH}, 7')
        a(f's_and_b32 s52, s{sW}, 1')
        a(f's_lshr_b32 s53, s{sW}, 1')
        a(f's_lshl_b32 s54, s{sJ}, 4')
        a('s_lshl_b32 s55, s50, 2')
        a('s_add_u32 s54, s54, s55')
        a('s_lshl_b32 s55, s52, 1')
        a('s_add_u32 s54, s54, s55')
        a('s_mul_i32 s55, s54, 20480')
        a('s_mul_i32 s56, s53, 10240')
        a('s_add_u32 s55, s55, s56')
        a(f's_add_u32 s55, s55, s{sOF}')
        a('s_add_u32 s56, s55, 20480')
        for i in range(10):
            for aa in range(2):
                r = OFR + 8 * i + 4 * aa
                sb = 's55' if aa == 0 else 's56'
                a(f'buffer_load_dwordx4 v[{r}:{r+3}], v2, {srd(S_WS)}, {sb} offen offset:{(i % 4) * 1024}')
            if i % 4 == 3:
                a('s_add_u32 s55, s55, 4096\ns_add_u32 s56, s56, 4096')
        a('s_add_u32 s57, s54, s53')
        a('s_lshr_b32 s58, s57, 1')
        a('s_mul_i32 s58, s58, 40960')
        a('s_mul_i32 s59, s51, 5120')
        a('s_add_u32 s58, s58, s59')
        a('s_and_b32 s59, s57, 1')
        a('s_lshl_b32 s59, s59, 8')
        a('s_add_u32 s58, s58, s59')
        a(f's_add_u32 s59, s58, s{sXF}')
        a('v_lshrrev_b32 v10, 5, v1')
        a('v_lshlrev_b32 v10, 9, v10')
        a('v_and_b32 v11, 15, v1')
        a('v_lshlrev_b32 v11, 4, v11')
        a('v_add_u32 v10, v10, v11')
        a('v_bfe_u32 v11, v1, 4, 1')
        a('v_lshlrev_b32 v11, 3, v11')
        a('v_add_u32 v10, v10, v11')
        for c in range(5):
            if c == 4:
                a('s_add_u32 s59, s59, 4096')
            a(f'buffer_load_dwordx2 v[{XO+2*c}:{XO+2*c+1}], v10, {srd(S_WS)}, s59 offen offset:{(c % 4) * 1024}')
        a('v_bfe_u32 v11, v1, 5, 1')
        a('v_lshlrev_b32 v11, 4, v11')
        a('v_bfe_u32 v12, v1, 4, 1')
        a('v_lshlrev_b32 v12, 2, v12')
        a('v_add_u32 v11, v11, v12')
        a('v_bfe_u32 v12, v1, 2, 2')
        a('v_add_u32 v11, v11, v12')
        a('v_mul_u32_u24 v11, 160, v11')
        a('v_and_b32 v12, 3, v1')
        a('v_lshlrev_b32 v12, 3, v12')
        a('v_add_u32 v11, v11, v12')
        a('s_mul_i32 s60, s53, 51200')
        a(f's_add_u32 s60, s60, {R_O}')
        a('v_add_u32 v11, s60, v11')
        def wrd(i):
            s = WF + 20 * (i % 2)
            for c in range(5):
                for sx in range(2):
                    a(f'ds_read_b64_tr_b16 v[{s+4*c+2*sx}:{s+4*c+2*sx+1}], v11 offset:{i*5120 + sx*1280 + c*32}')
        wrd(0)
        for i in range(10):
            if i + 1 < 10: wrd(i + 1); a('s_waitcnt lgkmcnt(10)')
            else: a('s_waitcnt lgkmcnt(0)')
            a(f's_waitcnt vmcnt({5 + 2 * (9 - i)})')
            s = WF + 20 * (i % 2)
            for aa in range(2):
                for c in range(5):
                    d = AC + 20 * aa + 4 * c; o = OFR + 8 * i + 4 * aa
                    cc = '0' if i == 0 else f'v[{d}:{d+3}]'
                    a(f'v_mfma_f32_16x16x32_bf16 v[{d}:{d+3}], v[{s+4*c}:{s+4*c+3}], v[{o}:{o+3}], {cc}')
        a(f's_mul_i32 s60, s{sW}, 5120')
        a(f's_add_u32 s60, s60, {SCR}')
        a('v_add_u32 v12, s60, v2')
        K1 = a.newlabel('WO_KH1'); K2 = a.newlabel('WO_KH2')
        a('s_cmp_eq_u32 s53, 0')
        a(f's_cbranch_scc0 {K1}')
        for c in range(5): a(f'ds_write_b128 v12, v[{AC+20+4*c}:{AC+20+4*c+3}] offset:{c*1024}')
        a(f's_branch {K2}')
        a.label(K1)
        for c in range(5): a(f'ds_write_b128 v12, v[{AC+4*c}:{AC+4*c+3}] offset:{c*1024}')
        for r in range(20): a(f'v_mov_b32 v{AC+r}, v{AC+20+r}')
        a.label(K2)
        a('s_waitcnt lgkmcnt(0)')
        a.label(HELP)
        a('s_barrier')
        H2 = a.newlabel('WO_H2'); H3 = a.newlabel('WO_H3')
        a(f's_cmp_ge_u32 s{sW}, 4')
        a(f's_cbranch_scc1 {H2}')
        a(f's_xor_b32 s60, s{sW}, 2')
        a('s_mul_i32 s60, s60, 5120')
        a(f's_add_u32 s60, s60, {SCR}')
        a('v_add_u32 v12, s60, v2')
        for c in range(5): a(f'ds_read_b128 v[{16+4*c}:{19+4*c}], v12 offset:{c*1024}')
        a('s_waitcnt lgkmcnt(0) vmcnt(0)')
        a('v_mov_b32 v40, 0\nv_mov_b32 v41, 0')
        for c in range(5):
            for r in range(4): a(f'v_add_f32 v{AC+4*c+r}, v{AC+4*c+r}, v{16+4*c+r}')
            x0, x1 = XO + 2 * c, XO + 2 * c + 1
            a(f'v_lshlrev_b32 v42, 16, v{x0}\nv_and_b32 v43, 0xffff0000, v{x0}\nv_lshlrev_b32 v44, 16, v{x1}\nv_and_b32 v45, 0xffff0000, v{x1}')
            for r in range(4):
                a(f'v_add_f32 v{AC+4*c+r}, v{AC+4*c+r}, v{42+r}')
                a(f'v_add_f32 v40, v40, v{AC+4*c+r}')
                a(f'v_fmac_f32 v41, v{AC+4*c+r}, v{AC+4*c+r}')
            a(f'v_cvt_pk_bf16_f32 v{48+2*c}, v{AC+4*c}, v{AC+4*c+1}')
            a(f'v_cvt_pk_bf16_f32 v{49+2*c}, v{AC+4*c+2}, v{AC+4*c+3}')
        LAST = a.newlabel('WO_LAST')
        a(f's_cmp_eq_u32 s{sLAYER}, 3')
        a(f's_cbranch_scc1 {LAST}')
        a(f's_add_u32 s59, s58, s{sXF}')
        a(f's_add_u32 s59, s59, {XF_SZ}')
        for c in range(5):
            if c == 4: a('s_add_u32 s59, s59, 4096')
            a(f'buffer_store_dwordx2 v[{48+2*c}:{49+2*c}], v10, {srd(S_WS)}, s59 offen offset:{(c % 4) * 1024}')
        for reg in (40, 41):
            a(f'v_mov_b32 v42, v{reg}')
            a(f'v_permlane16_swap_b32 v{reg}, v42')
            a(f'v_add_f32 v{reg}, v{reg}, v42')
            a(f'v_mov_b32 v42, v{reg}')
            a(f'v_permlane32_swap_b32 v{reg}, v42')
            a(f'v_add_f32 v{reg}, v{reg}, v42')
        a('s_lshl_b32 s60, s57, 10')
        a('s_lshl_b32 s61, s51, 3')
        a('s_add_u32 s60, s60, s61')
        a(f's_add_u32 s60, s60, s{sST}')
        a(f's_add_u32 s60, s60, {ST_SZ}')
        a('v_lshlrev_b32 v42, 6, v1')
        a('s_mov_b64 exec, 0xffff')
        a(f'buffer_store_dwordx2 v[40:41], v42, {srd(S_WS)}, s60 offen')
        a('s_mov_b64 exec, -1')
        a(f's_branch {H3}')
        a.label(LAST)
        a('s_mul_i32 s60, s57, 20480')
        a('s_mul_i32 s61, s51, 160')
        a('s_add_u32 s60, s60, s61')
        a('v_and_b32 v42, 15, v1')
        a('v_mul_u32_u24 v42, 1280, v42')
        a('v_lshrrev_b32 v43, 4, v1')
        a('v_lshlrev_b32 v43, 3, v43')
        a('v_add_u32 v42, v42, v43')
        for c in range(5):
            a(f'buffer_store_dwordx2 v[{48+2*c}:{49+2*c}], v42, {srd(S_OUT)}, s60 offen offset:{c*32}')
        a(f's_branch {H3}')
        a.label(H2)
        self.next_w_dma(early=True)
        a.label(H3)
        a('s_waitcnt vmcnt(0)') if False else None

    def next_w_dma(self, early):
        a = self.a
        E = a.newlabel('NW_E'); LB = a.newlabel('NW_B')
        a(f's_cmp_eq_u32 s{sLAYER}, 3')
        a(f's_cbranch_scc1 {E}')
        asg = {4: [('k', range(10))], 6: [('v', range(10))]} if early else {5: [('q', range(10))]}
        a(f's_bitcmp1_b32 s{sLAYER}, 0')
        a(f's_cbranch_scc0 {LB}')
        self.dma_wqkv_waves(S_WQA, asg)
        a(f's_branch {E}')
        a.label(LB)
        self.dma_wqkv_waves(S_WQB, asg)
        a.label(E)

    def set_layer_bases(self):
        a = self.a
        a(f's_mul_i32 s50, s{sLAYER}, {XF_SZ}')
        a(f's_add_u32 s{sXF}, s50, {WS_XF}')
        a(f's_add_u32 s{sOF}, s50, {WS_OF}')
        a(f's_mul_i32 s50, s{sLAYER}, {ST_SZ}')
        a(f's_add_u32 s{sST}, s50, {WS_ST}')

    def build(self):
        a = self.a
        args = self.args
        self.entry()
        self.p0()
        self.lbar(first=True)
        a.label('L_LAYER')
        self.set_layer_bases()
        self.qkv_main()
        if args.stop == 'qkv':
            SK = a.newlabel('DBG')
            a(f's_cmp_lg_u32 s{sLAYER}, {args.layer}')
            a(f's_cbranch_scc1 {SK}')
            for r in range(16, 48): a(f'v_mul_f32 v{r}, v101, v{r}')
            self.dbg_dump(list(range(16, 48, 4)), 0)
            a('s_branch L_END')
            a.label(SK)
        a(f's_bitcmp1_b32 s{sLAYER}, 0')
        a('s_cbranch_scc1 L_BLAYER')
        self.epi_A()
        self.wo_dma_layer()
        self.linear_attn()
        self.finalize_o(eps=True)
        a('s_branch L_ODONE')
        a.label('L_BLAYER')
        self.epi_B()
        self.wo_dma_layer()
        self.halo_exchange()
        a('s_barrier')
        self.attn_true()
        self.finalize_o(eps=False)
        a.label('L_ODONE')
        self.lbar()
        if args.stop == 'o':
            a(f's_cmp_eq_u32 s{sLAYER}, {args.layer}')
            a('s_cbranch_scc1 L_END')
        self.wo_phase()
        a(f's_cmp_eq_u32 s{sLAYER}, 3')
        a('s_cbranch_scc1 L_FIN')
        WS_ = a.newlabel('WAITST')
        a(f's_cmp_ge_u32 s{sW}, 4')
        a(f's_cbranch_scc1 {WS_}')
        a('s_waitcnt vmcnt(0)')
        a.label(WS_)
        def between():
            self.next_w_dma(early=False)
            self.zero_cs()
            a('s_waitcnt lgkmcnt(0)')
        self.lbar(between=between)
        if args.stop == 'x':
            a(f's_cmp_eq_u32 s{sLAYER}, {args.layer}')
            a('s_cbranch_scc1 L_END')
        a(f's_add_u32 s{sLAYER}, s{sLAYER}, 1')
        a('s_branch L_LAYER')
        a.label('L_FIN')
        a('s_waitcnt vmcnt(0)')
        a('L_END:')
        a('s_endpgm')
        body = a.finalize(verbose=True)
        hdr = open("header.txt").read() + f"""; generated by my generator script gen/gen.py (hand-designed persistent kernel)
; @launch grid=(256,1,1) block=(512,1,1) lds={LDS_BYTES}
.amdgcn_target "amdgcn-amd-amdhsa--gfx950"
.text
.globl {KNAME}
.p2align 8
.type {KNAME},@function
{KNAME}:
"""
        ftr = f""".section .rodata,"a"
.p2align 6
.amdhsa_kernel {KNAME}
  .amdhsa_next_free_vgpr 256
  .amdhsa_next_free_sgpr 102
  .amdhsa_accum_offset 256
  .amdhsa_group_segment_fixed_size 0
  .amdhsa_kernarg_size 72
  .amdhsa_user_sgpr_count 2
  .amdhsa_user_sgpr_kernarg_segment_ptr 1
  .amdhsa_system_sgpr_workgroup_id_x 1
  .amdhsa_float_denorm_mode_32 3
  .amdhsa_float_denorm_mode_16_64 3
.end_amdhsa_kernel
"""
        return hdr + body + ftr

if __name__ == '__main__':
    ap = argparse.ArgumentParser()
    ap.add_argument('-o', default='out.s')
    ap.add_argument('--stop', default='')
    ap.add_argument('--layer', type=int, default=0)
    ap.add_argument('--spin', type=int, default=20000)
    ap.add_argument('--force_generic', action='store_true')
    args = ap.parse_args()
    g = G(args)
    open(args.o, 'w').write(g.build())
```

```python
import sys, argparse
sys.path.insert(0, 'gen')
from asmlib import Asm

KNAME = "interleave_layers__linear_attn_block__sliding_block__prompt_kernel"

WS_LFLAG = 0x0000
WS_XFLAG = 0x4000
WS_XF = 0x100000;  XF_SZ = 0x280000
WS_OF = 0x1000000
WS_ST = 0x2000000; ST_SZ = 0x20000
WS_KVX = 0x2200000; KVX_SZ = 0x600000
WS_KVP = 0x3000000; KVP_SZ = 0x100000
WS_PW = 0x4000000; PW_SZ = 81920
WS_PCS = 0x4800000
WS_PO = 0x4900000; PO_SZ = 102400
WS_DBG = 0x8000000

KIMG, VIMG = 0, 24576
L_MISC = 49152
L_CS = L_MISC + 1024
L_KN = L_MISC + 2048
L_KV = L_MISC + 4096
L_MODE = 61424
R_O = 61440
PWL = 81920
RW0 = 71424
WK, WQ, WV = RW0, RW0 + 30768, RW0 + 61536
TK, TQ, TV = 0, 4096, 8192
SCR = 0
TO = 12288
L_SIG = L_MISC + 3072
LDS_BYTES = 163840

S_WS, S_X0, S_WQA, S_WOA, S_WQB, S_WOB, S_OUT, S_DBG = 4, 8, 12, 16, 20, 24, 28, 32
sJ, sH, sW, sMODE, sDEAD, sEPOCH, sLAYER, sRB = 36, 37, 38, 39, 40, 41, 42, 43
sLO32 = 44
sXF, sOF, sST = 46, 47, 48
sXCC = 49
sXFN, sSTN = 90, 91
LO = f's[{sLO32}:{sLO32+1}]'

def srd(n): return f's[{n}:{n+3}]'

QUADS = {
    0: [(('q', 0), ('q', 1)), (('q', 2), ('q', 3)), (('q', 4), ('q', 5)), (('k', 4), ('k', 3))],
    1: [(('k', 0), ('k', 1)), (('v', 0), ('v', 1)), (('v', 2), ('v', 3)), (('k', 2), ('v', 4))],
}
def quad_off(sec, i, bases):
    bk, bq, bv = bases
    if sec == 'k': return bk + (i + 1) * 8
    if sec == 'q': return bq + i * 8
    return bv + i * 8

vCSA, vCSB = 188, 190
def stash_reg(mat, i):
    if mat == 0: return 192 + 4 * i
    return 144 + 4 * i if i < 4 else 232 + 4 * (i - 4)

MF32 = 'v_mfma_f32_32x32x16_bf16'
MF16 = 'v_mfma_f32_16x16x32_bf16'

class VQ:
    def __init__(self): self.q = []
    def push(self, tag): self.q.append(tag)
    def cnt(self, tag):
        i = max(k for k, t in enumerate(self.q) if t == tag)
        return min(63, len(self.q) - 1 - i)

class G:
    def __init__(self, args):
        self.a = Asm(); self.args = args

    def stamp(self, idx, per_layer=False):
        if not self.args.prof: return
        a = self.a
        a('s_memtime s[82:83]' if self.args.cyc else 's_memrealtime s[82:83]')
        a('s_waitcnt lgkmcnt(0)')
        if per_layer:
            a(f's_mul_i32 s84, s{sLAYER}, 12')
            a(f's_add_u32 s84, s84, {idx}')
            a('s_mov_b32 m0, s84')
            a('s_nop 1')
            a('v_writelane_b32 v9, s82, m0')
        else:
            a(f'v_writelane_b32 v9, s82, {idx}')
    def fstamp(self, idx):
        if not self.args.prof: return
        a = self.a
        SK = a.newlabel('FST')
        a(f's_cmp_lg_u32 s{sLAYER}, {self.args.flayer}')
        a(f's_cbranch_scc1 {SK}')
        self.stamp(idx)
        a.label(SK)
    def stamp_out(self):
        if not self.args.prof: return
        a = self.a
        a('s_lshl_b32 s50, s2, 3')
        a(f's_add_u32 s50, s50, s{sW}')
        a('s_lshl_b32 s50, s50, 8')
        a(f's_add_u32 s50, s50, {WS_DBG + 0x400000}')
        a('v_lshlrev_b32 v10, 2, v1')
        a(f'buffer_store_dword v9, v10, {srd(S_WS)}, s50 offen')
        a('s_waitcnt vmcnt(0)')
    def dbg_dump(self, regs, slot):
        a = self.a
        n = len(regs)
        a(f's_mul_i32 s50, s2, {8*n*1024}')
        a(f's_mul_i32 s51, s{sW}, {n*1024}')
        a('s_add_u32 s50, s50, s51')
        a(f's_add_u32 s50, s50, {WS_DBG + slot}')
        for i, r in enumerate(regs):
            a(f'buffer_store_dwordx4 v[{r}:{r+3}], v2, {srd(S_WS)}, s50 offen')
            a('s_add_u32 s50, s50, 1024')
        a('s_waitcnt vmcnt(0)')

    def if_wave(self, cond, val):
        a = self.a
        L = a.newlabel('W')
        inv = {'eq': 's_cmp_lg_u32', 'lt': 's_cmp_ge_u32', 'ge': 's_cmp_lt_u32'}[cond]
        a(f'{inv} s{sW}, {val}')
        a(f's_cbranch_scc1 {L}')
        return L

    def tr_bases(self, d0, d1, bases, tmp=10):
        a = self.a
        t, u, w = f'v{tmp}', f'v{tmp+1}', f'v{tmp+2}'
        a(f'v_bfe_u32 {t}, v1, 4, 1')
        a(f'v_lshlrev_b32 {t}, 2, {t}')
        a(f'v_and_b32 {u}, 3, v1')
        a(f'v_add_u32 {t}, {t}, {u}')
        for B, d in ((0, d0), (1, d1)):
            offs = [quad_off(*QUADS[B][x >> 1][x & 1], bases) for x in range(8)]
            a(f'v_mov_b32 v{d}, {offs[0]}')
            for x in range(1, 8):
                a(f'v_cmp_eq_u32 vcc, {x}, {t}')
                a(f'v_mov_b32 {w}, {offs[x]}')
                a(f'v_cndmask_b32 v{d}, v{d}, {w}, vcc')
        a(f'v_bfe_u32 {u}, v1, 2, 2')
        a(f'v_mul_u32_u24 {u}, 192, {u}')
        a(f'v_lshrrev_b32 {w}, 5, v1')
        a(f'v_mul_u32_u24 {w}, 96, {w}')
        a(f'v_add_u32 {u}, {u}, {w}')
        a(f'v_add_u32 v{d0}, v{d0}, {u}')
        a(f'v_add_u32 v{d1}, v{d1}, {u}')

    def raw_patterns(self):
        a = self.a
        a(f's_mul_i32 s50, s{sH}, 40')
        for u in range(3):
            d = f'v{4+u}'
            a(f'v_add_u32 v10, {64*u}, v1')
            a('v_mul_u32_u24 v11, 21846, v10')
            a('v_lshrrev_b32 v11, 16, v11')
            a('v_mul_u32_u24 v12, 3, v11')
            a('v_sub_u32 v12, v10, v12')
            a('v_lshlrev_b32 v12, 4, v12')
            a('v_and_b32 v13, 0x30, v11')
            a('v_and_b32 v14, 3, v11')
            a('v_lshlrev_b32 v14, 2, v14')
            a('v_add_u32 v13, v13, v14')
            a('v_bfe_u32 v14, v11, 2, 2')
            a('v_add_u32 v13, v13, v14')
            a('v_mul_u32_u24 v13, 3840, v13')
            a('v_add_u32 v13, v13, v12')
            a(f'v_add_u32 {d}, s50, v13')

    def entry(self):
        a = self.a
        a('s_cmp_ge_u32 s2, 256')
        a('s_cbranch_scc1 L_END')
        a('s_load_dwordx16 s[64:79], s[0:1], 0')
        a('s_load_dwordx2 s[80:81], s[0:1], 64')
        a(f's_getreg_b32 s{sXCC}, hwreg(HW_REG_XCC_ID, 0, 4)')
        a(f's_and_b32 s{sJ}, s2, 7')
        a(f's_lshr_b32 s{sH}, s2, 3')
        a('v_lshrrev_b32 v3, 6, v0')
        a('v_and_b32 v1, 63, v0')
        a(f'v_readfirstlane_b32 s{sW}, v3')
        a('v_lshlrev_b32 v2, 4, v1')
        a(f's_mov_b32 s{sLO32}, -1')
        a(f's_mov_b32 s{sLO32+1}, 0')
        a(f's_mov_b32 s{sMODE}, 0')
        a(f's_mov_b32 s{sDEAD}, 0')
        a(f's_mov_b32 s{sEPOCH}, 0')
        a(f's_mov_b32 s{sLAYER}, 0')
        a(f's_sub_u32 s50, 7, s{sW}')
        a(f's_sub_u32 s51, s{sW}, 4')
        a(f's_cmp_lt_u32 s{sW}, 4')
        a(f's_cselect_b32 s{sRB}, s50, s51')
        a('s_waitcnt lgkmcnt(0)')
        def mk(dst, src, size):
            a(f's_mov_b32 s{dst}, s{src}')
            a(f's_and_b32 s{dst+1}, s{src+1}, 0xffff')
            a(f's_mov_b32 s{dst+2}, {size}')
            a(f's_mov_b32 s{dst+3}, 0x20000')
        mk(S_X0, 64, 2621440)
        mk(S_WS, 80, 0x10000000)
        self.p0_xloads()
        self.raw_patterns()
        mk(S_WQA, 66, 2457600); mk(S_WOA, 68, 819200)
        mk(S_WQB, 72, 2457600); mk(S_WOB, 74, 819200); mk(S_OUT, 76, 2621440); mk(S_DBG, 78, 256)

    def init_flags(self):
        a = self.a
        a('v_mov_b32 v10, 0')
        a(f's_lshl_b32 s50, s{sJ}, 8')
        a(f's_lshl_b32 s51, s{sH}, 2')
        a('s_add_u32 s50, s50, s51')
        a(f's_add_u32 s50, s50, {WS_LFLAG}')
        a('s_lshl_b32 s51, s2, 6')
        a(f's_add_u32 s51, s51, {WS_XFLAG}')
        a('v_lshlrev_b32 v11, 2, v1')
        a('s_mov_b64 exec, 0xffff')
        a(f'buffer_store_dword v10, v11, {srd(S_WS)}, s51 offen sc1')
        a('s_mov_b64 exec, 1')
        a(f'buffer_store_dword v10, v11, {srd(S_WS)}, s50 offen sc1')
        a('s_waitcnt vmcnt(0)')
        a(f's_or_b32 s50, s{sXCC}, 0x80')
        a('v_mov_b32 v10, s50')
        a('v_mov_b32 v11, s2')
        a(f'buffer_store_byte v10, v11, {srd(S_DBG)}, 0 offen sc1')
        a('s_mov_b64 exec, -1')

    def dma_raw(self, srdW, items):
        a = self.a
        base = {'k': WK, 'q': WQ, 'v': WV}
        soff = {'k': 1280 - 8, 'q': 0, 'v': 2560}
        for sec, Gi in items:
            for u in range(3):
                a(f's_mov_b32 m0, {base[sec] + (Gi*3 + u)*1024}')
                a(f's_mov_b32 s50, {Gi*64*3840 + soff[sec]}')
                a(f'buffer_load_dwordx4 v{4+u}, {srd(srdW)}, s50 offen lds')

    def dma_packed(self, nw, w0):
        a = self.a
        per = 80 // nw
        a(f's_add_u32 s50, s{sLAYER}, 1')
        a('s_and_b32 s50, s50, 1')
        a('s_lshl_b32 s50, s50, 5')
        a(f's_add_u32 s50, s50, s{sH}')
        a(f's_mul_i32 s50, s50, {PW_SZ}')
        a(f's_sub_u32 s51, s{sW}, {w0}')
        a(f's_mul_i32 s51, s51, {per*1024}')
        a('s_add_u32 s50, s50, s51')
        a(f's_add_u32 s50, s50, {WS_PW}')
        a(f's_add_u32 s51, s51, {PWL}')
        for i in range(per):
            a(f's_add_u32 m0, s51, {i*1024}')
            if i % 4 == 0 and i > 0: a('s_add_u32 s50, s50, 4096')
            a(f'buffer_load_dwordx4 v2, {srd(S_WS)}, s50 offen sc1 lds') if i % 4 == 0 else None
            if i % 4 != 0:
                a(f's_add_u32 s52, s50, {(i%4)*1024}')
                a(f'buffer_load_dwordx4 v2, {srd(S_WS)}, s52 offen sc1 lds')

    def dma_wo(self, mat, w0):
        a = self.a
        a(f's_and_b32 s50, s{sH}, 7')
        a(f's_add_u32 s50, s50, {mat*8}')
        a(f's_mul_i32 s50, s50, {PO_SZ}')
        a(f's_sub_u32 s51, s{sW}, {w0}')
        a('s_mul_i32 s51, s51, 25600')
        a('s_add_u32 s50, s50, s51')
        a(f's_add_u32 s50, s50, {WS_PO}')
        a(f's_add_u32 s51, s51, {R_O}')
        for i in range(25):
            a(f's_add_u32 m0, s51, {i*1024}')
            a(f's_add_u32 s52, s50, {i*1024}')
            a(f'buffer_load_dwordx4 v2, {srd(S_WS)}, s52 offen sc1 lds')

    def touch_w(self, w0, nw):
        a = self.a
        E = a.newlabel('TW_E')
        a(f's_cmp_eq_u32 s{sLAYER}, 3')
        a(f's_cbranch_scc1 {E}')
        a(f's_add_u32 s50, s{sLAYER}, 1')
        a('s_and_b32 s50, s50, 1')
        a('s_lshl_b32 s50, s50, 5')
        a(f's_add_u32 s50, s50, s{sH}')
        a(f's_mul_i32 s50, s50, {PW_SZ}')
        a(f's_add_u32 s50, s50, {WS_PW}')
        a('v_lshlrev_b32 v11, 7, v1')
        per = -(-10 // nw)
        for t in range(per):
            SK = a.newlabel('TW_SK')
            a(f's_sub_u32 s51, s{sW}, {w0}')
            a(f's_add_u32 s51, s51, {t*nw}')
            a('s_cmp_ge_u32 s51, 10')
            a(f's_cbranch_scc1 {SK}')
            a(f's_add_u32 s51, s51, s{sJ}')
            a('s_cmp_ge_u32 s51, 10')
            a('s_cselect_b32 s52, 10, 0')
            a('s_sub_u32 s51, s51, s52')
            a('s_lshl_b32 s51, s51, 13')
            a('s_add_u32 s51, s51, s50')
            a(f'buffer_load_dword v{250+t}, v11, {srd(S_WS)}, s51 offen sc1')
            a.label(SK)
        a.label(E)

    def check_packs(self):
        a = self.a
        a(f's_lshl_b32 s54, s{sH}, 3')
        self.xflag_addr('s52', 's54')
        a('v_and_b32 v11, 7, v1')
        a('v_lshlrev_b32 v11, 6, v11')
        a('v_add_u32 v11, 16, v11')
        a('s_mov_b32 s53, 1')
        self.poll('v11', 's52', 8, 's53')
        for mat in range(2):
            a(f's_and_b32 s50, s{sH}, 7')
            a(f's_add_u32 s50, s50, {mat*8}')
            a('s_mul_i32 s53, s50, 20')
            a('v_min_u32 v11, 19, v1')
            a('v_add_u32 v11, s53, v11')
            a('v_and_b32 v11, 255, v11')
            a('v_lshlrev_b32 v11, 6, v11')
            a(f's_mov_b32 s52, {WS_XFLAG + 24}')
            a('s_mov_b32 s53, 1')
            self.poll('v11', 's52', 20, 's53')

    def lds_signal(self, val_s):
        a = self.a
        a(f'v_mov_b32 v11, {L_SIG}')
        a(f'v_mov_b32 v12, {val_s}')
        a('ds_write_b32 v11, v12')
    def lds_wait(self, val_s):
        a = self.a
        L = a.newlabel('LW'); D = a.newlabel('LWD')
        a(f'v_mov_b32 v11, {L_SIG}')
        a('s_mov_b32 s60, 0')
        a.label(L)
        a('ds_read_b32 v12, v11')
        a('s_waitcnt lgkmcnt(0)')
        a('v_readfirstlane_b32 s61, v12')
        a(f's_cmp_eq_u32 s61, {val_s}')
        a(f's_cbranch_scc1 {D}')
        a('s_sleep 1')
        a('s_add_u32 s60, s60, 1')
        a('s_cmp_lt_u32 s60, 0x100000')
        a(f's_cbranch_scc1 {L}')
        a.label(D)

    def poll(self, vaddr, soff, nlanes, target_s, tmp='v12'):
        a = self.a
        L = a.newlabel('POLL'); D = a.newlabel('POLLD')
        a(f's_cmp_lg_u32 s{sDEAD}, 0')
        a(f's_cbranch_scc1 {D}')
        a('s_mov_b32 s60, 0')
        mask = (1 << nlanes) - 1
        a.label(L)
        a(f'buffer_load_dword {tmp}, {vaddr}, {srd(S_WS)}, {soff} offen sc1')
        a('s_waitcnt vmcnt(0)')
        a(f'v_cmp_gt_u32 vcc, {target_s}, {tmp}')
        a(f's_and_b32 s61, vcc_lo, {hex(mask & 0xffffffff)}')
        a('s_cmp_eq_u32 s61, 0')
        a(f's_cbranch_scc1 {D}')
        a('s_add_u32 s60, s60, 1')
        a(f's_cmp_lt_u32 s60, {self.args.spin}')
        a(f's_cbranch_scc1 {L}')
        a(f's_mov_b32 s{sDEAD}, 1')
        a.label(D)

    def check_hello(self):
        a = self.a
        L = a.newlabel('HELLO'); D = a.newlabel('HELLOD')
        a('s_mov_b32 s60, 0')
        a('v_lshlrev_b32 v11, 2, v1')
        a.label(L)
        a(f'buffer_load_dword v12, v11, {srd(S_DBG)}, 0 offen sc1')
        a('s_waitcnt vmcnt(0)')
        a('v_and_b32 v13, 0x80808080, v12')
        a('v_cmp_ne_u32 vcc, 0x80808080, v13')
        a('s_cmp_eq_u64 vcc, 0')
        a(f's_cbranch_scc1 {D}')
        a('s_add_u32 s60, s60, 1')
        a(f's_cmp_lt_u32 s60, {self.args.spin}')
        a(f's_cbranch_scc1 {L}')
        a(f's_mov_b32 s{sDEAD}, 1')
        a.label(D)
        a(f's_and_b32 s50, s{sJ}, 3')
        a('s_lshl_b32 s50, s50, 3')
        a('v_lshrrev_b32 v13, s50, v12')
        a('v_and_b32 v13, 0xf, v13')
        a(f's_lshr_b32 s51, s{sJ}, 2')
        a('v_and_b32 v14, 1, v1')
        a(f'v_cmp_eq_u32 s[52:53], s51, v14')
        a(f'v_cmp_ne_u32 vcc, s{sXCC}, v13')
        a('s_and_b64 s[52:53], s[52:53], vcc')
        a('s_cmp_lg_u64 s[52:53], 0')
        a(f's_cselect_b32 s{sMODE}, 1, 0')
        if self.args.force_generic:
            a(f's_mov_b32 s{sMODE}, 1')

    def lbar(self, first=False, between=None, poller=0):
        a = self.a
        a('s_barrier')
        a(f's_add_u32 s{sEPOCH}, s{sEPOCH}, 1')
        W0 = a.newlabel('LB_NOT0'); E = a.newlabel('LB_END')
        a(f's_cmp_lg_u32 s{sW}, {poller}')
        a(f's_cbranch_scc1 {W0}')
        if first:
            self.stashA_make()
            self.check_hello()
        G1 = a.newlabel('LB_GEN'); G2 = a.newlabel('LB_ST')
        a(f's_lshl_b32 s50, s{sJ}, 8')
        a(f's_add_u32 s50, s50, {WS_LFLAG}')
        a(f's_lshl_b32 s51, s{sH}, 2')
        a('s_add_u32 s51, s51, s50')
        a(f'v_mov_b32 v10, s{sEPOCH}')
        a('v_mov_b32 v11, 0')
        a(f's_cmp_lg_u32 s{sMODE}, 0')
        a(f's_cbranch_scc1 {G1}')
        a('s_mov_b64 exec, 1')
        a(f'buffer_store_dword v10, v11, {srd(S_WS)}, s51 offen')
        a('s_mov_b64 exec, -1')
        a(f's_branch {G2}')
        a.label(G1)
        a('buffer_wbl2 sc1')
        a('s_waitcnt vmcnt(0)')
        a('s_mov_b64 exec, 1')
        a(f'buffer_store_dword v10, v11, {srd(S_WS)}, s51 offen sc1')
        a('s_mov_b64 exec, -1')
        a.label(G2)
        a('v_and_b32 v11, 31, v1')
        a('v_lshlrev_b32 v11, 2, v11')
        self.poll('v11', 's50', 32, f's{sEPOCH}')
        G3 = a.newlabel('LB_NOINV')
        a(f's_cmp_eq_u32 s{sMODE}, 0')
        a(f's_cbranch_scc1 {G3}')
        a('buffer_inv sc1')
        a('s_waitcnt vmcnt(0)')
        a.label(G3)
        if first:
            a(f'v_mov_b32 v10, s{sMODE}')
            a(f'v_mov_b32 v11, {L_MODE}')
            a('ds_write_b32 v11, v10')
            a('s_waitcnt lgkmcnt(0)')
        a(f's_branch {E}')
        a.label(W0)
        if between: between()
        a.label(E)
        a('s_barrier')
        if first:
            a(f'v_mov_b32 v11, {L_MODE}')
            a('ds_read_b32 v10, v11')
            a('s_waitcnt lgkmcnt(0)')
            a(f'v_readfirstlane_b32 s{sMODE}, v10')

    def xflag_addr(self, dst, wg_s):
        a = self.a
        a(f's_lshl_b32 {dst}, {wg_s}, 6')
        a(f's_add_u32 {dst}, {dst}, {WS_XFLAG}')

    def set_xflag(self, word, val_s, saddr='s52', vt=('v11', 'v12')):
        a = self.a
        self.xflag_addr(saddr, 's2')
        if isinstance(word, int): a(f's_add_u32 {saddr}, {saddr}, {word*4}')
        else: a(f's_add_u32 {saddr}, {saddr}, {word}')
        a(f'v_mov_b32 {vt[0]}, {val_s}')
        a(f'v_mov_b32 {vt[1]}, 0')
        a('s_mov_b64 exec, 1')
        a(f'buffer_store_dword {vt[0]}, {vt[1]}, {srd(S_WS)}, {saddr} offen sc1')
        a('s_mov_b64 exec, -1')

    def pack5(self, vb0, vb1, imm0, mat, with_cs):
        a = self.a
        a(f's_add_u32 s50, s{sH}, {mat*32}')
        a(f's_mul_i32 s50, s50, {PW_SZ}')
        a(f's_mul_i32 s51, s{sJ}, {5*2048}')
        a('s_add_u32 s50, s50, s51')
        a(f's_add_u32 s50, s50, {WS_PW}')
        for i in range(5):
            s = 16 + 8 * i
            o = imm0(i)
            a(f'ds_read_b64_tr_b16 v[{s}:{s+1}], {vb0} offset:{o}')
            a(f'ds_read_b64_tr_b16 v[{s+2}:{s+3}], {vb0} offset:{o+48}')
            a(f'ds_read_b64_tr_b16 v[{s+4}:{s+5}], {vb1} offset:{o}')
            a(f'ds_read_b64_tr_b16 v[{s+6}:{s+7}], {vb1} offset:{o+48}')
        a('s_waitcnt lgkmcnt(0)')
        for i in range(5):
            s = 16 + 8 * i
            a(f'buffer_store_dwordx4 v[{s}:{s+3}], v2, {srd(S_WS)}, s50 offen sc1')
            a(f'buffer_store_dwordx4 v[{s+4}:{s+7}], v2, {srd(S_WS)}, s50 offen offset:1024 sc1')
            a('s_add_u32 s50, s50, 2048')
        if with_cs:
            for r in range(96, 100): a(f'v_mov_b32 v{r}, 0x3f803f80')
            for i in range(5):
                s = 16 + 8 * i
                a(f'{MF32} v[64:79], v[96:99], v[{s}:{s+3}], {"0" if i == 0 else "v[64:79]"}')
                a(f'{MF32} v[80:95], v[96:99], v[{s+4}:{s+7}], {"0" if i == 0 else "v[80:95]"}')
            a('v_mov_b32 v100, v64')
            a('v_mov_b32 v101, v80')
            self.store_cs(mat, 100)

    def store_cs(self, mat, r):
        a = self.a
        a(f's_add_u32 s50, s{sH}, {mat*32}')
        a('s_lshl_b32 s50, s50, 3')
        a(f's_add_u32 s50, s50, s{sJ}')
        a('s_lshl_b32 s50, s50, 8')
        a(f's_add_u32 s50, s50, {WS_PCS}')
        a('v_lshlrev_b32 v12, 3, v1')
        a('s_mov_b64 exec, 0xffffffff')
        a(f'buffer_store_dwordx2 v[{r}:{r+1}], v12, {srd(S_WS)}, s50 offen sc1')
        a('s_mov_b64 exec, -1')

    def stash_writeback(self):
        a = self.a
        E = a.newlabel('SW_E'); LA = a.newlabel('SW_A')
        a(f's_cmp_eq_u32 s{sLAYER}, 3')
        a(f's_cbranch_scc1 {E}')
        a(f's_mul_i32 s62, s{sW}, 10240')
        a(f's_add_u32 s62, s62, {PWL}')
        a('v_add_u32 v13, s62, v2')
        a(f's_bitcmp1_b32 s{sLAYER}, 0')
        a(f's_cbranch_scc1 {LA}')
        for i in range(10):
            r = stash_reg(1, i)
            a(f'ds_write_b128 v13, v[{r}:{r+3}] offset:{i*1024}')
        a(f's_branch {E}')
        a.label(LA)
        for i in range(10):
            r = stash_reg(0, i)
            a(f'ds_write_b128 v13, v[{r}:{r+3}] offset:{i*1024}')
        a.label(E)

    def stashB_load(self):
        a = self.a
        a(f's_add_u32 s50, s{sH}, 32')
        a(f's_mul_i32 s50, s50, {PW_SZ}')
        a(f's_mul_i32 s51, s{sW}, 10240')
        a('s_add_u32 s50, s50, s51')
        a(f's_add_u32 s50, s50, {WS_PW}')
        for i in range(10):
            r = stash_reg(1, i)
            if i % 4 == 0 and i > 0: a('s_add_u32 s50, s50, 4096')
            a(f'buffer_load_dwordx4 v[{r}:{r+3}], v2, {srd(S_WS)}, s50 offen offset:{(i%4)*1024} sc1')
        a('v_and_b32 v11, 31, v1')
        a('v_lshlrev_b32 v11, 3, v11')
        a(f's_add_u32 s52, s{sH}, 32')
        a('s_lshl_b32 s52, s52, 11')
        a(f's_add_u32 s52, s52, {WS_PCS}')
        for j in range(8):
            a(f'buffer_load_dwordx2 v[{160+2*j}:{161+2*j}], v11, {srd(S_WS)}, s52 offen offset:{j*256} sc1')

    def stashB_cs_sum(self):
        a = self.a
        a(f'v_add_f32 v{vCSB}, v160, v162')
        a(f'v_add_f32 v{vCSB+1}, v161, v163')
        for j in range(2, 8):
            a(f'v_add_f32 v{vCSB}, v{vCSB}, v{160+2*j}')
            a(f'v_add_f32 v{vCSB+1}, v{vCSB+1}, v{161+2*j}')

    def stashA_make(self):
        a = self.a
        a(f's_mul_i32 s52, s{sW}, {5*768}')
        a('v_add_u32 v12, s52, v7')
        a('v_add_u32 v13, s52, v8')
        for i in range(5):
            r0 = stash_reg(0, 2*i); r1 = stash_reg(0, 2*i+1)
            a(f'ds_read_b64_tr_b16 v[{r0}:{r0+1}], v12 offset:{i*768}')
            a(f'ds_read_b64_tr_b16 v[{r0+2}:{r0+3}], v12 offset:{i*768+48}')
            a(f'ds_read_b64_tr_b16 v[{r1}:{r1+1}], v13 offset:{i*768}')
            a(f'ds_read_b64_tr_b16 v[{r1+2}:{r1+3}], v13 offset:{i*768+48}')
        for r in range(108, 112): a(f'v_mov_b32 v{r}, 0x3f803f80')
        for i in range(5):
            r0 = stash_reg(0, 2*i); r1 = stash_reg(0, 2*i+1)
            a(f's_waitcnt lgkmcnt({min(15, 4*(4-i))})')
            a(f'{MF32} v[112:127], v[108:111], v[{r0}:{r0+3}], {"0" if i == 0 else "v[112:127]"}')
            a(f'{MF32} v[128:143], v[108:111], v[{r1}:{r1+3}], {"0" if i == 0 else "v[128:143]"}')
        a('v_and_b32 v12, 31, v1')
        a('v_lshlrev_b32 v12, 2, v12')
        a('s_mov_b64 exec, 0xffffffff')
        a(f'ds_add_f32 v12, v112 offset:{L_CS}')
        a(f'ds_add_f32 v12, v128 offset:{L_CS+128}')
        a('s_mov_b64 exec, -1')
        a('s_waitcnt lgkmcnt(0)')

    def p0_xloads(self):
        a = self.a
        if not self.args.noreuse:
            L = self.if_wave('ge', 4)
            a('v_lshlrev_b32 v30, 7, v1')
            a(f's_mul_i32 s50, s{sJ}, {XF_SZ//8}')
            a(f's_mul_i32 s51, s{sH}, 10240')
            a('s_add_u32 s50, s50, s51')
            a(f's_lshl_b32 s52, s{sJ}, 3')
            a(f's_lshr_b32 s53, s{sH}, 2')
            a('s_add_u32 s52, s52, s53')
            a('s_mul_i32 s52, s52, 40960')
            a(f's_and_b32 s53, s{sH}, 3')
            a('s_lshl_b32 s53, s53, 7')
            a('s_add_u32 s52, s52, s53')
            a(f's_add_u32 s52, s52, {WS_XF}')
            L4 = self.if_wave('eq', 4)
            a('v_lshlrev_b32 v30, 9, v1')
            a(f'buffer_load_dword v31, v30, {srd(S_WS)}, s52 offen')
            a('s_add_u32 s52, s52, 32768')
            a('s_mov_b64 exec, 0xffff')
            a(f'buffer_load_dword v31, v30, {srd(S_WS)}, s52 offen')
            a('s_mov_b64 exec, -1')
            a.label(L4)
            for w, base in ((5, WS_XF + XF_SZ), (6, WS_OF)):
                Lw = self.if_wave('eq', w)
                a(f's_add_u32 s52, s50, {base}')
                a(f'buffer_load_dword v31, v30, {srd(S_WS)}, s52 offen')
                a('s_add_u32 s52, s52, 8192')
                a('s_mov_b64 exec, 0xffff')
                a(f'buffer_load_dword v31, v30, {srd(S_WS)}, s52 offen')
                a('s_mov_b64 exec, -1')
                a.label(Lw)
            L7 = self.if_wave('eq', 7)
            a(f's_lshl_b32 s52, s{sJ}, 14')
            a(f's_lshl_b32 s53, s{sH}, 9')
            a('s_add_u32 s52, s52, s53')
            a(f's_add_u32 s52, s52, {WS_ST}')
            a('s_mov_b64 exec, 0xf')
            a(f'buffer_load_dword v31, v30, {srd(S_WS)}, s52 offen')
            a(f's_add_u32 s52, s52, {ST_SZ}')
            a(f'buffer_load_dword v31, v30, {srd(S_WS)}, s52 offen')
            a('s_mov_b64 exec, -1')
            a.label(L7)
            a.label(L)
        a(f's_lshl_b32 s50, s{sJ}, 8')
        a(f's_lshl_b32 s51, s{sH}, 3')
        a('s_add_u32 s50, s50, s51')
        a('s_mul_i32 s52, s50, 1280')
        a('v_and_b32 v10, 7, v0')
        a('v_lshrrev_b32 v11, 3, v0')
        a('v_mul_u32_u24 v12, 1280, v10')
        a('v_lshlrev_b32 v13, 4, v11')
        a('v_add_u32 v12, v12, v13')
        a(f'buffer_load_dwordx4 v[16:19], v12, {srd(S_X0)}, s52 offen')
        a('v_mov_b32 v20, 0\nv_mov_b32 v21, 0\nv_mov_b32 v22, 0\nv_mov_b32 v23, 0')
        L = self.if_wave('lt', 2)
        a(f'buffer_load_dwordx4 v[20:23], v12, {srd(S_X0)}, s52 offen offset:1024')
        a.label(L)

    def wo_item_dma(self, n, item_s):
        a = self.a
        a(f's_mul_hi_u32 s55, {item_s}, 0xccccccd')
        a('s_mul_i32 s56, s55, 20')
        a(f's_sub_u32 s56, {item_s}, s56')
        a('s_and_b32 s57, s55, 7')
        a('s_mul_i32 s57, s57, 160')
        a('s_mul_i32 s56, s56, 40960')
        a('s_add_u32 s56, s56, s57')
        A = a.newlabel('WOI_A'); E = a.newlabel('WOI_E')
        a('s_cmp_lt_u32 s55, 8')
        a(f's_cbranch_scc1 {A}')
        for u in range(5):
            a(f's_mov_b32 m0, {TO + n*5120 + u*1024}')
            a(f'buffer_load_dwordx4 v{24+u}, {srd(S_WOB)}, s56 offen lds')
        a(f's_branch {E}')
        a.label(A)
        for u in range(5):
            a(f's_mov_b32 m0, {TO + n*5120 + u*1024}')
            a(f'buffer_load_dwordx4 v{24+u}, {srd(S_WOA)}, s56 offen lds')
        a.label(E)

    def wo_item_pack(self, n, item_s):
        a = self.a
        for c in range(5):
            for sx in range(2):
                a(f'ds_read_b64_tr_b16 v[{32+4*c+2*sx}:{33+4*c+2*sx}], v30 offset:{TO + n*5120 + sx*1280 + c*32}')
        a(f's_mul_i32 s55, {item_s}, 5120')
        a(f's_add_u32 s55, s55, {WS_PO}')
        a('s_waitcnt lgkmcnt(0)')
        for c in range(5):
            if c == 4: a('s_add_u32 s55, s55, 4096')
            a(f'buffer_store_dwordx4 v[{32+4*c}:{35+4*c}], v2, {srd(S_WS)}, s55 offen offset:{(c%4)*1024} sc1')

    def p0(self):
        a = self.a
        self.fstamp(53)
        vq = None
        DD = a.newlabel('P0_DMAD')
        L = self.if_wave('eq', 1)
        a(f's_mul_i32 s53, s{sJ}, {80*3840}')
        for sec, tb, so in (('k', TK, 1280 - 8), ('q', TQ, 0), ('v', TV, 2560)):
            for u in range(4):
                a(f's_mov_b32 m0, {tb + u*1024}')
                a(f's_add_u32 s54, s53, {so + (64*3840 if u == 3 else 0)}')
                if u == 3: a('s_mov_b32 exec_hi, 0xffff')
                a(f'buffer_load_dwordx4 v{4 + (u % 3)}, {srd(S_WQB)}, s54 offen lds')
                if u == 3: a('s_mov_b64 exec, -1')
        a(f's_branch {DD}')
        a.label(L)
        L = self.if_wave('eq', 2)
        for u in range(5):
            d = f'v{24+u}'
            a(f'v_add_u32 v15, {64*u}, v1')
            a('v_mul_u32_u24 v3, 6554, v15')
            a('v_lshrrev_b32 v3, 16, v3')
            a(f'v_mul_u32_u24 {d}, 10, v3')
            a(f'v_sub_u32 {d}, v15, {d}')
            a(f'v_lshlrev_b32 {d}, 4, {d}')
            a('v_mul_u32_u24 v3, 1280, v3')
            a(f'v_add_u32 {d}, {d}, v3')
        a('s_mov_b32 s58, s2')
        self.wo_item_dma(0, 's58')
        L2 = a.newlabel('P0_NOI2')
        a('s_cmp_ge_u32 s2, 64')
        a(f's_cbranch_scc1 {L2}')
        a('s_add_u32 s59, s2, 256')
        self.wo_item_dma(1, 's59')
        a.label(L2)
        a(f's_branch {DD}')
        a.label(L)
        allg = [(sec, g) for g in range(10) for sec in 'kqv']
        for w in range(3, 8):
            L = self.if_wave('eq', w)
            self.dma_raw(S_WQA, allg[(w - 3)::5])
            a(f's_branch {DD}')
            a.label(L)
        a.label(DD)
        self.fstamp(54)
        L = self.if_wave('eq', 0)
        self.init_flags()
        a.label(L)
        self.tr_bases(7, 8, (WK, WQ, WV))
        a(f's_lshl_b32 s53, s{sJ}, 3')
        a(f's_lshr_b32 s54, s{sH}, 2')
        a('s_add_u32 s53, s53, s54')
        a('s_mul_i32 s53, s53, 40960')
        a(f's_and_b32 s54, s{sH}, 3')
        a('s_lshl_b32 s54, s54, 7')
        a('s_add_u32 s53, s53, s54')
        a(f's_add_u32 s53, s53, {WS_XF}')
        a('v_and_b32 v10, 7, v0')
        a('v_lshrrev_b32 v11, 3, v0')
        a('v_lshrrev_b32 v13, 1, v11')
        a('v_lshlrev_b32 v13, 10, v13')
        a('v_and_b32 v14, 1, v11')
        a('v_lshlrev_b32 v14, 9, v14')
        a('v_add_u32 v13, v13, v14')
        a('v_lshlrev_b32 v14, 4, v10')
        a('v_add_u32 v13, v13, v14')
        a('s_add_u32 s54, s53, 32768')
        L = self.if_wave('ge', 3)
        a('s_waitcnt vmcnt(18)')
        a.label(L)
        L = self.if_wave('eq', 1)
        a('s_waitcnt vmcnt(12)')
        a.label(L)
        L = self.if_wave('eq', 2)
        a('s_waitcnt vmcnt(5)')
        a.label(L)
        self.fstamp(55)
        a(f'buffer_store_dwordx4 v[16:19], v13, {srd(S_WS)}, s53 offen')
        L = self.if_wave('lt', 2)
        a(f'buffer_store_dwordx4 v[20:23], v13, {srd(S_WS)}, s54 offen')
        a.label(L)
        a('v_mov_b32 v34, 0\nv_mov_b32 v35, 0')
        for r in range(16, 24):
            a(f'v_lshlrev_b32 v36, 16, v{r}')
            a(f'v_and_b32 v37, 0xffff0000, v{r}')
            a('v_add_f32 v34, v34, v36')
            a('v_fmac_f32 v35, v36, v36')
            a('v_add_f32 v34, v34, v37')
            a('v_fmac_f32 v35, v37, v37')
        for reg in (34, 35):
            a(f'v_mov_b32_dpp v36, v{reg} row_ror:8 row_mask:0xf bank_mask:0xf')
            a(f'v_add_f32 v{reg}, v{reg}, v36')
            a(f'v_mov_b32 v36, v{reg}')
            a(f'v_permlane16_swap_b32 v{reg}, v36')
            a(f'v_add_f32 v{reg}, v{reg}, v36')
            a(f'v_mov_b32 v36, v{reg}')
            a(f'v_permlane32_swap_b32 v{reg}, v36')
            a(f'v_add_f32 v{reg}, v{reg}, v36')
        P0S = L_MISC
        a(f's_lshl_b32 s50, s{sW}, 6')
        a('v_lshlrev_b32 v36, 3, v1')
        a('v_add_u32 v36, s50, v36')
        a('s_mov_b64 exec, 0xff')
        a(f'ds_write_b64 v36, v[34:35] offset:{P0S}')
        a('s_mov_b64 exec, -1')
        a('v_mov_b32 v10, 0')
        a('v_lshlrev_b32 v11, 2, v1')
        a(f'ds_write_b32 v11, v10 offset:{L_CS}')
        a(f'v_mov_b32 v11, {L_SIG}')
        a('ds_write_b32 v11, v10')
        a('s_waitcnt lgkmcnt(0)')
        self.fstamp(56)
        a('s_barrier')
        self.fstamp(57)
        L = self.if_wave('eq', 0)
        a('v_lshrrev_b32 v10, 2, v1')
        a('v_and_b32 v10, 7, v10')
        a('v_lshlrev_b32 v11, 3, v10')
        for w in range(8):
            a(f'ds_read_b64 v[{28+2*w}:{29+2*w}], v11 offset:{P0S + w*64}')
        a('s_waitcnt lgkmcnt(0)')
        for w in range(1, 8):
            a(f'v_add_f32 v28, v28, v{28+2*w}')
            a(f'v_add_f32 v29, v29, v{29+2*w}')
        a('v_and_b32 v12, 3, v1')
        a('v_cmp_eq_u32 vcc, 0, v12')
        a('v_mov_b32 v30, 0\nv_mov_b32 v31, 0')
        a('v_cndmask_b32 v28, v30, v28, vcc')
        a('v_cndmask_b32 v29, v30, v29, vcc')
        a(f's_lshl_b32 s50, s{sJ}, 8')
        a(f's_lshl_b32 s51, s{sH}, 3')
        a('s_add_u32 s50, s50, s51')
        a('s_lshl_b32 s50, s50, 6')
        a(f's_add_u32 s50, s50, {WS_ST}')
        a('s_mov_b64 exec, 0xffffffff')
        a(f'buffer_store_dwordx4 v[28:31], v2, {srd(S_WS)}, s50 offen')
        a('s_mov_b64 exec, -1')
        a.label(L)
        a('s_waitcnt vmcnt(0)')
        self.p0_packs()

    def p0_packs(self):
        a = self.a
        L = self.if_wave('eq', 1)
        self.tr_bases(105, 106, (TK, TQ, TV))
        self.pack5('v105', 'v106', lambda i: i * 768, 1, True)
        a('s_waitcnt vmcnt(0)')
        self.set_xflag(4, 1)
        a.label(L)
        L = self.if_wave('eq', 2)
        a('v_bfe_u32 v30, v1, 5, 1')
        a('v_lshlrev_b32 v30, 4, v30')
        a('v_bfe_u32 v12, v1, 4, 1')
        a('v_lshlrev_b32 v12, 2, v12')
        a('v_add_u32 v30, v30, v12')
        a('v_bfe_u32 v12, v1, 2, 2')
        a('v_add_u32 v30, v30, v12')
        a('v_mul_u32_u24 v30, 160, v30')
        a('v_and_b32 v12, 3, v1')
        a('v_lshlrev_b32 v12, 3, v12')
        a('v_add_u32 v30, v30, v12')
        a('s_mov_b32 s58, s2')
        self.wo_item_pack(0, 's58')
        L2 = a.newlabel('P0_NOI2B')
        a('s_cmp_ge_u32 s2, 64')
        a(f's_cbranch_scc1 {L2}')
        a('s_add_u32 s59, s2, 256')
        self.wo_item_pack(1, 's59')
        a.label(L2)
        a('s_waitcnt vmcnt(0)')
        self.set_xflag(6, 1)
        a.label(L)

    ACC0, ACC1 = 16, 32
    XR = 48
    WB = 80
    def qkv_main(self, packed):
        a = self.a
        A0, A1, XR, WB = self.ACC0, self.ACC1, self.XR, self.WB
        a.comment('QKV main ' + ('packed' if packed else 'raw'))
        vq = VQ()
        a(f's_lshl_b32 s50, s{sJ}, 3')
        a(f's_add_u32 s50, s50, s{sRB}')
        a(f's_lshl_b32 s51, s50, 11')
        a('s_mul_i32 s50, s50, 40960')
        a(f's_add_u32 s50, s50, s{sXF}')
        def xload(ks):
            r = XR + 4 * (ks % 8)
            if ks % 4 == 0 and ks > 0: a('s_add_u32 s50, s50, 4096')
            a(f'buffer_load_dwordx4 v[{r}:{r+3}], v2, {srd(S_WS)}, s50 offen offset:{(ks % 4) * 1024} sc1')
            vq.push(('x', ks))
        for ks in range(4): xload(ks)
        if packed:
            a(f'v_add_u32 v3, {PWL}, v2')
            a(f'v_add_u32 v15, {PWL + 40960}, v2')
            def wread(ks):
                s = WB + 8 * (ks % 3)
                b = 'v3' if ks < 20 else 'v15'
                o = (ks % 20) * 2048
                a(f'ds_read_b128 v[{s}:{s+3}], {b} offset:{o}')
                a(f'ds_read_b128 v[{s+4}:{s+7}], {b} offset:{o+1024}')
            nrd = 2
        else:
            def wread(ks):
                s = WB + 8 * (ks % 3)
                a(f'ds_read_b64_tr_b16 v[{s}:{s+1}], v7 offset:{ks*768}')
                a(f'ds_read_b64_tr_b16 v[{s+2}:{s+3}], v7 offset:{ks*768+48}')
                a(f'ds_read_b64_tr_b16 v[{s+4}:{s+5}], v8 offset:{ks*768}')
                a(f'ds_read_b64_tr_b16 v[{s+6}:{s+7}], v8 offset:{ks*768+48}')
            nrd = 4
        wread(0); wread(1)
        for ks in range(4, 8): xload(ks)
        a(f's_add_u32 s51, s51, s{sST}')
        a('v_and_b32 v10, 31, v1')
        a('v_lshlrev_b32 v11, 3, v10')
        a('v_lshlrev_b32 v10, 6, v10')
        a('v_lshrrev_b32 v12, 5, v1')
        a('v_lshlrev_b32 v12, 5, v12')
        a('v_add_u32 v10, v10, v12')
        late = [f'buffer_load_dwordx4 v[108:111], v10, {srd(S_WS)}, s51 offen sc1',
                f'buffer_load_dwordx4 v[112:115], v10, {srd(S_WS)}, s51 offen offset:16 sc1']
        for ks in range(40):
            if ks + 2 < 40: wread(ks + 2)
            lg = nrd * min(2, 39 - ks)
            a(f's_waitcnt vmcnt({vq.cnt(("x", ks))}) lgkmcnt({lg})')
            s = WB + 8 * (ks % 3); x = XR + 4 * (ks % 8)
            c0 = '0' if ks == 0 else f'v[{A0}:{A0+15}]'
            c1 = '0' if ks == 0 else f'v[{A1}:{A1+15}]'
            a(f'{MF32} v[{A0}:{A0+15}], v[{s}:{s+3}], v[{x}:{x+3}], {c0}')
            a(f'{MF32} v[{A1}:{A1+15}], v[{s+4}:{s+7}], v[{x}:{x+3}], {c1}')
            if ks + 8 < 40: xload(ks + 8)
            if ks >= 12 and ks % 2 == 0 and late:
                a(late.pop(0)); vq.push('late')
        assert not late
        a('s_waitcnt vmcnt(0)')

    def colsum_raw(self):
        a = self.a
        WB = self.WB
        a(f's_mul_i32 s52, s{sW}, 768')
        a('v_add_u32 v12, s52, v7')
        a('v_add_u32 v13, s52, v8')
        for r in range(108, 112): a(f'v_mov_b32 v{r}, 0x3f803f80')
        for i in range(5):
            s = 16 + 8 * i
            a(f'ds_read_b64_tr_b16 v[{s}:{s+1}], v12 offset:{i*6144}')
            a(f'ds_read_b64_tr_b16 v[{s+2}:{s+3}], v12 offset:{i*6144+48}')
            a(f'ds_read_b64_tr_b16 v[{s+4}:{s+5}], v13 offset:{i*6144}')
            a(f'ds_read_b64_tr_b16 v[{s+6}:{s+7}], v13 offset:{i*6144+48}')
        a('s_waitcnt lgkmcnt(0)')
        for i in range(5):
            s = 16 + 8 * i
            a(f'{MF32} v[112:127], v[108:111], v[{s}:{s+3}], {"0" if i == 0 else "v[112:127]"}')
            a(f'{MF32} v[128:143], v[108:111], v[{s+4}:{s+7}], {"0" if i == 0 else "v[128:143]"}')
        a('v_and_b32 v12, 31, v1')
        a('v_lshlrev_b32 v12, 2, v12')
        a('s_mov_b64 exec, 0xffffffff')
        a(f'ds_add_f32 v12, v112 offset:{L_CS}')
        a(f'ds_add_f32 v12, v128 offset:{L_CS+128}')
        a('s_mov_b64 exec, -1')
        a('s_waitcnt lgkmcnt(0)')

    def ln_fix(self, packed):
        a = self.a
        A0, A1 = self.ACC0, self.ACC1
        if packed:
            a(f's_bitcmp1_b32 s{sLAYER}, 0')
            a('s_cselect_b64 s[70:71], -1, 0')
            a(f'v_cndmask_b32 v116, v{vCSA}, v{vCSB}, s[70:71]')
            a(f'v_cndmask_b32 v117, v{vCSA+1}, v{vCSB+1}, s[70:71]')
        else:
            a('v_and_b32 v12, 31, v1')
            a('v_lshlrev_b32 v12, 2, v12')
            a(f'ds_read_b32 v{vCSA}, v12 offset:{L_CS}')
            a(f'ds_read_b32 v{vCSA+1}, v12 offset:{L_CS+128}')
        a('v_add_f32 v108, v108, v110\nv_add_f32 v109, v109, v111\nv_add_f32 v112, v112, v114\nv_add_f32 v113, v113, v115')
        a('v_add_f32 v100, v108, v112\nv_add_f32 v101, v109, v113')
        a('v_mov_b32 v102, v100\nv_mov_b32 v103, v101')
        a('v_permlane32_swap_b32 v100, v102')
        a('v_permlane32_swap_b32 v101, v103')
        a('v_add_f32 v100, v100, v102\nv_add_f32 v101, v101, v103')
        a('s_mov_b32 s52, 0x3acccccd')
        a('v_mul_f32 v100, s52, v100')
        a('v_mul_f32 v101, s52, v101')
        a('v_fma_f32 v101, -v100, v100, v101')
        a('v_add_f32 v101, 0x3727c5ac, v101')
        a('v_rsq_f32 v101, v101')
        a('v_sub_f32 v102, 0, v100')
        a('v_cvt_pk_bf16_f32 v104, v102, v102')
        a('v_lshlrev_b32 v103, 16, v104')
        a('v_sub_f32 v103, v102, v103')
        a('v_mov_b32 v106, 0\nv_mov_b32 v107, 0')
        a('v_cvt_pk_bf16_f32 v105, v103, v106')
        a(f'v_cndmask_b32 v104, v106, v104, {LO}')
        a(f'v_cndmask_b32 v105, v106, v105, {LO}')
        if not packed:
            a('s_waitcnt lgkmcnt(0)')
            a(f'v_mov_b32 v116, v{vCSA}')
            a(f'v_mov_b32 v117, v{vCSA+1}')
        for B, (src, dst) in enumerate(((116, 132), (117, 136))):
            a(f'v_cvt_pk_bf16_f32 v108, v{src}, v{src}')
            a('v_lshlrev_b32 v108, 16, v108')
            a(f'v_sub_f32 v109, v{src}, v108')
            a(f'v_cvt_pk_bf16_f32 v{dst}, v108, v109')
            a(f'v_cvt_pk_bf16_f32 v{dst+1}, v108, v106')
            a(f'v_cndmask_b32 v{dst}, v106, v{dst}, {LO}')
            a(f'v_cndmask_b32 v{dst+1}, v106, v{dst+1}, {LO}')
            a(f'v_mov_b32 v{dst+2}, 0\nv_mov_b32 v{dst+3}, 0')
        a(f'{MF32} v[{A0}:{A0+15}], v[132:135], v[104:107], v[{A0}:{A0+15}]')
        a(f'{MF32} v[{A1}:{A1+15}], v[136:139], v[104:107], v[{A1}:{A1+15}]')

    def img_addr_regs(self):
        a = self.a
        a('v_and_b32 v10, 31, v1')
        a(f's_lshl_b32 s50, s{sRB}, 5')
        a('s_add_u32 s50, s50, 256')
        a('v_add_u32 v10, s50, v10')
        a('v_mul_u32_u24 v10, 48, v10')
        a('v_lshrrev_b32 v11, 5, v1')
        a('v_lshlrev_b32 v12, 4, v11')
        a('v_add_u32 v120, v10, v12')
        a('v_lshlrev_b32 v12, 3, v11')
        a('v_sub_u32 v121, v10, v12')
        a('v_add_u32 v121, 32, v121')
        a('v_add_u32 v122, v10, v12')
        a(f'v_add_u32 v122, {VIMG}, v122')
        a(f'v_mul_u32_u24 v12, {VIMG + 32 - 8}, v11')
        a('v_add_u32 v123, v10, v12')
        a('v_add_u32 v123, 8, v123')
        a(f'v_mul_u32_u24 v12, {VIMG}, v11')
        a('v_add_u32 v124, v10, v12')
        a('v_add_u32 v124, 40, v124')

    def write_img(self, regs):
        a = self.a
        a(f'ds_write_b64 v120, v[{regs["B1g0"]}:{regs["B1g0"]+1}]')
        a(f'ds_write_b64 v121, v[{regs["B0g3"]}:{regs["B0g3"]+1}]')
        a(f'ds_write_b64 v122, v[{regs["B1g1"]}:{regs["B1g1"]+1}]')
        a(f'ds_write_b64 v122, v[{regs["B1g2"]}:{regs["B1g2"]+1}] offset:16')
        a(f'ds_write_b64 v123, v[{regs["B1g3"]}:{regs["B1g3"]+1}]')
        a('v_mov_b32 v12, 0x3f80')
        a('v_mov_b32 v13, 0')
        a(f'v_cndmask_b32 v12, v12, v13, {LO}')
        a('ds_write_b64 v124, v[12:13]')

    def wave_max(self, reg, tmp):
        a = self.a
        for ror in (8, 4, 2, 1):
            a(f'v_mov_b32_dpp v{tmp}, v{reg} row_ror:{ror} row_mask:0xf bank_mask:0xf')
            a(f'v_max_f32 v{reg}, v{reg}, v{tmp}')
        a(f'v_mov_b32 v{tmp}, v{reg}')
        a(f'v_permlane16_swap_b32 v{reg}, v{tmp}')
        a(f'v_max_f32 v{reg}, v{reg}, v{tmp}')
        a(f'v_mov_b32 v{tmp}, v{reg}')
        a(f'v_permlane32_swap_b32 v{reg}, v{tmp}')
        a(f'v_max_f32 v{reg}, v{reg}, v{tmp}')

    QA, QB = 96, 100
    vQN = 104
    def epi_B(self):
        a = self.a
        A0, A1 = self.ACC0, self.ACC1
        QA, QB = self.QA, self.QB
        self.img_addr_regs()
        a('s_mov_b32 s52, 0x3ea52b5c')
        a('v_mul_f32 v102, s52, v101')
        for r in range(12, 16): a(f'v_mul_f32 v{A0+r}, v101, v{A0+r}')
        for r in range(16): a(f'v_mul_f32 v{A1+r}, v101, v{A1+r}')
        pk = {'B0g3': (106, A0+12), 'B1g0': (108, A1), 'B1g1': (110, A1+4), 'B1g2': (112, A1+8), 'B1g3': (114, A1+12)}
        for n, (d, s_) in pk.items():
            a(f'v_cvt_pk_bf16_f32 v{d}, v{s_}, v{s_+1}')
            a(f'v_cvt_pk_bf16_f32 v{d+1}, v{s_+2}, v{s_+3}')
        self.write_img({n: d for n, (d, _) in pk.items()})
        for r in range(0, 12): a(f'v_mul_f32 v{A0+r}, v102, v{A0+r}')
        for j in range(4): a(f'v_cvt_pk_bf16_f32 v{QA+j}, v{A0+2*j}, v{A0+2*j+1}')
        a(f'v_cvt_pk_bf16_f32 v{QB}, v{A0+8}, v{A0+9}')
        a(f'v_cvt_pk_bf16_f32 v{QB+1}, v{A0+10}, v{A0+11}')
        a('v_mul_f32 v116, v16, v16')
        for r in range(1, 8): a(f'v_fmac_f32 v116, v{A0+r}, v{A0+r}')
        a(f'v_mul_f32 v117, v{A0+8}, v{A0+8}')
        for r in range(9, 12): a(f'v_fmac_f32 v117, v{A0+r}, v{A0+r}')
        a(f'v_mul_f32 v118, v{A0+12}, v{A0+12}')
        for r in [A0+13, A0+14, A0+15, A1, A1+1, A1+2, A1+3]: a(f'v_fmac_f32 v118, v{r}, v{r}')
        a(f'v_mul_f32 v119, v{A1+12}, v{A1+12}')
        for r in range(13, 16): a(f'v_fmac_f32 v119, v{A1+r}, v{A1+r}')
        a('v_mov_b32 v13, 0')
        a(f'v_mov_b32 v{QB+2}, 0x3f80')
        a(f'v_mov_b32 v{QB+3}, 0')
        for j in range(3): a(f'v_cndmask_b32 v{QB+j}, v13, v{QB+j}, {LO}')
        a(f'v_cndmask_b32 v117, v13, v117, {LO}')
        a(f'v_cndmask_b32 v119, v13, v119, {LO}')
        a('v_add_f32 v116, v116, v117')
        a('v_add_f32 v118, v118, v119')
        a('v_mov_b32 v117, v116\nv_mov_b32 v119, v118')
        a('v_permlane32_swap_b32 v116, v117')
        a('v_permlane32_swap_b32 v118, v119')
        a(f'v_add_f32 v{self.vQN}, v116, v117')
        a('v_add_f32 v118, v118, v119')
        self.wave_max(self.vQN, 116)
        self.wave_max(118, 117)
        a(f's_lshl_b32 s50, s{sW}, 2')
        a('v_mov_b32 v12, s50')
        a('s_mov_b64 exec, 1')
        a(f'ds_write_b32 v12, v118 offset:{L_KN}')
        a('s_mov_b64 exec, -1')
        a('s_waitcnt lgkmcnt(0)')
        a('s_barrier')

    def export_issue(self):
        a = self.a
        NOEXP = a.newlabel('HX_NOEXP')
        a(f's_cmp_eq_u32 s{sJ}, 7')
        a(f's_cbranch_scc1 {NOEXP}')
        a('v_subrev_u32 v10, 256, v0')
        a('v_lshlrev_b32 v10, 4, v10')
        a(f's_lshr_b32 s50, s{sLAYER}, 1')
        a(f's_mul_i32 s50, s50, {KVX_SZ}')
        a(f's_add_u32 s50, s50, {WS_KVX}')
        for n in range(6):
            base = (KIMG + 12288 + n * 4096) if n < 3 else (VIMG + 12288 + (n - 3) * 4096)
            a(f'ds_read_b128 v[{160+4*n}:{163+4*n}], v10 offset:{base}')
        a('v_lshlrev_b32 v11, 2, v1')
        a('v_and_b32 v11, 28, v11')
        a(f'ds_read_b32 v184, v11 offset:{L_KN}')
        a('s_mul_i32 s51, s2, 24576')
        a('s_add_u32 s51, s51, s50')
        a('s_waitcnt lgkmcnt(0)')
        for n in range(6):
            a(f'buffer_store_dwordx4 v[{160+4*n}:{163+4*n}], v10, {srd(S_WS)}, s51 offen sc1')
            a('s_add_u32 s51, s51, 4096')
        L = self.if_wave('eq', 4)
        self.wave_max(184, 185)
        self.xflag_addr('s52', 's2')
        a('v_mov_b32 v12, 32')
        a('s_mov_b64 exec, 1')
        a(f'buffer_store_dword v184, v12, {srd(S_WS)}, s52 offen sc1')
        a('s_mov_b64 exec, -1')
        a.label(L)
        a.label(NOEXP)

    def export_finish_import(self):
        a = self.a
        NOEXP = a.newlabel('HX_NOEXP2')
        a(f's_cmp_eq_u32 s{sJ}, 7')
        a(f's_cbranch_scc1 {NOEXP}')
        a('s_waitcnt vmcnt(0)')
        a(f's_sub_u32 s53, s{sW}, 4')
        a('s_lshl_b32 s53, s53, 2')
        a(f's_add_u32 s54, s{sLAYER}, 1')
        self.set_xflag('s53', 's54')
        a.label(NOEXP)
        FILL = a.newlabel('HX_FILL'); E = a.newlabel('HX_END')
        a('v_subrev_u32 v10, 256, v0')
        a('v_lshlrev_b32 v10, 4, v10')
        a(f's_cmp_eq_u32 s{sJ}, 0')
        a(f's_cbranch_scc1 {FILL}')
        a('s_sub_u32 s54, s2, 1')
        self.xflag_addr('s52', 's54')
        a(f's_add_u32 s53, s{sLAYER}, 1')
        a('v_and_b32 v11, 3, v1')
        a('v_lshlrev_b32 v11, 2, v11')
        self.poll('v11', 's52', 4, 's53')
        a(f's_lshr_b32 s50, s{sLAYER}, 1')
        a(f's_mul_i32 s50, s50, {KVX_SZ}')
        a(f's_add_u32 s50, s50, {WS_KVX}')
        a('s_mul_i32 s51, s54, 24576')
        a('s_add_u32 s51, s51, s50')
        a('v_mov_b32 v12, 32')
        a(f'buffer_load_dword v184, v12, {srd(S_WS)}, s52 offen sc1')
        for n in range(6):
            a(f'buffer_load_dwordx4 v[{160+4*n}:{163+4*n}], v10, {srd(S_WS)}, s51 offen sc1')
            a('s_add_u32 s51, s51, 4096')
        a('v_mov_b32 v186, v10')
        for n in range(6):
            a(f's_waitcnt vmcnt({5 - n})')
            base = (KIMG + n * 4096) if n < 3 else (VIMG + (n - 3) * 4096)
            a(f'ds_write_b128 v186, v[{160+4*n}:{163+4*n}] offset:{base}')
        a(f'v_mov_b32 v12, {L_KN + 32}')
        a('ds_write_b32 v12, v184')
        a(f's_branch {E}')
        a.label(FILL)
        for r in range(160, 168): a(f'v_mov_b32 v{r}, 0')
        for n in range(3):
            a(f'v_add_u32 v11, {n*256 - 256}, v0')
            a('v_mul_u32_u24 v12, 21846, v11')
            a('v_lshrrev_b32 v12, 16, v12')
            a('v_mul_u32_u24 v12, 3, v12')
            a('v_sub_u32 v12, v11, v12')
            a('v_cmp_eq_u32 vcc, 2, v12')
            a('v_mov_b32 v13, 0xf14a')
            a('v_cndmask_b32 v162, v160, v13, vcc')
            a(f'ds_write_b128 v10, v[160:163] offset:{KIMG + n*4096}')
            a(f'ds_write_b128 v10, v[164:167] offset:{VIMG + n*4096}')
        a(f'v_mov_b32 v12, {L_KN + 32}')
        a('ds_write_b32 v12, v160')
        a.label(E)
        a('s_waitcnt lgkmcnt(0)')

    def attn_addr(self):
        a = self.a
        a('v_and_b32 v10, 31, v1')
        a(f's_lshl_b32 s50, s{sRB}, 5')
        a('v_add_u32 v10, s50, v10')
        a('v_mul_u32_u24 v10, 48, v10')
        a('v_lshrrev_b32 v11, 5, v1')
        a('v_lshlrev_b32 v12, 4, v11')
        a('v_add_u32 v105, v10, v12')
        a('v_add_u32 v106, 32, v10')
        a('v_bfe_u32 v12, v1, 2, 2')
        a('v_lshlrev_b32 v13, 2, v11')
        a('v_add_u32 v12, v12, v13')
        a('v_add_u32 v12, s50, v12')
        a('v_mul_u32_u24 v12, 48, v12')
        a('v_and_b32 v13, 3, v1')
        a('v_lshlrev_b32 v14, 3, v13')
        a('v_min_u32 v15, 1, v13')
        a('v_lshlrev_b32 v15, 3, v15')
        a('v_add_u32 v15, 32, v15')
        a('v_bfe_u32 v13, v1, 4, 1')
        a('v_cmp_eq_u32 vcc, 1, v13')
        a('v_cndmask_b32 v14, v14, v15, vcc')
        a('v_add_u32 v12, v12, v14')
        a(f'v_add_u32 v107, {VIMG}, v12')

    def attn_masks(self, MD, MF):
        a = self.a
        a('v_and_b32 v10, 31, v1')
        a('v_lshrrev_b32 v11, 5, v1')
        a('v_lshlrev_b32 v13, 2, v11')
        a('v_sub_u32 v10, v10, v13')
        a('v_mov_b32 v14, 0xf149f2ca')
        a('v_mov_b32 v15, 0')
        conds = ['s[70:71]', 's[72:73]', 's[74:75]', 's[76:77]']
        for r0 in range(0, 16, 4):
            for q in range(4):
                r = r0 + q
                kk = 8 * (r >> 2) + (r & 3)
                a(f'v_cmp_le_i32 {conds[q]}, {kk}, v10')
            for q in range(4):
                r = r0 + q
                a(f'v_cndmask_b32 v{MD+r}, v14, v15, {conds[q]}')
                a(f'v_cndmask_b32 v{MF+r}, v15, v14, {conds[q]}')

    def norm_check(self, with_remote, fail_label):
        a = self.a
        a('v_lshlrev_b32 v11, 2, v1')
        a('v_and_b32 v11, 28, v11')
        a(f'ds_read_b32 v12, v11 offset:{L_KN}')
        if with_remote:
            a(f'v_mov_b32 v11, {L_KN + 32}')
            a('ds_read_b32 v13, v11')
        a('s_waitcnt lgkmcnt(0)')
        if with_remote: a('v_max_f32 v12, v12, v13')
        for ror in (4, 2, 1):
            a(f'v_mov_b32_dpp v13, v12 row_ror:{ror} row_mask:0xf bank_mask:0xf')
            a('v_max_f32 v12, v12, v13')
        a(f'v_mul_f32 v12, v{self.vQN}, v12')
        a(f's_mov_b32 s50, {self.args.t2hex}')
        a('v_cmp_nle_f32 vcc, v12, s50') if False else None
        a('v_mov_b32 v13, s50')
        a('v_cmp_nle_f32 vcc, v12, v13')
        a('s_cmp_lg_u64 vcc, 0')
        a(f's_cbranch_scc1 {fail_label}')

    AO, AMD, AMF, AVF, AKF, ASB, ANM = 16, 32, 48, 64, 80, 112, 160
    def at_kread(self, i):
        n = 8 - i; s = self.AKF + 8 * (i % 2)
        self.a(f'ds_read_b128 v[{s}:{s+3}], v105 offset:{n*1536}')
        self.a(f'ds_read_b128 v[{s+4}:{s+7}], v106 offset:{n*1536}')
    def at_vread(self, i):
        n = 8 - i; s = self.AVF + 8 * (i % 2)
        for s2 in range(2):
            for sx in range(2):
                self.a(f'ds_read_b64_tr_b16 v[{s+4*s2+2*sx}:{s+4*s2+2*sx+1}], v107 offset:{n*1536 + s2*768 + sx*384}')
    def at_smfma(self, i, part, cz):
        s = self.AKF + 8 * (i % 2); d = self.ASB + 16 * (i % 2)
        MD, MF, QA, QB = self.AMD, self.AMF, self.QA, self.QB
        if part == 0:
            c = f'v[{MD}:{MD+15}]' if i == 0 else f'v[{MF}:{MF+15}]' if i == 8 else cz
            self.a(f'{MF32} v[{d}:{d+15}], v[{s}:{s+3}], v[{QA}:{QA+3}], {c}')
        else:
            self.a(f'{MF32} v[{d}:{d+15}], v[{s+4}:{s+7}], v[{QB}:{QB+3}], v[{d}:{d+15}]')

    def attn_loop(self, cz, sync):
        a = self.a
        O, VF, SB = self.AO, self.AVF, self.ASB
        self.at_kread(0); self.at_vread(0)
        a('s_waitcnt lgkmcnt(4)')
        self.at_smfma(0, 0, cz); self.at_smfma(0, 1, cz)
        for i in range(9):
            d = SB + 16 * (i % 2)
            if i < 8:
                if sync: sync(i)
                self.at_kread(i + 1)
                self.at_vread(i + 1)
                for r in range(0, 4): a(f'v_exp_f32 v{d+r}, v{d+r}')
                a('s_waitcnt lgkmcnt(4)')
                self.at_smfma(i + 1, 0, cz)
                for r in range(4, 8): a(f'v_exp_f32 v{d+r}, v{d+r}')
                for j in range(0, 2): a(f'v_cvt_pk_bf16_f32 v{d+j}, v{d+2*j}, v{d+2*j+1}')
                self.at_smfma(i + 1, 1, cz)
                for j in range(2, 4): a(f'v_cvt_pk_bf16_f32 v{d+j}, v{d+2*j}, v{d+2*j+1}')
                for r in range(8, 12): a(f'v_exp_f32 v{d+r}, v{d+r}')
            else:
                for r in range(0, 8): a(f'v_exp_f32 v{d+r}, v{d+r}')
                for j in range(0, 4): a(f'v_cvt_pk_bf16_f32 v{d+j}, v{d+2*j}, v{d+2*j+1}')
                a('s_waitcnt lgkmcnt(0)')
                for r in range(8, 12): a(f'v_exp_f32 v{d+r}, v{d+r}')
            s = VF + 8 * (i % 2)
            a(f'{MF32} v[{O}:{O+15}], v[{s}:{s+3}], v[{d}:{d+3}], {"0" if i == 0 else f"v[{O}:{O+15}]"}')
            for r in range(12, 16): a(f'v_exp_f32 v{d+r}, v{d+r}')
            for j in range(4, 8): a(f'v_cvt_pk_bf16_f32 v{d+j}, v{d+2*j}, v{d+2*j+1}')
            a(f'{MF32} v[{O}:{O+15}], v[{s+4}:{s+7}], v[{d+4}:{d+7}], v[{O}:{O+15}]')

    def attn_true(self):
        a = self.a
        MD, MF, SB, NM = self.AMD, self.AMF, self.ASB, self.ANM
        a('v_mov_b32 v10, 0xff7fffff')
        a('v_mov_b32 v11, 0xff7fffff')
        self.at_kread(0)
        for i in range(9):
            if i < 8:
                self.at_kread(i + 1); a('s_waitcnt lgkmcnt(2)')
            else: a('s_waitcnt lgkmcnt(0)')
            self.at_smfma(i, 0, '0'); self.at_smfma(i, 1, '0')
            d = SB + 16 * (i % 2)
            for k in range(0, 16, 4):
                a(f'v_max3_f32 v10, v10, v{d+k}, v{d+k+1}')
                a(f'v_max3_f32 v11, v11, v{d+k+2}, v{d+k+3}')
        a('v_max_f32 v10, v10, v11')
        a('v_mov_b32 v11, v10')
        a('v_permlane32_swap_b32 v10, v11')
        a('v_max_f32 v10, v10, v11')
        for r in range(16):
            a(f'v_sub_f32 v{NM+r}, 0, v10')
            a(f'v_sub_f32 v{MD+r}, v{MD+r}, v10')
            a(f'v_sub_f32 v{MF+r}, v{MF+r}, v10')
        self.attn_loop(f'v[{NM}:{NM+15}]', None)

    def attn_B(self):
        a = self.a
        FB1 = a.newlabel('AT_FB1'); FB2 = a.newlabel('AT_FB2'); DONE = a.newlabel('AT_DONE')
        L = self.if_wave('ge', 4)
        self.export_issue()
        a.label(L)
        self.attn_addr()
        self.attn_masks(self.AMD, self.AMF)
        if self.args.force_fallback:
            a(f's_branch {FB1}')
        self.norm_check(False, FB1)
        def sync_point(i):
            SK = a.newlabel('AT_SY')
            a(f's_cmp_lg_u32 s{sRB}, {i}')
            a(f's_cbranch_scc1 {SK}')
            if i < 4:
                a('s_call_b64 s[88:89], SUB_IMPORT')
            a('s_barrier')
            self.norm_check(True, FB2)
            a.label(SK)
        self.attn_loop('0', sync_point)
        a(f's_branch {DONE}')
        a.label(FB1)
        a('s_waitcnt lgkmcnt(0)')
        L = self.if_wave('ge', 4)
        a('s_call_b64 s[88:89], SUB_IMPORT')
        a.label(L)
        a('s_barrier')
        a.label(FB2)
        a('s_waitcnt vmcnt(0) lgkmcnt(0)')
        self.attn_true()
        a.label(DONE)

    def phi(self, r, tA, tB, sel_lo=False):
        a = self.a
        a(f'v_mul_f32 v{tA}, v102, v{r}')
        a(f'v_fma_f32 v{tB}, v101, v{r}, s52')
        a(f'v_exp_f32_e64 v{tA}, v{tA} clamp')
        a(f'v_max_f32 v{tB}, s52, v{tB}')
        if not sel_lo:
            a(f'v_add_f32 v{r}, v{tA}, v{tB}')
        else:
            a(f'v_add_f32 v{tA}, v{tA}, v{tB}')
            a(f'v_mul_f32 v{r}, v101, v{r}')
            a(f'v_cndmask_b32 v{r}, v{r}, v{tA}, {LO}')

    def epi_A(self):
        a = self.a
        A0, A1 = self.ACC0, self.ACC1
        QA, QB = self.QA, self.QB
        self.img_addr_regs()
        a('s_mov_b32 s53, 0x3fb8aa3b')
        a('v_mul_f32 v102, s53, v101')
        a('s_mov_b32 s52, 0x358637bd')
        t = 0
        def ph(r, sel=False):
            nonlocal t
            self.phi(r, 106 + 2 * (t % 4), 107 + 2 * (t % 4), sel); t += 1
        for r in list(range(A0 + 12, A0 + 16)) + list(range(A1, A1 + 4)): ph(r)
        for r in range(A1 + 4, A1 + 12): a(f'v_mul_f32 v{r}, v101, v{r}')
        for r in range(A1 + 12, A1 + 16): ph(r, True)
        pk = {'B0g3': (126, A0+12), 'B1g0': (128, A1), 'B1g1': (130, A1+4), 'B1g2': (132, A1+8), 'B1g3': (134, A1+12)}
        for n, (d, s_) in pk.items():
            a(f'v_cvt_pk_bf16_f32 v{d}, v{s_}, v{s_+1}')
            a(f'v_cvt_pk_bf16_f32 v{d+1}, v{s_+2}, v{s_+3}')
        self.write_img({n: d for n, (d, _) in pk.items()})
        for r in range(A0, A0 + 12): ph(r)
        for j in range(4): a(f'v_cvt_pk_bf16_f32 v{QA+j}, v{A0+2*j}, v{A0+2*j+1}')
        a(f'v_cvt_pk_bf16_f32 v{QB}, v{A0+8}, v{A0+9}')
        a(f'v_cvt_pk_bf16_f32 v{QB+1}, v{A0+10}, v{A0+11}')
        a('v_mov_b32 v13, 0')
        a(f'v_mov_b32 v{QB+2}, 0')
        a(f'v_mov_b32 v{QB+3}, 0')
        for j in range(2): a(f'v_cndmask_b32 v{QB+j}, v13, v{QB+j}, {LO}')
        a('s_waitcnt lgkmcnt(0)')
        a('s_barrier')

    def linear_attn(self):
        a = self.a
        QA, QB = self.QA, self.QB
        L = self.if_wave('ge', 4)
        a(f's_add_u32 s59, s{sLAYER}, 1')
        self.lds_wait('s59')
        self.dma_wo(0, 4)
        a.label(L)
        E = self.if_wave('eq', 0)
        a('v_lshrrev_b32 v11, 5, v1')
        a('v_bfe_u32 v12, v1, 2, 2')
        a('v_lshlrev_b32 v13, 2, v11')
        a('v_add_u32 v12, v12, v13')
        a('v_add_u32 v12, 256, v12')
        a('v_mul_u32_u24 v12, 48, v12')
        a('v_and_b32 v13, 3, v1')
        a('v_bfe_u32 v17, v1, 4, 1')
        a('v_min_u32 v15, 1, v13')
        a('v_lshlrev_b32 v15, 3, v15')
        a('v_add_u32 v15, 32, v15')
        a('v_lshlrev_b32 v14, 3, v13')
        a('v_and_b32 v16, 1, v13')
        a('v_lshlrev_b32 v16, 4, v16')
        a('v_lshrrev_b32 v18, 1, v13')
        a('v_lshlrev_b32 v18, 3, v18')
        a('v_add_u32 v16, v16, v18')
        a('v_cmp_eq_u32 vcc, 1, v17')
        a('v_cndmask_b32 v14, v14, v15, vcc')
        a('v_cndmask_b32 v16, v16, v15, vcc')
        a('v_add_u32 v104, v12, v16')
        a('v_add_u32 v105, v12, v14')
        a(f'v_add_u32 v105, {VIMG}, v105')
        D = 32
        NB = 4
        def rd(s2):
            s = 112 + 8 * (s2 % NB)
            a(f'ds_read_b64_tr_b16 v[{s}:{s+1}], v104 offset:{s2*768}')
            a(f'ds_read_b64_tr_b16 v[{s+2}:{s+3}], v104 offset:{s2*768+384}')
            a(f'ds_read_b64_tr_b16 v[{s+4}:{s+5}], v105 offset:{s2*768}')
            a(f'ds_read_b64_tr_b16 v[{s+6}:{s+7}], v105 offset:{s2*768+384}')
        for s2 in range(NB - 1): rd(s2)
        for s2 in range(16):
            if s2 + NB - 1 < 16: rd(s2 + NB - 1)
            pend = min(NB - 1, 15 - s2)
            a(f's_waitcnt lgkmcnt({4*pend})')
            s = 112 + 8 * (s2 % NB)
            a(f'{MF32} v[{D}:{D+15}], v[{s}:{s+3}], v[{s+4}:{s+7}], {"0" if s2 == 0 else f"v[{D}:{D+15}]"}')
        self.fstamp(53)
        a(f's_lshr_b32 s50, s{sLAYER}, 1')
        a(f's_mul_i32 s50, s50, {KVP_SZ}')
        a(f's_add_u32 s50, s50, {WS_KVP}')
        a(f's_lshl_b32 s51, s{sH}, 15')
        a('s_add_u32 s50, s50, s51')
        a(f's_lshl_b32 s51, s{sJ}, 12')
        a('s_add_u32 s51, s51, s50')
        for n in range(3):
            a(f'buffer_store_dwordx4 v[{D+4*n}:{D+4*n+3}], v2, {srd(S_WS)}, s51 offen offset:{n*1024} sc1')
        a('s_waitcnt vmcnt(0)')
        self.fstamp(54)
        a(f's_add_u32 s53, s{sLAYER}, 1')
        self.set_xflag(0, 's53')
        a(f's_lshl_b32 s54, s{sH}, 3')
        self.xflag_addr('s52', 's54')
        a('v_and_b32 v11, 7, v1')
        a('v_lshlrev_b32 v11, 6, v11')
        self.poll('v11', 's52', 8, 's53')
        self.fstamp(55)
        IB = [16, 28, 40, 52, 64, 76, 104, 116]
        for j in range(8):
            for n in range(3):
                r = IB[j] + 4 * n
                a(f'buffer_load_dwordx4 v[{r}:{r+3}], v2, {srd(S_WS)}, s50 offen offset:{n*1024} sc1')
            a('s_add_u32 s50, s50, 4096')
        a(f's_add_u32 s59, s{sLAYER}, 1')
        self.lds_signal('s59')
        for j in range(1, 8):
            a(f's_waitcnt vmcnt({3*(7-j)})')
            for r in range(12): a(f'v_add_f32 v{16+r}, v{16+r}, v{IB[j]+r}')
        self.fstamp(56)
        for j in range(6): a(f'v_cvt_pk_bf16_f32 v{64+j}, v{16+2*j}, v{17+2*j}')
        a(f'ds_write_b128 v2, v[64:67] offset:{L_KV}')
        a('v_lshlrev_b32 v13, 3, v1')
        a(f'ds_write_b64 v13, v[68:69] offset:{L_KV+1024}')
        a.label(E)
        a('s_waitcnt lgkmcnt(0)')
        a('s_barrier')
        a('v_lshlrev_b32 v13, 3, v1')
        a(f'ds_read_b128 v[64:67], v2 offset:{L_KV}')
        a(f'ds_read_b64 v[68:69], v13 offset:{L_KV+1024}')
        a('v_mov_b32 v70, 0\nv_mov_b32 v71, 0')
        a('s_waitcnt lgkmcnt(0)')
        a(f'{MF32} v[16:31], v[64:67], v[{QA}:{QA+3}], 0')
        a(f'{MF32} v[16:31], v[68:71], v[{QB}:{QB+3}], v[16:31]')

    def o_addr(self):
        a = self.a
        a(f's_lshl_b32 s50, s{sJ}, 4')
        a(f's_lshl_b32 s51, s{sRB}, 1')
        a('s_add_u32 s50, s50, s51')
        a('s_mul_i32 s50, s50, 20480')
        a(f's_add_u32 s50, s50, s{sOF}')
        a('v_bfe_u32 v11, v1, 4, 1')
        a('v_mul_u32_u24 v11, 20480, v11')
        a('v_and_b32 v12, 15, v1')
        a('v_lshlrev_b32 v12, 4, v12')
        a('v_add_u32 v11, v11, v12')
        a('v_lshrrev_b32 v12, 5, v1')
        a(f's_mul_i32 s51, s{sH}, 5')
        a('v_add_u32 v12, s51, v12')
        def qoff(dst, q):
            a(f'v_lshrrev_b32 v14, 3, {q}')
            a(f'v_lshlrev_b32 {dst}, 10, v14')
            a(f'v_bfe_u32 v14, {q}, 2, 1')
            a('v_lshlrev_b32 v14, 9, v14')
            a(f'v_add_u32 {dst}, {dst}, v14')
            a(f'v_and_b32 v14, 1, {q}')
            a('v_lshlrev_b32 v14, 8, v14')
            a(f'v_add_u32 {dst}, {dst}, v14')
            a(f'v_bfe_u32 v14, {q}, 1, 1')
            a('v_lshlrev_b32 v14, 3, v14')
            a(f'v_add_u32 {dst}, {dst}, v14')
            a(f'v_add_u32 {dst}, {dst}, v11')
        qoff('v40', 'v12')
        a('v_add_u32 v13, 2, v12')
        qoff('v41', 'v13')
        a('s_add_u32 s51, s51, 4')
        a('v_mov_b32 v13, s51')
        qoff('v42', 'v13')

    def finalize_o(self, eps):
        a = self.a
        self.o_addr()
        a(f'v_cndmask_b32 v10, v24, v28, {LO}')
        if eps: a('v_add_f32 v10, 0x358637bd, v10')
        a('v_rcp_f32 v10, v10')
        for r in range(12): a(f'v_mul_f32 v{16+r}, v10, v{16+r}')
        for j in range(6): a(f'v_cvt_pk_bf16_f32 v{32+j}, v{16+2*j}, v{17+2*j}')
        a(f'buffer_store_dwordx2 v[32:33], v40, {srd(S_WS)}, s50 offen')
        a(f'buffer_store_dwordx2 v[34:35], v41, {srd(S_WS)}, s50 offen')
        a('s_mov_b64 exec, 0xffffffff')
        a(f'buffer_store_dwordx2 v[36:37], v42, {srd(S_WS)}, s50 offen')
        a('s_mov_b64 exec, -1')
        a('s_waitcnt vmcnt(0)')

    def wo_phase(self):
        a = self.a
        OFR = 16; WF = 96; AC = 48; XOR_ = [88, 90, 92, 94, 136]
        HELP = a.newlabel('WO_HELP')
        a(f's_cmp_ge_u32 s{sW}, 4')
        a(f's_cbranch_scc1 {HELP}')
        a(f's_lshr_b32 s50, s{sH}, 3')
        a(f's_and_b32 s51, s{sH}, 7')
        a(f's_and_b32 s52, s{sW}, 1')
        a(f's_lshr_b32 s53, s{sW}, 1')
        a(f's_lshl_b32 s54, s{sJ}, 4')
        a('s_lshl_b32 s55, s50, 2')
        a('s_add_u32 s54, s54, s55')
        a('s_lshl_b32 s55, s52, 1')
        a('s_add_u32 s54, s54, s55')
        a('s_mul_i32 s55, s54, 20480')
        a('s_mul_i32 s56, s53, 10240')
        a('s_add_u32 s55, s55, s56')
        a(f's_add_u32 s55, s55, s{sOF}')
        a('s_add_u32 s56, s55, 20480')
        vq = VQ()
        def oload(i):
            for aa in range(2):
                r = OFR + 8 * (i % 4) + 4 * aa
                sb = 's55' if aa == 0 else 's56'
                a(f'buffer_load_dwordx4 v[{r}:{r+3}], v2, {srd(S_WS)}, {sb} offen offset:{(i % 4) * 1024} sc1')
                vq.push(('o', i))
            if i % 4 == 3:
                a('s_add_u32 s55, s55, 4096\ns_add_u32 s56, s56, 4096')
        PF = 3
        for i in range(PF): oload(i)
        self.fstamp(59)
        a('s_mul_i32 s60, s53, 51200')
        a(f's_add_u32 s60, s60, {R_O}')
        a('v_add_u32 v11, s60, v2')
        def wrd1(i, c):
            s = WF + 20 * (i % 2)
            a(f'ds_read_b128 v[{s+4*c}:{s+4*c+3}], v11 offset:{(i*5 + c)*1024}')
        for c in range(5): wrd1(0, c)
        a('s_add_u32 s57, s54, s53')
        a('s_lshr_b32 s58, s57, 1')
        a('s_mul_i32 s58, s58, 40960')
        a('s_mul_i32 s59, s51, 5120')
        a('s_add_u32 s58, s58, s59')
        a('s_and_b32 s59, s57, 1')
        a('s_lshl_b32 s59, s59, 8')
        a('s_add_u32 s58, s58, s59')
        a(f's_add_u32 s59, s58, s{sXF}')
        a('v_lshrrev_b32 v10, 5, v1')
        a('v_lshlrev_b32 v10, 9, v10')
        a('v_and_b32 v12, 15, v1')
        a('v_lshlrev_b32 v12, 4, v12')
        a('v_add_u32 v10, v10, v12')
        a('v_bfe_u32 v12, v1, 4, 1')
        a('v_lshlrev_b32 v12, 3, v12')
        a('v_add_u32 v10, v10, v12')
        self.fstamp(60)
        for i in range(10):
            s = WF + 20 * (i % 2)
            a(f's_waitcnt vmcnt({vq.cnt(("o", i))})')
            if i == 1: self.fstamp(61)
            for c in range(5):
                lg = 4 if i < 9 else (4 - c)
                a(f's_waitcnt lgkmcnt({lg})')
                for aa in range(2):
                    d = AC + 20 * aa + 4 * c; o = OFR + 8 * (i % 4) + 4 * aa
                    cc = '0' if i == 0 else f'v[{d}:{d+3}]'
                    a(f'{MF16} v[{d}:{d+3}], v[{s+4*c}:{s+4*c+3}], v[{o}:{o+3}], {cc}')
                if i < 9: wrd1(i + 1, c)
                if c == 1 and i + PF < 10: oload(i + PF)
                if c == 3 and i >= 5:
                    cc = i - 5
                    if cc == 4: a('s_add_u32 s59, s59, 4096')
                    a(f'buffer_load_dwordx2 v[{XOR_[cc]}:{XOR_[cc]+1}], v10, {srd(S_WS)}, s59 offen offset:{(cc % 4) * 1024} sc1')
                    vq.push('res')
        self.fstamp(62)
        a(f's_mul_i32 s60, s{sW}, 5120')
        a(f's_add_u32 s60, s60, {SCR}')
        a('v_add_u32 v12, s60, v2')
        K1 = a.newlabel('WO_KH1'); K2 = a.newlabel('WO_KH2')
        a('s_cmp_eq_u32 s53, 0')
        a(f's_cbranch_scc0 {K1}')
        for c in range(5): a(f'ds_write_b128 v12, v[{AC+20+4*c}:{AC+20+4*c+3}] offset:{c*1024}')
        a(f's_branch {K2}')
        a.label(K1)
        for c in range(5): a(f'ds_write_b128 v12, v[{AC+4*c}:{AC+4*c+3}] offset:{c*1024}')
        for r in range(20): a(f'v_mov_b32 v{AC+r}, v{AC+20+r}')
        a.label(K2)
        a('s_waitcnt lgkmcnt(0)')
        a.label(HELP)
        a('s_barrier')
        self.stamp(9, True)
        H2 = a.newlabel('WO_H2'); H3 = a.newlabel('WO_H3')
        a(f's_cmp_ge_u32 s{sW}, 4')
        a(f's_cbranch_scc1 {H2}')
        a(f's_xor_b32 s60, s{sW}, 2')
        a('s_mul_i32 s60, s60, 5120')
        a(f's_add_u32 s60, s60, {SCR}')
        a('v_add_u32 v12, s60, v2')
        for c in range(5): a(f'ds_read_b128 v[{16+4*c}:{19+4*c}], v12 offset:{c*1024}')
        a('s_waitcnt vmcnt(0)')
        for c in range(5):
            x0, x1 = XOR_[c], XOR_[c] + 1
            b = 100 + 4 * c
            a(f'v_lshlrev_b32 v{b}, 16, v{x0}\nv_and_b32 v{b+1}, 0xffff0000, v{x0}\nv_lshlrev_b32 v{b+2}, 16, v{x1}\nv_and_b32 v{b+3}, 0xffff0000, v{x1}')
            for r in range(4): a(f'v_add_f32 v{AC+4*c+r}, v{AC+4*c+r}, v{b+r}')
        a('s_waitcnt lgkmcnt(0)')
        for c in range(5):
            for r in range(4): a(f'v_add_f32 v{AC+4*c+r}, v{AC+4*c+r}, v{16+4*c+r}')
            a(f'v_cvt_pk_bf16_f32 v{120+2*c}, v{AC+4*c}, v{AC+4*c+1}')
            a(f'v_cvt_pk_bf16_f32 v{121+2*c}, v{AC+4*c+2}, v{AC+4*c+3}')
        LAST = a.newlabel('WO_LAST')
        a(f's_cmp_eq_u32 s{sLAYER}, 3')
        a(f's_cbranch_scc1 {LAST}')
        a(f's_add_u32 s59, s58, s{sXFN}')
        for c in range(5):
            if c == 4: a('s_add_u32 s59, s59, 4096')
            a(f'buffer_store_dwordx2 v[{120+2*c}:{121+2*c}], v10, {srd(S_WS)}, s59 offen offset:{(c % 4) * 1024}')
        a(f'v_add_f32 v40, v{AC}, v{AC+1}')
        a(f'v_add_f32 v42, v{AC+2}, v{AC+3}')
        a(f'v_mul_f32 v41, v{AC}, v{AC}')
        a(f'v_mul_f32 v43, v{AC+1}, v{AC+1}')
        a(f'v_fmac_f32 v41, v{AC+2}, v{AC+2}')
        a(f'v_fmac_f32 v43, v{AC+3}, v{AC+3}')
        for k in range(4, 20, 2):
            a(f'v_add_f32 v40, v40, v{AC+k}')
            a(f'v_add_f32 v42, v42, v{AC+k+1}')
            a(f'v_fmac_f32 v41, v{AC+k}, v{AC+k}')
            a(f'v_fmac_f32 v43, v{AC+k+1}, v{AC+k+1}')
        a('v_add_f32 v40, v40, v42')
        a('v_add_f32 v41, v41, v43')
        a('v_mov_b32 v42, v40\nv_mov_b32 v43, v41')
        a('v_permlane16_swap_b32 v40, v42')
        a('v_permlane16_swap_b32 v41, v43')
        a('v_add_f32 v40, v40, v42\nv_add_f32 v41, v41, v43')
        a('v_mov_b32 v42, v40\nv_mov_b32 v43, v41')
        a('v_permlane32_swap_b32 v40, v42')
        a('v_permlane32_swap_b32 v41, v43')
        a('v_add_f32 v40, v40, v42\nv_add_f32 v41, v41, v43')
        a('s_lshl_b32 s60, s57, 10')
        a('s_lshl_b32 s61, s51, 3')
        a('s_add_u32 s60, s60, s61')
        a(f's_add_u32 s60, s60, s{sSTN}')
        a('v_lshlrev_b32 v42, 6, v1')
        a('s_mov_b64 exec, 0xffff')
        a(f'buffer_store_dwordx2 v[40:41], v42, {srd(S_WS)}, s60 offen')
        a('s_mov_b64 exec, -1')
        self.stash_writeback()
        a('s_waitcnt lgkmcnt(0)')
        a(f's_branch {H3}')
        a.label(LAST)
        a('s_mul_i32 s60, s57, 20480')
        a('s_mul_i32 s61, s51, 160')
        a('s_add_u32 s60, s60, s61')
        a('v_and_b32 v42, 15, v1')
        a('v_mul_u32_u24 v42, 1280, v42')
        a('v_lshrrev_b32 v43, 4, v1')
        a('v_lshlrev_b32 v43, 3, v43')
        a('v_add_u32 v42, v42, v43')
        for c in range(5):
            a(f'buffer_store_dwordx2 v[{120+2*c}:{121+2*c}], v42, {srd(S_OUT)}, s60 offen offset:{c*32}')
        a(f's_branch {H3}')
        a.label(H2)
        self.stash_writeback()
        a('s_waitcnt lgkmcnt(0)')
        a.label(H3)

    def set_layer_bases(self):
        a = self.a
        if self.args.noreuse:
            a(f's_mul_i32 s50, s{sLAYER}, {XF_SZ}')
            a(f's_add_u32 s{sXF}, s50, {WS_XF}')
            a(f's_add_u32 s{sXFN}, s{sXF}, {XF_SZ}')
            a(f's_add_u32 s{sOF}, s50, {WS_OF}')
            a(f's_mul_i32 s50, s{sLAYER}, {ST_SZ}')
            a(f's_add_u32 s{sST}, s50, {WS_ST}')
            a(f's_add_u32 s{sSTN}, s{sST}, {ST_SZ}')
            return
        a(f's_and_b32 s51, s{sLAYER}, 1')
        a(f's_mul_i32 s50, s51, {XF_SZ}')
        a(f's_add_u32 s{sXF}, s50, {WS_XF}')
        a(f's_sub_u32 s{sXFN}, {2*WS_XF + XF_SZ}, s{sXF}')
        a(f's_mov_b32 s{sOF}, {WS_OF}')
        a(f's_mul_i32 s50, s51, {ST_SZ}')
        a(f's_add_u32 s{sST}, s50, {WS_ST}')
        a(f's_sub_u32 s{sSTN}, {2*WS_ST + ST_SZ}, s{sST}')

    def build(self):
        a = self.a
        args = self.args
        if args.prof: a('v_mov_b32 v9, 0')
        self.stamp(0)
        if args.prof:
            a('s_memtime s[86:87]')
            a('s_waitcnt lgkmcnt(0)')
        self.entry()
        self.p0()
        self.stamp(1)
        def between0():
            self.colsum_raw_others()
        self.lbar(first=True, between=self.between0)
        self.stamp(2)
        self.set_layer_bases()
        self.qkv_main(packed=False)
        self.ln_fix(packed=False)
        self.stashB_load()
        self.stamp(3, True)
        a('s_branch L_AFTERQKV')
        a.label('L_LAYER')
        self.set_layer_bases()
        self.qkv_main(packed=True)
        self.ln_fix(packed=True)
        self.stamp(3, True)
        a.label('L_AFTERQKV')
        if args.stop == 'qkv':
            SK = a.newlabel('DBG')
            a(f's_cmp_lg_u32 s{sLAYER}, {args.layer}')
            a(f's_cbranch_scc1 {SK}')
            for r in range(16, 48): a(f'v_mul_f32 v{r}, v101, v{r}')
            self.dbg_dump(list(range(16, 48, 4)), 0)
            a('s_branch L_END')
            a.label(SK)
        a(f's_bitcmp1_b32 s{sLAYER}, 0')
        a('s_cbranch_scc1 L_BLAYER')
        self.epi_A()
        self.stamp(4, True)
        self.linear_attn()
        self.stamp(6, True)
        self.finalize_o(eps=True)
        LC = a.newlabel('CSB')
        a(f's_cmp_lg_u32 s{sLAYER}, 0')
        a(f's_cbranch_scc1 {LC}')
        self.stashB_cs_sum()
        a.label(LC)
        a('s_branch L_ODONE')
        a.label('L_BLAYER')
        self.epi_B()
        self.stamp(4, True)
        self.attn_B()
        self.stamp(6, True)
        self.finalize_o(eps=False)
        L = self.if_wave('lt', 4)
        self.dma_wo(1, 0)
        a.label(L)
        self.stamp(7, True)
        self.lbar(poller=4, between=lambda: a('s_waitcnt vmcnt(0)'))
        a('s_branch L_BAR1DONE')
        a.label('L_ODONE')
        self.stamp(7, True)
        self.lbar(between=lambda: a('s_waitcnt vmcnt(0)'))
        a.label('L_BAR1DONE')
        self.stamp(8, True)
        if args.stop == 'o':
            a(f's_cmp_eq_u32 s{sLAYER}, {args.layer}')
            a('s_cbranch_scc1 L_END')
        self.wo_phase()
        self.stamp(10, True)
        a(f's_cmp_eq_u32 s{sLAYER}, 3')
        a('s_cbranch_scc1 L_FIN')
        L = self.if_wave('lt', 4)
        a('s_waitcnt vmcnt(0)')
        a.label(L)
        self.stamp(11, True)
        self.lbar(between=lambda: a('s_waitcnt vmcnt(0)'))
        self.stamp(12, True)
        if args.stop == 'x':
            a(f's_cmp_eq_u32 s{sLAYER}, {args.layer}')
            a('s_cbranch_scc1 L_END')
        a(f's_add_u32 s{sLAYER}, s{sLAYER}, 1')
        a('s_branch L_LAYER')
        a.label('L_FIN')
        a('s_waitcnt vmcnt(0)')
        self.stamp(51)
        if args.prof:
            a('s_memtime s[82:83]')
            a('s_waitcnt lgkmcnt(0)')
            a('s_sub_u32 s82, s82, s86')
            a('v_writelane_b32 v9, s82, 52')
        self.stamp_out()
        a('L_END:')
        a('s_endpgm')
        a.label('SUB_IMPORT')
        a('s_nop 4')
        self.export_finish_import()
        a('s_nop 4')
        a('s_setpc_b64 s[88:89]')
        body = a.finalize(verbose=True)
        hdr = open("header.txt").read() + f"""; generated by my generator script gen/gen2.py (hand-designed persistent kernel)
; @launch grid=(256,1,1) block=(512,1,1) lds={LDS_BYTES}
.amdgcn_target "amdgcn-amd-amdhsa--gfx950"
.text
.globl {KNAME}
.p2align 8
.type {KNAME},@function
{KNAME}:
"""
        ftr = f""".section .rodata,"a"
.p2align 6
.amdhsa_kernel {KNAME}
  .amdhsa_next_free_vgpr 256
  .amdhsa_next_free_sgpr 102
  .amdhsa_accum_offset 256
  .amdhsa_group_segment_fixed_size 0
  .amdhsa_kernarg_size 72
  .amdhsa_user_sgpr_count 2
  .amdhsa_user_sgpr_kernarg_segment_ptr 1
  .amdhsa_system_sgpr_workgroup_id_x 1
  .amdhsa_float_denorm_mode_32 3
  .amdhsa_float_denorm_mode_16_64 3
.end_amdhsa_kernel
"""
        return hdr + body + ftr

    def between0(self):
        a = self.a
        self.stashA_make()
        L = self.if_wave('eq', 3)
        self.check_packs()
        a.label(L)

if __name__ == '__main__':
    import struct
    ap = argparse.ArgumentParser()
    ap.add_argument('-o', default='out.s')
    ap.add_argument('--stop', default='')
    ap.add_argument('--layer', type=int, default=0)
    ap.add_argument('--spin', type=int, default=20000)
    ap.add_argument('--flayer', type=int, default=1)
    ap.add_argument('--cyc', action='store_true')
    ap.add_argument('--prof', action='store_true')
    ap.add_argument('--noreuse', action='store_true')
    ap.add_argument('--notouch', action='store_true')
    ap.add_argument('--force_generic', action='store_true')
    ap.add_argument('--force_fallback', action='store_true')
    ap.add_argument('--T', type=float, default=56.0)
    args = ap.parse_args()
    args.t2hex = hex(struct.unpack('<I', struct.pack('<f', args.T * args.T))[0])
    g = G(args)
    open(args.o, 'w').write(g.build())
```

```python
import sys, argparse
sys.path.insert(0, 'gen')
from asmlib import Asm

KNAME = "interleave_layers__linear_attn_block__sliding_block__prompt_kernel"

WS_LFLAG = 0x0000
WS_XFLAG = 0x4000
WS_XF = 0x100000;  XF_SZ = 0x2B0000
RBS = 41984
OBS = 21504
WS_OF = 0x1000000
WS_ST = 0x2000000; ST_SZ = 0x20000
WS_KVX = 0x2200000; KVX_SZ = 0x600000
WS_KVP = 0x3000000; KVP_SZ = 0x100000
WS_PW = 0x4000000; PW_SZ = 81920
WS_PCS = 0x4800000
WS_PO = 0x4900000; PO_SZ = 102400
WS_DBG = 0x8000000

KIMG, VIMG = 0, 24576
L_MISC = 49152
L_CS = L_MISC + 1024
L_KN = L_MISC + 2048
L_KV = L_MISC + 4096
L_MODE = 61424
R_O = 61440
PWL = 81920
RW0 = 71424
WK, WQ, WV = RW0, RW0 + 30768, RW0 + 61536
TK, TQ, TV = 0, 4096, 8192
TBOFF = 12288
SCR = 0
TO = 24576
L_SIG = L_MISC + 3072
L_CNTA = L_MISC + 3080
L_CNTB = L_MISC + 3084
LDS_BYTES = 163840

S_WS, S_X0, S_WQA, S_WOA, S_WQB, S_WOB, S_OUT, S_DBG = 4, 8, 12, 16, 20, 24, 28, 32
sJ, sH, sW, sMODE, sDEAD, sEPOCH, sLAYER, sRB = 36, 37, 38, 39, 40, 41, 42, 43
sLO32 = 44
sXF, sOF, sST = 46, 47, 48
sXCC = 49
sXFN, sSTN = 90, 91
sNONCE = 93
sNEED = 96
sSH = 97
WS_GXCC = 0x2000
WS_XKN = 0x8000
L_NONCE = 61428
LO = f's[{sLO32}:{sLO32+1}]'

def srd(n): return f's[{n}:{n+3}]'

QUADS = {
    0: [(('q', 0), ('q', 1)), (('q', 2), ('q', 3)), (('q', 4), ('q', 5)), (('k', 4), ('k', 3))],
    1: [(('k', 0), ('k', 1)), (('v', 0), ('v', 1)), (('v', 2), ('v', 3)), (('k', 2), ('v', 4))],
}
def quad_off(sec, i, bases):
    bk, bq, bv = bases
    if sec == 'k': return bk + (i + 1) * 8
    if sec == 'q': return bq + i * 8
    return bv + i * 8

vCSA, vCSB = 188, 190
def stash_reg(mat, i):
    if mat == 0: return 192 + 4 * i
    return 144 + 4 * i if i < 4 else 232 + 4 * (i - 4)

MF32 = 'v_mfma_f32_32x32x16_bf16'
MF16 = 'v_mfma_f32_16x16x32_bf16'

class VQ:
    def __init__(self): self.q = []
    def push(self, tag): self.q.append(tag)
    def cnt(self, tag):
        i = max(k for k, t in enumerate(self.q) if t == tag)
        return min(63, len(self.q) - 1 - i)

class G:
    def __init__(self, args):
        self.a = Asm(); self.args = args

    def stamp(self, idx, per_layer=False):
        if not self.args.prof: return
        a = self.a
        a('s_memtime s[82:83]' if self.args.cyc else 's_memrealtime s[82:83]')
        a('s_waitcnt lgkmcnt(0)')
        if per_layer:
            a(f's_mul_i32 s84, s{sLAYER}, 12')
            a(f's_add_u32 s84, s84, {idx}')
            a('s_mov_b32 m0, s84')
            a('s_nop 1')
            a('v_writelane_b32 v9, s82, m0')
        else:
            a(f'v_writelane_b32 v9, s82, {idx}')
    def cstamp(self, idx):
        if not (self.args.prof and self.args.clk): return
        a = self.a
        SK = a.newlabel('CST')
        a(f's_cmp_lg_u32 s{sLAYER}, {self.args.flayer}')
        a(f's_cbranch_scc1 {SK}')
        a('s_memtime s[82:83]')
        a('s_waitcnt lgkmcnt(0)')
        a(f'v_writelane_b32 v9, s82, {idx}')
        a('s_memrealtime s[82:83]')
        a('s_waitcnt lgkmcnt(0)')
        a(f'v_writelane_b32 v9, s82, {idx+1}')
        a.label(SK)
    def fstamp(self, idx):
        if not self.args.prof or self.args.clk: return
        a = self.a
        SK = a.newlabel('FST')
        a(f's_cmp_lg_u32 s{sLAYER}, {self.args.flayer}')
        a(f's_cbranch_scc1 {SK}')
        self.stamp(idx)
        a.label(SK)
    def stamp_out(self):
        if not self.args.prof: return
        a = self.a
        a('s_lshl_b32 s50, s2, 3')
        a(f's_add_u32 s50, s50, s{sW}')
        a('s_lshl_b32 s50, s50, 8')
        a(f's_add_u32 s50, s50, {WS_DBG + 0x400000}')
        a('v_lshlrev_b32 v10, 2, v1')
        a(f'buffer_store_dword v9, v10, {srd(S_WS)}, s50 offen')
        a('s_waitcnt vmcnt(0)')
    def dbg_dump(self, regs, slot):
        a = self.a
        n = len(regs)
        a(f's_mul_i32 s50, s2, {8*n*1024}')
        a(f's_mul_i32 s51, s{sW}, {n*1024}')
        a('s_add_u32 s50, s50, s51')
        a(f's_add_u32 s50, s50, {WS_DBG + slot}')
        for i, r in enumerate(regs):
            a(f'buffer_store_dwordx4 v[{r}:{r+3}], v2, {srd(S_WS)}, s50 offen')
            a('s_add_u32 s50, s50, 1024')
        a('s_waitcnt vmcnt(0)')

    def if_wave(self, cond, val):
        a = self.a
        L = a.newlabel('W')
        inv = {'eq': 's_cmp_lg_u32', 'lt': 's_cmp_ge_u32', 'ge': 's_cmp_lt_u32'}[cond]
        a(f'{inv} s{sW}, {val}')
        a(f's_cbranch_scc1 {L}')
        return L

    def tr_bases(self, d0, d1, bases, tmp=10):
        a = self.a
        t, u, w = f'v{tmp}', f'v{tmp+1}', f'v{tmp+2}'
        a(f'v_bfe_u32 {t}, v1, 4, 1')
        a(f'v_lshlrev_b32 {t}, 2, {t}')
        a(f'v_and_b32 {u}, 3, v1')
        a(f'v_add_u32 {t}, {t}, {u}')
        for B, d in ((0, d0), (1, d1)):
            offs = [quad_off(*QUADS[B][x >> 1][x & 1], bases) for x in range(8)]
            a(f'v_mov_b32 v{d}, {offs[0]}')
            for x in range(1, 8):
                a(f'v_cmp_eq_u32 vcc, {x}, {t}')
                a(f'v_mov_b32 {w}, {offs[x]}')
                a(f'v_cndmask_b32 v{d}, v{d}, {w}, vcc')
        a(f'v_bfe_u32 {u}, v1, 2, 2')
        a(f'v_mul_u32_u24 {u}, 192, {u}')
        a(f'v_lshrrev_b32 {w}, 5, v1')
        a(f'v_mul_u32_u24 {w}, 96, {w}')
        a(f'v_add_u32 {u}, {u}, {w}')
        a(f'v_add_u32 v{d0}, v{d0}, {u}')
        a(f'v_add_u32 v{d1}, v{d1}, {u}')

    def raw_patterns(self):
        a = self.a
        a(f's_mul_i32 s50, s{sH}, 40')
        for u in range(3):
            d = f'v{4+u}'
            a(f'v_add_u32 v10, {64*u}, v1')
            a('v_mul_u32_u24 v11, 21846, v10')
            a('v_lshrrev_b32 v11, 16, v11')
            a('v_mul_u32_u24 v12, 3, v11')
            a('v_sub_u32 v12, v10, v12')
            a('v_lshlrev_b32 v12, 4, v12')
            a('v_and_b32 v13, 0x30, v11')
            a('v_and_b32 v14, 3, v11')
            a('v_lshlrev_b32 v14, 2, v14')
            a('v_add_u32 v13, v13, v14')
            a('v_bfe_u32 v14, v11, 2, 2')
            a('v_add_u32 v13, v13, v14')
            a('v_mul_u32_u24 v13, 3840, v13')
            a('v_add_u32 v13, v13, v12')
            a(f'v_add_u32 {d}, s50, v13')

    def entry(self):
        a = self.a
        a('s_cmp_ge_u32 s2, 256')
        a('s_cbranch_scc1 L_END')
        a('s_load_dwordx16 s[64:79], s[0:1], 0')
        a('s_load_dwordx2 s[80:81], s[0:1], 64')
        a(f's_getreg_b32 s{sXCC}, hwreg(HW_REG_XCC_ID, 0, 4)')
        a(f's_and_b32 s{sJ}, s2, 7')
        a(f's_lshr_b32 s{sH}, s2, 3')
        a('v_lshrrev_b32 v3, 6, v0')
        a('v_and_b32 v1, 63, v0')
        a(f'v_readfirstlane_b32 s{sW}, v3')
        a('v_lshlrev_b32 v2, 4, v1')
        a(f's_mov_b32 s{sLO32}, -1')
        a(f's_mov_b32 s{sLO32+1}, 0')
        a(f's_mov_b32 s{sMODE}, 0')
        a(f's_mov_b32 s{sDEAD}, 0')
        a(f's_mov_b32 s{sEPOCH}, 0')
        a(f's_mov_b32 s{sLAYER}, 0')
        a(f's_sub_u32 s50, 7, s{sW}')
        a(f's_sub_u32 s51, s{sW}, 4')
        a(f's_cmp_lt_u32 s{sW}, 4')
        a(f's_cselect_b32 s{sRB}, s50, s51')
        a(f's_add_u32 s{sSH}, s{sW}, s{sJ}')
        a(f's_and_b32 s{sSH}, s{sSH}, 7')
        a('s_waitcnt lgkmcnt(0)')
        def mk(dst, src, size):
            a(f's_mov_b32 s{dst}, s{src}')
            a(f's_and_b32 s{dst+1}, s{src+1}, 0xffff')
            a(f's_mov_b32 s{dst+2}, {size}')
            a(f's_mov_b32 s{dst+3}, 0x20000')
        mk(S_X0, 64, 2621440)
        mk(S_WS, 80, 0x10000000)
        mk(S_WQA, 66, 2457600)
        L = self.if_wave('eq', 1)
        self.raw_patterns()
        self.raw_part_dma(S_WQA, 0)
        a.label(L)
        self.p0_xloads()
        self.raw_patterns()
        mk(S_WOA, 68, 819200)
        mk(S_WQB, 72, 2457600); mk(S_WOB, 74, 819200); mk(S_OUT, 76, 2621440); mk(S_DBG, 78, 256)

    def init_flags(self):
        a = self.a
        G = a.newlabel('NON_GET'); D = a.newlabel('NON_DONE'); L = a.newlabel('NON_POLL')
        a('s_cmp_lg_u32 s2, 0')
        a(f's_cbranch_scc1 {G}')
        a('s_memrealtime s[50:51]')
        a('s_waitcnt lgkmcnt(0)')
        a('s_mul_i32 s50, s50, 0x9E3779B1')
        a('s_mul_i32 s51, s51, 0x85EBCA77')
        a('s_xor_b32 s50, s50, s51')
        a('s_lshr_b32 s51, s50, 15')
        a('s_xor_b32 s50, s50, s51')
        a('s_mul_i32 s50, s50, 0x2C1B3C6D')
        a('s_andn2_b32 s50, s50, 0x7f')
        a(f's_or_b32 s{sNONCE}, s50, 0x40')
        a(f'v_mov_b32 v10, s{sNONCE}')
        a('v_mov_b32 v11, 0')
        a('s_mov_b64 exec, 1')
        a(f'buffer_store_dword v10, v11, {srd(S_DBG)}, 0 offen sc1')
        a('s_mov_b64 exec, -1')
        a(f's_branch {D}')
        a.label(G)
        a('s_mov_b32 s60, 0')
        a('v_mov_b32 v11, 0')
        a.label(L)
        a(f'buffer_load_dword v12, v11, {srd(S_DBG)}, 0 offen sc1')
        a('s_waitcnt vmcnt(0)')
        a(f'v_readfirstlane_b32 s{sNONCE}, v12')
        a(f's_cmp_lg_u32 s{sNONCE}, 0')
        a(f's_cbranch_scc1 {D}')
        a('s_sleep 4')
        a('s_add_u32 s60, s60, 1')
        a(f's_cmp_lt_u32 s60, {self.args.spin}')
        a(f's_cbranch_scc1 {L}')
        a(f's_mov_b32 s{sDEAD}, 1')
        a.label(D)
        a(f's_lshl_b32 s50, s{sJ}, 8')
        a(f's_lshl_b32 s51, s{sH}, 2')
        a('s_add_u32 s50, s50, s51')
        a(f's_add_u32 s50, s50, {WS_GXCC}')
        a(f's_and_b32 s51, s{sXCC}, 7')
        a(f's_add_u32 s51, s51, s{sNONCE}')
        a('s_add_u32 s51, s51, 8')
        a('v_mov_b32 v10, s51')
        a('v_mov_b32 v11, 0')
        a('s_mov_b64 exec, 1')
        a(f'buffer_store_dword v10, v11, {srd(S_WS)}, s50 offen sc1')
        a('s_mov_b64 exec, -1')
        a(f'v_mov_b32 v10, s{sNONCE}')
        a(f'v_mov_b32 v11, {L_NONCE}')
        a('ds_write_b32 v11, v10')

    def dma_raw(self, srdW, items):
        a = self.a
        base = {'k': WK, 'q': WQ, 'v': WV}
        soff = {'k': 1280 - 8, 'q': 0, 'v': 2560}
        for sec, Gi in items:
            a(f's_add_u32 s55, s92, {Gi}')
            a('s_cmp_ge_u32 s55, 10')
            a('s_cselect_b32 s56, 10, 0')
            a('s_sub_u32 s55, s55, s56')
            a(f's_mul_i32 s56, s55, {64*3840}')
            a(f's_add_u32 s50, s56, {soff[sec]}')
            a('s_mul_i32 s55, s55, 3072')
            for u in range(3):
                a(f's_add_u32 m0, s55, {base[sec] + u*1024}')
                a(f'buffer_load_dwordx4 v{4+u}, {srd(srdW)}, s50 offen lds')

    def dma_packed(self, nw, w0):
        a = self.a
        per = 80 // nw
        a(f's_add_u32 s50, s{sLAYER}, 1')
        a('s_and_b32 s50, s50, 1')
        a('s_lshl_b32 s50, s50, 5')
        a(f's_add_u32 s50, s50, s{sH}')
        a(f's_mul_i32 s50, s50, {PW_SZ}')
        a(f's_sub_u32 s51, s{sW}, {w0}')
        a(f's_mul_i32 s51, s51, {per*1024}')
        a('s_add_u32 s50, s50, s51')
        a(f's_add_u32 s50, s50, {WS_PW}')
        a(f's_add_u32 s51, s51, {PWL}')
        for i in range(per):
            a(f's_add_u32 m0, s51, {i*1024}')
            if i % 4 == 0 and i > 0: a('s_add_u32 s50, s50, 4096')
            a(f'buffer_load_dwordx4 v2, {srd(S_WS)}, s50 offen sc1 lds') if i % 4 == 0 else None
            if i % 4 != 0:
                a(f's_add_u32 s52, s50, {(i%4)*1024}')
                a(f'buffer_load_dwordx4 v2, {srd(S_WS)}, s52 offen sc1 lds')

    def dma_wo(self, mat, w0):
        a = self.a
        a(f's_and_b32 s50, s{sH}, 7')
        a(f's_add_u32 s50, s50, {mat*8}')
        a(f's_mul_i32 s50, s50, {PO_SZ}')
        a(f's_sub_u32 s51, s{sW}, {w0}')
        a('s_mul_i32 s51, s51, 25600')
        a('s_add_u32 s50, s50, s51')
        a(f's_add_u32 s50, s50, {WS_PO}')
        a(f's_add_u32 s51, s51, {R_O}')
        for i in range(25):
            a(f's_add_u32 m0, s51, {i*1024}')
            a(f's_add_u32 s52, s50, {i*1024}')
            a(f'buffer_load_dwordx4 v2, {srd(S_WS)}, s52 offen sc1 lds')

    def touch_w(self, w0, nw):
        a = self.a
        E = a.newlabel('TW_E')
        a(f's_cmp_eq_u32 s{sLAYER}, 3')
        a(f's_cbranch_scc1 {E}')
        a(f's_add_u32 s50, s{sLAYER}, 1')
        a('s_and_b32 s50, s50, 1')
        a('s_lshl_b32 s50, s50, 5')
        a(f's_add_u32 s50, s50, s{sH}')
        a(f's_mul_i32 s50, s50, {PW_SZ}')
        a(f's_add_u32 s50, s50, {WS_PW}')
        a('v_lshlrev_b32 v11, 7, v1')
        per = -(-10 // nw)
        for t in range(per):
            SK = a.newlabel('TW_SK')
            a(f's_sub_u32 s51, s{sW}, {w0}')
            a(f's_add_u32 s51, s51, {t*nw}')
            a('s_cmp_ge_u32 s51, 10')
            a(f's_cbranch_scc1 {SK}')
            a(f's_add_u32 s51, s51, s{sJ}')
            a('s_cmp_ge_u32 s51, 10')
            a('s_cselect_b32 s52, 10, 0')
            a('s_sub_u32 s51, s51, s52')
            a('s_lshl_b32 s51, s51, 13')
            a('s_add_u32 s51, s51, s50')
            a(f'buffer_load_dword v{250+t}, v11, {srd(S_WS)}, s51 offen sc1')
            a.label(SK)
        a.label(E)

    def check_packs(self):
        a = self.a
        a(f's_lshl_b32 s54, s{sH}, 3')
        self.xflag_addr('s52', 's54')
        a('v_and_b32 v11, 7, v1')
        a('v_lshlrev_b32 v11, 6, v11')
        a('v_add_u32 v11, 16, v11')
        a('s_mov_b32 s53, 1')
        self.poll('v11', 's52', 8, 's53')
        for mat in range(2):
            a(f's_and_b32 s50, s{sH}, 7')
            a(f's_add_u32 s50, s50, {mat*8}')
            a('s_mul_i32 s53, s50, 20')
            a('v_min_u32 v11, 19, v1')
            a('v_add_u32 v11, s53, v11')
            a('v_and_b32 v11, 255, v11')
            a('v_lshlrev_b32 v11, 6, v11')
            a(f's_mov_b32 s52, {WS_XFLAG + 24}')
            a('s_mov_b32 s53, 1')
            self.poll('v11', 's52', 20, 's53')

    def lds_signal(self, val_s):
        a = self.a
        a(f'v_mov_b32 v11, {L_SIG}')
        a(f'v_mov_b32 v12, {val_s}')
        a('ds_write_b32 v11, v12')
    def lds_wait(self, val_s):
        a = self.a
        L = a.newlabel('LW'); D = a.newlabel('LWD')
        a(f'v_mov_b32 v11, {L_SIG}')
        a('s_mov_b32 s60, 0')
        a.label(L)
        a('ds_read_b32 v12, v11')
        a('s_waitcnt lgkmcnt(0)')
        a('v_readfirstlane_b32 s61, v12')
        a(f's_cmp_eq_u32 s61, {val_s}')
        a(f's_cbranch_scc1 {D}')
        a('s_sleep 1')
        a('s_add_u32 s60, s60, 1')
        a('s_cmp_lt_u32 s60, 0x100000')
        a(f's_cbranch_scc1 {L}')
        a.label(D)

    def poll(self, vaddr, soff, nlanes, target_s, tmp='v12'):
        a = self.a
        L = a.newlabel('POLL'); D = a.newlabel('POLLD')
        a(f's_cmp_lg_u32 s{sDEAD}, 0')
        a(f's_cbranch_scc1 {D}')
        a('s_mov_b32 s60, 0')
        a(f's_add_u32 s63, s{sNONCE}, {target_s}')
        mask = (1 << nlanes) - 1
        a.label(L)
        a(f'buffer_load_dword {tmp}, {vaddr}, {srd(S_WS)}, {soff} offen sc1')
        a('s_waitcnt vmcnt(0)')
        a(f'v_subrev_u32 {tmp}, s63, {tmp}')
        a(f'v_cmp_lt_u32 vcc, 7, {tmp}')
        a(f's_and_b32 s61, vcc_lo, {hex(mask & 0xffffffff)}')
        a('s_cmp_eq_u32 s61, 0')
        a(f's_cbranch_scc1 {D}')
        a('s_add_u32 s60, s60, 1')
        a(f's_cmp_lt_u32 s60, {self.args.spin}')
        a(f's_cbranch_scc1 {L}')
        a(f's_mov_b32 s{sDEAD}, 1')
        a.label(D)

    def check_hello(self):
        a = self.a
        L = a.newlabel('HELLO'); D = a.newlabel('HELLOD')
        a('s_mov_b32 s60, 0')
        a('v_and_b32 v11, 31, v1')
        a('v_lshlrev_b32 v11, 2, v11')
        a(f's_lshl_b32 s50, s{sJ}, 8')
        a(f's_add_u32 s50, s50, {WS_GXCC}')
        a(f's_add_u32 s63, s{sNONCE}, 8')
        a.label(L)
        a(f'buffer_load_dword v12, v11, {srd(S_WS)}, s50 offen sc1')
        a('s_waitcnt vmcnt(0)')
        a('v_subrev_u32 v12, s63, v12')
        a('v_cmp_lt_u32 vcc, 7, v12')
        a('s_cmp_eq_u64 vcc, 0')
        a(f's_cbranch_scc1 {D}')
        a('s_add_u32 s60, s60, 1')
        a(f's_cmp_lt_u32 s60, {self.args.spin}')
        a(f's_cbranch_scc1 {L}')
        a(f's_mov_b32 s{sDEAD}, 1')
        a.label(D)
        a(f's_and_b32 s51, s{sXCC}, 7')
        a('v_cmp_ne_u32 vcc, s51, v12')
        a('s_cmp_lg_u64 vcc, 0')
        a(f's_cselect_b32 s{sMODE}, 1, 0')
        if self.args.force_generic:
            a(f's_mov_b32 s{sMODE}, 1')

    def lbar(self, first=False, between=None, poller=0):
        a = self.a
        a('s_barrier')
        a(f's_add_u32 s{sEPOCH}, s{sEPOCH}, 1')
        W0 = a.newlabel('LB_NOT0'); E = a.newlabel('LB_END')
        a(f's_cmp_lg_u32 s{sW}, {poller}')
        a(f's_cbranch_scc1 {W0}')
        if first:
            self.stamp(60)
            self.check_hello()
            self.stamp(61)
        G1 = a.newlabel('LB_GEN'); G2 = a.newlabel('LB_ST')
        a(f's_lshl_b32 s50, s{sJ}, 8')
        a(f's_add_u32 s50, s50, {WS_LFLAG}')
        a(f's_lshl_b32 s51, s{sH}, 2')
        a('s_add_u32 s51, s51, s50')
        a(f's_add_u32 s62, s{sEPOCH}, s{sNONCE}')
        a('v_mov_b32 v10, s62')
        a('v_mov_b32 v11, 0')
        a(f's_cmp_lg_u32 s{sMODE}, 0')
        a(f's_cbranch_scc1 {G1}')
        a('s_mov_b64 exec, 1')
        a(f'buffer_store_dword v10, v11, {srd(S_WS)}, s51 offen')
        a('s_mov_b64 exec, -1')
        a(f's_branch {G2}')
        a.label(G1)
        a('buffer_wbl2 sc1')
        a('s_waitcnt vmcnt(0)')
        a('s_mov_b64 exec, 1')
        a(f'buffer_store_dword v10, v11, {srd(S_WS)}, s51 offen sc1')
        a('s_mov_b64 exec, -1')
        a.label(G2)
        a('v_and_b32 v11, 31, v1')
        a('v_lshlrev_b32 v11, 2, v11')
        self.poll('v11', 's50', 32, f's{sEPOCH}')
        if first: self.stamp(62)
        G3 = a.newlabel('LB_NOINV')
        a(f's_cmp_eq_u32 s{sMODE}, 0')
        a(f's_cbranch_scc1 {G3}')
        a('buffer_inv sc1')
        a('s_waitcnt vmcnt(0)')
        a.label(G3)
        if first:
            a(f'v_mov_b32 v10, s{sMODE}')
            a(f'v_mov_b32 v11, {L_MODE}')
            a('ds_write_b32 v11, v10')
            a('s_waitcnt lgkmcnt(0)')
        a(f's_branch {E}')
        a.label(W0)
        if between: between()
        a.label(E)
        a('s_barrier')
        if first:
            a(f'v_mov_b32 v11, {L_MODE}')
            a('ds_read_b32 v10, v11')
            a('s_waitcnt lgkmcnt(0)')
            a(f'v_readfirstlane_b32 s{sMODE}, v10')

    def xflag_addr(self, dst, wg_s):
        a = self.a
        a(f's_lshl_b32 {dst}, {wg_s}, 6')
        a(f's_add_u32 {dst}, {dst}, {WS_XFLAG}')

    def set_xflag(self, word, val_s, saddr='s52', vt=('v11', 'v12')):
        a = self.a
        self.xflag_addr(saddr, 's2')
        if isinstance(word, int): a(f's_add_u32 {saddr}, {saddr}, {word*4}')
        else: a(f's_add_u32 {saddr}, {saddr}, {word}')
        a(f's_add_u32 s63, s{sNONCE}, {val_s}')
        a(f'v_mov_b32 {vt[0]}, s63')
        a(f'v_mov_b32 {vt[1]}, 0')
        a('s_mov_b64 exec, 1')
        a(f'buffer_store_dword {vt[0]}, {vt[1]}, {srd(S_WS)}, {saddr} offen sc1')
        a('s_mov_b64 exec, -1')

    def pack5(self, vb0, vb1, imm0, mat, with_cs):
        a = self.a
        a(f's_add_u32 s50, s{sH}, {mat*32}')
        a(f's_mul_i32 s50, s50, {PW_SZ}')
        a(f's_mul_i32 s51, s{sJ}, {5*2048}')
        a('s_add_u32 s50, s50, s51')
        a(f's_add_u32 s50, s50, {WS_PW}')
        for i in range(5):
            s = 16 + 8 * i
            o = imm0(i)
            a(f'ds_read_b64_tr_b16 v[{s}:{s+1}], {vb0} offset:{o}')
            a(f'ds_read_b64_tr_b16 v[{s+2}:{s+3}], {vb0} offset:{o+48}')
            a(f'ds_read_b64_tr_b16 v[{s+4}:{s+5}], {vb1} offset:{o}')
            a(f'ds_read_b64_tr_b16 v[{s+6}:{s+7}], {vb1} offset:{o+48}')
        a('s_waitcnt lgkmcnt(0)')
        for i in range(5):
            s = 16 + 8 * i
            a(f'buffer_store_dwordx4 v[{s}:{s+3}], v2, {srd(S_WS)}, s50 offen sc1')
            a(f'buffer_store_dwordx4 v[{s+4}:{s+7}], v2, {srd(S_WS)}, s50 offen offset:1024 sc1')
            a('s_add_u32 s50, s50, 2048')
        if with_cs:
            for r in range(96, 100): a(f'v_mov_b32 v{r}, 0x3f803f80')
            for i in range(5):
                s = 16 + 8 * i
                a(f'{MF32} v[64:79], v[96:99], v[{s}:{s+3}], {"0" if i == 0 else "v[64:79]"}')
                a(f'{MF32} v[80:95], v[96:99], v[{s+4}:{s+7}], {"0" if i == 0 else "v[80:95]"}')
            a('v_mov_b32 v100, v64')
            a('v_mov_b32 v101, v80')
            self.store_cs(mat, 100)

    def store_cs(self, mat, r):
        a = self.a
        a(f's_add_u32 s50, s{sH}, {mat*32}')
        a('s_lshl_b32 s50, s50, 3')
        a(f's_add_u32 s50, s50, s{sJ}')
        a('s_lshl_b32 s50, s50, 8')
        a(f's_add_u32 s50, s50, {WS_PCS}')
        a('v_lshlrev_b32 v12, 3, v1')
        a('s_mov_b64 exec, 0xffffffff')
        a(f'buffer_store_dwordx2 v[{r}:{r+1}], v12, {srd(S_WS)}, s50 offen sc1')
        a('s_mov_b64 exec, -1')

    def stash_writeback(self, mat=None):
        a = self.a
        if mat is not None:
            a(f's_mul_i32 s62, s{sSH}, 10240')
            a(f's_add_u32 s62, s62, {PWL}')
            a('v_add_u32 v13, s62, v2')
            for i in range(10):
                r = stash_reg(mat, i)
                a(f'ds_write_b128 v13, v[{r}:{r+3}] offset:{i*1024}')
            return
        E = a.newlabel('SW_E'); LA = a.newlabel('SW_A')
        a(f's_cmp_eq_u32 s{sLAYER}, 3')
        a(f's_cbranch_scc1 {E}')
        a(f's_mul_i32 s62, s{sSH}, 10240')
        a(f's_add_u32 s62, s62, {PWL}')
        a('v_add_u32 v13, s62, v2')
        a(f's_bitcmp1_b32 s{sLAYER}, 0')
        a(f's_cbranch_scc1 {LA}')
        for i in range(10):
            r = stash_reg(1, i)
            a(f'ds_write_b128 v13, v[{r}:{r+3}] offset:{i*1024}')
        a(f's_branch {E}')
        a.label(LA)
        for i in range(10):
            r = stash_reg(0, i)
            a(f'ds_write_b128 v13, v[{r}:{r+3}] offset:{i*1024}')
        a.label(E)

    def stash_load(self, mat):
        a = self.a
        a(f's_add_u32 s50, s{sH}, {32*mat}')
        a(f's_mul_i32 s50, s50, {PW_SZ}')
        a(f's_mul_i32 s51, s{sSH}, 10240')
        a('s_add_u32 s50, s50, s51')
        a(f's_add_u32 s50, s50, {WS_PW}')
        for i in range(10):
            r = stash_reg(mat, i)
            if i % 4 == 0 and i > 0: a('s_add_u32 s50, s50, 4096')
            a(f'buffer_load_dwordx4 v[{r}:{r+3}], v2, {srd(S_WS)}, s50 offen offset:{(i%4)*1024} sc1')
        a('v_and_b32 v11, 31, v1')
        a('v_lshlrev_b32 v11, 3, v11')
        a(f's_add_u32 s52, s{sH}, {32*mat}')
        a('s_lshl_b32 s52, s52, 11')
        a(f's_add_u32 s52, s52, {WS_PCS}')
        for j in range(8):
            a(f'buffer_load_dwordx2 v[{160+2*j}:{161+2*j}], v11, {srd(S_WS)}, s52 offen offset:{j*256} sc1')

    def stash_cs_sum(self, mat):
        a = self.a
        d = vCSA if mat == 0 else vCSB
        a(f'v_add_f32 v{d}, v160, v162')
        a(f'v_add_f32 v{d+1}, v161, v163')
        for j in range(2, 8):
            a(f'v_add_f32 v{d}, v{d}, v{160+2*j}')
            a(f'v_add_f32 v{d+1}, v{d+1}, v{161+2*j}')

    def wait_hello(self):
        a = self.a
        L = a.newlabel('WH'); D = a.newlabel('WHD')
        a('s_mov_b32 s60, 0')
        a('v_lshlrev_b32 v11, 2, v1')
        a.label(L)
        a(f'buffer_load_dword v12, v11, {srd(S_DBG)}, 0 offen sc1')
        a('s_waitcnt vmcnt(0)')
        a('v_and_b32 v13, 0x80808080, v12')
        a('v_cmp_ne_u32 vcc, 0x80808080, v13')
        a('s_cmp_eq_u64 vcc, 0')
        a(f's_cbranch_scc1 {D}')
        a('s_sleep 2')
        a('s_add_u32 s60, s60, 1')
        a(f's_cmp_lt_u32 s60, {self.args.spin}')
        a(f's_cbranch_scc1 {L}')
        a(f's_mov_b32 s{sDEAD}, 1')
        a.label(D)

    def poll_packA(self):
        a = self.a
        a(f's_lshl_b32 s54, s{sH}, 3')
        self.xflag_addr('s52', 's54')
        a('v_and_b32 v11, 7, v1')
        a('v_lshlrev_b32 v11, 6, v11')
        a('v_add_u32 v11, 20, v11')
        a('s_mov_b32 s53, 1')
        self.poll('v11', 's52', 8, 's53')

    def p0_xloads(self):
        a = self.a
        if not self.args.noreuse:
            L4 = self.if_wave('eq', 4)
            a(f's_lshl_b32 s52, s{sJ}, 3')
            a(f's_lshr_b32 s53, s{sH}, 2')
            a('s_add_u32 s52, s52, s53')
            a(f's_mul_i32 s52, s52, {RBS}')
            a(f's_and_b32 s53, s{sH}, 3')
            a('s_lshl_b32 s53, s53, 7')
            a('s_add_u32 s52, s52, s53')
            a(f's_add_u32 s52, s52, {WS_XF}')
            a('v_lshlrev_b32 v30, 9, v1')
            a(f'buffer_load_dword v31, v30, {srd(S_WS)}, s52 offen')
            a('s_add_u32 s52, s52, 32768')
            a('s_mov_b64 exec, 0xffff')
            a(f'buffer_load_dword v31, v30, {srd(S_WS)}, s52 offen')
            a(f's_lshl_b32 s52, s{sJ}, 14')
            a(f's_lshl_b32 s53, s{sH}, 9')
            a('s_add_u32 s52, s52, s53')
            a(f's_add_u32 s52, s52, {WS_ST}')
            a('v_lshlrev_b32 v30, 7, v1')
            a('s_mov_b64 exec, 0xf')
            a(f'buffer_load_dword v31, v30, {srd(S_WS)}, s52 offen')
            a('s_mov_b64 exec, -1')
            a.label(L4)
        if not self.args.nocodepf:
            L7 = self.if_wave('eq', 7)
            LC = a.newlabel('CPF')
            a(f's_cmp_ge_u32 s{sH}, 6')
            a(f's_cbranch_scc1 {LC}')
            a('s_getpc_b64 s[56:57]')
            a.label('L_PCREF')
            a(f's_sub_u32 s56, s56, L_PCREF-{KNAME}')
            a('s_subb_u32 s57, s57, 0')
            a(f's_lshl_b32 s53, s{sH}, 13')
            a('v_lshlrev_b32 v30, 7, v1')
            a('v_add_u32 v30, s53, v30')
            a(f's_mov_b32 s58, L_CODE_END-{KNAME}-4')
            a('v_min_u32 v30, s58, v30')
            a('global_load_dword v31, v30, s[56:57]')
            a.label(LC)
            a.label(L7)
        a(f's_lshl_b32 s50, s{sJ}, 8')
        a(f's_lshl_b32 s51, s{sH}, 3')
        a('s_add_u32 s50, s50, s51')
        a('s_mul_i32 s52, s50, 1280')
        a('v_and_b32 v10, 7, v0')
        a('v_lshrrev_b32 v11, 3, v0')
        a('v_mul_u32_u24 v12, 1280, v10')
        a('v_lshlrev_b32 v13, 4, v11')
        a('v_add_u32 v12, v12, v13')
        a(f'buffer_load_dwordx4 v[16:19], v12, {srd(S_X0)}, s52 offen')
        a('v_mov_b32 v20, 0\nv_mov_b32 v21, 0\nv_mov_b32 v22, 0\nv_mov_b32 v23, 0')
        L = self.if_wave('lt', 2)
        a(f'buffer_load_dwordx4 v[20:23], v12, {srd(S_X0)}, s52 offen offset:1024')
        a.label(L)

    def late_touch(self):
        a = self.a
        if self.args.noreuse: return
        a('v_lshlrev_b32 v13, 7, v1')
        for w in (6, 5):
            Lw = self.if_wave('eq', w)
            if w == 5:
                a(f's_lshl_b32 s52, s{sJ}, 3')
                a(f's_lshr_b32 s53, s{sH}, 2')
                a('s_add_u32 s52, s52, s53')
                a(f's_mul_i32 s52, s52, {RBS}')
                a(f's_and_b32 s53, s{sH}, 3')
                a('s_mul_i32 s53, s53, 10240')
                a('s_add_u32 s52, s52, s53')
                a(f's_add_u32 s52, s52, {WS_XF + XF_SZ}')
            else:
                a(f's_lshl_b32 s52, s{sJ}, 4')
                a(f's_lshr_b32 s53, s{sH}, 1')
                a('s_add_u32 s52, s52, s53')
                a(f's_mul_i32 s52, s52, {OBS}')
                a(f's_and_b32 s53, s{sH}, 1')
                a('s_mul_i32 s53, s53, 10240')
                a('s_add_u32 s52, s52, s53')
                a(f's_add_u32 s52, s52, {WS_OF}')
            a(f'buffer_load_dword v176, v13, {srd(S_WS)}, s52 offen')
            a('s_add_u32 s52, s52, 8192')
            a('s_mov_b64 exec, 0xffff')
            a(f'buffer_load_dword v176, v13, {srd(S_WS)}, s52 offen')
            a('s_mov_b64 exec, -1')
            a.label(Lw)
        L7 = self.if_wave('eq', 7)
        a(f's_lshl_b32 s52, s{sJ}, 14')
        a(f's_lshl_b32 s53, s{sH}, 9')
        a('s_add_u32 s52, s52, s53')
        a(f's_add_u32 s52, s52, {WS_ST + ST_SZ}')
        a('s_mov_b64 exec, 0xf')
        a(f'buffer_load_dword v176, v13, {srd(S_WS)}, s52 offen')
        a('s_mov_b64 exec, -1')
        a.label(L7)

    def wo_item_dma(self, n, item_s):
        a = self.a
        a(f's_mul_hi_u32 s55, {item_s}, 0xccccccd')
        a('s_mul_i32 s56, s55, 20')
        a(f's_sub_u32 s56, {item_s}, s56')
        a('s_and_b32 s57, s55, 7')
        a('s_mul_i32 s57, s57, 160')
        a('s_mul_i32 s56, s56, 40960')
        a('s_add_u32 s56, s56, s57')
        A = a.newlabel('WOI_A'); E = a.newlabel('WOI_E')
        a('s_cmp_lt_u32 s55, 8')
        a(f's_cbranch_scc1 {A}')
        for u in range(5):
            a(f's_mov_b32 m0, {TO + n*5120 + u*1024}')
            a(f'buffer_load_dwordx4 v{24+u}, {srd(S_WOB)}, s56 offen lds')
        a(f's_branch {E}')
        a.label(A)
        for u in range(5):
            a(f's_mov_b32 m0, {TO + n*5120 + u*1024}')
            a(f'buffer_load_dwordx4 v{24+u}, {srd(S_WOA)}, s56 offen lds')
        a.label(E)

    def wo_item_pack(self, n, item_s):
        a = self.a
        for c in range(5):
            for sx in range(2):
                a(f'ds_read_b64_tr_b16 v[{32+4*c+2*sx}:{33+4*c+2*sx}], v30 offset:{TO + n*5120 + sx*1280 + c*32}')
        a(f's_mul_i32 s55, {item_s}, 5120')
        a(f's_add_u32 s55, s55, {WS_PO}')
        a('s_waitcnt lgkmcnt(0)')
        for c in range(5):
            if c == 4: a('s_add_u32 s55, s55, 4096')
            a(f'buffer_store_dwordx4 v[{32+4*c}:{35+4*c}], v2, {srd(S_WS)}, s55 offen offset:{(c%4)*1024} sc1')

    def raw_part_dma(self, srdW, toff):
        a = self.a
        a(f's_mul_i32 s53, s{sJ}, {80*3840}')
        for sec, tb, so in (('k', TK, 1280 - 8), ('q', TQ, 0), ('v', TV, 2560)):
            for u in range(4):
                a(f's_mov_b32 m0, {toff + tb + u*1024}')
                a(f's_add_u32 s54, s53, {so + (64*3840 if u == 3 else 0)}')
                if u == 3: a('s_mov_b32 exec_hi, 0xffff')
                a(f'buffer_load_dwordx4 v{4 + (u % 3)}, {srd(srdW)}, s54 offen lds')
                if u == 3: a('s_mov_b64 exec, -1')

    def p0(self):
        a = self.a
        self.fstamp(53)
        self.fstamp(54)
        L = self.if_wave('eq', 0)
        self.init_flags()
        a.label(L)
        a(f's_lshl_b32 s53, s{sJ}, 3')
        a(f's_lshr_b32 s54, s{sH}, 2')
        a('s_add_u32 s53, s53, s54')
        a(f's_mul_i32 s53, s53, {RBS}')
        a(f's_and_b32 s54, s{sH}, 3')
        a('s_lshl_b32 s54, s54, 7')
        a('s_add_u32 s53, s53, s54')
        a(f's_add_u32 s53, s53, {WS_XF}')
        a('v_and_b32 v10, 7, v0')
        a('v_lshrrev_b32 v11, 3, v0')
        a('v_lshrrev_b32 v13, 1, v11')
        a('v_lshlrev_b32 v13, 10, v13')
        a('v_and_b32 v14, 1, v11')
        a('v_lshlrev_b32 v14, 9, v14')
        a('v_add_u32 v13, v13, v14')
        a('v_lshlrev_b32 v14, 4, v10')
        a('v_add_u32 v13, v13, v14')
        a('s_add_u32 s54, s53, 32768')
        a('s_waitcnt vmcnt(0)')
        self.fstamp(55)
        L = self.if_wave('eq', 1)
        a('v_mov_b32 v107, v13')
        self.tr_bases(105, 106, (TK, TQ, TV))
        for r in range(8): a(f'v_mov_b32 v{140+r}, v{16+r}')
        self.pack5('v105', 'v106', lambda i: i * 768, 0, True)
        for r in range(8): a(f'v_mov_b32 v{16+r}, v{140+r}')
        a('v_mov_b32 v13, v107')
        a(f's_lshl_b32 s53, s{sJ}, 3')
        a(f's_lshr_b32 s54, s{sH}, 2')
        a('s_add_u32 s53, s53, s54')
        a(f's_mul_i32 s53, s53, {RBS}')
        a(f's_and_b32 s54, s{sH}, 3')
        a('s_lshl_b32 s54, s54, 7')
        a('s_add_u32 s53, s53, s54')
        a(f's_add_u32 s53, s53, {WS_XF}')
        a('s_add_u32 s54, s53, 32768')
        a.label(L)
        a(f'buffer_store_dwordx4 v[16:19], v13, {srd(S_WS)}, s53 offen')
        L = self.if_wave('lt', 2)
        a(f'buffer_store_dwordx4 v[20:23], v13, {srd(S_WS)}, s54 offen')
        a.label(L)
        DD = a.newlabel('P0_DMAD')
        L = self.if_wave('eq', 2)
        a('s_mov_b32 s94, s53')
        a('s_mov_b32 s95, s54')
        self.raw_part_dma(S_WQB, TBOFF)
        a('s_mov_b32 s53, s94')
        a('s_mov_b32 s54, s95')
        a.label(L)
        L = self.if_wave('eq', 3)
        for u in range(5):
            d = f'v{24+u}'
            a(f'v_add_u32 v15, {64*u}, v1')
            a('v_mul_u32_u24 v3, 6554, v15')
            a('v_lshrrev_b32 v3, 16, v3')
            a(f'v_mul_u32_u24 {d}, 10, v3')
            a(f'v_sub_u32 {d}, v15, {d}')
            a(f'v_lshlrev_b32 {d}, 4, {d}')
            a('v_mul_u32_u24 v3, 1280, v3')
            a(f'v_add_u32 {d}, {d}, v3')
        a('s_mov_b32 s58, s2')
        self.wo_item_dma(0, 's58')
        L2 = a.newlabel('P0_NOI2')
        a('s_cmp_ge_u32 s2, 64')
        a(f's_cbranch_scc1 {L2}')
        a('s_add_u32 s59, s2, 256')
        self.wo_item_dma(1, 's59')
        a.label(L2)
        a.label(L)
        a('v_mov_b32 v34, 0\nv_mov_b32 v35, 0')
        for r in range(16, 24):
            a(f'v_lshlrev_b32 v36, 16, v{r}')
            a(f'v_and_b32 v37, 0xffff0000, v{r}')
            a('v_add_f32 v34, v34, v36')
            a('v_fmac_f32 v35, v36, v36')
            a('v_add_f32 v34, v34, v37')
            a('v_fmac_f32 v35, v37, v37')
        for reg in (34, 35):
            a(f'v_mov_b32_dpp v36, v{reg} row_ror:8 row_mask:0xf bank_mask:0xf')
            a(f'v_add_f32 v{reg}, v{reg}, v36')
            a(f'v_mov_b32 v36, v{reg}')
            a(f'v_permlane16_swap_b32 v{reg}, v36')
            a(f'v_add_f32 v{reg}, v{reg}, v36')
            a(f'v_mov_b32 v36, v{reg}')
            a(f'v_permlane32_swap_b32 v{reg}, v36')
            a(f'v_add_f32 v{reg}, v{reg}, v36')
        P0S = L_MISC
        a(f's_lshl_b32 s50, s{sW}, 6')
        a('v_lshlrev_b32 v36, 3, v1')
        a('v_add_u32 v36, s50, v36')
        a('s_mov_b64 exec, 0xff')
        a(f'ds_write_b64 v36, v[34:35] offset:{P0S}')
        a('s_mov_b64 exec, -1')
        a('v_mov_b32 v10, 0')
        a(f'v_mov_b32 v11, {L_SIG}')
        a('ds_write_b32 v11, v10')
        a(f'ds_write_b32 v11, v10 offset:{L_CNTA - L_SIG}')
        a(f'ds_write_b32 v11, v10 offset:{L_CNTB - L_SIG}')
        a('s_waitcnt lgkmcnt(0)')
        self.fstamp(56)
        a('s_barrier')
        self.fstamp(57)
        a(f'v_mov_b32 v11, {L_NONCE}')
        a('ds_read_b32 v10, v11')
        a('s_waitcnt lgkmcnt(0)')
        a(f'v_readfirstlane_b32 s{sNONCE}, v10')
        L = self.if_wave('eq', 0)
        a('v_lshrrev_b32 v10, 2, v1')
        a('v_and_b32 v10, 7, v10')
        a('v_lshlrev_b32 v11, 3, v10')
        for w in range(8):
            a(f'ds_read_b64 v[{28+2*w}:{29+2*w}], v11 offset:{P0S + w*64}')
        a('s_waitcnt lgkmcnt(0)')
        for w in range(1, 8):
            a(f'v_add_f32 v28, v28, v{28+2*w}')
            a(f'v_add_f32 v29, v29, v{29+2*w}')
        a('v_and_b32 v12, 3, v1')
        a('v_cmp_eq_u32 vcc, 0, v12')
        a('v_mov_b32 v30, 0\nv_mov_b32 v31, 0')
        a('v_cndmask_b32 v28, v30, v28, vcc')
        a('v_cndmask_b32 v29, v30, v29, vcc')
        a(f's_lshl_b32 s50, s{sJ}, 8')
        a(f's_lshl_b32 s51, s{sH}, 3')
        a('s_add_u32 s50, s50, s51')
        a('s_lshl_b32 s50, s50, 6')
        a(f's_add_u32 s50, s50, {WS_ST}')
        a('s_mov_b64 exec, 0xffffffff')
        a(f'buffer_store_dwordx4 v[28:31], v2, {srd(S_WS)}, s50 offen')
        a('s_mov_b64 exec, -1')
        a.label(L)
        for w, n in ((2, 12), (3, 5)):
            Lx = self.if_wave('eq', w)
            a(f's_waitcnt vmcnt({n})')
            a.label(Lx)
        Ly = a.newlabel('P0_W23')
        a(f's_sub_u32 s50, s{sW}, 2')
        a('s_cmp_lt_u32 s50, 2')
        a(f's_cbranch_scc1 {Ly}')
        a('s_waitcnt vmcnt(0)')
        a.label(Ly)
        L = self.if_wave('eq', 1)
        self.set_xflag(5, 1)
        a.label(L)
        self.fstamp(58)

    def p0_packs(self):
        a = self.a
        a('s_waitcnt vmcnt(0)')
        L = self.if_wave('eq', 2)
        self.tr_bases(105, 106, (TK + TBOFF, TQ + TBOFF, TV + TBOFF))
        self.pack5('v105', 'v106', lambda i: i * 768, 1, True)
        a.label(L)
        L = self.if_wave('eq', 3)
        a('v_bfe_u32 v30, v1, 5, 1')
        a('v_lshlrev_b32 v30, 4, v30')
        a('v_bfe_u32 v12, v1, 4, 1')
        a('v_lshlrev_b32 v12, 2, v12')
        a('v_add_u32 v30, v30, v12')
        a('v_bfe_u32 v12, v1, 2, 2')
        a('v_add_u32 v30, v30, v12')
        a('v_mul_u32_u24 v30, 160, v30')
        a('v_and_b32 v12, 3, v1')
        a('v_lshlrev_b32 v12, 3, v12')
        a('v_add_u32 v30, v30, v12')
        a('s_mov_b32 s58, s2')
        self.wo_item_pack(0, 's58')
        L2 = a.newlabel('P0_NOI2B')
        a('s_cmp_ge_u32 s2, 64')
        a(f's_cbranch_scc1 {L2}')
        a('s_add_u32 s59, s2, 256')
        self.wo_item_pack(1, 's59')
        a.label(L2)
        a.label(L)

    ACC0, ACC1 = 16, 32
    XR = 48
    WB = 80
    def qkv_main(self, packed):
        a = self.a
        A0, A1, XR, WB = self.ACC0, self.ACC1, self.XR, self.WB
        a.comment('QKV main ' + ('packed' if packed else 'raw'))
        self.cstamp(53)
        if self.args.prio:
            L = self.if_wave('ge', 4)
            a(f's_setprio {self.args.prio}')
            a.label(L)
        vq = VQ()
        a(f's_lshl_b32 s50, s{sJ}, 3')
        a(f's_add_u32 s50, s50, s{sRB}')
        a(f's_lshl_b32 s51, s50, 11')
        a(f's_mul_i32 s50, s50, {RBS}')
        a(f's_add_u32 s50, s50, s{sXF}')
        def xload(ks):
            r = XR + 4 * (ks % 8)
            if ks % 4 == 0 and ks > 0: a('s_add_u32 s50, s50, 4096')
            a(f'buffer_load_dwordx4 v[{r}:{r+3}], v2, {srd(S_WS)}, s50 offen offset:{(ks % 4) * 1024} sc1')
            vq.push(('x', ks))
        NPRE = self.args.npre
        for ks in range(min(4, NPRE)): xload(ks)
        if packed:
            a(f'v_add_u32 v3, {PWL}, v2')
            a(f'v_add_u32 v15, {PWL + 40960}, v2')
            def wread(ks):
                s = WB + 8 * (ks % 3)
                b = 'v3' if ks < 20 else 'v15'
                o = (ks % 20) * 2048
                a(f'ds_read_b128 v[{s}:{s+3}], {b} offset:{o}')
                a(f'ds_read_b128 v[{s+4}:{s+7}], {b} offset:{o+1024}')
            nrd = 2
        else:
            def wread(ks):
                s = WB + 8 * (ks % 3)
                a(f'ds_read_b64_tr_b16 v[{s}:{s+1}], v7 offset:{ks*768}')
                a(f'ds_read_b64_tr_b16 v[{s+2}:{s+3}], v7 offset:{ks*768+48}')
                a(f'ds_read_b64_tr_b16 v[{s+4}:{s+5}], v8 offset:{ks*768}')
                a(f'ds_read_b64_tr_b16 v[{s+6}:{s+7}], v8 offset:{ks*768+48}')
            nrd = 4
        wread(0); wread(1)
        for ks in range(4, NPRE): xload(ks)
        nxt = [NPRE]
        a(f's_add_u32 s51, s51, s{sST}')
        a('v_and_b32 v10, 31, v1')
        a('v_lshlrev_b32 v11, 3, v10')
        a('v_lshlrev_b32 v10, 6, v10')
        a('v_lshrrev_b32 v12, 5, v1')
        a('v_lshlrev_b32 v12, 5, v12')
        a('v_add_u32 v10, v10, v12')
        late = [f'buffer_load_dwordx4 v[108:111], v10, {srd(S_WS)}, s51 offen sc1',
                f'buffer_load_dwordx4 v[112:115], v10, {srd(S_WS)}, s51 offen offset:16 sc1']
        if self.args.fq: self.fstamp(53)
        for ks in range(40):
            if self.args.fq and ks in (1, 8, 20, 39): self.fstamp({1: 54, 8: 55, 20: 56, 39: 57}[ks])
            if ks + 2 < 40 and not self.args.e_now: wread(ks + 2)
            lg = nrd * min(2, 39 - ks)
            a(f's_waitcnt vmcnt({vq.cnt(("x", ks))}) lgkmcnt({lg})')
            s = WB + 8 * (ks % 3); x = XR + 4 * (ks % 8)
            c0 = '0' if ks == 0 else f'v[{A0}:{A0+15}]'
            c1 = '0' if ks == 0 else f'v[{A1}:{A1+15}]'
            if self.args.e_m16:
                for q in range(2):
                    for (AA, so) in ((A0, s), (A1, s + 4)):
                        d = AA + 4 * q + 8 * (ks % 2)
                        a(f'{MF16} v[{d}:{d+3}], v[{so}:{so+3}], v[{x}:{x+3}], {"0" if ks < 2 else f"v[{d}:{d+3}]"}')
            else:
                a(f'{MF32} v[{A0}:{A0+15}], v[{s}:{s+3}], v[{x}:{x+3}], {c0}')
                a(f'{MF32} v[{A1}:{A1+15}], v[{s+4}:{s+7}], v[{x}:{x+3}], {c1}')
            nis = 0
            while nxt[0] < 40 and nxt[0] <= ks + 8 and nis < 2:
                if self.args.e_nox:
                    vq.push(('x', nxt[0]))
                    vq.q.pop(); vq.q.insert(0, ('x', nxt[0]))
                else: xload(nxt[0])
                nxt[0] += 1; nis += 1
            if ks == 10:
                LF = a.newlabel('QK_FL')
                a(f's_cmp_lg_u32 s{sLAYER}, 0')
                a(f's_cbranch_scc1 {LF}')
                for w, word in ((2, 4), (3, 6)):
                    L = self.if_wave('eq', w)
                    self.set_xflag(word, 1, saddr='s54', vt=('v13', 'v14'))
                    a.label(L)
                a.label(LF)
            if ks >= 12 and ks % 2 == 0 and late:
                a(late.pop(0)); vq.push('late')
        assert not late
        self.cstamp(55)
        if self.args.prio: a('s_setprio 0')
        a('s_waitcnt vmcnt(0)')
        if self.args.fq: self.fstamp(58)

    def colsum_raw(self):
        a = self.a
        WB = self.WB
        a(f's_mul_i32 s52, s{sW}, 768')
        a('v_add_u32 v12, s52, v7')
        a('v_add_u32 v13, s52, v8')
        for r in range(108, 112): a(f'v_mov_b32 v{r}, 0x3f803f80')
        for i in range(5):
            s = 16 + 8 * i
            a(f'ds_read_b64_tr_b16 v[{s}:{s+1}], v12 offset:{i*6144}')
            a(f'ds_read_b64_tr_b16 v[{s+2}:{s+3}], v12 offset:{i*6144+48}')
            a(f'ds_read_b64_tr_b16 v[{s+4}:{s+5}], v13 offset:{i*6144}')
            a(f'ds_read_b64_tr_b16 v[{s+6}:{s+7}], v13 offset:{i*6144+48}')
        a('s_waitcnt lgkmcnt(0)')
        for i in range(5):
            s = 16 + 8 * i
            a(f'{MF32} v[112:127], v[108:111], v[{s}:{s+3}], {"0" if i == 0 else "v[112:127]"}')
            a(f'{MF32} v[128:143], v[108:111], v[{s+4}:{s+7}], {"0" if i == 0 else "v[128:143]"}')
        a('v_and_b32 v12, 31, v1')
        a('v_lshlrev_b32 v12, 2, v12')
        a('s_mov_b64 exec, 0xffffffff')
        a(f'ds_add_f32 v12, v112 offset:{L_CS}')
        a(f'ds_add_f32 v12, v128 offset:{L_CS+128}')
        a('s_mov_b64 exec, -1')
        a('s_waitcnt lgkmcnt(0)')

    def ln_fix(self, packed):
        a = self.a
        A0, A1 = self.ACC0, self.ACC1
        if packed:
            a(f's_bitcmp1_b32 s{sLAYER}, 0')
            a('s_cselect_b64 s[70:71], -1, 0')
            a(f'v_cndmask_b32 v116, v{vCSA}, v{vCSB}, s[70:71]')
            a(f'v_cndmask_b32 v117, v{vCSA+1}, v{vCSB+1}, s[70:71]')
        else:
            a('v_and_b32 v12, 31, v1')
            a('v_lshlrev_b32 v12, 2, v12')
            a(f'ds_read_b32 v{vCSA}, v12 offset:{L_CS}')
            a(f'ds_read_b32 v{vCSA+1}, v12 offset:{L_CS+128}')
        a('v_add_f32 v108, v108, v110\nv_add_f32 v109, v109, v111\nv_add_f32 v112, v112, v114\nv_add_f32 v113, v113, v115')
        a('v_add_f32 v100, v108, v112\nv_add_f32 v101, v109, v113')
        a('v_mov_b32 v102, v100\nv_mov_b32 v103, v101')
        a('v_permlane32_swap_b32 v100, v102')
        a('v_permlane32_swap_b32 v101, v103')
        a('v_add_f32 v100, v100, v102\nv_add_f32 v101, v101, v103')
        a('s_mov_b32 s52, 0x3acccccd')
        a('v_mul_f32 v100, s52, v100')
        a('v_mul_f32 v101, s52, v101')
        a('v_fma_f32 v101, -v100, v100, v101')
        a('v_add_f32 v101, 0x3727c5ac, v101')
        a('v_rsq_f32 v101, v101')
        a('v_sub_f32 v102, 0, v100')
        a('v_cvt_pk_bf16_f32 v104, v102, v102')
        a('v_lshlrev_b32 v103, 16, v104')
        a('v_sub_f32 v103, v102, v103')
        a('v_mov_b32 v106, 0\nv_mov_b32 v107, 0')
        a('v_cvt_pk_bf16_f32 v105, v103, v106')
        a(f'v_cndmask_b32 v104, v106, v104, {LO}')
        a(f'v_cndmask_b32 v105, v106, v105, {LO}')
        if not packed:
            a('s_waitcnt lgkmcnt(0)')
            a(f'v_mov_b32 v116, v{vCSA}')
            a(f'v_mov_b32 v117, v{vCSA+1}')
        for B, (src, dst) in enumerate(((116, 132), (117, 136))):
            a(f'v_cvt_pk_bf16_f32 v108, v{src}, v{src}')
            a('v_lshlrev_b32 v108, 16, v108')
            a(f'v_sub_f32 v109, v{src}, v108')
            a(f'v_cvt_pk_bf16_f32 v{dst}, v108, v109')
            a(f'v_cvt_pk_bf16_f32 v{dst+1}, v108, v106')
            a(f'v_cndmask_b32 v{dst}, v106, v{dst}, {LO}')
            a(f'v_cndmask_b32 v{dst+1}, v106, v{dst+1}, {LO}')
            a(f'v_mov_b32 v{dst+2}, 0\nv_mov_b32 v{dst+3}, 0')
        a(f'{MF32} v[{A0}:{A0+15}], v[132:135], v[104:107], v[{A0}:{A0+15}]')
        a(f'{MF32} v[{A1}:{A1+15}], v[136:139], v[104:107], v[{A1}:{A1+15}]')

    def img_addr_regs(self):
        a = self.a
        a('v_and_b32 v10, 31, v1')
        a(f's_lshl_b32 s50, s{sRB}, 5')
        a('s_add_u32 s50, s50, 256')
        a('v_add_u32 v10, s50, v10')
        a('v_mul_u32_u24 v10, 48, v10')
        a('v_lshrrev_b32 v11, 5, v1')
        a('v_lshlrev_b32 v12, 4, v11')
        a('v_add_u32 v120, v10, v12')
        a('v_lshlrev_b32 v12, 3, v11')
        a('v_sub_u32 v121, v10, v12')
        a('v_add_u32 v121, 32, v121')
        a('v_add_u32 v122, v10, v12')
        a(f'v_add_u32 v122, {VIMG}, v122')
        a(f'v_mul_u32_u24 v12, {VIMG + 32 - 8}, v11')
        a('v_add_u32 v123, v10, v12')
        a('v_add_u32 v123, 8, v123')
        a(f'v_mul_u32_u24 v12, {VIMG}, v11')
        a('v_add_u32 v124, v10, v12')
        a('v_add_u32 v124, 40, v124')

    def write_img(self, regs):
        a = self.a
        a(f'ds_write_b64 v120, v[{regs["B1g0"]}:{regs["B1g0"]+1}]')
        a(f'ds_write_b64 v121, v[{regs["B0g3"]}:{regs["B0g3"]+1}]')
        a(f'ds_write_b64 v122, v[{regs["B1g1"]}:{regs["B1g1"]+1}]')
        a(f'ds_write_b64 v122, v[{regs["B1g2"]}:{regs["B1g2"]+1}] offset:16')
        a(f'ds_write_b64 v123, v[{regs["B1g3"]}:{regs["B1g3"]+1}]')
        a('v_mov_b32 v12, 0x3f80')
        a('v_mov_b32 v13, 0')
        a(f'v_cndmask_b32 v12, v12, v13, {LO}')
        a('ds_write_b64 v124, v[12:13]')

    def wave_max(self, reg, tmp):
        a = self.a
        for ror in (8, 4, 2, 1):
            a(f'v_mov_b32_dpp v{tmp}, v{reg} row_ror:{ror} row_mask:0xf bank_mask:0xf')
            a(f'v_max_f32 v{reg}, v{reg}, v{tmp}')
        a(f'v_mov_b32 v{tmp}, v{reg}')
        a(f'v_permlane16_swap_b32 v{reg}, v{tmp}')
        a(f'v_max_f32 v{reg}, v{reg}, v{tmp}')
        a(f'v_mov_b32 v{tmp}, v{reg}')
        a(f'v_permlane32_swap_b32 v{reg}, v{tmp}')
        a(f'v_max_f32 v{reg}, v{reg}, v{tmp}')

    QA, QB = 96, 100
    vQN = 104
    def kvx_base(self, dst, wg_s):
        a = self.a
        a(f's_lshr_b32 {dst}, s{sLAYER}, 1')
        a(f's_mul_i32 {dst}, {dst}, {KVX_SZ}')
        a(f's_add_u32 {dst}, {dst}, {WS_KVX}')
        a(f's_mul_i32 s63, {wg_s}, 24576')
        a(f's_add_u32 {dst}, {dst}, s63')

    def export_own(self):
        a = self.a
        a(f's_mul_i32 s50, s{sRB}, 1536')
        a('v_add_u32 v60, s50, v2')
        a('v_add_u32 v62, 12800, v60')
        a('v_add_u32 v61, 1024, v60')
        a('v_add_u32 v63, 11776, v60')
        a(f'v_cndmask_b32 v61, v63, v61, {LO}')
        a('v_add_u32 v63, 12288, v61')
        a(f'v_add_u32 v10, {VIMG}, v61')
        a(f'v_cndmask_b32 v63, v10, v63, {LO}')
        a('ds_read_b128 v[48:51], v60 offset:12288')
        a('ds_read_b128 v[52:55], v63')
        a(f'ds_read_b128 v[56:59], v62 offset:{VIMG}')
        self.kvx_base('s51', 's2')
        a('s_waitcnt lgkmcnt(0)')
        a(f'buffer_store_dwordx4 v[48:51], v60, {srd(S_WS)}, s51 offen sc1')
        a(f'buffer_store_dwordx4 v[52:55], v61, {srd(S_WS)}, s51 offen sc1')
        a(f'buffer_store_dwordx4 v[56:59], v62, {srd(S_WS)}, s51 offen sc1')

    def set_block_flag(self):
        a = self.a
        a(f's_lshl_b32 s53, s{sRB}, 2')
        a('s_add_u32 s53, s53, 32')
        a(f's_add_u32 s54, s{sLAYER}, 1')
        self.set_xflag('s53', 's54')

    def epi_B(self):
        a = self.a
        A0, A1 = self.ACC0, self.ACC1
        QA, QB = self.QA, self.QB
        a(f's_mov_b32 s{sNEED}, 1')
        self.img_addr_regs()
        a('s_mov_b32 s52, 0x3ea52b5c')
        a('v_mul_f32 v102, s52, v101')
        for r in range(12, 16): a(f'v_mul_f32 v{A0+r}, v101, v{A0+r}')
        for r in range(16): a(f'v_mul_f32 v{A1+r}, v101, v{A1+r}')
        pk = {'B0g3': (106, A0+12), 'B1g0': (108, A1), 'B1g1': (110, A1+4), 'B1g2': (112, A1+8), 'B1g3': (114, A1+12)}
        for n, (d, s_) in pk.items():
            a(f'v_cvt_pk_bf16_f32 v{d}, v{s_}, v{s_+1}')
            a(f'v_cvt_pk_bf16_f32 v{d+1}, v{s_+2}, v{s_+3}')
        self.write_img({n: d for n, (d, _) in pk.items()})
        a(f'v_mul_f32 v118, v{A0+12}, v{A0+12}')
        for r in [A0+13, A0+14, A0+15, A1, A1+1, A1+2, A1+3]: a(f'v_fmac_f32 v118, v{r}, v{r}')
        a(f'v_mul_f32 v119, v{A1+12}, v{A1+12}')
        for r in range(13, 16): a(f'v_fmac_f32 v119, v{A1+r}, v{A1+r}')
        a('v_mov_b32 v13, 0')
        a(f'v_cndmask_b32 v119, v13, v119, {LO}')
        a('v_add_f32 v118, v118, v119')
        a('v_mov_b32 v119, v118')
        a('v_permlane32_swap_b32 v118, v119')
        a('v_add_f32 v118, v118, v119')
        a('s_waitcnt lgkmcnt(0)')
        NOEXP = a.newlabel('EB_NOEXP')
        a(f's_cmp_eq_u32 s{sJ}, 7')
        a(f's_cbranch_scc1 {NOEXP}')
        if self.args.fe: self.fstamp(53)
        self.export_own()
        if self.args.fe: self.fstamp(54)
        a.label(NOEXP)
        self.wave_max(118, 117)
        NOEXP2 = a.newlabel('EB_NOEXP2')
        a(f's_cmp_eq_u32 s{sJ}, 7')
        a(f's_cbranch_scc1 {NOEXP2}')
        a('s_lshl_b32 s52, s2, 6')
        a(f's_add_u32 s52, s52, {WS_XKN}')
        a(f's_lshl_b32 s53, s{sRB}, 2')
        a('v_mov_b32 v12, s53')
        a('s_mov_b64 exec, 1')
        a(f'buffer_store_dword v118, v12, {srd(S_WS)}, s52 offen sc1')
        a('s_mov_b64 exec, -1')
        a.label(NOEXP2)
        a(f's_lshl_b32 s50, s{sW}, 2')
        a('v_mov_b32 v12, s50')
        a('s_mov_b64 exec, 1')
        a(f'ds_write_b32 v12, v118 offset:{L_KN}')
        a('s_mov_b64 exec, -1')
        L = self.if_wave('eq', 0)
        a('v_lshlrev_b32 v12, 2, v1')
        a('v_mov_b32 v13, 0')
        a('s_mov_b64 exec, 0xff')
        a(f'ds_write_b32 v12, v13 offset:{L_KN+32}')
        a('s_mov_b64 exec, -1')
        a.label(L)
        for r in range(0, 12): a(f'v_mul_f32 v{A0+r}, v102, v{A0+r}')
        for j in range(4): a(f'v_cvt_pk_bf16_f32 v{QA+j}, v{A0+2*j}, v{A0+2*j+1}')
        a(f'v_cvt_pk_bf16_f32 v{QB}, v{A0+8}, v{A0+9}')
        a(f'v_cvt_pk_bf16_f32 v{QB+1}, v{A0+10}, v{A0+11}')
        a('v_mul_f32 v116, v16, v16')
        for r in range(1, 8): a(f'v_fmac_f32 v116, v{A0+r}, v{A0+r}')
        a(f'v_mul_f32 v117, v{A0+8}, v{A0+8}')
        for r in range(9, 12): a(f'v_fmac_f32 v117, v{A0+r}, v{A0+r}')
        a('v_mov_b32 v13, 0')
        a(f'v_mov_b32 v{QB+2}, 0x3f80')
        a(f'v_mov_b32 v{QB+3}, 0')
        for j in range(3): a(f'v_cndmask_b32 v{QB+j}, v13, v{QB+j}, {LO}')
        a(f'v_cndmask_b32 v117, v13, v117, {LO}')
        a('v_add_f32 v116, v116, v117')
        a('v_mov_b32 v117, v116')
        a('v_permlane32_swap_b32 v116, v117')
        a(f'v_add_f32 v{self.vQN}, v116, v117')
        self.wave_max(self.vQN, 116)
        self.attn_addr()
        self.attn_masks(self.AMD, self.AMF)
        L = self.if_wave('lt', 4)
        LJ = a.newlabel('EB_J7')
        a(f's_cmp_eq_u32 s{sJ}, 7')
        a(f's_cbranch_scc1 {LJ}')
        if self.args.fe: self.fstamp(55)
        a('s_waitcnt vmcnt(0)')
        if self.args.fe: self.fstamp(56)
        self.set_block_flag()
        a.label(LJ)
        L0 = self.if_wave('eq', 0)
        a('s_call_b64 s[88:89], SUB_IMPORT1T')
        a.label(L0)
        a.label(L)
        if self.args.fe: self.fstamp(57)
        a('s_waitcnt lgkmcnt(0)')
        a('s_barrier')

    def imp_addr(self, st):
        a = self.a
        half = 6144 if st == 1 else 0
        a('v_lshlrev_b32 v10, 4, v0')
        a(f'v_add_u32 v184, {half}, v10')
        a(f'v_add_u32 v185, {half + 4096}, v10')
        a(f'v_add_u32 v186, {12288 + half - 2048}, v10')
        a('v_cmp_gt_u32 vcc, 2048, v10')
        a('v_cndmask_b32 v185, v186, v185, vcc')
        a(f'v_add_u32 v186, {12288 + half + 2048}, v10')
        a(f'v_add_u32 v187, {VIMG - 12288}, v185')
        a('v_cndmask_b32 v187, v187, v185, vcc')

    def imp_flagload(self, st):
        a = self.a
        a('s_sub_u32 s54, s2, 1')
        self.xflag_addr('s52', 's54')
        a('v_and_b32 v11, 3, v1')
        a('v_lshlrev_b32 v11, 2, v11')
        a(f'v_add_u32 v11, {32 + (16 if st == 1 else 0)}, v11')
        a(f'buffer_load_dword v176, v11, {srd(S_WS)}, s52 offen sc1')

    def imp_loads(self, st):
        a = self.a
        a('s_sub_u32 s54, s2, 1')
        self.kvx_base('s51', 's54')
        a(f'buffer_load_dwordx4 v[160:163], v184, {srd(S_WS)}, s51 offen sc1')
        a(f'buffer_load_dwordx4 v[164:167], v185, {srd(S_WS)}, s51 offen sc1')
        a(f'buffer_load_dwordx4 v[168:171], v186, {srd(S_WS)}, s51 offen sc1')
        a('s_lshl_b32 s52, s54, 6')
        a(f's_add_u32 s52, s52, {WS_XKN + (16 if st == 1 else 0)}')
        a('v_and_b32 v11, 3, v1')
        a('v_lshlrev_b32 v11, 2, v11')
        a(f'buffer_load_dword v172, v11, {srd(S_WS)}, s52 offen sc1')

    def imp_try(self, st, nyounger):
        a = self.a
        N = a.newlabel('IT_NO'); E = a.newlabel('IT_E')
        a(f's_waitcnt vmcnt({nyounger})')
        a(f's_add_u32 s63, s{sNONCE}, s{sLAYER}')
        a('s_add_u32 s63, s63, 1')
        a('v_subrev_u32 v176, s63, v176')
        a('v_cmp_lt_u32 vcc, 7, v176')
        a('s_and_b32 s61, vcc_lo, 0xf')
        a('s_cmp_eq_u32 s61, 0')
        a(f's_cbranch_scc0 {N}')
        self.imp_addr(st)
        self.imp_loads(st)
        a(f's_mov_b32 s{sNEED}, 0')
        a(f's_branch {E}')
        a.label(N)
        a(f's_mov_b32 s{sNEED}, 1')
        a.label(E)

    def imp_fill_vals(self, nK, tsrc):
        pass

    def imp_finish(self, st):
        a = self.a
        FILL = a.newlabel('IM_FILL'); E = a.newlabel('IM_END')
        a(f's_cmp_eq_u32 s{sJ}, 0')
        a(f's_cbranch_scc1 {FILL}')
        a('s_sub_u32 s54, s2, 1')
        self.xflag_addr('s52', 's54')
        a(f's_add_u32 s53, s{sLAYER}, 1')
        a('v_and_b32 v11, 3, v1')
        a('v_lshlrev_b32 v11, 2, v11')
        a('v_add_u32 v11, 48, v11')
        self.poll('v11', 's52', 4, 's53')
        self.imp_addr(1)
        self.imp_loads(1)
        a('s_waitcnt vmcnt(0)')
        a('ds_write_b128 v184, v[160:163]')
        a('ds_write_b128 v187, v[164:167]')
        a(f'ds_write_b128 v186, v[168:171] offset:{VIMG - 12288}')
        for ror in (2, 1):
            a(f'v_mov_b32_dpp v173, v172 row_ror:{ror} row_mask:0xf bank_mask:0xf')
            a('v_max_f32 v172, v172, v173')
        a(f'v_mov_b32 v12, {L_KN + 32}')
        a('s_mov_b64 exec, 1')
        a('ds_write_b32 v12, v172')
        a('s_mov_b64 exec, -1')
        a(f's_branch {E}')
        a.label(FILL)
        self.imp_addr(1)
        a('v_lshlrev_b32 v10, 4, v0')
        for r in range(160, 172): a(f'v_mov_b32 v{r}, 0')
        for n, reg in ((0, 162), (1, 166)):
            a(f'v_lshrrev_b32 v11, 4, v10')
            a(f'v_add_u32 v11, {n*256}, v11')
            a('v_mul_u32_u24 v12, 21846, v11')
            a('v_lshrrev_b32 v12, 16, v12')
            a('v_mul_u32_u24 v12, 3, v12')
            a('v_sub_u32 v12, v11, v12')
            a('v_cmp_eq_u32 s[70:71], 2, v12')
            if n == 1:
                a('v_cmp_gt_u32 vcc, 2048, v10')
                a('s_and_b64 s[70:71], s[70:71], vcc')
            a('v_mov_b32 v13, 0xf14a')
            a(f'v_cndmask_b32 v{reg}, v{reg}, v13, s[70:71]')
        a('ds_write_b128 v184, v[160:163]')
        a('ds_write_b128 v187, v[164:167]')
        a(f'ds_write_b128 v186, v[168:171] offset:{VIMG - 12288}')
        a(f'v_mov_b32 v12, {L_KN + 32}')
        a('s_mov_b64 exec, 1')
        a('ds_write_b32 v12, v160')
        a('s_mov_b64 exec, -1')
        a.label(E)
        a('s_waitcnt lgkmcnt(0)')

    def import_solo(self, st, maxtry=None):
        a = self.a
        FILL = a.newlabel('I2_FILL'); E = a.newlabel('I2_END'); GIVE = a.newlabel('I2_GIVE')
        half = 6144 if st == 1 else 0
        fw = 48 if st == 1 else 32
        a(f's_cmp_eq_u32 s{sJ}, 0')
        a(f's_cbranch_scc1 {FILL}')
        a('s_sub_u32 s54, s2, 1')
        self.xflag_addr('s52', 's54')
        a('v_and_b32 v11, 3, v1')
        a('v_lshlrev_b32 v11, 2, v11')
        a(f'v_add_u32 v11, {fw}, v11')
        if maxtry is None:
            a(f's_add_u32 s53, s{sLAYER}, 1')
            self.poll('v11', 's52', 4, 's53')
        else:
            L = a.newlabel('I2_TRY'); OK = a.newlabel('I2_OK')
            a('s_mov_b32 s60, 0')
            a(f's_add_u32 s63, s{sNONCE}, s{sLAYER}')
            a('s_add_u32 s63, s63, 1')
            a.label(L)
            a(f'buffer_load_dword v12, v11, {srd(S_WS)}, s52 offen sc1')
            a('s_waitcnt vmcnt(0)')
            a('v_subrev_u32 v12, s63, v12')
            a('v_cmp_lt_u32 vcc, 7, v12')
            a('s_and_b32 s61, vcc_lo, 0xf')
            a('s_cmp_eq_u32 s61, 0')
            a(f's_cbranch_scc1 {OK}')
            a('s_add_u32 s60, s60, 1')
            a(f's_cmp_lt_u32 s60, {maxtry}')
            a(f's_cbranch_scc1 {L}')
            a(f's_branch {GIVE}')
            a.label(OK)
        self.kvx_base('s51', 's54')
        a(f's_add_u32 s55, s51, {12288 + half}')
        if half: a(f's_add_u32 s51, s51, {half}')
        KR = [160, 164, 168, 172, 176, 180]; VR = [184, 108, 128, 132, 136, 140]
        a('s_lshl_b32 s52, s54, 6')
        a(f's_add_u32 s52, s52, {WS_XKN + (16 if st == 1 else 0)}')
        a('v_and_b32 v11, 3, v1')
        a('v_lshlrev_b32 v11, 2, v11')
        a(f'buffer_load_dword v14, v11, {srd(S_WS)}, s52 offen sc1')
        for n in range(6):
            if n == 4: a('s_add_u32 s51, s51, 4096')
            a(f'buffer_load_dwordx4 v[{KR[n]}:{KR[n]+3}], v2, {srd(S_WS)}, s51 offen offset:{(n%4)*1024} sc1')
        for n in range(6):
            if n == 4: a('s_add_u32 s55, s55, 4096')
            a(f'buffer_load_dwordx4 v[{VR[n]}:{VR[n]+3}], v2, {srd(S_WS)}, s55 offen offset:{(n%4)*1024} sc1')
        a('s_waitcnt vmcnt(12)')
        for ror in (2, 1):
            a(f'v_mov_b32_dpp v15, v14 row_ror:{ror} row_mask:0xf bank_mask:0xf')
            a('v_max_f32 v14, v14, v15')
        a(f'v_mov_b32 v12, {L_KN + 32 + (0 if st == 1 else 4)}')
        a('s_mov_b64 exec, 1')
        a('ds_write_b32 v12, v14')
        a('s_mov_b64 exec, -1')
        for n in range(6):
            a(f's_waitcnt vmcnt({11 - n})')
            a(f'ds_write_b128 v2, v[{KR[n]}:{KR[n]+3}] offset:{KIMG + half + n*1024}')
        for n in range(6):
            a(f's_waitcnt vmcnt({5 - n})')
            a(f'ds_write_b128 v2, v[{VR[n]}:{VR[n]+3}] offset:{VIMG + half + n*1024}')
        a(f's_branch {E}')
        a.label(FILL)
        for r in range(160, 168): a(f'v_mov_b32 v{r}, 0')
        for n in range(6):
            a(f'v_add_u32 v11, {n*64}, v1')
            a('v_mul_u32_u24 v12, 21846, v11')
            a('v_lshrrev_b32 v12, 16, v12')
            a('v_mul_u32_u24 v12, 3, v12')
            a('v_sub_u32 v12, v11, v12')
            a('v_cmp_eq_u32 vcc, 2, v12')
            a('v_mov_b32 v13, 0xf14a')
            a('v_cndmask_b32 v162, v160, v13, vcc')
            a(f'ds_write_b128 v2, v[160:163] offset:{KIMG + half + n*1024}')
            a(f'ds_write_b128 v2, v[164:167] offset:{VIMG + half + n*1024}')
        a.label(E)
        a('s_waitcnt lgkmcnt(0)')
        self.cnt_inc(L_CNTA if st == 1 else L_CNTB)
        a('s_waitcnt lgkmcnt(0)')
        a.label(GIVE)

    def cnt_inc(self, addr):
        a = self.a
        a(f'v_mov_b32 v11, {addr}')
        a('v_mov_b32 v12, 1')
        a('s_mov_b64 exec, 1')
        a('ds_add_u32 v11, v12')
        a('s_mov_b64 exec, -1')

    def cnt_wait(self, addr):
        a = self.a
        L = a.newlabel('CW'); D = a.newlabel('CWD')
        a(f's_add_u32 s62, s{sLAYER}, 1')
        a('s_lshr_b32 s62, s62, 1')
        a(f'v_mov_b32 v11, {addr}')
        a('s_mov_b32 s60, 0')
        a.label(L)
        a('ds_read_b32 v12, v11')
        a('s_waitcnt lgkmcnt(0)')
        a('v_readfirstlane_b32 s61, v12')
        a('s_cmp_ge_u32 s61, s62')
        a(f's_cbranch_scc1 {D}')
        a('s_sleep 1')
        a('s_add_u32 s60, s60, 1')
        a('s_cmp_lt_u32 s60, 0x200000')
        a(f's_cbranch_scc1 {L}')
        a.label(D)

    def light_flag(self):
        a = self.a
        E = a.newlabel('LF_E')
        a(f's_cmp_eq_u32 s{sJ}, 7')
        a(f's_cbranch_scc1 {E}')
        a('s_waitcnt vmcnt(0)')
        self.set_block_flag()
        a.label(E)

    def attn_addr(self):
        a = self.a
        a('v_and_b32 v10, 31, v1')
        a(f's_lshl_b32 s50, s{sRB}, 5')
        a('v_add_u32 v10, s50, v10')
        a('v_mul_u32_u24 v10, 48, v10')
        a('v_lshrrev_b32 v11, 5, v1')
        a('v_lshlrev_b32 v12, 4, v11')
        a('v_add_u32 v105, v10, v12')
        a('v_add_u32 v106, 32, v10')
        a('v_bfe_u32 v12, v1, 2, 2')
        a('v_lshlrev_b32 v13, 2, v11')
        a('v_add_u32 v12, v12, v13')
        a('v_add_u32 v12, s50, v12')
        a('v_mul_u32_u24 v12, 48, v12')
        a('v_and_b32 v13, 3, v1')
        a('v_lshlrev_b32 v14, 3, v13')
        a('v_min_u32 v15, 1, v13')
        a('v_lshlrev_b32 v15, 3, v15')
        a('v_add_u32 v15, 32, v15')
        a('v_bfe_u32 v13, v1, 4, 1')
        a('v_cmp_eq_u32 vcc, 1, v13')
        a('v_cndmask_b32 v14, v14, v15, vcc')
        a('v_add_u32 v12, v12, v14')
        a(f'v_add_u32 v107, {VIMG}, v12')

    def attn_masks(self, MD, MF):
        a = self.a
        a('v_and_b32 v10, 31, v1')
        a('v_lshrrev_b32 v11, 5, v1')
        a('v_lshlrev_b32 v13, 2, v11')
        a('v_sub_u32 v10, v10, v13')
        a('v_mov_b32 v14, 0xf149f2ca')
        a('v_mov_b32 v15, 0')
        conds = ['s[70:71]', 's[72:73]', 's[74:75]', 's[76:77]']
        for r0 in range(0, 16, 4):
            for q in range(4):
                r = r0 + q
                kk = 8 * (r >> 2) + (r & 3)
                a(f'v_cmp_le_i32 {conds[q]}, {kk}, v10')
            for q in range(4):
                r = r0 + q
                a(f'v_cndmask_b32 v{MD+r}, v14, v15, {conds[q]}')
                a(f'v_cndmask_b32 v{MF+r}, v15, v14, {conds[q]}')

    def norm_check(self, fail_label):
        a = self.a
        a('v_and_b32 v11, 15, v1')
        a('v_lshlrev_b32 v11, 2, v11')
        a(f'ds_read_b32 v12, v11 offset:{L_KN}')
        a('s_waitcnt lgkmcnt(0)')
        for ror in (8, 4, 2, 1):
            a(f'v_mov_b32_dpp v13, v12 row_ror:{ror} row_mask:0xf bank_mask:0xf')
            a('v_max_f32 v12, v12, v13')
        a(f'v_mul_f32 v12, v{self.vQN}, v12')
        a(f's_mov_b32 s50, {self.args.t2hex}')
        a('v_mov_b32 v13, s50')
        a('v_cmp_nle_f32 vcc, v12, v13')
        a('s_cmp_lg_u64 vcc, 0')
        a(f's_cbranch_scc1 {fail_label}')

    AO, AMD, AMF, AVF, AKF, ASB, ANM = 16, 32, 48, 64, 80, 112, 160
    def at_kread(self, i):
        n = 8 - i; s = self.AKF + 8 * (i % 2)
        self.a(f'ds_read_b128 v[{s}:{s+3}], v105 offset:{n*1536}')
        self.a(f'ds_read_b128 v[{s+4}:{s+7}], v106 offset:{n*1536}')
    def at_vread(self, i):
        n = 8 - i; s = self.AVF + 8 * (i % 2)
        for s2 in range(2):
            for sx in range(2):
                self.a(f'ds_read_b64_tr_b16 v[{s+4*s2+2*sx}:{s+4*s2+2*sx+1}], v107 offset:{n*1536 + s2*768 + sx*384}')
    def at_smfma(self, i, part, cz):
        s = self.AKF + 8 * (i % 2); d = self.ASB + 16 * (i % 2)
        MD, MF, QA, QB = self.AMD, self.AMF, self.QA, self.QB
        if part == 0:
            c = f'v[{MD}:{MD+15}]' if i == 0 else f'v[{MF}:{MF+15}]' if i == 8 else cz
            self.a(f'{MF32} v[{d}:{d+15}], v[{s}:{s+3}], v[{QA}:{QA+3}], {c}')
        else:
            self.a(f'{MF32} v[{d}:{d+15}], v[{s+4}:{s+7}], v[{QB}:{QB+3}], v[{d}:{d+15}]')

    def attn_loop(self, cz, sync):
        a = self.a
        O, VF, SB = self.AO, self.AVF, self.ASB
        self.at_kread(0); self.at_vread(0)
        a('s_waitcnt lgkmcnt(4)')
        self.at_smfma(0, 0, cz); self.at_smfma(0, 1, cz)
        for i in range(9):
            d = SB + 16 * (i % 2)
            if i < 8:
                if sync: sync(i)
                self.at_kread(i + 1)
                self.at_vread(i + 1)
                for r in range(0, 4): a(f'v_exp_f32 v{d+r}, v{d+r}')
                a('s_waitcnt lgkmcnt(4)')
                self.at_smfma(i + 1, 0, cz)
                for r in range(4, 8): a(f'v_exp_f32 v{d+r}, v{d+r}')
                for j in range(0, 2): a(f'v_cvt_pk_bf16_f32 v{d+j}, v{d+2*j}, v{d+2*j+1}')
                self.at_smfma(i + 1, 1, cz)
                for j in range(2, 4): a(f'v_cvt_pk_bf16_f32 v{d+j}, v{d+2*j}, v{d+2*j+1}')
                for r in range(8, 12): a(f'v_exp_f32 v{d+r}, v{d+r}')
            else:
                for r in range(0, 8): a(f'v_exp_f32 v{d+r}, v{d+r}')
                for j in range(0, 4): a(f'v_cvt_pk_bf16_f32 v{d+j}, v{d+2*j}, v{d+2*j+1}')
                a('s_waitcnt lgkmcnt(0)')
                for r in range(8, 12): a(f'v_exp_f32 v{d+r}, v{d+r}')
            s = VF + 8 * (i % 2)
            a(f'{MF32} v[{O}:{O+15}], v[{s}:{s+3}], v[{d}:{d+3}], {"0" if i == 0 else f"v[{O}:{O+15}]"}')
            for r in range(12, 16): a(f'v_exp_f32 v{d+r}, v{d+r}')
            for j in range(4, 8): a(f'v_cvt_pk_bf16_f32 v{d+j}, v{d+2*j}, v{d+2*j+1}')
            a(f'{MF32} v[{O}:{O+15}], v[{s+4}:{s+7}], v[{d+4}:{d+7}], v[{O}:{O+15}]')

    def attn_true(self):
        a = self.a
        MD, MF, SB, NM = self.AMD, self.AMF, self.ASB, self.ANM
        a('v_mov_b32 v10, 0xff7fffff')
        a('v_mov_b32 v11, 0xff7fffff')
        self.at_kread(0)
        for i in range(9):
            if i < 8:
                self.at_kread(i + 1); a('s_waitcnt lgkmcnt(2)')
            else: a('s_waitcnt lgkmcnt(0)')
            self.at_smfma(i, 0, '0'); self.at_smfma(i, 1, '0')
            d = SB + 16 * (i % 2)
            for k in range(0, 16, 4):
                a(f'v_max3_f32 v10, v10, v{d+k}, v{d+k+1}')
                a(f'v_max3_f32 v11, v11, v{d+k+2}, v{d+k+3}')
        a('v_max_f32 v10, v10, v11')
        a('v_mov_b32 v11, v10')
        a('v_permlane32_swap_b32 v10, v11')
        a('v_max_f32 v10, v10, v11')
        for r in range(16):
            a(f'v_sub_f32 v{NM+r}, 0, v10')
            a(f'v_sub_f32 v{MD+r}, v{MD+r}, v10')
            a(f'v_sub_f32 v{MF+r}, v{MF+r}, v10')
        self.attn_loop(f'v[{NM}:{NM+15}]', None)

    def attn_B(self):
        a = self.a
        FB1 = a.newlabel('AT_FB1'); FB2 = a.newlabel('AT_FB2'); FB3 = a.newlabel('AT_FB3'); DONE = a.newlabel('AT_DONE')
        FB2L = a.newlabel('AT_FB2L')
        if self.args.aprio:
            L = self.if_wave('ge', 4)
            a(f's_setprio {self.args.aprio}')
            a.label(L)
        if self.args.force_fallback:
            a(f's_branch {FB1}')
        self.norm_check(FB1)
        def stage1_if_needed():
            D = a.newlabel('S1_D')
            a(f's_add_u32 s62, s{sLAYER}, 1')
            a('s_lshr_b32 s62, s62, 1')
            a(f'v_mov_b32 v11, {L_CNTA}')
            a('ds_read_b32 v12, v11')
            a('s_waitcnt lgkmcnt(0)')
            a('v_readfirstlane_b32 s61, v12')
            a('s_cmp_ge_u32 s61, s62')
            a(f's_cbranch_scc1 {D}')
            a('s_call_b64 s[88:89], SUB_IMPORT1')
            a.label(D)
        self.stage1_if_needed = stage1_if_needed
        def sync_point(i):
            if i == self.args.fli:
                SK = self.if_wave('ge', 4)
                self.light_flag()
                a.label(SK)
            if i == 0:
                SK = self.if_wave('eq', 4)
                stage1_if_needed()
                a.label(SK)
            SK = a.newlabel('AT_SY')
            a(f's_cmp_lg_u32 s{sRB}, {i}')
            a(f's_cbranch_scc1 {SK}')
            self.cnt_wait(L_CNTA)
            self.norm_check(FB2)
            a.label(SK)
            if i == 4:
                SK = self.if_wave('eq', 4)
                if self.args.fb: self.fstamp(56)
                a('s_call_b64 s[88:89], SUB_IMPORT2')
                if self.args.fb: self.fstamp(57)
                a.label(SK)
                if self.args.aprio:
                    SK = self.if_wave('ge', 4)
                    a('s_setprio 0')
                    a.label(SK)
            if i >= 4:
                SK = a.newlabel('AT_SYB')
                a(f's_cmp_lg_u32 s{sRB}, {i-4}')
                a(f's_cbranch_scc1 {SK}')
                self.cnt_wait(L_CNTB)
                self.norm_check(FB3)
                a.label(SK)
        self.attn_loop('0', sync_point)
        a(f's_branch {DONE}')
        a.label(FB1)
        a('s_waitcnt lgkmcnt(0)')
        L = self.if_wave('ge', 4)
        self.light_flag()
        L4 = self.if_wave('eq', 4)
        stage1_if_needed()
        a.label(L4)
        a.label(L)
        self.cnt_wait(L_CNTA)
        a.label(FB2)
        L = self.if_wave('ge', 4)
        L4 = self.if_wave('eq', 4)
        a('s_call_b64 s[88:89], SUB_IMPORT2')
        a.label(L4)
        self.cnt_wait(L_CNTB)
        a.label(L)
        a.label(FB3)
        a('s_setprio 0')
        a('s_waitcnt vmcnt(0) lgkmcnt(0)')
        self.attn_true()
        a.label(DONE)

    def phi(self, r, tA, tB, sel_lo=False):
        a = self.a
        a(f'v_mul_f32 v{tA}, v102, v{r}')
        a(f'v_fma_f32 v{tB}, v101, v{r}, s52')
        a(f'v_exp_f32_e64 v{tA}, v{tA} clamp')
        a(f'v_max_f32 v{tB}, s52, v{tB}')
        if not sel_lo:
            a(f'v_add_f32 v{r}, v{tA}, v{tB}')
        else:
            a(f'v_add_f32 v{tA}, v{tA}, v{tB}')
            a(f'v_mul_f32 v{r}, v101, v{r}')
            a(f'v_cndmask_b32 v{r}, v{r}, v{tA}, {LO}')

    def epi_A(self):
        a = self.a
        A0, A1 = self.ACC0, self.ACC1
        QA, QB = self.QA, self.QB
        self.img_addr_regs()
        a('s_mov_b32 s53, 0x3fb8aa3b')
        a('v_mul_f32 v102, s53, v101')
        a('s_mov_b32 s52, 0x358637bd')
        t = 0
        def ph(r, sel=False):
            nonlocal t
            self.phi(r, 106 + 2 * (t % 4), 107 + 2 * (t % 4), sel); t += 1
        for r in list(range(A0 + 12, A0 + 16)) + list(range(A1, A1 + 4)): ph(r)
        for r in range(A1 + 4, A1 + 12): a(f'v_mul_f32 v{r}, v101, v{r}')
        for r in range(A1 + 12, A1 + 16): ph(r, True)
        pk = {'B0g3': (126, A0+12), 'B1g0': (128, A1), 'B1g1': (130, A1+4), 'B1g2': (132, A1+8), 'B1g3': (134, A1+12)}
        for n, (d, s_) in pk.items():
            a(f'v_cvt_pk_bf16_f32 v{d}, v{s_}, v{s_+1}')
            a(f'v_cvt_pk_bf16_f32 v{d+1}, v{s_+2}, v{s_+3}')
        self.write_img({n: d for n, (d, _) in pk.items()})
        for r in range(A0, A0 + 12): ph(r)
        for j in range(4): a(f'v_cvt_pk_bf16_f32 v{QA+j}, v{A0+2*j}, v{A0+2*j+1}')
        a(f'v_cvt_pk_bf16_f32 v{QB}, v{A0+8}, v{A0+9}')
        a(f'v_cvt_pk_bf16_f32 v{QB+1}, v{A0+10}, v{A0+11}')
        a('v_mov_b32 v13, 0')
        a(f'v_mov_b32 v{QB+2}, 0')
        a(f'v_mov_b32 v{QB+3}, 0')
        for j in range(2): a(f'v_cndmask_b32 v{QB+j}, v13, v{QB+j}, {LO}')
        a('s_waitcnt lgkmcnt(0)')
        a('s_barrier')

    def linear_attn(self):
        a = self.a
        QA, QB = self.QA, self.QB
        L = self.if_wave('ge', 4)
        if self.args.wosig:
            a(f's_add_u32 s59, s{sLAYER}, 1')
            self.lds_wait('s59')
        if not self.args.nowo: self.dma_wo(0, 4)
        a.label(L)
        LS = a.newlabel('LA_ST')
        a(f's_cmp_lg_u32 s{sLAYER}, 0')
        a(f's_cbranch_scc1 {LS}')
        self.late_touch()
        L = self.if_wave('ge', 1)
        self.stash_load(1)
        a.label(L)
        a.label(LS)
        E = self.if_wave('eq', 0)
        a('v_lshrrev_b32 v11, 5, v1')
        a('v_bfe_u32 v12, v1, 2, 2')
        a('v_lshlrev_b32 v13, 2, v11')
        a('v_add_u32 v12, v12, v13')
        a('v_add_u32 v12, 256, v12')
        a('v_mul_u32_u24 v12, 48, v12')
        a('v_and_b32 v13, 3, v1')
        a('v_bfe_u32 v17, v1, 4, 1')
        a('v_min_u32 v15, 1, v13')
        a('v_lshlrev_b32 v15, 3, v15')
        a('v_add_u32 v15, 32, v15')
        a('v_lshlrev_b32 v14, 3, v13')
        a('v_and_b32 v16, 1, v13')
        a('v_lshlrev_b32 v16, 4, v16')
        a('v_lshrrev_b32 v18, 1, v13')
        a('v_lshlrev_b32 v18, 3, v18')
        a('v_add_u32 v16, v16, v18')
        a('v_cmp_eq_u32 vcc, 1, v17')
        a('v_cndmask_b32 v14, v14, v15, vcc')
        a('v_cndmask_b32 v16, v16, v15, vcc')
        a('v_add_u32 v104, v12, v16')
        a('v_add_u32 v105, v12, v14')
        a(f'v_add_u32 v105, {VIMG}, v105')
        D = 32
        NB = 4
        def rd(s2):
            s = 112 + 8 * (s2 % NB)
            a(f'ds_read_b64_tr_b16 v[{s}:{s+1}], v104 offset:{s2*768}')
            a(f'ds_read_b64_tr_b16 v[{s+2}:{s+3}], v104 offset:{s2*768+384}')
            a(f'ds_read_b64_tr_b16 v[{s+4}:{s+5}], v105 offset:{s2*768}')
            a(f'ds_read_b64_tr_b16 v[{s+6}:{s+7}], v105 offset:{s2*768+384}')
        for s2 in range(NB - 1): rd(s2)
        for s2 in range(16):
            if s2 + NB - 1 < 16: rd(s2 + NB - 1)
            pend = min(NB - 1, 15 - s2)
            a(f's_waitcnt lgkmcnt({4*pend})')
            s = 112 + 8 * (s2 % NB)
            a(f'{MF32} v[{D}:{D+15}], v[{s}:{s+3}], v[{s+4}:{s+7}], {"0" if s2 == 0 else f"v[{D}:{D+15}]"}')
        (None if self.args.fq else self.fstamp(53))
        a(f's_lshr_b32 s50, s{sLAYER}, 1')
        a(f's_mul_i32 s50, s50, {KVP_SZ}')
        a(f's_add_u32 s50, s50, {WS_KVP}')
        a(f's_lshl_b32 s51, s{sH}, 15')
        a('s_add_u32 s50, s50, s51')
        a(f's_lshl_b32 s51, s{sJ}, 12')
        a('s_add_u32 s51, s51, s50')
        a(f's_add_u32 s53, s{sLAYER}, 17')
        a(f's_add_u32 s53, s53, s{sNONCE}')
        for g in range(3):
            b = 48 + 4 * g
            a(f'v_cvt_pk_bf16_f32 v{b}, v{D+4*g}, v{D+4*g+1}')
            a(f'v_cvt_pk_bf16_f32 v{b+1}, v{D+4*g+2}, v{D+4*g+3}')
            a(f'v_mov_b32 v{b+2}, s53')
            a(f'v_mov_b32 v{b+3}, s53')
        for g in range(3):
            b = 48 + 4 * g
            a(f'buffer_store_dwordx4 v[{b}:{b+3}], v2, {srd(S_WS)}, s51 offen offset:{g*1024} sc1')
        (None if self.args.fq else self.fstamp(54))
        IB = [16, 28, 40, 52, 64, 76, 104, 116]
        PL = a.newlabel('KV_POLL'); PD = a.newlabel('KV_DONE')
        a('s_mov_b32 s60, 0')
        a(f's_sleep {self.args.kvsleep}')
        a.label(PL)
        a('s_mov_b32 s54, s50')
        for j in range(8):
            for g in range(3):
                r = IB[j] + 4 * g
                a(f'buffer_load_dwordx4 v[{r}:{r+3}], v2, {srd(S_WS)}, s54 offen offset:{g*1024} sc1')
            if j < 7: a('s_add_u32 s54, s54, 4096')
        a('v_mov_b32 v88, 0')
        a('v_mov_b32 v89, s53')
        for j in range(8):
            a(f's_waitcnt vmcnt({3*(7-j)})')
            r = IB[j]
            a(f'v_bitop3_b32 v90, v{r+2}, v{r+3}, v89 bitop3:0x7e')
            a(f'v_bitop3_b32 v91, v{r+6}, v{r+7}, v89 bitop3:0x7e')
            a(f'v_bitop3_b32 v92, v{r+10}, v{r+11}, v89 bitop3:0x7e')
            a('v_or3_b32 v88, v88, v90, v91')
            a('v_or_b32 v88, v88, v92')
        a('v_cmp_ne_u32 vcc, 0, v88')
        a('s_cmp_eq_u64 vcc, 0')
        a(f's_cbranch_scc1 {PD}')
        a(f's_cmp_lg_u32 s{sDEAD}, 0')
        a(f's_cbranch_scc1 {PD}')
        a('s_add_u32 s60, s60, 1')
        a(f's_cmp_lt_u32 s60, {self.args.spin}')
        a(f's_cbranch_scc1 {PL}')
        a(f's_mov_b32 s{sDEAD}, 1')
        a.label(PD)
        (None if self.args.fq else self.fstamp(55))
        a(f's_add_u32 s59, s{sLAYER}, 1')
        self.lds_signal('s59')
        a('v_mov_b32 v88, 0x00003f80')
        a('v_mov_b32 v89, 0x3f800000')
        acc = [128 + k for k in range(12)]
        for k in range(12): a(f'v_mov_b32 v{acc[k]}, 0')
        for j in range(8):
            for g in range(3):
                for h2 in range(2):
                    src = IB[j] + 4 * g + h2
                    a(f'v_dot2c_f32_bf16 v{acc[4*g + 2*h2]}, v{src}, v88')
                    a(f'v_dot2c_f32_bf16 v{acc[4*g + 2*h2 + 1]}, v{src}, v89')
        (None if self.args.fq else self.fstamp(56))
        for j in range(6): a(f'v_cvt_pk_bf16_f32 v{64+j}, v{acc[2*j]}, v{acc[2*j+1]}')
        LS0 = a.newlabel('LA_ST0')
        a(f's_cmp_lg_u32 s{sLAYER}, 0')
        a(f's_cbranch_scc1 {LS0}')
        self.stash_load(1)
        a.label(LS0)
        a(f'ds_write_b128 v2, v[64:67] offset:{L_KV}')
        a('v_lshlrev_b32 v13, 3, v1')
        a(f'ds_write_b64 v13, v[68:69] offset:{L_KV+1024}')
        a.label(E)
        a('s_waitcnt lgkmcnt(0)')
        a('s_barrier')
        a('v_lshlrev_b32 v13, 3, v1')
        a(f'ds_read_b128 v[64:67], v2 offset:{L_KV}')
        a(f'ds_read_b64 v[68:69], v13 offset:{L_KV+1024}')
        a('v_mov_b32 v70, 0\nv_mov_b32 v71, 0')
        a('s_waitcnt lgkmcnt(0)')
        a(f'{MF32} v[16:31], v[64:67], v[{QA}:{QA+3}], 0')
        a(f'{MF32} v[16:31], v[68:71], v[{QB}:{QB+3}], v[16:31]')

    def o_addr(self):
        a = self.a
        a(f's_lshl_b32 s50, s{sJ}, 4')
        a(f's_lshl_b32 s51, s{sRB}, 1')
        a('s_add_u32 s50, s50, s51')
        a(f's_mul_i32 s50, s50, {OBS}')
        a(f's_add_u32 s50, s50, s{sOF}')
        a('v_bfe_u32 v11, v1, 4, 1')
        a(f'v_mul_u32_u24 v11, {OBS}, v11')
        a('v_and_b32 v12, 15, v1')
        a('v_lshlrev_b32 v12, 4, v12')
        a('v_add_u32 v11, v11, v12')
        a('v_lshrrev_b32 v12, 5, v1')
        a(f's_mul_i32 s51, s{sH}, 5')
        a('v_add_u32 v12, s51, v12')
        def qoff(dst, q):
            a(f'v_lshrrev_b32 v14, 3, {q}')
            a(f'v_lshlrev_b32 {dst}, 10, v14')
            a(f'v_bfe_u32 v14, {q}, 2, 1')
            a('v_lshlrev_b32 v14, 9, v14')
            a(f'v_add_u32 {dst}, {dst}, v14')
            a(f'v_and_b32 v14, 1, {q}')
            a('v_lshlrev_b32 v14, 8, v14')
            a(f'v_add_u32 {dst}, {dst}, v14')
            a(f'v_bfe_u32 v14, {q}, 1, 1')
            a('v_lshlrev_b32 v14, 3, v14')
            a(f'v_add_u32 {dst}, {dst}, v14')
            a(f'v_add_u32 {dst}, {dst}, v11')
        qoff('v40', 'v12')
        a('v_add_u32 v13, 2, v12')
        qoff('v41', 'v13')
        a('s_add_u32 s51, s51, 4')
        a('v_mov_b32 v13, s51')
        qoff('v42', 'v13')

    def finalize_o(self, eps):
        a = self.a
        self.o_addr()
        a(f'v_cndmask_b32 v10, v24, v28, {LO}')
        if eps: a('v_add_f32 v10, 0x358637bd, v10')
        a('v_rcp_f32 v10, v10')
        for r in range(12): a(f'v_mul_f32 v{16+r}, v10, v{16+r}')
        for j in range(6): a(f'v_cvt_pk_bf16_f32 v{32+j}, v{16+2*j}, v{17+2*j}')
        a(f'buffer_store_dwordx2 v[32:33], v40, {srd(S_WS)}, s50 offen')
        a(f'buffer_store_dwordx2 v[34:35], v41, {srd(S_WS)}, s50 offen')
        a('s_mov_b64 exec, 0xffffffff')
        a(f'buffer_store_dwordx2 v[36:37], v42, {srd(S_WS)}, s50 offen')
        a('s_mov_b64 exec, -1')
        a('s_waitcnt vmcnt(0)')

    def wo_phase(self):
        a = self.a
        OFR = 16; WF = 96; AC = 48; XOR_ = [88, 90, 92, 94, 136]
        HELP = a.newlabel('WO_HELP')
        a(f's_cmp_ge_u32 s{sW}, 4')
        a(f's_cbranch_scc1 {HELP}')
        a(f's_lshr_b32 s50, s{sH}, 3')
        a(f's_and_b32 s51, s{sH}, 7')
        a(f's_and_b32 s52, s{sW}, 1')
        a(f's_lshr_b32 s53, s{sW}, 1')
        a(f's_lshl_b32 s54, s{sJ}, 4')
        a('s_lshl_b32 s55, s50, 2')
        a('s_add_u32 s54, s54, s55')
        a('s_lshl_b32 s55, s52, 1')
        a('s_add_u32 s54, s54, s55')
        a(f's_mul_i32 s55, s54, {OBS}')
        a('s_mul_i32 s56, s53, 10240')
        a('s_add_u32 s55, s55, s56')
        a(f's_add_u32 s55, s55, s{sOF}')
        a(f's_add_u32 s56, s55, {OBS}')
        a('s_cmp_eq_u32 s53, 0')
        a('s_cselect_b32 s57, s55, s56')
        a('s_cselect_b32 s56, s56, s55')
        a('s_mov_b32 s55, s57')
        vq = VQ()
        def oload(i):
            for aa in range(2):
                r = OFR + 8 * (i % 4) + 4 * aa
                sb = 's55' if aa == 0 else 's56'
                a(f'buffer_load_dwordx4 v[{r}:{r+3}], v2, {srd(S_WS)}, {sb} offen offset:{(i % 4) * 1024} sc1')
                vq.push(('o', i))
            if i % 4 == 3:
                a('s_add_u32 s55, s55, 4096\ns_add_u32 s56, s56, 4096')
        PF = 3
        for i in range(PF): oload(i)
        (self.fstamp(59) if self.args.flayer else None)
        a('s_mul_i32 s60, s53, 51200')
        a(f's_add_u32 s60, s60, {R_O}')
        a('v_add_u32 v11, s60, v2')
        def wrd1(i, c):
            s = WF + 20 * (i % 2)
            a(f'ds_read_b128 v[{s+4*c}:{s+4*c+3}], v11 offset:{(i*5 + c)*1024}')
        for c in range(5): wrd1(0, c)
        a('s_add_u32 s57, s54, s53')
        a('s_lshr_b32 s58, s57, 1')
        a(f's_mul_i32 s58, s58, {RBS}')
        a('s_mul_i32 s59, s51, 5120')
        a('s_add_u32 s58, s58, s59')
        a('s_and_b32 s59, s57, 1')
        a('s_lshl_b32 s59, s59, 8')
        a('s_add_u32 s58, s58, s59')
        a(f's_add_u32 s59, s58, s{sXF}')
        a('v_lshrrev_b32 v10, 5, v1')
        a('v_lshlrev_b32 v10, 9, v10')
        a('v_and_b32 v12, 15, v1')
        a('v_lshlrev_b32 v12, 4, v12')
        a('v_add_u32 v10, v10, v12')
        a('v_bfe_u32 v12, v1, 4, 1')
        a('v_lshlrev_b32 v12, 3, v12')
        a('v_add_u32 v10, v10, v12')
        (self.fstamp(60) if self.args.flayer else None)
        for i in range(10):
            s = WF + 20 * (i % 2)
            a(f's_waitcnt vmcnt({vq.cnt(("o", i))})')
            if i == 1 and self.args.flayer: self.fstamp(61)
            for c in range(5):
                lg = 4 if i < 9 else (4 - c)
                a(f's_waitcnt lgkmcnt({lg})')
                for aa in range(2):
                    d = AC + 20 * aa + 4 * c; o = OFR + 8 * (i % 4) + 4 * aa
                    cc = '0' if i == 0 else f'v[{d}:{d+3}]'
                    a(f'{MF16} v[{d}:{d+3}], v[{s+4*c}:{s+4*c+3}], v[{o}:{o+3}], {cc}')
                if i < 9: wrd1(i + 1, c)
                if c == 1 and i + PF < 10: oload(i + PF)
                if c == 3 and i >= 5:
                    cc = i - 5
                    if cc == 4: a('s_add_u32 s59, s59, 4096')
                    a(f'buffer_load_dwordx2 v[{XOR_[cc]}:{XOR_[cc]+1}], v10, {srd(S_WS)}, s59 offen offset:{(cc % 4) * 1024} sc1')
                    vq.push('res')
        (self.fstamp(62) if self.args.flayer else None)
        a(f's_mul_i32 s60, s{sW}, 5120')
        a(f's_add_u32 s60, s60, {SCR}')
        a('v_add_u32 v12, s60, v2')
        for c in range(5): a(f'ds_write_b128 v12, v[{AC+20+4*c}:{AC+20+4*c+3}] offset:{c*1024}')
        a('s_waitcnt vmcnt(0)')
        for c in range(5):
            x0, x1 = XOR_[c], XOR_[c] + 1
            b = 100 + 4 * c
            a(f'v_lshlrev_b32 v{b}, 16, v{x0}\nv_and_b32 v{b+1}, 0xffff0000, v{x0}\nv_lshlrev_b32 v{b+2}, 16, v{x1}\nv_and_b32 v{b+3}, 0xffff0000, v{x1}')
            for r in range(4): a(f'v_add_f32 v{AC+4*c+r}, v{AC+4*c+r}, v{b+r}')
        a('s_waitcnt lgkmcnt(0)')
        a.label(HELP)
        a('s_barrier')
        self.stamp(9, True)
        H2 = a.newlabel('WO_H2'); H3 = a.newlabel('WO_H3')
        a(f's_cmp_ge_u32 s{sW}, 4')
        a(f's_cbranch_scc1 {H2}')
        a(f's_xor_b32 s60, s{sW}, 2')
        a('s_mul_i32 s60, s60, 5120')
        a(f's_add_u32 s60, s60, {SCR}')
        a('v_add_u32 v12, s60, v2')
        for c in range(5): a(f'ds_read_b128 v[{16+4*c}:{19+4*c}], v12 offset:{c*1024}')
        a('s_waitcnt lgkmcnt(0)')
        for c in range(5):
            for r in range(4): a(f'v_add_f32 v{AC+4*c+r}, v{AC+4*c+r}, v{16+4*c+r}')
            a(f'v_cvt_pk_bf16_f32 v{120+2*c}, v{AC+4*c}, v{AC+4*c+1}')
            a(f'v_cvt_pk_bf16_f32 v{121+2*c}, v{AC+4*c+2}, v{AC+4*c+3}')
        LAST = a.newlabel('WO_LAST')
        a(f's_cmp_eq_u32 s{sLAYER}, 3')
        a(f's_cbranch_scc1 {LAST}')
        a(f's_add_u32 s59, s58, s{sXFN}')
        for c in range(5):
            if c == 4: a('s_add_u32 s59, s59, 4096')
            a(f'buffer_store_dwordx2 v[{120+2*c}:{121+2*c}], v10, {srd(S_WS)}, s59 offen offset:{(c % 4) * 1024}')
        a(f'v_add_f32 v40, v{AC}, v{AC+1}')
        a(f'v_add_f32 v42, v{AC+2}, v{AC+3}')
        a(f'v_mul_f32 v41, v{AC}, v{AC}')
        a(f'v_mul_f32 v43, v{AC+1}, v{AC+1}')
        a(f'v_fmac_f32 v41, v{AC+2}, v{AC+2}')
        a(f'v_fmac_f32 v43, v{AC+3}, v{AC+3}')
        for k in range(4, 20, 2):
            a(f'v_add_f32 v40, v40, v{AC+k}')
            a(f'v_add_f32 v42, v42, v{AC+k+1}')
            a(f'v_fmac_f32 v41, v{AC+k}, v{AC+k}')
            a(f'v_fmac_f32 v43, v{AC+k+1}, v{AC+k+1}')
        a('v_add_f32 v40, v40, v42')
        a('v_add_f32 v41, v41, v43')
        a('v_mov_b32 v42, v40\nv_mov_b32 v43, v41')
        a('v_permlane16_swap_b32 v40, v42')
        a('v_permlane16_swap_b32 v41, v43')
        a('v_add_f32 v40, v40, v42\nv_add_f32 v41, v41, v43')
        a('v_mov_b32 v42, v40\nv_mov_b32 v43, v41')
        a('v_permlane32_swap_b32 v40, v42')
        a('v_permlane32_swap_b32 v41, v43')
        a('v_add_f32 v40, v40, v42\nv_add_f32 v41, v41, v43')
        a('s_lshl_b32 s60, s57, 10')
        a('s_lshl_b32 s61, s51, 3')
        a('s_add_u32 s60, s60, s61')
        a(f's_add_u32 s60, s60, s{sSTN}')
        a('v_lshlrev_b32 v42, 6, v1')
        a('s_mov_b64 exec, 0xffff')
        a(f'buffer_store_dwordx2 v[40:41], v42, {srd(S_WS)}, s60 offen')
        a('s_mov_b64 exec, -1')
        self.stash_writeback()
        a('s_waitcnt lgkmcnt(0)')
        a(f's_branch {H3}')
        a.label(LAST)
        a('s_mul_i32 s60, s57, 20480')
        a('s_mul_i32 s61, s51, 160')
        a('s_add_u32 s60, s60, s61')
        a('v_and_b32 v42, 15, v1')
        a('v_mul_u32_u24 v42, 1280, v42')
        a('v_lshrrev_b32 v43, 4, v1')
        a('v_lshlrev_b32 v43, 3, v43')
        a('v_add_u32 v42, v42, v43')
        for c in range(5):
            a(f'buffer_store_dwordx2 v[{120+2*c}:{121+2*c}], v42, {srd(S_OUT)}, s60 offen offset:{c*32}')
        a(f's_branch {H3}')
        a.label(H2)
        self.stash_writeback()
        a('s_waitcnt lgkmcnt(0)')
        a.label(H3)

    def set_layer_bases(self):
        a = self.a
        if self.args.noreuse:
            a(f's_mul_i32 s50, s{sLAYER}, {XF_SZ}')
            a(f's_add_u32 s{sXF}, s50, {WS_XF}')
            a(f's_add_u32 s{sXFN}, s{sXF}, {XF_SZ}')
            a(f's_add_u32 s{sOF}, s50, {WS_OF}')
            a(f's_mul_i32 s50, s{sLAYER}, {ST_SZ}')
            a(f's_add_u32 s{sST}, s50, {WS_ST}')
            a(f's_add_u32 s{sSTN}, s{sST}, {ST_SZ}')
            return
        a(f's_and_b32 s51, s{sLAYER}, 1')
        a(f's_mul_i32 s50, s51, {XF_SZ}')
        a(f's_add_u32 s{sXF}, s50, {WS_XF}')
        a(f's_sub_u32 s{sXFN}, {2*WS_XF + XF_SZ}, s{sXF}')
        a(f's_mov_b32 s{sOF}, {WS_OF}')
        a(f's_mul_i32 s50, s51, {ST_SZ}')
        a(f's_add_u32 s{sST}, s50, {WS_ST}')
        a(f's_sub_u32 s{sSTN}, {2*WS_ST + ST_SZ}, s{sST}')

    def build(self):
        a = self.a
        args = self.args
        if args.prof: a('v_mov_b32 v9, 0')
        self.stamp(0)
        if args.prof:
            a('s_memtime s[86:87]')
            a('s_waitcnt lgkmcnt(0)')
        self.entry()
        self.p0()
        self.stamp(1)
        def between0():
            self.colsum_raw_others()
        self.first_sync()
        self.stamp(2)
        a('s_waitcnt vmcnt(0)')
        self.fstamp(59)
        self.stash_cs_sum(0)
        self.stash_writeback(mat=0)
        a('s_waitcnt lgkmcnt(0)')
        a('s_barrier')
        a.label('L_LAYER')
        self.set_layer_bases()
        self.qkv_main(packed=True)
        self.ln_fix(packed=True)
        L0 = a.newlabel('L0_CHK')
        a(f's_cmp_lg_u32 s{sLAYER}, 0')
        a(f's_cbranch_scc1 {L0}')
        L = self.if_wave('eq', 0)
        self.check_packs()
        a.label(L)
        a.label(L0)
        self.stamp(3, True)
        a.label('L_AFTERQKV')
        if args.stop == 'qkv':
            SK = a.newlabel('DBG')
            a(f's_cmp_lg_u32 s{sLAYER}, {args.layer}')
            a(f's_cbranch_scc1 {SK}')
            for r in range(16, 48): a(f'v_mul_f32 v{r}, v101, v{r}')
            self.dbg_dump(list(range(16, 48, 4)), 0)
            a('s_branch L_END')
            a.label(SK)
        a(f's_bitcmp1_b32 s{sLAYER}, 0')
        a('s_cbranch_scc1 L_BLAYER')
        self.epi_A()
        self.stamp(4, True)
        self.linear_attn()
        self.stamp(6, True)
        self.finalize_o(eps=True)
        LC = a.newlabel('CSB')
        a(f's_cmp_lg_u32 s{sLAYER}, 0')
        a(f's_cbranch_scc1 {LC}')
        self.stash_cs_sum(1)
        a.label(LC)
        a('s_branch L_ODONE')
        a.label('L_BLAYER')
        self.epi_B()
        self.stamp(4, True)
        self.cstamp(57)
        self.attn_B()
        self.cstamp(59)
        self.stamp(6, True)
        self.finalize_o(eps=False)
        L = self.if_wave('lt', 4)
        self.dma_wo(1, 0)
        a.label(L)
        self.stamp(7, True)
        self.lbar(poller=4, between=lambda: a('s_waitcnt vmcnt(0)'))
        a('s_branch L_BAR1DONE')
        a.label('L_ODONE')
        self.stamp(7, True)
        self.lbar(between=lambda: a('s_waitcnt vmcnt(0)'))
        a.label('L_BAR1DONE')
        self.stamp(8, True)
        if args.stop == 'o':
            a(f's_cmp_eq_u32 s{sLAYER}, {args.layer}')
            a('s_cbranch_scc1 L_END')
        self.wo_phase()
        self.stamp(10, True)
        a(f's_cmp_eq_u32 s{sLAYER}, 3')
        a('s_cbranch_scc1 L_FIN')
        L = self.if_wave('lt', 4)
        a('s_waitcnt vmcnt(0)')
        a.label(L)
        self.stamp(11, True)
        self.lbar(between=lambda: a('s_waitcnt vmcnt(0)'))
        self.stamp(12, True)
        if args.stop == 'x':
            a(f's_cmp_eq_u32 s{sLAYER}, {args.layer}')
            a('s_cbranch_scc1 L_END')
        a(f's_add_u32 s{sLAYER}, s{sLAYER}, 1')
        a('s_branch L_LAYER')
        a.label('L_FIN')
        a('s_waitcnt vmcnt(0)')
        self.stamp(51)
        if args.prof:
            a('s_memtime s[82:83]')
            a('s_waitcnt lgkmcnt(0)')
            a('s_sub_u32 s82, s82, s86')
            a('v_writelane_b32 v9, s82, 52')
        self.stamp_out()
        a('L_END:')
        a('s_endpgm')
        for name, st, mt in (('SUB_IMPORT1', 1, None), ('SUB_IMPORT1T', 1, self.args.maxtry), ('SUB_IMPORT2', 2, None)):
            a.label(name)
            a('s_nop 4')
            self.import_solo(st, mt)
            a('s_nop 4')
            a('s_setpc_b64 s[88:89]')
        a.label('L_CODE_END')
        body = a.finalize(verbose=True)
        hdr = open("header.txt").read() + f"""; generated by my generator script gen/gen2.py (hand-designed persistent kernel)
; @launch grid=(256,1,1) block=(512,1,1) lds={LDS_BYTES}
.amdgcn_target "amdgcn-amd-amdhsa--gfx950"
.text
.globl {KNAME}
.p2align 8
.type {KNAME},@function
{KNAME}:
"""
        ftr = f""".section .rodata,"a"
.p2align 6
.amdhsa_kernel {KNAME}
  .amdhsa_next_free_vgpr 256
  .amdhsa_next_free_sgpr 102
  .amdhsa_accum_offset 256
  .amdhsa_group_segment_fixed_size 0
  .amdhsa_kernarg_size 72
  .amdhsa_user_sgpr_count 2
  .amdhsa_user_sgpr_kernarg_segment_ptr 1
  .amdhsa_system_sgpr_workgroup_id_x 1
  .amdhsa_float_denorm_mode_32 3
  .amdhsa_float_denorm_mode_16_64 3
.end_amdhsa_kernel
"""
        return hdr + body + ftr

    def between0(self):
        pass

    def first_sync(self):
        a = self.a
        a('s_barrier')
        a(f's_add_u32 s{sEPOCH}, s{sEPOCH}, 1')
        L = self.if_wave('eq', 0)
        self.stamp(60)
        self.check_hello()
        self.stamp(61)
        G1 = a.newlabel('LB_GEN'); G2 = a.newlabel('LB_ST')
        a(f's_lshl_b32 s50, s{sJ}, 8')
        a(f's_add_u32 s50, s50, {WS_LFLAG}')
        a(f's_lshl_b32 s51, s{sH}, 2')
        a('s_add_u32 s51, s51, s50')
        a(f's_add_u32 s62, s{sEPOCH}, s{sNONCE}')
        a('v_mov_b32 v10, s62')
        a('v_mov_b32 v11, 0')
        a(f's_cmp_lg_u32 s{sMODE}, 0')
        a(f's_cbranch_scc1 {G1}')
        a('s_mov_b64 exec, 1')
        a(f'buffer_store_dword v10, v11, {srd(S_WS)}, s51 offen')
        a('s_mov_b64 exec, -1')
        a(f's_branch {G2}')
        a.label(G1)
        a('buffer_wbl2 sc1')
        a('s_waitcnt vmcnt(0)')
        a('s_mov_b64 exec, 1')
        a(f'buffer_store_dword v10, v11, {srd(S_WS)}, s51 offen sc1')
        a('s_mov_b64 exec, -1')
        a.label(G2)
        a(f'v_mov_b32 v10, s{sMODE}')
        a(f'v_mov_b32 v11, {L_MODE}')
        a('ds_write_b32 v11, v10')
        a('s_waitcnt lgkmcnt(0)')
        a.label(L)
        self.p0_packs()
        L = self.if_wave('eq', 4)
        self.poll_packA()
        self.stamp(63)
        a.label(L)
        a('s_barrier')
        a(f'v_mov_b32 v11, {L_MODE}')
        a('ds_read_b32 v10, v11')
        a('s_waitcnt lgkmcnt(0)')
        a(f'v_readfirstlane_b32 s{sMODE}, v10')
        self.stash_load(0)
        L = self.if_wave('eq', 0)
        a(f's_lshl_b32 s50, s{sJ}, 8')
        a(f's_add_u32 s50, s50, {WS_LFLAG}')
        a('v_and_b32 v11, 31, v1')
        a('v_lshlrev_b32 v11, 2, v11')
        self.poll('v11', 's50', 32, f's{sEPOCH}')
        G3 = a.newlabel('LB_NOINV')
        a(f's_cmp_eq_u32 s{sMODE}, 0')
        a(f's_cbranch_scc1 {G3}')
        a('buffer_inv sc1')
        a('s_waitcnt vmcnt(0)')
        a.label(G3)
        self.stamp(62)
        a.label(L)

if __name__ == '__main__':
    import struct
    ap = argparse.ArgumentParser()
    ap.add_argument('-o', default='out.s')
    ap.add_argument('--stop', default='')
    ap.add_argument('--layer', type=int, default=0)
    ap.add_argument('--spin', type=int, default=20000)
    ap.add_argument('--flayer', type=int, default=1)
    ap.add_argument('--cyc', action='store_true')
    ap.add_argument('--prof', action='store_true')
    ap.add_argument('--noreuse', action='store_true')
    ap.add_argument('--wosig', action='store_true')
    ap.add_argument('--nocodepf', action='store_true')
    ap.add_argument('--fq', action='store_true')
    ap.add_argument('--xring', type=int, default=8)
    ap.add_argument('--prio', type=int, default=0)
    ap.add_argument('--kvsleep', type=int, default=6)
    ap.add_argument('--nowo', action='store_true')
    ap.add_argument('--fb', action='store_true')
    ap.add_argument('--npre', type=int, default=8)
    ap.add_argument('--clk', action='store_true')
    ap.add_argument('--e_now', action='store_true')
    ap.add_argument('--e_m16', action='store_true')
    ap.add_argument('--e_nox', action='store_true')
    ap.add_argument('--fe', action='store_true')
    ap.add_argument('--maxtry', type=int, default=2)
    ap.add_argument('--aprio', type=int, default=1)
    ap.add_argument('--fli', type=int, default=0)
    ap.add_argument('--notouch', action='store_true')
    ap.add_argument('--force_generic', action='store_true')
    ap.add_argument('--force_fallback', action='store_true')
    ap.add_argument('--T', type=float, default=56.0)
    args = ap.parse_args()
    args.t2hex = hex(struct.unpack('<I', struct.pack('<f', args.T * args.T))[0])
    g = G(args)
    open(args.o, 'w').write(g.build())
```

```python
import sys, argparse
sys.path.insert(0, 'gen')
from asmlib import Asm

KNAME = "interleave_layers__linear_attn_block__sliding_block__prompt_kernel"

WS_LFLAG = 0x0000
WS_XFLAG = 0x4000
WS_XF = 0x100000;  XF_SZ = 0x2B0000
RBS = 41984
OBS = 21504
WS_OF = 0x1000000
WS_ST = 0x2000000; ST_SZ = 0x20000
WS_KVX = 0x2200000; KVX_SZ = 0x600000
WS_KVP = 0x3000000; KVP_SZ = 0x100000
WS_PW = 0x4000000; PW_SZ = 81920
WS_PCS = 0x4800000
WS_PO = 0x4900000; PO_SZ = 102400
WS_DBG = 0x8000000

KIMG, VIMG = 0, 24576
L_MISC = 49152
L_CS = L_MISC + 1024
L_KN = L_MISC + 2048
L_KV = L_MISC + 4096
L_MODE = 61424
R_O = 61440
PWL = 81920
RW0 = 71424
WK, WQ, WV = RW0, RW0 + 30768, RW0 + 61536
TK, TQ, TV = 0, 4096, 8192
TBOFF = 12288
SCR = 0
TO = 24576
L_SIG = L_MISC + 3072
L_CNTA = L_MISC + 3080
L_CNTB = L_MISC + 3084
L_MD = L_MISC + 6144
LDS_BYTES = 163840

S_WS, S_X0, S_WQA, S_WOA, S_WQB, S_WOB, S_OUT, S_DBG = 4, 8, 12, 16, 20, 24, 28, 32
sJ, sH, sW, sMODE, sDEAD, sEPOCH, sLAYER, sRB = 36, 37, 38, 39, 40, 41, 42, 43
sLO32 = 44
sXF, sOF, sST = 46, 47, 48
sXCC = 49
sXFN, sSTN = 90, 91
sNONCE = 93
sNEED = 96
sSH = 97
WS_GXCC = 0x2000
WS_XKN = 0x8000
L_NONCE = 61428
LO = f's[{sLO32}:{sLO32+1}]'

def srd(n): return f's[{n}:{n+3}]'

QUADS = {
    0: [(('q', 0), ('q', 1)), (('q', 2), ('q', 3)), (('q', 4), ('q', 5)), (('k', 4), ('k', 3))],
    1: [(('k', 0), ('k', 1)), (('v', 0), ('v', 1)), (('v', 2), ('v', 3)), (('k', 2), ('v', 4))],
}
def quad_off(sec, i, bases):
    bk, bq, bv = bases
    if sec == 'k': return bk + (i + 1) * 8
    if sec == 'q': return bq + i * 8
    return bv + i * 8

vCSA, vCSB = 188, 190
vPI = [4, 5, 6, 7, 8]
vPA = [176, 177, 178]
vPO = [179, 180, 181]
def stash_reg(mat, i):
    if mat == 0: return 192 + 4 * i
    return 144 + 4 * i if i < 4 else 232 + 4 * (i - 4)

MF32 = 'v_mfma_f32_32x32x16_bf16'
MF16 = 'v_mfma_f32_16x16x32_bf16'

class VQ:
    def __init__(self): self.q = []
    def push(self, tag): self.q.append(tag)
    def cnt(self, tag):
        i = max(k for k, t in enumerate(self.q) if t == tag)
        return min(63, len(self.q) - 1 - i)

class G:
    def __init__(self, args):
        self.a = Asm(); self.args = args

    def stamp(self, idx, per_layer=False):
        if not self.args.prof: return
        a = self.a
        a('s_memtime s[82:83]' if self.args.cyc else 's_memrealtime s[82:83]')
        a('s_waitcnt lgkmcnt(0)')
        if per_layer:
            a(f's_mul_i32 s84, s{sLAYER}, 12')
            a(f's_add_u32 s84, s84, {idx}')
            a('s_mov_b32 m0, s84')
            a('s_nop 1')
            a('v_writelane_b32 v9, s82, m0')
        else:
            a(f'v_writelane_b32 v9, s82, {idx}')
    def cstamp(self, idx):
        if not (self.args.prof and self.args.clk): return
        a = self.a
        SK = a.newlabel('CST')
        a(f's_cmp_lg_u32 s{sLAYER}, {self.args.flayer}')
        a(f's_cbranch_scc1 {SK}')
        a('s_memtime s[82:83]')
        a('s_waitcnt lgkmcnt(0)')
        a(f'v_writelane_b32 v9, s82, {idx}')
        a('s_memrealtime s[82:83]')
        a('s_waitcnt lgkmcnt(0)')
        a(f'v_writelane_b32 v9, s82, {idx+1}')
        a.label(SK)
    def fstamp(self, idx):
        if not self.args.prof or self.args.clk: return
        a = self.a
        SK = a.newlabel('FST')
        a(f's_cmp_lg_u32 s{sLAYER}, {self.args.flayer}')
        a(f's_cbranch_scc1 {SK}')
        self.stamp(idx)
        a.label(SK)
    def stamp_out(self):
        if not self.args.prof: return
        a = self.a
        a('s_lshl_b32 s50, s2, 3')
        a(f's_add_u32 s50, s50, s{sW}')
        a('s_lshl_b32 s50, s50, 8')
        a(f's_add_u32 s50, s50, {WS_DBG + 0x400000}')
        a('v_lshlrev_b32 v10, 2, v1')
        a(f'buffer_store_dword v9, v10, {srd(S_WS)}, s50 offen')
        a('s_waitcnt vmcnt(0)')
    def dbg_dump(self, regs, slot):
        a = self.a
        n = len(regs)
        a(f's_mul_i32 s50, s2, {8*n*1024}')
        a(f's_mul_i32 s51, s{sW}, {n*1024}')
        a('s_add_u32 s50, s50, s51')
        a(f's_add_u32 s50, s50, {WS_DBG + slot}')
        for i, r in enumerate(regs):
            a(f'buffer_store_dwordx4 v[{r}:{r+3}], v2, {srd(S_WS)}, s50 offen')
            a('s_add_u32 s50, s50, 1024')
        a('s_waitcnt vmcnt(0)')

    def if_wave(self, cond, val):
        a = self.a
        L = a.newlabel('W')
        inv = {'eq': 's_cmp_lg_u32', 'lt': 's_cmp_ge_u32', 'ge': 's_cmp_lt_u32'}[cond]
        a(f'{inv} s{sW}, {val}')
        a(f's_cbranch_scc1 {L}')
        return L

    def tr_bases(self, d0, d1, bases, tmp=10):
        a = self.a
        t, u, w = f'v{tmp}', f'v{tmp+1}', f'v{tmp+2}'
        a(f'v_bfe_u32 {t}, v1, 4, 1')
        a(f'v_lshlrev_b32 {t}, 2, {t}')
        a(f'v_and_b32 {u}, 3, v1')
        a(f'v_add_u32 {t}, {t}, {u}')
        for B, d in ((0, d0), (1, d1)):
            offs = [quad_off(*QUADS[B][x >> 1][x & 1], bases) for x in range(8)]
            a(f'v_mov_b32 v{d}, {offs[0]}')
            for x in range(1, 8):
                a(f'v_cmp_eq_u32 vcc, {x}, {t}')
                a(f'v_mov_b32 {w}, {offs[x]}')
                a(f'v_cndmask_b32 v{d}, v{d}, {w}, vcc')
        a(f'v_bfe_u32 {u}, v1, 2, 2')
        a(f'v_mul_u32_u24 {u}, 192, {u}')
        a(f'v_lshrrev_b32 {w}, 5, v1')
        a(f'v_mul_u32_u24 {w}, 96, {w}')
        a(f'v_add_u32 {u}, {u}, {w}')
        a(f'v_add_u32 v{d0}, v{d0}, {u}')
        a(f'v_add_u32 v{d1}, v{d1}, {u}')

    def raw_patterns(self):
        a = self.a
        a(f's_mul_i32 s50, s{sH}, 40')
        for u in range(3):
            d = f'v{4+u}'
            a(f'v_add_u32 v10, {64*u}, v1')
            a('v_mul_u32_u24 v11, 21846, v10')
            a('v_lshrrev_b32 v11, 16, v11')
            a('v_mul_u32_u24 v12, 3, v11')
            a('v_sub_u32 v12, v10, v12')
            a('v_lshlrev_b32 v12, 4, v12')
            a('v_and_b32 v13, 0x30, v11')
            a('v_and_b32 v14, 3, v11')
            a('v_lshlrev_b32 v14, 2, v14')
            a('v_add_u32 v13, v13, v14')
            a('v_bfe_u32 v14, v11, 2, 2')
            a('v_add_u32 v13, v13, v14')
            a('v_mul_u32_u24 v13, 3840, v13')
            a('v_add_u32 v13, v13, v12')
            a(f'v_add_u32 {d}, s50, v13')

    def entry(self):
        a = self.a
        a('s_cmp_ge_u32 s2, 256')
        a('s_cbranch_scc1 L_END')
        a('s_load_dwordx16 s[64:79], s[0:1], 0')
        a('s_load_dwordx2 s[80:81], s[0:1], 64')
        a(f's_getreg_b32 s{sXCC}, hwreg(HW_REG_XCC_ID, 0, 4)')
        a(f's_and_b32 s{sJ}, s2, 7')
        a(f's_lshr_b32 s{sH}, s2, 3')
        a('v_lshrrev_b32 v3, 6, v0')
        a('v_and_b32 v1, 63, v0')
        a(f'v_readfirstlane_b32 s{sW}, v3')
        a('v_lshlrev_b32 v2, 4, v1')
        a(f's_mov_b32 s{sLO32}, -1')
        a(f's_mov_b32 s{sLO32+1}, 0')
        a(f's_mov_b32 s{sMODE}, 0')
        a(f's_mov_b32 s{sDEAD}, 0')
        a(f's_mov_b32 s{sEPOCH}, 0')
        a(f's_mov_b32 s{sLAYER}, 0')
        a(f's_sub_u32 s50, 7, s{sW}')
        a(f's_sub_u32 s51, s{sW}, 4')
        a(f's_cmp_lt_u32 s{sW}, 4')
        a(f's_cselect_b32 s{sRB}, s50, s51')
        a(f's_add_u32 s{sSH}, s{sW}, s{sJ}')
        a(f's_and_b32 s{sSH}, s{sSH}, 7')
        a('s_waitcnt lgkmcnt(0)')
        def mk(dst, src, size):
            a(f's_mov_b32 s{dst}, s{src}')
            a(f's_and_b32 s{dst+1}, s{src+1}, 0xffff')
            a(f's_mov_b32 s{dst+2}, {size}')
            a(f's_mov_b32 s{dst+3}, 0x20000')
        mk(S_DBG, 78, 256)
        a(f's_mov_b32 s{sNONCE}, 0')
        self.nonce_create()
        mk(S_X0, 64, 2621440)
        mk(S_WS, 80, 0x10000000)
        mk(S_WQA, 66, 2457600)
        L = self.if_wave('eq', 1)
        self.raw_patterns()
        self.raw_part_dma(S_WQA, 0)
        a.label(L)
        self.p0_xloads()
        self.raw_patterns()
        mk(S_WOA, 68, 819200)
        mk(S_WQB, 72, 2457600); mk(S_WOB, 74, 819200); mk(S_OUT, 76, 2621440)

    def nonce_create(self):
        a = self.a
        E = a.newlabel('NC_E')
        a(f's_or_b32 s50, s2, s{sW}')
        a('s_cmp_lg_u32 s50, 0')
        a(f's_cbranch_scc1 {E}')
        a('s_memrealtime s[50:51]')
        a('s_waitcnt lgkmcnt(0)')
        a('s_mul_i32 s50, s50, 0x9E3779B1')
        a('s_mul_i32 s51, s51, 0x85EBCA77')
        a('s_xor_b32 s50, s50, s51')
        a('s_lshr_b32 s51, s50, 15')
        a('s_xor_b32 s50, s50, s51')
        a('s_mul_i32 s50, s50, 0x2C1B3C6D')
        a('s_andn2_b32 s50, s50, 0x7f')
        a(f's_or_b32 s{sNONCE}, s50, 0x40')
        a(f'v_mov_b32 v10, s{sNONCE}')
        a('v_lshlrev_b32 v11, 6, v1')
        a('s_mov_b64 exec, 0xf')
        a(f'buffer_store_dword v10, v11, {srd(S_DBG)}, 0 offen sc1')
        a('s_mov_b64 exec, -1')
        a.label(E)

    def init_flags(self):
        a = self.a
        G = a.newlabel('NON_GET'); D = a.newlabel('NON_DONE'); L = a.newlabel('NON_POLL')
        a('s_cmp_lg_u32 s2, 0')
        a(f's_cbranch_scc0 {D}')
        a.label(G)
        a('s_mov_b32 s60, 0')
        a(f's_and_b32 s50, s{sH}, 3')
        a('s_lshl_b32 s50, s50, 6')
        a('v_mov_b32 v11, s50')
        a('s_waitcnt vmcnt(0)')
        a.label(L)
        a(f'buffer_load_dword v12, v11, {srd(S_DBG)}, 0 offen sc1')
        a('s_waitcnt vmcnt(0)')
        a(f'v_readfirstlane_b32 s{sNONCE}, v12')
        a(f's_cmp_lg_u32 s{sNONCE}, 0')
        a(f's_cbranch_scc1 {D}')
        a('s_sleep 4')
        a('s_add_u32 s60, s60, 1')
        a(f's_cmp_lt_u32 s60, {self.args.spin}')
        a(f's_cbranch_scc1 {L}')
        a(f's_mov_b32 s{sDEAD}, 1')
        a.label(D)
        a(f's_lshl_b32 s50, s{sJ}, 8')
        a(f's_lshl_b32 s51, s{sH}, 2')
        a('s_add_u32 s50, s50, s51')
        a(f's_add_u32 s50, s50, {WS_GXCC}')
        a(f's_and_b32 s51, s{sXCC}, 7')
        a(f's_add_u32 s51, s51, s{sNONCE}')
        a('s_add_u32 s51, s51, 8')
        a('v_mov_b32 v10, s51')
        a('v_mov_b32 v11, 0')
        a('s_mov_b64 exec, 1')
        a(f'buffer_store_dword v10, v11, {srd(S_WS)}, s50 offen sc1')
        a('s_mov_b64 exec, -1')
        a(f'v_mov_b32 v10, s{sNONCE}')
        a(f'v_mov_b32 v11, {L_NONCE}')
        a('ds_write_b32 v11, v10')

    def dma_raw(self, srdW, items):
        a = self.a
        base = {'k': WK, 'q': WQ, 'v': WV}
        soff = {'k': 1280 - 8, 'q': 0, 'v': 2560}
        for sec, Gi in items:
            a(f's_add_u32 s55, s92, {Gi}')
            a('s_cmp_ge_u32 s55, 10')
            a('s_cselect_b32 s56, 10, 0')
            a('s_sub_u32 s55, s55, s56')
            a(f's_mul_i32 s56, s55, {64*3840}')
            a(f's_add_u32 s50, s56, {soff[sec]}')
            a('s_mul_i32 s55, s55, 3072')
            for u in range(3):
                a(f's_add_u32 m0, s55, {base[sec] + u*1024}')
                a(f'buffer_load_dwordx4 v{4+u}, {srd(srdW)}, s50 offen lds')

    def dma_packed(self, nw, w0):
        a = self.a
        per = 80 // nw
        a(f's_add_u32 s50, s{sLAYER}, 1')
        a('s_and_b32 s50, s50, 1')
        a('s_lshl_b32 s50, s50, 5')
        a(f's_add_u32 s50, s50, s{sH}')
        a(f's_mul_i32 s50, s50, {PW_SZ}')
        a(f's_sub_u32 s51, s{sW}, {w0}')
        a(f's_mul_i32 s51, s51, {per*1024}')
        a('s_add_u32 s50, s50, s51')
        a(f's_add_u32 s50, s50, {WS_PW}')
        a(f's_add_u32 s51, s51, {PWL}')
        for i in range(per):
            a(f's_add_u32 m0, s51, {i*1024}')
            if i % 4 == 0 and i > 0: a('s_add_u32 s50, s50, 4096')
            a(f'buffer_load_dwordx4 v2, {srd(S_WS)}, s50 offen sc1 lds') if i % 4 == 0 else None
            if i % 4 != 0:
                a(f's_add_u32 s52, s50, {(i%4)*1024}')
                a(f'buffer_load_dwordx4 v2, {srd(S_WS)}, s52 offen sc1 lds')

    def dma_wo(self, mat, w0):
        a = self.a
        a(f's_and_b32 s50, s{sH}, 7')
        a(f's_add_u32 s50, s50, {mat*8}')
        a(f's_mul_i32 s50, s50, {PO_SZ}')
        a(f's_sub_u32 s51, s{sW}, {w0}')
        a('s_mul_i32 s51, s51, 25600')
        a('s_add_u32 s50, s50, s51')
        a(f's_add_u32 s50, s50, {WS_PO}')
        a(f's_add_u32 s51, s51, {R_O}')
        for i in range(25):
            a(f's_add_u32 m0, s51, {i*1024}')
            a(f's_add_u32 s52, s50, {i*1024}')
            a(f'buffer_load_dwordx4 v2, {srd(S_WS)}, s52 offen sc1 lds')

    def touch_w(self, w0, nw):
        a = self.a
        E = a.newlabel('TW_E')
        a(f's_cmp_eq_u32 s{sLAYER}, 3')
        a(f's_cbranch_scc1 {E}')
        a(f's_add_u32 s50, s{sLAYER}, 1')
        a('s_and_b32 s50, s50, 1')
        a('s_lshl_b32 s50, s50, 5')
        a(f's_add_u32 s50, s50, s{sH}')
        a(f's_mul_i32 s50, s50, {PW_SZ}')
        a(f's_add_u32 s50, s50, {WS_PW}')
        a('v_lshlrev_b32 v11, 7, v1')
        per = -(-10 // nw)
        for t in range(per):
            SK = a.newlabel('TW_SK')
            a(f's_sub_u32 s51, s{sW}, {w0}')
            a(f's_add_u32 s51, s51, {t*nw}')
            a('s_cmp_ge_u32 s51, 10')
            a(f's_cbranch_scc1 {SK}')
            a(f's_add_u32 s51, s51, s{sJ}')
            a('s_cmp_ge_u32 s51, 10')
            a('s_cselect_b32 s52, 10, 0')
            a('s_sub_u32 s51, s51, s52')
            a('s_lshl_b32 s51, s51, 13')
            a('s_add_u32 s51, s51, s50')
            a(f'buffer_load_dword v{250+t}, v11, {srd(S_WS)}, s51 offen sc1')
            a.label(SK)
        a.label(E)

    def check_packs(self):
        a = self.a
        a(f's_lshl_b32 s54, s{sH}, 3')
        self.xflag_addr('s52', 's54')
        a('v_and_b32 v11, 7, v1')
        a('v_lshlrev_b32 v11, 6, v11')
        a('v_add_u32 v11, 16, v11')
        a('s_mov_b32 s53, 1')
        self.poll('v11', 's52', 8, 's53')
        for mat in range(2):
            a(f's_and_b32 s50, s{sH}, 7')
            a(f's_add_u32 s50, s50, {mat*8}')
            a('s_mul_i32 s53, s50, 20')
            a('v_min_u32 v11, 19, v1')
            a('v_add_u32 v11, s53, v11')
            a('v_and_b32 v11, 255, v11')
            a('v_lshlrev_b32 v11, 6, v11')
            a(f's_mov_b32 s52, {WS_XFLAG + 24}')
            a('s_mov_b32 s53, 1')
            self.poll('v11', 's52', 20, 's53')

    def lds_signal(self, val_s):
        a = self.a
        a(f'v_mov_b32 v11, {L_SIG}')
        a(f'v_mov_b32 v12, {val_s}')
        a('ds_write_b32 v11, v12')
    def lds_wait(self, val_s):
        a = self.a
        L = a.newlabel('LW'); D = a.newlabel('LWD')
        a(f'v_mov_b32 v11, {L_SIG}')
        a('s_mov_b32 s60, 0')
        a.label(L)
        a('ds_read_b32 v12, v11')
        a('s_waitcnt lgkmcnt(0)')
        a('v_readfirstlane_b32 s61, v12')
        a(f's_cmp_eq_u32 s61, {val_s}')
        a(f's_cbranch_scc1 {D}')
        a('s_sleep 1')
        a('s_add_u32 s60, s60, 1')
        a('s_cmp_lt_u32 s60, 0x100000')
        a(f's_cbranch_scc1 {L}')
        a.label(D)

    def poll(self, vaddr, soff, nlanes, target_s, tmp='v12'):
        a = self.a
        L = a.newlabel('POLL'); D = a.newlabel('POLLD')
        a(f's_cmp_lg_u32 s{sDEAD}, 0')
        a(f's_cbranch_scc1 {D}')
        a('s_mov_b32 s60, 0')
        a(f's_add_u32 s63, s{sNONCE}, {target_s}')
        mask = (1 << nlanes) - 1
        a.label(L)
        a(f'buffer_load_dword {tmp}, {vaddr}, {srd(S_WS)}, {soff} offen sc1')
        a('s_waitcnt vmcnt(0)')
        a(f'v_subrev_u32 {tmp}, s63, {tmp}')
        a(f'v_cmp_lt_u32 vcc, 7, {tmp}')
        a(f's_and_b32 s61, vcc_lo, {hex(mask & 0xffffffff)}')
        a('s_cmp_eq_u32 s61, 0')
        a(f's_cbranch_scc1 {D}')
        a('s_add_u32 s60, s60, 1')
        a(f's_cmp_lt_u32 s60, {self.args.spin}')
        a(f's_cbranch_scc1 {L}')
        a(f's_mov_b32 s{sDEAD}, 1')
        a.label(D)

    def check_hello(self):
        a = self.a
        L = a.newlabel('HELLO'); D = a.newlabel('HELLOD')
        a('s_mov_b32 s60, 0')
        a('v_and_b32 v11, 31, v1')
        a('v_lshlrev_b32 v11, 2, v11')
        a(f's_lshl_b32 s50, s{sJ}, 8')
        a(f's_add_u32 s50, s50, {WS_GXCC}')
        a(f's_add_u32 s63, s{sNONCE}, 8')
        a.label(L)
        a(f'buffer_load_dword v12, v11, {srd(S_WS)}, s50 offen sc1')
        a('s_waitcnt vmcnt(0)')
        a('v_subrev_u32 v12, s63, v12')
        a('v_cmp_lt_u32 vcc, 7, v12')
        a('s_cmp_eq_u64 vcc, 0')
        a(f's_cbranch_scc1 {D}')
        a('s_add_u32 s60, s60, 1')
        a(f's_cmp_lt_u32 s60, {self.args.spin}')
        a(f's_cbranch_scc1 {L}')
        a(f's_mov_b32 s{sDEAD}, 1')
        a.label(D)
        a(f's_and_b32 s51, s{sXCC}, 7')
        a('v_cmp_ne_u32 vcc, s51, v12')
        a('s_cmp_lg_u64 vcc, 0')
        a(f's_cselect_b32 s{sMODE}, 1, 0')
        if self.args.force_generic:
            a(f's_mov_b32 s{sMODE}, 1')

    def lbar(self, first=False, between=None, poller=0):
        a = self.a
        a('s_barrier')
        a(f's_add_u32 s{sEPOCH}, s{sEPOCH}, 1')
        W0 = a.newlabel('LB_NOT0'); E = a.newlabel('LB_END')
        a(f's_cmp_lg_u32 s{sW}, {poller}')
        a(f's_cbranch_scc1 {W0}')
        if first:
            self.stamp(60)
            self.check_hello()
            self.stamp(61)
        G1 = a.newlabel('LB_GEN'); G2 = a.newlabel('LB_ST')
        a(f's_lshl_b32 s50, s{sJ}, 8')
        a(f's_add_u32 s50, s50, {WS_LFLAG}')
        a(f's_lshl_b32 s51, s{sH}, 2')
        a('s_add_u32 s51, s51, s50')
        a(f's_add_u32 s62, s{sEPOCH}, s{sNONCE}')
        a('v_mov_b32 v10, s62')
        a('v_mov_b32 v11, 0')
        a(f's_cmp_lg_u32 s{sMODE}, 0')
        a(f's_cbranch_scc1 {G1}')
        a('s_mov_b64 exec, 1')
        a(f'buffer_store_dword v10, v11, {srd(S_WS)}, s51 offen')
        a('s_mov_b64 exec, -1')
        a(f's_branch {G2}')
        a.label(G1)
        a('buffer_wbl2 sc1')
        a('s_waitcnt vmcnt(0)')
        a('s_mov_b64 exec, 1')
        a(f'buffer_store_dword v10, v11, {srd(S_WS)}, s51 offen sc1')
        a('s_mov_b64 exec, -1')
        a.label(G2)
        a('v_and_b32 v11, 31, v1')
        a('v_lshlrev_b32 v11, 2, v11')
        self.poll('v11', 's50', 32, f's{sEPOCH}')
        if first: self.stamp(62)
        G3 = a.newlabel('LB_NOINV')
        a(f's_cmp_eq_u32 s{sMODE}, 0')
        a(f's_cbranch_scc1 {G3}')
        a('buffer_inv sc1')
        a('s_waitcnt vmcnt(0)')
        a.label(G3)
        if first:
            a(f'v_mov_b32 v10, s{sMODE}')
            a(f'v_mov_b32 v11, {L_MODE}')
            a('ds_write_b32 v11, v10')
            a('s_waitcnt lgkmcnt(0)')
        a(f's_branch {E}')
        a.label(W0)
        if between: between()
        a.label(E)
        a('s_barrier')
        if first:
            a(f'v_mov_b32 v11, {L_MODE}')
            a('ds_read_b32 v10, v11')
            a('s_waitcnt lgkmcnt(0)')
            a(f'v_readfirstlane_b32 s{sMODE}, v10')

    def xflag_addr(self, dst, wg_s):
        a = self.a
        a(f's_lshl_b32 {dst}, {wg_s}, 6')
        a(f's_add_u32 {dst}, {dst}, {WS_XFLAG}')

    def set_xflag(self, word, val_s, saddr='s52', vt=('v11', 'v12')):
        a = self.a
        self.xflag_addr(saddr, 's2')
        if isinstance(word, int): a(f's_add_u32 {saddr}, {saddr}, {word*4}')
        else: a(f's_add_u32 {saddr}, {saddr}, {word}')
        a(f's_add_u32 s63, s{sNONCE}, {val_s}')
        a(f'v_mov_b32 {vt[0]}, s63')
        a(f'v_mov_b32 {vt[1]}, 0')
        a('s_mov_b64 exec, 1')
        a(f'buffer_store_dword {vt[0]}, {vt[1]}, {srd(S_WS)}, {saddr} offen sc1')
        a('s_mov_b64 exec, -1')

    def pack5(self, vb0, vb1, imm0, mat, with_cs, fb=16):
        a = self.a
        a(f's_add_u32 s50, s{sH}, {mat*32}')
        a(f's_mul_i32 s50, s50, {PW_SZ}')
        a(f's_mul_i32 s51, s{sJ}, {5*2048}')
        a('s_add_u32 s50, s50, s51')
        a(f's_add_u32 s50, s50, {WS_PW}')
        for i in range(5):
            s = fb + 8 * i
            o = imm0(i)
            a(f'ds_read_b64_tr_b16 v[{s}:{s+1}], {vb0} offset:{o}')
            a(f'ds_read_b64_tr_b16 v[{s+2}:{s+3}], {vb0} offset:{o+48}')
            a(f'ds_read_b64_tr_b16 v[{s+4}:{s+5}], {vb1} offset:{o}')
            a(f'ds_read_b64_tr_b16 v[{s+6}:{s+7}], {vb1} offset:{o+48}')
        a('s_mov_b32 s74, 0x00f00000')
        a('s_mov_b32 s75, 0x00f00000')
        a('v_mov_b32 v104, 0')
        a('s_waitcnt lgkmcnt(0)')
        for i in range(5):
            s = fb + 8 * i
            for r in range(4): a(f'v_cndmask_b32 v{s+r}, v{s+r}, v104, s[74:75]')
        for i in range(5):
            s = fb + 8 * i
            a(f'buffer_store_dwordx4 v[{s}:{s+3}], v2, {srd(S_WS)}, s50 offen sc1')
            a(f'buffer_store_dwordx4 v[{s+4}:{s+7}], v2, {srd(S_WS)}, s50 offen offset:1024 sc1')
            a('s_add_u32 s50, s50, 2048')
        if with_cs:
            for r in range(108, 112): a(f'v_mov_b32 v{r}, 0x3f803f80')
            for i in range(5):
                s = fb + 8 * i
                a(f'{MF32} v[112:127], v[108:111], v[{s}:{s+3}], {"0" if i == 0 else "v[112:127]"}')
                a(f'{MF32} v[128:143], v[108:111], v[{s+4}:{s+7}], {"0" if i == 0 else "v[128:143]"}')
            a('v_mov_b32 v104, v112')
            a('v_mov_b32 v105, v128')
            self.store_cs(mat, 104)

    def store_cs(self, mat, r):
        a = self.a
        a(f's_add_u32 s50, s{sH}, {mat*32}')
        a('s_lshl_b32 s50, s50, 3')
        a(f's_add_u32 s50, s50, s{sJ}')
        a('s_lshl_b32 s50, s50, 8')
        a(f's_add_u32 s50, s50, {WS_PCS}')
        a('v_lshlrev_b32 v12, 3, v1')
        a('s_mov_b64 exec, 0xffffffff')
        a(f'buffer_store_dwordx2 v[{r}:{r+1}], v12, {srd(S_WS)}, s50 offen sc1')
        a('s_mov_b64 exec, -1')

    def stash_writeback(self, mat=None):
        a = self.a
        if mat is not None:
            a(f's_mul_i32 s62, s{sSH}, 10240')
            a(f's_add_u32 s62, s62, {PWL}')
            a('v_add_u32 v13, s62, v2')
            for i in range(10):
                r = stash_reg(mat, i)
                a(f'ds_write_b128 v13, v[{r}:{r+3}] offset:{i*1024}')
            return
        E = a.newlabel('SW_E'); LA = a.newlabel('SW_A')
        a(f's_cmp_eq_u32 s{sLAYER}, 3')
        a(f's_cbranch_scc1 {E}')
        a(f's_mul_i32 s62, s{sSH}, 10240')
        a(f's_add_u32 s62, s62, {PWL}')
        a('v_add_u32 v13, s62, v2')
        a(f's_bitcmp1_b32 s{sLAYER}, 0')
        a(f's_cbranch_scc1 {LA}')
        for i in range(10):
            r = stash_reg(1, i)
            a(f'ds_write_b128 v13, v[{r}:{r+3}] offset:{i*1024}')
        a(f's_branch {E}')
        a.label(LA)
        for i in range(10):
            r = stash_reg(0, i)
            a(f'ds_write_b128 v13, v[{r}:{r+3}] offset:{i*1024}')
        a.label(E)

    def stash_load(self, mat):
        a = self.a
        a(f's_add_u32 s50, s{sH}, {32*mat}')
        a(f's_mul_i32 s50, s50, {PW_SZ}')
        a(f's_mul_i32 s51, s{sSH}, 10240')
        a('s_add_u32 s50, s50, s51')
        a(f's_add_u32 s50, s50, {WS_PW}')
        for i in range(10):
            r = stash_reg(mat, i)
            if i % 4 == 0 and i > 0: a('s_add_u32 s50, s50, 4096')
            a(f'buffer_load_dwordx4 v[{r}:{r+3}], v2, {srd(S_WS)}, s50 offen offset:{(i%4)*1024} sc1')
        a('v_and_b32 v11, 31, v1')
        a('v_lshlrev_b32 v11, 3, v11')
        a(f's_add_u32 s52, s{sH}, {32*mat}')
        a('s_lshl_b32 s52, s52, 11')
        a(f's_add_u32 s52, s52, {WS_PCS}')
        for j in range(8):
            a(f'buffer_load_dwordx2 v[{160+2*j}:{161+2*j}], v11, {srd(S_WS)}, s52 offen offset:{j*256} sc1')

    def stash_cs_sum(self, mat):
        a = self.a
        d = vCSA if mat == 0 else vCSB
        a(f'v_add_f32 v{d}, v160, v162')
        a(f'v_add_f32 v{d+1}, v161, v163')
        for j in range(2, 8):
            a(f'v_add_f32 v{d}, v{d}, v{160+2*j}')
            a(f'v_add_f32 v{d+1}, v{d+1}, v{161+2*j}')

    def wait_hello(self):
        a = self.a
        L = a.newlabel('WH'); D = a.newlabel('WHD')
        a('s_mov_b32 s60, 0')
        a('v_lshlrev_b32 v11, 2, v1')
        a.label(L)
        a(f'buffer_load_dword v12, v11, {srd(S_DBG)}, 0 offen sc1')
        a('s_waitcnt vmcnt(0)')
        a('v_and_b32 v13, 0x80808080, v12')
        a('v_cmp_ne_u32 vcc, 0x80808080, v13')
        a('s_cmp_eq_u64 vcc, 0')
        a(f's_cbranch_scc1 {D}')
        a('s_sleep 2')
        a('s_add_u32 s60, s60, 1')
        a(f's_cmp_lt_u32 s60, {self.args.spin}')
        a(f's_cbranch_scc1 {L}')
        a(f's_mov_b32 s{sDEAD}, 1')
        a.label(D)

    def poll_packA(self):
        a = self.a
        a(f's_lshl_b32 s54, s{sH}, 3')
        a(f's_add_u32 s54, s54, s{sSH}')
        self.xflag_addr('s52', 's54')
        a('v_mov_b32 v11, 20')
        a('s_mov_b32 s53, 1')
        self.poll('v11', 's52', 1, 's53')

    def stashA_load(self):
        a = self.a
        a(f's_mul_i32 s50, s{sH}, {PW_SZ}')
        a(f's_mul_i32 s51, s{sSH}, 10240')
        a('s_add_u32 s50, s50, s51')
        a(f's_add_u32 s50, s50, {WS_PW}')
        for i in range(10):
            r = stash_reg(0, i)
            if i % 4 == 0 and i > 0: a('s_add_u32 s50, s50, 4096')
            a(f'buffer_load_dwordx4 v[{r}:{r+3}], v2, {srd(S_WS)}, s50 offen offset:{(i%4)*1024} sc1')
        a('v_and_b32 v11, 31, v1')
        a('v_lshlrev_b32 v11, 3, v11')
        a(f's_lshl_b32 s52, s{sH}, 3')
        a(f's_add_u32 s52, s52, s{sSH}')
        a('s_lshl_b32 s52, s52, 8')
        a(f's_add_u32 s52, s52, {WS_PCS}')
        a(f'buffer_load_dwordx2 v[160:161], v11, {srd(S_WS)}, s52 offen sc1')

    def p0_xloads(self):
        a = self.a
        if not self.args.noreuse:
            L4 = self.if_wave('eq', 4)
            a(f's_lshl_b32 s52, s{sJ}, 3')
            a(f's_lshr_b32 s53, s{sH}, 2')
            a('s_add_u32 s52, s52, s53')
            a(f's_mul_i32 s52, s52, {RBS}')
            a(f's_and_b32 s53, s{sH}, 3')
            a('s_lshl_b32 s53, s53, 7')
            a('s_add_u32 s52, s52, s53')
            a(f's_add_u32 s52, s52, {WS_XF}')
            a('v_lshlrev_b32 v30, 9, v1')
            a(f'buffer_load_dword v31, v30, {srd(S_WS)}, s52 offen')
            a('s_add_u32 s52, s52, 32768')
            a('s_mov_b64 exec, 0xffff')
            a(f'buffer_load_dword v31, v30, {srd(S_WS)}, s52 offen')
            a(f's_lshl_b32 s52, s{sJ}, 14')
            a(f's_lshl_b32 s53, s{sH}, 9')
            a('s_add_u32 s52, s52, s53')
            a(f's_add_u32 s52, s52, {WS_ST}')
            a('v_lshlrev_b32 v30, 7, v1')
            a('s_mov_b64 exec, 0xf')
            a(f'buffer_load_dword v31, v30, {srd(S_WS)}, s52 offen')
            a('s_mov_b64 exec, -1')
            a.label(L4)
        if not self.args.nocodepf:
            L7 = self.if_wave('eq', 7)
            LC = a.newlabel('CPF')
            a(f's_cmp_ge_u32 s{sH}, 6')
            a(f's_cbranch_scc1 {LC}')
            a('s_getpc_b64 s[56:57]')
            a.label('L_PCREF')
            a(f's_sub_u32 s56, s56, L_PCREF-{KNAME}')
            a('s_subb_u32 s57, s57, 0')
            a(f's_lshl_b32 s53, s{sH}, 13')
            a('v_lshlrev_b32 v30, 7, v1')
            a('v_add_u32 v30, s53, v30')
            a(f's_mov_b32 s58, L_CODE_END-{KNAME}-4')
            a('v_min_u32 v30, s58, v30')
            a('global_load_dword v31, v30, s[56:57]')
            a.label(LC)
            a.label(L7)
        a(f's_lshl_b32 s50, s{sJ}, 8')
        a(f's_lshl_b32 s51, s{sH}, 3')
        a('s_add_u32 s50, s50, s51')
        a('s_mul_i32 s52, s50, 1280')
        a('v_and_b32 v10, 7, v0')
        a('v_lshrrev_b32 v11, 3, v0')
        a('v_mul_u32_u24 v12, 1280, v10')
        a('v_lshlrev_b32 v13, 4, v11')
        a('v_add_u32 v12, v12, v13')
        a(f'buffer_load_dwordx4 v[16:19], v12, {srd(S_X0)}, s52 offen')
        a('v_mov_b32 v20, 0\nv_mov_b32 v21, 0\nv_mov_b32 v22, 0\nv_mov_b32 v23, 0')
        L = self.if_wave('lt', 2)
        a(f'buffer_load_dwordx4 v[20:23], v12, {srd(S_X0)}, s52 offen offset:1024')
        a.label(L)

    def late_touch(self):
        a = self.a
        if self.args.noreuse: return
        a('v_lshlrev_b32 v13, 7, v1')
        for w in (6, 5):
            Lw = self.if_wave('eq', w)
            if w == 5:
                a(f's_lshl_b32 s52, s{sJ}, 3')
                a(f's_lshr_b32 s53, s{sH}, 2')
                a('s_add_u32 s52, s52, s53')
                a(f's_mul_i32 s52, s52, {RBS}')
                a(f's_and_b32 s53, s{sH}, 3')
                a('s_mul_i32 s53, s53, 10240')
                a('s_add_u32 s52, s52, s53')
                a(f's_add_u32 s52, s52, {WS_XF + XF_SZ}')
            else:
                a(f's_lshl_b32 s52, s{sJ}, 4')
                a(f's_lshr_b32 s53, s{sH}, 1')
                a('s_add_u32 s52, s52, s53')
                a(f's_mul_i32 s52, s52, {OBS}')
                a(f's_and_b32 s53, s{sH}, 1')
                a('s_mul_i32 s53, s53, 10240')
                a('s_add_u32 s52, s52, s53')
                a(f's_add_u32 s52, s52, {WS_OF}')
            a(f'buffer_load_dword v182, v13, {srd(S_WS)}, s52 offen')
            a('s_add_u32 s52, s52, 8192')
            a('s_mov_b64 exec, 0xffff')
            a(f'buffer_load_dword v182, v13, {srd(S_WS)}, s52 offen')
            a('s_mov_b64 exec, -1')
            a.label(Lw)
        L7 = self.if_wave('eq', 7)
        a(f's_lshl_b32 s52, s{sJ}, 14')
        a(f's_lshl_b32 s53, s{sH}, 9')
        a('s_add_u32 s52, s52, s53')
        a(f's_add_u32 s52, s52, {WS_ST + ST_SZ}')
        a('s_mov_b64 exec, 0xf')
        a(f'buffer_load_dword v182, v13, {srd(S_WS)}, s52 offen')
        a('s_mov_b64 exec, -1')
        a.label(L7)

    def wo_item_dma(self, n, item_s):
        a = self.a
        a(f's_mul_hi_u32 s55, {item_s}, 0xccccccd')
        a('s_mul_i32 s56, s55, 20')
        a(f's_sub_u32 s56, {item_s}, s56')
        a('s_and_b32 s57, s55, 7')
        a('s_mul_i32 s57, s57, 160')
        a('s_mul_i32 s56, s56, 40960')
        a('s_add_u32 s56, s56, s57')
        A = a.newlabel('WOI_A'); E = a.newlabel('WOI_E')
        a('s_cmp_lt_u32 s55, 8')
        a(f's_cbranch_scc1 {A}')
        for u in range(5):
            a(f's_mov_b32 m0, {TO + n*5120 + u*1024}')
            a(f'buffer_load_dwordx4 v{24+u}, {srd(S_WOB)}, s56 offen lds')
        a(f's_branch {E}')
        a.label(A)
        for u in range(5):
            a(f's_mov_b32 m0, {TO + n*5120 + u*1024}')
            a(f'buffer_load_dwordx4 v{24+u}, {srd(S_WOA)}, s56 offen lds')
        a.label(E)

    def wo_item_pack(self, n, item_s):
        a = self.a
        for c in range(5):
            for sx in range(2):
                a(f'ds_read_b64_tr_b16 v[{32+4*c+2*sx}:{33+4*c+2*sx}], v30 offset:{TO + n*5120 + sx*1280 + c*32}')
        a(f's_mul_i32 s55, {item_s}, 5120')
        a(f's_add_u32 s55, s55, {WS_PO}')
        a('s_waitcnt lgkmcnt(0)')
        for c in range(5):
            if c == 4: a('s_add_u32 s55, s55, 4096')
            a(f'buffer_store_dwordx4 v[{32+4*c}:{35+4*c}], v2, {srd(S_WS)}, s55 offen offset:{(c%4)*1024} sc1')

    def raw_part_dma(self, srdW, toff):
        a = self.a
        a(f's_mul_i32 s53, s{sJ}, {80*3840}')
        for sec, tb, so in (('k', TK, 1280 - 8), ('q', TQ, 0), ('v', TV, 2560)):
            for u in range(4):
                a(f's_mov_b32 m0, {toff + tb + u*1024}')
                a(f's_add_u32 s54, s53, {so + (64*3840 if u == 3 else 0)}')
                if u == 3: a('s_mov_b32 exec_hi, 0xffff')
                a(f'buffer_load_dwordx4 v{4 + (u % 3)}, {srd(srdW)}, s54 offen lds')
                if u == 3: a('s_mov_b64 exec, -1')

    def p0(self):
        a = self.a
        self.fstamp(53)
        self.fstamp(54)
        L = self.if_wave('eq', 0)
        self.init_flags()
        a.label(L)
        a(f's_lshl_b32 s53, s{sJ}, 3')
        a(f's_lshr_b32 s54, s{sH}, 2')
        a('s_add_u32 s53, s53, s54')
        a(f's_mul_i32 s53, s53, {RBS}')
        a(f's_and_b32 s54, s{sH}, 3')
        a('s_lshl_b32 s54, s54, 7')
        a('s_add_u32 s53, s53, s54')
        a(f's_add_u32 s53, s53, {WS_XF}')
        a('v_and_b32 v10, 7, v0')
        a('v_lshrrev_b32 v11, 3, v0')
        a('v_lshrrev_b32 v13, 1, v11')
        a('v_lshlrev_b32 v13, 10, v13')
        a('v_and_b32 v14, 1, v11')
        a('v_lshlrev_b32 v14, 9, v14')
        a('v_add_u32 v13, v13, v14')
        a('v_lshlrev_b32 v14, 4, v10')
        a('v_add_u32 v13, v13, v14')
        a('s_add_u32 s54, s53, 32768')
        L = self.if_wave('eq', 1)
        a('v_mov_b32 v40, v13')
        a('s_mov_b32 s94, s53')
        self.tr_bases(106, 107, (TK, TQ, TV))
        a('s_waitcnt vmcnt(2)')
        self.pack5('v106', 'v107', lambda i: i * 768, 0, True, fb=48)
        a('v_mov_b32 v13, v40')
        a('s_mov_b32 s53, s94')
        a('s_add_u32 s54, s53, 32768')
        a('s_waitcnt vmcnt(11)')
        a.label(L)
        Lw = a.newlabel('P0_XW')
        a(f's_cmp_eq_u32 s{sW}, 1')
        a(f's_cbranch_scc1 {Lw}')
        a('s_waitcnt vmcnt(0)')
        a.label(Lw)
        self.fstamp(55)
        a(f'buffer_store_dwordx4 v[16:19], v13, {srd(S_WS)}, s53 offen')
        L = self.if_wave('lt', 2)
        a(f'buffer_store_dwordx4 v[20:23], v13, {srd(S_WS)}, s54 offen')
        a.label(L)
        DD = a.newlabel('P0_DMAD')
        L = self.if_wave('eq', 2)
        a('s_mov_b32 s94, s53')
        a('s_mov_b32 s95, s54')
        self.raw_part_dma(S_WQB, TBOFF)
        a('s_mov_b32 s53, s94')
        a('s_mov_b32 s54, s95')
        a.label(L)
        L = self.if_wave('eq', 3)
        for u in range(5):
            d = f'v{24+u}'
            a(f'v_add_u32 v15, {64*u}, v1')
            a('v_mul_u32_u24 v3, 6554, v15')
            a('v_lshrrev_b32 v3, 16, v3')
            a(f'v_mul_u32_u24 {d}, 10, v3')
            a(f'v_sub_u32 {d}, v15, {d}')
            a(f'v_lshlrev_b32 {d}, 4, {d}')
            a('v_mul_u32_u24 v3, 1280, v3')
            a(f'v_add_u32 {d}, {d}, v3')
        a('s_mov_b32 s58, s2')
        self.wo_item_dma(0, 's58')
        L2 = a.newlabel('P0_NOI2')
        a('s_cmp_ge_u32 s2, 64')
        a(f's_cbranch_scc1 {L2}')
        a('s_add_u32 s59, s2, 256')
        self.wo_item_dma(1, 's59')
        a.label(L2)
        a.label(L)
        a('v_mov_b32 v34, 0\nv_mov_b32 v35, 0')
        for r in range(16, 24):
            a(f'v_lshlrev_b32 v36, 16, v{r}')
            a(f'v_and_b32 v37, 0xffff0000, v{r}')
            a('v_add_f32 v34, v34, v36')
            a('v_fmac_f32 v35, v36, v36')
            a('v_add_f32 v34, v34, v37')
            a('v_fmac_f32 v35, v37, v37')
        for reg in (34, 35):
            a(f'v_mov_b32_dpp v36, v{reg} row_ror:8 row_mask:0xf bank_mask:0xf')
            a(f'v_add_f32 v{reg}, v{reg}, v36')
            a(f'v_mov_b32 v36, v{reg}')
            a(f'v_permlane16_swap_b32 v{reg}, v36')
            a(f'v_add_f32 v{reg}, v{reg}, v36')
            a(f'v_mov_b32 v36, v{reg}')
            a(f'v_permlane32_swap_b32 v{reg}, v36')
            a(f'v_add_f32 v{reg}, v{reg}, v36')
        P0S = L_MISC
        a(f's_lshl_b32 s50, s{sW}, 6')
        a('v_lshlrev_b32 v36, 3, v1')
        a('v_add_u32 v36, s50, v36')
        a('s_mov_b64 exec, 0xff')
        a(f'ds_write_b64 v36, v[34:35] offset:{P0S}')
        a('s_mov_b64 exec, -1')
        a('v_mov_b32 v10, 0')
        a(f'v_mov_b32 v11, {L_SIG}')
        a('ds_write_b32 v11, v10')
        a(f'ds_write_b32 v11, v10 offset:{L_CNTA - L_SIG}')
        a(f'ds_write_b32 v11, v10 offset:{L_CNTB - L_SIG}')
        a('v_lshlrev_b32 v11, 2, v1')
        a(f'ds_write_b32 v11, v10 offset:{L_CS}')
        a('s_waitcnt lgkmcnt(0)')
        self.fstamp(56)
        a('s_barrier')
        self.fstamp(57)
        a(f'v_mov_b32 v11, {L_NONCE}')
        a('ds_read_b32 v10, v11')
        a('s_waitcnt lgkmcnt(0)')
        a(f'v_readfirstlane_b32 s{sNONCE}, v10')
        L = self.if_wave('eq', 0)
        a('v_lshrrev_b32 v10, 2, v1')
        a('v_and_b32 v10, 7, v10')
        a('v_lshlrev_b32 v11, 3, v10')
        for w in range(8):
            a(f'ds_read_b64 v[{28+2*w}:{29+2*w}], v11 offset:{P0S + w*64}')
        a('s_waitcnt lgkmcnt(0)')
        for w in range(1, 8):
            a(f'v_add_f32 v28, v28, v{28+2*w}')
            a(f'v_add_f32 v29, v29, v{29+2*w}')
        a('v_and_b32 v12, 3, v1')
        a('v_cmp_eq_u32 vcc, 0, v12')
        a('v_mov_b32 v30, 0\nv_mov_b32 v31, 0')
        a('v_cndmask_b32 v28, v30, v28, vcc')
        a('v_cndmask_b32 v29, v30, v29, vcc')
        a(f's_lshl_b32 s50, s{sJ}, 8')
        a(f's_lshl_b32 s51, s{sH}, 3')
        a('s_add_u32 s50, s50, s51')
        a('s_lshl_b32 s50, s50, 6')
        a(f's_add_u32 s50, s50, {WS_ST}')
        a('s_mov_b64 exec, 0xffffffff')
        a(f'buffer_store_dwordx4 v[28:31], v2, {srd(S_WS)}, s50 offen')
        a('s_mov_b64 exec, -1')
        a.label(L)
        for w, n in ((2, 12), (3, 5)):
            Lx = self.if_wave('eq', w)
            a(f's_waitcnt vmcnt({n})')
            a.label(Lx)
        Ly = a.newlabel('P0_W23')
        a(f's_sub_u32 s50, s{sW}, 2')
        a('s_cmp_lt_u32 s50, 2')
        a(f's_cbranch_scc1 {Ly}')
        a('s_waitcnt vmcnt(0)')
        a.label(Ly)
        L = self.if_wave('eq', 1)
        self.set_xflag(5, 1)
        a.label(L)
        self.fstamp(58)

    def p0_packs(self):
        a = self.a
        a('s_waitcnt vmcnt(11)')
        L = self.if_wave('eq', 2)
        self.tr_bases(106, 107, (TK + TBOFF, TQ + TBOFF, TV + TBOFF))
        self.pack5('v106', 'v107', lambda i: i * 768, 1, True)
        a.label(L)
        L = self.if_wave('eq', 3)
        a('v_bfe_u32 v30, v1, 5, 1')
        a('v_lshlrev_b32 v30, 4, v30')
        a('v_bfe_u32 v12, v1, 4, 1')
        a('v_lshlrev_b32 v12, 2, v12')
        a('v_add_u32 v30, v30, v12')
        a('v_bfe_u32 v12, v1, 2, 2')
        a('v_add_u32 v30, v30, v12')
        a('v_mul_u32_u24 v30, 160, v30')
        a('v_and_b32 v12, 3, v1')
        a('v_lshlrev_b32 v12, 3, v12')
        a('v_add_u32 v30, v30, v12')
        a('s_mov_b32 s58, s2')
        self.wo_item_pack(0, 's58')
        L2 = a.newlabel('P0_NOI2B')
        a('s_cmp_ge_u32 s2, 64')
        a(f's_cbranch_scc1 {L2}')
        a('s_add_u32 s59, s2, 256')
        self.wo_item_pack(1, 's59')
        a.label(L2)
        a.label(L)

    ACC0, ACC1 = 16, 32
    XR = 48
    WB = 80
    def qkv_main(self, packed):
        a = self.a
        A0, A1, XR, WB = self.ACC0, self.ACC1, self.XR, self.WB
        a.comment('QKV main ' + ('packed' if packed else 'raw'))
        self.cstamp(53)
        if self.args.prio:
            L = self.if_wave('ge', 4)
            a(f's_setprio {self.args.prio}')
            a.label(L)
        vq = VQ()
        a(f's_lshl_b32 s50, s{sJ}, 3')
        a(f's_add_u32 s50, s50, s{sRB}')
        a(f's_lshl_b32 s51, s50, 11')
        a(f's_mul_i32 s50, s50, {RBS}')
        a(f's_add_u32 s50, s50, s{sXF}')
        def xload(ks):
            r = XR + 4 * (ks % 8)
            if ks % 4 == 0 and ks > 0: a('s_add_u32 s50, s50, 4096')
            a(f'buffer_load_dwordx4 v[{r}:{r+3}], v2, {srd(S_WS)}, s50 offen offset:{(ks % 4) * 1024} sc1')
            vq.push(('x', ks))
        NPRE = self.args.npre
        for ks in range(min(4, NPRE)): xload(ks)
        if packed:
            a(f'v_add_u32 v3, {PWL}, v2')
            a(f'v_add_u32 v15, {PWL + 40960}, v2')
            def wread(ks):
                s = WB + 8 * (ks % 3)
                b = 'v3' if ks < 20 else 'v15'
                o = (ks % 20) * 2048
                a(f'ds_read_b128 v[{s}:{s+3}], {b} offset:{o}')
                if not self.args.e_half: a(f'ds_read_b128 v[{s+4}:{s+7}], {b} offset:{o+1024}')
            nrd = 1 if self.args.e_half else 2
        else:
            def wread(ks):
                s = WB + 8 * (ks % 3)
                a(f'ds_read_b64_tr_b16 v[{s}:{s+1}], v7 offset:{ks*768}')
                a(f'ds_read_b64_tr_b16 v[{s+2}:{s+3}], v7 offset:{ks*768+48}')
                a(f'ds_read_b64_tr_b16 v[{s+4}:{s+5}], v8 offset:{ks*768}')
                a(f'ds_read_b64_tr_b16 v[{s+6}:{s+7}], v8 offset:{ks*768+48}')
            nrd = 4
        wread(0); wread(1)
        for ks in range(4, NPRE): xload(ks)
        nxt = [NPRE]
        a(f's_add_u32 s51, s51, s{sST}')
        a('v_and_b32 v10, 31, v1')
        a('v_lshlrev_b32 v11, 3, v10')
        a('v_lshlrev_b32 v10, 6, v10')
        a('v_lshrrev_b32 v12, 5, v1')
        a('v_lshlrev_b32 v12, 5, v12')
        a('v_add_u32 v10, v10, v12')
        late = [f'buffer_load_dwordx4 v[104:107], v10, {srd(S_WS)}, s51 offen sc1',
                f'buffer_load_dwordx4 v[108:111], v10, {srd(S_WS)}, s51 offen offset:16 sc1']
        lnpre = self.ln_pre_instrs()
        if self.args.fq: self.fstamp(53)
        for ks in range(40):
            if self.args.fq and ks in (1, 8, 20, 39): self.fstamp({1: 54, 8: 55, 20: 56, 39: 57}[ks])
            if ks + 2 < 40 and not self.args.e_now: wread(ks + 2)
            lg = nrd * min(2, 39 - ks)
            a(f's_waitcnt vmcnt({vq.cnt(("x", ks))}) lgkmcnt({lg})')
            s = WB + 8 * (ks % 3); x = XR + 4 * (ks % 8)
            c0 = '0' if ks == 0 else f'v[{A0}:{A0+15}]'
            c1 = '0' if ks == 0 else f'v[{A1}:{A1+15}]'
            if self.args.e_m16:
                for q in range(2):
                    for (AA, so) in ((A0, s), (A1, s + 4)):
                        d = AA + 4 * q + 8 * (ks % 2)
                        a(f'{MF16} v[{d}:{d+3}], v[{so}:{so+3}], v[{x}:{x+3}], {"0" if ks < 2 else f"v[{d}:{d+3}]"}')
            else:
                sA = 140 if self.args.e_dummy else s
                a(f'{MF32} v[{A0}:{A0+15}], v[{sA}:{sA+3}], v[{x}:{x+3}], {c0}')
                s1 = s if self.args.e_half else (136 if self.args.e_dummy else s + 4)
                a(f'{MF32} v[{A1}:{A1+15}], v[{s1}:{s1+3}], v[{x}:{x+3}], {c1}')
            nis = 0
            while nxt[0] < 40 and nxt[0] <= ks + 8 and nis < 2:
                if self.args.e_nox:
                    vq.push(('x', nxt[0]))
                    vq.q.pop(); vq.q.insert(0, ('x', nxt[0]))
                else: xload(nxt[0])
                nxt[0] += 1; nis += 1
            if ks == 10:
                LF = a.newlabel('QK_FL')
                a(f's_cmp_lg_u32 s{sLAYER}, 0')
                a(f's_cbranch_scc1 {LF}')
                for w, word in ((2, 4), (3, 6)):
                    L = self.if_wave('eq', w)
                    self.set_xflag(word, 1, saddr='s54', vt=('v13', 'v14'))
                    a.label(L)
                a.label(LF)
            if ks >= 12 and ks % 2 == 0 and late:
                a(late.pop(0)); vq.push('late')
            if ks >= 25:
                n = -(-len(lnpre) // (39 - ks)) if ks < 39 else len(lnpre)
                for _ in range(min(n, len(lnpre))): a(lnpre.pop(0))
        assert not late and not lnpre
        self.cstamp(55)
        if self.args.prio: a('s_setprio 0')
        a('s_waitcnt vmcnt(0)')
        if self.args.fq: self.fstamp(58)

    def colsum_raw(self):
        a = self.a
        WB = self.WB
        a(f's_mul_i32 s52, s{sW}, 768')
        a('v_add_u32 v12, s52, v7')
        a('v_add_u32 v13, s52, v8')
        for r in range(108, 112): a(f'v_mov_b32 v{r}, 0x3f803f80')
        for i in range(5):
            s = 16 + 8 * i
            a(f'ds_read_b64_tr_b16 v[{s}:{s+1}], v12 offset:{i*6144}')
            a(f'ds_read_b64_tr_b16 v[{s+2}:{s+3}], v12 offset:{i*6144+48}')
            a(f'ds_read_b64_tr_b16 v[{s+4}:{s+5}], v13 offset:{i*6144}')
            a(f'ds_read_b64_tr_b16 v[{s+6}:{s+7}], v13 offset:{i*6144+48}')
        a('s_waitcnt lgkmcnt(0)')
        for i in range(5):
            s = 16 + 8 * i
            a(f'{MF32} v[112:127], v[108:111], v[{s}:{s+3}], {"0" if i == 0 else "v[112:127]"}')
            a(f'{MF32} v[128:143], v[108:111], v[{s+4}:{s+7}], {"0" if i == 0 else "v[128:143]"}')
        a('v_and_b32 v12, 31, v1')
        a('v_lshlrev_b32 v12, 2, v12')
        a('s_mov_b64 exec, 0xffffffff')
        a(f'ds_add_f32 v12, v112 offset:{L_CS}')
        a(f'ds_add_f32 v12, v128 offset:{L_CS+128}')
        a('s_mov_b64 exec, -1')
        a('s_waitcnt lgkmcnt(0)')

    def ln_pre_instrs(self):
        I = []
        I += [f's_bitcmp1_b32 s{sLAYER}, 0', 's_cselect_b64 s[70:71], -1, 0',
              f'v_cndmask_b32 v116, v{vCSA}, v{vCSB}, s[70:71]', f'v_cndmask_b32 v117, v{vCSA+1}, v{vCSB+1}, s[70:71]']
        I += ['v_add_f32 v104, v104, v106', 'v_add_f32 v105, v105, v107', 'v_add_f32 v108, v108, v110', 'v_add_f32 v109, v109, v111',
              'v_add_f32 v112, v104, v108', 'v_add_f32 v113, v105, v109', 'v_mov_b32 v114, v112', 'v_mov_b32 v115, v113',
              'v_mov_b32 v122, 0', 'v_mov_b32 v123, 0',
              'v_permlane32_swap_b32 v112, v114', 'v_permlane32_swap_b32 v113, v115',
              'v_add_f32 v112, v112, v114', 'v_add_f32 v113, v113, v115', 's_mov_b32 s72, 0x3acccccd',
              'v_mul_f32 v112, s72, v112', 'v_mul_f32 v113, s72, v113', 'v_fma_f32 v113, -v112, v112, v113',
              'v_add_f32 v113, 0x3727c5ac, v113', 'v_rsq_f32 v132, v113',
              'v_sub_f32 v114, 0, v112', 'v_cvt_pk_bf16_f32 v120, v114, v114', 'v_lshlrev_b32 v115, 16, v120',
              'v_sub_f32 v115, v114, v115', 'v_cvt_pk_bf16_f32 v121, v115, v122',
              f'v_cndmask_b32 v120, v122, v120, {LO}', f'v_cndmask_b32 v121, v122, v121, {LO}']
        for src, dst in ((116, 124), (117, 128)):
            I += [f'v_cvt_pk_bf16_f32 v118, v{src}, v{src}', 'v_lshlrev_b32 v118, 16, v118', f'v_sub_f32 v119, v{src}, v118',
                  f'v_cvt_pk_bf16_f32 v{dst}, v118, v119', f'v_cvt_pk_bf16_f32 v{dst+1}, v118, v122',
                  f'v_cndmask_b32 v{dst}, v122, v{dst}, {LO}', f'v_cndmask_b32 v{dst+1}, v122, v{dst+1}, {LO}',
                  f'v_mov_b32 v{dst+2}, 0', f'v_mov_b32 v{dst+3}, 0']
        return I

    def ln_fix(self, packed):
        a = self.a
        A0, A1 = self.ACC0, self.ACC1
        a(f'{MF32} v[{A0}:{A0+15}], v[124:127], v[120:123], v[{A0}:{A0+15}]')
        a(f'{MF32} v[{A1}:{A1+15}], v[128:131], v[120:123], v[{A1}:{A1+15}]')
        a('v_mov_b32 v101, v132')

    def img_addr_regs(self):
        a = self.a
        a('v_and_b32 v10, 31, v1')
        a(f's_lshl_b32 s50, s{sRB}, 5')
        a('s_add_u32 s50, s50, 256')
        a('v_add_u32 v10, s50, v10')
        a('v_mul_u32_u24 v10, 48, v10')
        a('v_lshrrev_b32 v11, 5, v1')
        a('v_lshlrev_b32 v12, 4, v11')
        a('v_add_u32 v120, v10, v12')
        a('v_lshlrev_b32 v12, 3, v11')
        a('v_sub_u32 v121, v10, v12')
        a('v_add_u32 v121, 32, v121')
        a('v_add_u32 v122, v10, v12')
        a(f'v_add_u32 v122, {VIMG}, v122')
        a(f'v_mul_u32_u24 v12, {VIMG + 32 - 8}, v11')
        a('v_add_u32 v123, v10, v12')
        a('v_add_u32 v123, 8, v123')
        a(f'v_mul_u32_u24 v12, {VIMG}, v11')
        a('v_add_u32 v124, v10, v12')
        a('v_add_u32 v124, 40, v124')

    def setup_persistent(self):
        a = self.a
        self.img_addr_regs()
        for k in range(5): a(f'v_mov_b32 v{vPI[k]}, v{120+k}')
        self.attn_addr()
        for k in range(3): a(f'v_mov_b32 v{vPA[k]}, v{105+k}')
        self.o_addr_lane()
        for k in range(3): a(f'v_mov_b32 v{vPO[k]}, v{40+k}')
        L = self.if_wave('eq', 5)
        self.attn_masks_md(32)
        for q in range(4):
            a(f'ds_write_b128 v2, v[{32+4*q}:{35+4*q}] offset:{L_MD + q*1024}')
        a('s_waitcnt lgkmcnt(0)')
        a.label(L)

    def write_img(self, regs):
        a = self.a
        a(f'ds_write_b64 v{vPI[0]}, v[{regs["B1g0"]}:{regs["B1g0"]+1}]')
        a(f'ds_write_b64 v{vPI[1]}, v[{regs["B0g3"]}:{regs["B0g3"]+1}]')
        a(f'ds_write_b64 v{vPI[2]}, v[{regs["B1g1"]}:{regs["B1g1"]+1}]')
        a(f'ds_write_b64 v{vPI[2]}, v[{regs["B1g2"]}:{regs["B1g2"]+1}] offset:16')
        a(f'ds_write_b64 v{vPI[3]}, v[{regs["B1g3"]}:{regs["B1g3"]+1}]')
        a('v_mov_b32 v12, 0x3f80')
        a('v_mov_b32 v13, 0')
        a(f'v_cndmask_b32 v12, v12, v13, {LO}')
        a(f'ds_write_b64 v{vPI[4]}, v[12:13]')

    def wave_max(self, reg, tmp):
        a = self.a
        for ror in (8, 4, 2, 1):
            a(f'v_mov_b32_dpp v{tmp}, v{reg} row_ror:{ror} row_mask:0xf bank_mask:0xf')
            a(f'v_max_f32 v{reg}, v{reg}, v{tmp}')
        a(f'v_mov_b32 v{tmp}, v{reg}')
        a(f'v_permlane16_swap_b32 v{reg}, v{tmp}')
        a(f'v_max_f32 v{reg}, v{reg}, v{tmp}')
        a(f'v_mov_b32 v{tmp}, v{reg}')
        a(f'v_permlane32_swap_b32 v{reg}, v{tmp}')
        a(f'v_max_f32 v{reg}, v{reg}, v{tmp}')

    QA, QB = 96, 100
    vQN = 104
    def kvx_base(self, dst, wg_s):
        a = self.a
        a(f's_lshr_b32 {dst}, s{sLAYER}, 1')
        a(f's_mul_i32 {dst}, {dst}, {KVX_SZ}')
        a(f's_add_u32 {dst}, {dst}, {WS_KVX}')
        a(f's_mul_i32 s63, {wg_s}, 24576')
        a(f's_add_u32 {dst}, {dst}, s63')

    def export_own(self):
        a = self.a
        a(f's_mul_i32 s50, s{sRB}, 1536')
        a('v_add_u32 v60, s50, v2')
        a('v_add_u32 v62, 12800, v60')
        a('v_add_u32 v61, 1024, v60')
        a('v_add_u32 v63, 11776, v60')
        a(f'v_cndmask_b32 v61, v63, v61, {LO}')
        a('v_add_u32 v63, 12288, v61')
        a(f'v_add_u32 v10, {VIMG}, v61')
        a(f'v_cndmask_b32 v63, v10, v63, {LO}')
        a('ds_read_b128 v[48:51], v60 offset:12288')
        a('ds_read_b128 v[52:55], v63')
        a(f'ds_read_b128 v[56:59], v62 offset:{VIMG}')
        self.kvx_base('s51', 's2')
        a('s_waitcnt lgkmcnt(0)')
        a(f'buffer_store_dwordx4 v[48:51], v60, {srd(S_WS)}, s51 offen sc1')
        a(f'buffer_store_dwordx4 v[52:55], v61, {srd(S_WS)}, s51 offen sc1')
        a(f'buffer_store_dwordx4 v[56:59], v62, {srd(S_WS)}, s51 offen sc1')

    def set_block_flag(self):
        a = self.a
        a(f's_lshl_b32 s53, s{sRB}, 2')
        a('s_add_u32 s53, s53, 32')
        a(f's_add_u32 s54, s{sLAYER}, 1')
        self.set_xflag('s53', 's54')

    def epi_B(self):
        a = self.a
        A0, A1 = self.ACC0, self.ACC1
        QA, QB = self.QA, self.QB
        a(f's_mov_b32 s{sNEED}, 1')
        a('s_mov_b32 s52, 0x3ea52b5c')
        a('v_mul_f32 v102, s52, v101')
        for r in range(12, 16): a(f'v_mul_f32 v{A0+r}, v101, v{A0+r}')
        for r in range(16): a(f'v_mul_f32 v{A1+r}, v101, v{A1+r}')
        pk = {'B0g3': (106, A0+12), 'B1g0': (108, A1), 'B1g1': (110, A1+4), 'B1g2': (112, A1+8), 'B1g3': (114, A1+12)}
        for n, (d, s_) in pk.items():
            a(f'v_cvt_pk_bf16_f32 v{d}, v{s_}, v{s_+1}')
            a(f'v_cvt_pk_bf16_f32 v{d+1}, v{s_+2}, v{s_+3}')
        self.write_img({n: d for n, (d, _) in pk.items()})
        a(f'v_mul_f32 v118, v{A0+12}, v{A0+12}')
        for r in [A0+13, A0+14, A0+15, A1, A1+1, A1+2, A1+3]: a(f'v_fmac_f32 v118, v{r}, v{r}')
        a(f'v_mul_f32 v119, v{A1+12}, v{A1+12}')
        for r in range(13, 16): a(f'v_fmac_f32 v119, v{A1+r}, v{A1+r}')
        a('v_mov_b32 v13, 0')
        a(f'v_cndmask_b32 v119, v13, v119, {LO}')
        a('v_add_f32 v118, v118, v119')
        a('v_mov_b32 v119, v118')
        a('v_permlane32_swap_b32 v118, v119')
        a('v_add_f32 v118, v118, v119')
        a('s_waitcnt lgkmcnt(0)')
        NOEXP = a.newlabel('EB_NOEXP')
        a(f's_cmp_eq_u32 s{sJ}, 7')
        a(f's_cbranch_scc1 {NOEXP}')
        if self.args.fe: self.fstamp(53)
        self.export_own()
        if self.args.fe: self.fstamp(54)
        a.label(NOEXP)
        self.wave_max(118, 117)
        NOEXP2 = a.newlabel('EB_NOEXP2')
        a(f's_cmp_eq_u32 s{sJ}, 7')
        a(f's_cbranch_scc1 {NOEXP2}')
        a('s_lshl_b32 s52, s2, 6')
        a(f's_add_u32 s52, s52, {WS_XKN}')
        a(f's_lshl_b32 s53, s{sRB}, 2')
        a('v_mov_b32 v12, s53')
        a('s_mov_b64 exec, 1')
        a(f'buffer_store_dword v118, v12, {srd(S_WS)}, s52 offen sc1')
        a('s_mov_b64 exec, -1')
        a.label(NOEXP2)
        a(f's_lshl_b32 s50, s{sW}, 2')
        a('v_mov_b32 v12, s50')
        a('s_mov_b64 exec, 1')
        a(f'ds_write_b32 v12, v118 offset:{L_KN}')
        a('s_mov_b64 exec, -1')
        L = self.if_wave('eq', 0)
        a('v_lshlrev_b32 v12, 2, v1')
        a('v_mov_b32 v13, 0')
        a('s_mov_b64 exec, 0xff')
        a(f'ds_write_b32 v12, v13 offset:{L_KN+32}')
        a('s_mov_b64 exec, -1')
        a.label(L)
        L = self.if_wave('lt', 4)
        self.epi_B_q()
        a.label(L)
        for q in range(4):
            a(f'ds_read_b128 v[{self.AMD+4*q}:{self.AMD+4*q+3}], v2 offset:{L_MD + q*1024}')
        L = self.if_wave('lt', 4)
        LJ = a.newlabel('EB_J7')
        a(f's_cmp_eq_u32 s{sJ}, 7')
        a(f's_cbranch_scc1 {LJ}')
        if self.args.fe: self.fstamp(55)
        a('s_waitcnt vmcnt(0)')
        if self.args.fe: self.fstamp(56)
        self.set_block_flag()
        a.label(LJ)
        L0 = self.if_wave('eq', 0)
        a('s_call_b64 s[88:89], SUB_IMPORT1T')
        a.label(L0)
        a.label(L)
        if self.args.fe: self.fstamp(57)
        a('s_waitcnt lgkmcnt(0)')
        a('s_barrier')

    def epi_B_q(self):
        a = self.a
        A0 = self.ACC0
        QA, QB = self.QA, self.QB
        for r in range(0, 12): a(f'v_mul_f32 v{A0+r}, v102, v{A0+r}')
        for j in range(4): a(f'v_cvt_pk_bf16_f32 v{QA+j}, v{A0+2*j}, v{A0+2*j+1}')
        a(f'v_cvt_pk_bf16_f32 v{QB}, v{A0+8}, v{A0+9}')
        a(f'v_cvt_pk_bf16_f32 v{QB+1}, v{A0+10}, v{A0+11}')
        a('v_mul_f32 v116, v16, v16')
        for r in range(1, 8): a(f'v_fmac_f32 v116, v{A0+r}, v{A0+r}')
        a(f'v_mul_f32 v117, v{A0+8}, v{A0+8}')
        for r in range(9, 12): a(f'v_fmac_f32 v117, v{A0+r}, v{A0+r}')
        a('v_mov_b32 v13, 0')
        a(f'v_mov_b32 v{QB+2}, 0x3f80')
        a(f'v_mov_b32 v{QB+3}, 0')
        for j in range(3): a(f'v_cndmask_b32 v{QB+j}, v13, v{QB+j}, {LO}')
        a(f'v_cndmask_b32 v117, v13, v117, {LO}')
        a('v_add_f32 v116, v116, v117')
        a('v_mov_b32 v117, v116')
        a('v_permlane32_swap_b32 v116, v117')
        a(f'v_add_f32 v{self.vQN}, v116, v117')
        self.wave_max(self.vQN, 116)

    def imp_addr(self, st):
        a = self.a
        half = 6144 if st == 1 else 0
        a('v_lshlrev_b32 v10, 4, v0')
        a(f'v_add_u32 v184, {half}, v10')
        a(f'v_add_u32 v185, {half + 4096}, v10')
        a(f'v_add_u32 v186, {12288 + half - 2048}, v10')
        a('v_cmp_gt_u32 vcc, 2048, v10')
        a('v_cndmask_b32 v185, v186, v185, vcc')
        a(f'v_add_u32 v186, {12288 + half + 2048}, v10')
        a(f'v_add_u32 v187, {VIMG - 12288}, v185')
        a('v_cndmask_b32 v187, v187, v185, vcc')

    def imp_flagload(self, st):
        a = self.a
        a('s_sub_u32 s54, s2, 1')
        self.xflag_addr('s52', 's54')
        a('v_and_b32 v11, 3, v1')
        a('v_lshlrev_b32 v11, 2, v11')
        a(f'v_add_u32 v11, {32 + (16 if st == 1 else 0)}, v11')
        a(f'buffer_load_dword v176, v11, {srd(S_WS)}, s52 offen sc1')

    def imp_loads(self, st):
        a = self.a
        a('s_sub_u32 s54, s2, 1')
        self.kvx_base('s51', 's54')
        a(f'buffer_load_dwordx4 v[160:163], v184, {srd(S_WS)}, s51 offen sc1')
        a(f'buffer_load_dwordx4 v[164:167], v185, {srd(S_WS)}, s51 offen sc1')
        a(f'buffer_load_dwordx4 v[168:171], v186, {srd(S_WS)}, s51 offen sc1')
        a('s_lshl_b32 s52, s54, 6')
        a(f's_add_u32 s52, s52, {WS_XKN + (16 if st == 1 else 0)}')
        a('v_and_b32 v11, 3, v1')
        a('v_lshlrev_b32 v11, 2, v11')
        a(f'buffer_load_dword v172, v11, {srd(S_WS)}, s52 offen sc1')

    def imp_try(self, st, nyounger):
        a = self.a
        N = a.newlabel('IT_NO'); E = a.newlabel('IT_E')
        a(f's_waitcnt vmcnt({nyounger})')
        a(f's_add_u32 s63, s{sNONCE}, s{sLAYER}')
        a('s_add_u32 s63, s63, 1')
        a('v_subrev_u32 v176, s63, v176')
        a('v_cmp_lt_u32 vcc, 7, v176')
        a('s_and_b32 s61, vcc_lo, 0xf')
        a('s_cmp_eq_u32 s61, 0')
        a(f's_cbranch_scc0 {N}')
        self.imp_addr(st)
        self.imp_loads(st)
        a(f's_mov_b32 s{sNEED}, 0')
        a(f's_branch {E}')
        a.label(N)
        a(f's_mov_b32 s{sNEED}, 1')
        a.label(E)

    def imp_fill_vals(self, nK, tsrc):
        pass

    def imp_finish(self, st):
        a = self.a
        FILL = a.newlabel('IM_FILL'); E = a.newlabel('IM_END')
        a(f's_cmp_eq_u32 s{sJ}, 0')
        a(f's_cbranch_scc1 {FILL}')
        a('s_sub_u32 s54, s2, 1')
        self.xflag_addr('s52', 's54')
        a(f's_add_u32 s53, s{sLAYER}, 1')
        a('v_and_b32 v11, 3, v1')
        a('v_lshlrev_b32 v11, 2, v11')
        a('v_add_u32 v11, 48, v11')
        self.poll('v11', 's52', 4, 's53')
        self.imp_addr(1)
        self.imp_loads(1)
        a('s_waitcnt vmcnt(0)')
        a('ds_write_b128 v184, v[160:163]')
        a('ds_write_b128 v187, v[164:167]')
        a(f'ds_write_b128 v186, v[168:171] offset:{VIMG - 12288}')
        for ror in (2, 1):
            a(f'v_mov_b32_dpp v173, v172 row_ror:{ror} row_mask:0xf bank_mask:0xf')
            a('v_max_f32 v172, v172, v173')
        a(f'v_mov_b32 v12, {L_KN + 32}')
        a('s_mov_b64 exec, 1')
        a('ds_write_b32 v12, v172')
        a('s_mov_b64 exec, -1')
        a(f's_branch {E}')
        a.label(FILL)
        self.imp_addr(1)
        a('v_lshlrev_b32 v10, 4, v0')
        for r in range(160, 172): a(f'v_mov_b32 v{r}, 0')
        for n, reg in ((0, 162), (1, 166)):
            a(f'v_lshrrev_b32 v11, 4, v10')
            a(f'v_add_u32 v11, {n*256}, v11')
            a('v_mul_u32_u24 v12, 21846, v11')
            a('v_lshrrev_b32 v12, 16, v12')
            a('v_mul_u32_u24 v12, 3, v12')
            a('v_sub_u32 v12, v11, v12')
            a('v_cmp_eq_u32 s[70:71], 2, v12')
            if n == 1:
                a('v_cmp_gt_u32 vcc, 2048, v10')
                a('s_and_b64 s[70:71], s[70:71], vcc')
            a('v_mov_b32 v13, 0xf14a')
            a(f'v_cndmask_b32 v{reg}, v{reg}, v13, s[70:71]')
        a('ds_write_b128 v184, v[160:163]')
        a('ds_write_b128 v187, v[164:167]')
        a(f'ds_write_b128 v186, v[168:171] offset:{VIMG - 12288}')
        a(f'v_mov_b32 v12, {L_KN + 32}')
        a('s_mov_b64 exec, 1')
        a('ds_write_b32 v12, v160')
        a('s_mov_b64 exec, -1')
        a.label(E)
        a('s_waitcnt lgkmcnt(0)')

    def import_solo(self, st, maxtry=None):
        a = self.a
        FILL = a.newlabel('I2_FILL'); E = a.newlabel('I2_END'); GIVE = a.newlabel('I2_GIVE')
        half = 6144 if st == 1 else 0
        fw = 48 if st == 1 else 32
        a(f's_cmp_eq_u32 s{sJ}, 0')
        a(f's_cbranch_scc1 {FILL}')
        a('s_sub_u32 s54, s2, 1')
        self.xflag_addr('s52', 's54')
        a('v_and_b32 v11, 3, v1')
        a('v_lshlrev_b32 v11, 2, v11')
        a(f'v_add_u32 v11, {fw}, v11')
        if maxtry is None:
            a(f's_add_u32 s53, s{sLAYER}, 1')
            self.poll('v11', 's52', 4, 's53')
        else:
            L = a.newlabel('I2_TRY'); OK = a.newlabel('I2_OK')
            a('s_mov_b32 s60, 0')
            a(f's_add_u32 s63, s{sNONCE}, s{sLAYER}')
            a('s_add_u32 s63, s63, 1')
            a.label(L)
            a(f'buffer_load_dword v12, v11, {srd(S_WS)}, s52 offen sc1')
            a('s_waitcnt vmcnt(0)')
            a('v_subrev_u32 v12, s63, v12')
            a('v_cmp_lt_u32 vcc, 7, v12')
            a('s_and_b32 s61, vcc_lo, 0xf')
            a('s_cmp_eq_u32 s61, 0')
            a(f's_cbranch_scc1 {OK}')
            a('s_add_u32 s60, s60, 1')
            a(f's_cmp_lt_u32 s60, {maxtry}')
            a(f's_cbranch_scc1 {L}')
            a(f's_branch {GIVE}')
            a.label(OK)
        self.kvx_base('s51', 's54')
        a(f's_add_u32 s55, s51, {12288 + half}')
        if half: a(f's_add_u32 s51, s51, {half}')
        KR = [160, 164, 168, 172, 184, 108]; VR = [128, 132, 136, 140, 48, 52]
        a('s_lshl_b32 s52, s54, 6')
        a(f's_add_u32 s52, s52, {WS_XKN + (16 if st == 1 else 0)}')
        a('v_and_b32 v11, 3, v1')
        a('v_lshlrev_b32 v11, 2, v11')
        a(f'buffer_load_dword v14, v11, {srd(S_WS)}, s52 offen sc1')
        for n in range(6):
            if n == 4: a('s_add_u32 s51, s51, 4096')
            a(f'buffer_load_dwordx4 v[{KR[n]}:{KR[n]+3}], v2, {srd(S_WS)}, s51 offen offset:{(n%4)*1024} sc1')
        for n in range(6):
            if n == 4: a('s_add_u32 s55, s55, 4096')
            a(f'buffer_load_dwordx4 v[{VR[n]}:{VR[n]+3}], v2, {srd(S_WS)}, s55 offen offset:{(n%4)*1024} sc1')
        a('s_waitcnt vmcnt(12)')
        for ror in (2, 1):
            a(f'v_mov_b32_dpp v15, v14 row_ror:{ror} row_mask:0xf bank_mask:0xf')
            a('v_max_f32 v14, v14, v15')
        a(f'v_mov_b32 v12, {L_KN + 32 + (0 if st == 1 else 4)}')
        a('s_mov_b64 exec, 1')
        a('ds_write_b32 v12, v14')
        a('s_mov_b64 exec, -1')
        for n in range(6):
            a(f's_waitcnt vmcnt({11 - n})')
            a(f'ds_write_b128 v2, v[{KR[n]}:{KR[n]+3}] offset:{KIMG + half + n*1024}')
        for n in range(6):
            a(f's_waitcnt vmcnt({5 - n})')
            a(f'ds_write_b128 v2, v[{VR[n]}:{VR[n]+3}] offset:{VIMG + half + n*1024}')
        a(f's_branch {E}')
        a.label(FILL)
        for r in range(160, 168): a(f'v_mov_b32 v{r}, 0')
        for n in range(6):
            a(f'v_add_u32 v11, {n*64}, v1')
            a('v_mul_u32_u24 v12, 21846, v11')
            a('v_lshrrev_b32 v12, 16, v12')
            a('v_mul_u32_u24 v12, 3, v12')
            a('v_sub_u32 v12, v11, v12')
            a('v_cmp_eq_u32 vcc, 2, v12')
            a('v_mov_b32 v13, 0xf14a')
            a('v_cndmask_b32 v162, v160, v13, vcc')
            a(f'ds_write_b128 v2, v[160:163] offset:{KIMG + half + n*1024}')
            a(f'ds_write_b128 v2, v[164:167] offset:{VIMG + half + n*1024}')
        a.label(E)
        a('s_waitcnt lgkmcnt(0)')
        self.cnt_inc(L_CNTA if st == 1 else L_CNTB)
        a('s_waitcnt lgkmcnt(0)')
        a.label(GIVE)

    def cnt_inc(self, addr):
        a = self.a
        a(f'v_mov_b32 v11, {addr}')
        a('v_mov_b32 v12, 1')
        a('s_mov_b64 exec, 1')
        a('ds_add_u32 v11, v12')
        a('s_mov_b64 exec, -1')

    def cnt_wait(self, addr):
        a = self.a
        L = a.newlabel('CW'); D = a.newlabel('CWD')
        a(f's_add_u32 s62, s{sLAYER}, 1')
        a('s_lshr_b32 s62, s62, 1')
        a(f'v_mov_b32 v11, {addr}')
        a('s_mov_b32 s60, 0')
        a.label(L)
        a('ds_read_b32 v12, v11')
        a('s_waitcnt lgkmcnt(0)')
        a('v_readfirstlane_b32 s61, v12')
        a('s_cmp_ge_u32 s61, s62')
        a(f's_cbranch_scc1 {D}')
        a('s_sleep 1')
        a('s_add_u32 s60, s60, 1')
        a('s_cmp_lt_u32 s60, 0x200000')
        a(f's_cbranch_scc1 {L}')
        a.label(D)

    def light_flag(self):
        a = self.a
        E = a.newlabel('LF_E')
        a(f's_cmp_eq_u32 s{sJ}, 7')
        a(f's_cbranch_scc1 {E}')
        a('s_waitcnt vmcnt(0)')
        self.set_block_flag()
        a.label(E)

    def attn_addr(self):
        a = self.a
        a('v_and_b32 v10, 31, v1')
        a(f's_lshl_b32 s50, s{sRB}, 5')
        a('v_add_u32 v10, s50, v10')
        a('v_mul_u32_u24 v10, 48, v10')
        a('v_lshrrev_b32 v11, 5, v1')
        a('v_lshlrev_b32 v12, 4, v11')
        a('v_add_u32 v105, v10, v12')
        a('v_add_u32 v106, 32, v10')
        a('v_bfe_u32 v12, v1, 2, 2')
        a('v_lshlrev_b32 v13, 2, v11')
        a('v_add_u32 v12, v12, v13')
        a('v_add_u32 v12, s50, v12')
        a('v_mul_u32_u24 v12, 48, v12')
        a('v_and_b32 v13, 3, v1')
        a('v_lshlrev_b32 v14, 3, v13')
        a('v_min_u32 v15, 1, v13')
        a('v_lshlrev_b32 v15, 3, v15')
        a('v_add_u32 v15, 32, v15')
        a('v_bfe_u32 v13, v1, 4, 1')
        a('v_cmp_eq_u32 vcc, 1, v13')
        a('v_cndmask_b32 v14, v14, v15, vcc')
        a('v_add_u32 v12, v12, v14')
        a(f'v_add_u32 v107, {VIMG}, v12')

    def attn_masks_md(self, MD):
        a = self.a
        a('v_and_b32 v10, 31, v1')
        a('v_lshrrev_b32 v11, 5, v1')
        a('v_lshlrev_b32 v13, 2, v11')
        a('v_sub_u32 v10, v10, v13')
        a('v_mov_b32 v14, 0xf149f2ca')
        a('v_mov_b32 v15, 0')
        conds = ['s[70:71]', 's[72:73]', 's[74:75]', 's[76:77]']
        for r0 in range(0, 16, 4):
            for q in range(4):
                r = r0 + q
                kk = 8 * (r >> 2) + (r & 3)
                a(f'v_cmp_le_i32 {conds[q]}, {kk}, v10')
            for q in range(4):
                r = r0 + q
                a(f'v_cndmask_b32 v{MD+r}, v14, v15, {conds[q]}')

    def make_mf(self, r0, r1):
        for r in range(r0, r1):
            self.a(f'v_sub_f32 v{self.AMF+r}, 0xf149f2ca, v{self.AMD+r}')

    def norm_check(self, fail_label):
        a = self.a
        a('v_and_b32 v11, 15, v1')
        a('v_lshlrev_b32 v11, 2, v11')
        a(f'ds_read_b32 v12, v11 offset:{L_KN}')
        a('s_waitcnt lgkmcnt(0)')
        for ror in (8, 4, 2, 1):
            a(f'v_mov_b32_dpp v13, v12 row_ror:{ror} row_mask:0xf bank_mask:0xf')
            a('v_max_f32 v12, v12, v13')
        a(f'v_mul_f32 v12, v{self.vQN}, v12')
        a(f's_mov_b32 s50, {self.args.t2hex}')
        a('v_mov_b32 v13, s50')
        a('v_cmp_nle_f32 vcc, v12, v13')
        a('s_cmp_lg_u64 vcc, 0')
        a(f's_cbranch_scc1 {fail_label}')

    AO, AMD, AMF, AVF, AKF, ASB, ANM = 16, 32, 48, 64, 80, 112, 160
    def at_kread(self, i):
        n = 8 - i; s = self.AKF + 8 * (i % 2)
        self.a(f'ds_read_b128 v[{s}:{s+3}], v{vPA[0]} offset:{n*1536}')
        self.a(f'ds_read_b128 v[{s+4}:{s+7}], v{vPA[1]} offset:{n*1536}')
    def at_vread(self, i):
        n = 8 - i; s = self.AVF + 8 * (i % 2)
        for s2 in range(2):
            for sx in range(2):
                self.a(f'ds_read_b64_tr_b16 v[{s+4*s2+2*sx}:{s+4*s2+2*sx+1}], v{vPA[2]} offset:{n*1536 + s2*768 + sx*384}')
    def at_smfma(self, i, part, cz):
        s = self.AKF + 8 * (i % 2); d = self.ASB + 16 * (i % 2)
        MD, MF, QA, QB = self.AMD, self.AMF, self.QA, self.QB
        if part == 0:
            c = f'v[{MD}:{MD+15}]' if i == 0 else f'v[{MF}:{MF+15}]' if i == 8 else cz
            self.a(f'{MF32} v[{d}:{d+15}], v[{s}:{s+3}], v[{QA}:{QA+3}], {c}')
        else:
            self.a(f'{MF32} v[{d}:{d+15}], v[{s+4}:{s+7}], v[{QB}:{QB+3}], v[{d}:{d+15}]')

    def attn_loop(self, cz, sync):
        a = self.a
        O, VF, SB = self.AO, self.AVF, self.ASB
        self.at_kread(0); self.at_vread(0)
        a('s_waitcnt lgkmcnt(4)')
        self.at_smfma(0, 0, cz); self.at_smfma(0, 1, cz)
        for i in range(9):
            d = SB + 16 * (i % 2)
            if i < 8:
                if sync: sync(i)
                self.at_kread(i + 1)
                self.at_vread(i + 1)
                for r in range(0, 4): a(f'v_exp_f32 v{d+r}, v{d+r}')
                a('s_waitcnt lgkmcnt(4)')
                self.at_smfma(i + 1, 0, cz)
                for r in range(4, 8): a(f'v_exp_f32 v{d+r}, v{d+r}')
                if sync and i in (5, 6): self.make_mf(8 * (i - 5), 8 * (i - 5) + 8)
                for j in range(0, 2): a(f'v_cvt_pk_bf16_f32 v{d+j}, v{d+2*j}, v{d+2*j+1}')
                self.at_smfma(i + 1, 1, cz)
                for j in range(2, 4): a(f'v_cvt_pk_bf16_f32 v{d+j}, v{d+2*j}, v{d+2*j+1}')
                for r in range(8, 12): a(f'v_exp_f32 v{d+r}, v{d+r}')
            else:
                for r in range(0, 8): a(f'v_exp_f32 v{d+r}, v{d+r}')
                for j in range(0, 4): a(f'v_cvt_pk_bf16_f32 v{d+j}, v{d+2*j}, v{d+2*j+1}')
                a('s_waitcnt lgkmcnt(0)')
                for r in range(8, 12): a(f'v_exp_f32 v{d+r}, v{d+r}')
            s = VF + 8 * (i % 2)
            a(f'{MF32} v[{O}:{O+15}], v[{s}:{s+3}], v[{d}:{d+3}], {"0" if i == 0 else f"v[{O}:{O+15}]"}')
            for r in range(12, 16): a(f'v_exp_f32 v{d+r}, v{d+r}')
            for j in range(4, 8): a(f'v_cvt_pk_bf16_f32 v{d+j}, v{d+2*j}, v{d+2*j+1}')
            a(f'{MF32} v[{O}:{O+15}], v[{s+4}:{s+7}], v[{d+4}:{d+7}], v[{O}:{O+15}]')

    def attn_true(self):
        a = self.a
        MD, MF, SB, NM = self.AMD, self.AMF, self.ASB, self.ANM
        self.make_mf(0, 16)
        a('v_mov_b32 v10, 0xff7fffff')
        a('v_mov_b32 v11, 0xff7fffff')
        self.at_kread(0)
        for i in range(9):
            if i < 8:
                self.at_kread(i + 1); a('s_waitcnt lgkmcnt(2)')
            else: a('s_waitcnt lgkmcnt(0)')
            self.at_smfma(i, 0, '0'); self.at_smfma(i, 1, '0')
            d = SB + 16 * (i % 2)
            for k in range(0, 16, 4):
                a(f'v_max3_f32 v10, v10, v{d+k}, v{d+k+1}')
                a(f'v_max3_f32 v11, v11, v{d+k+2}, v{d+k+3}')
        a('v_max_f32 v10, v10, v11')
        a('v_mov_b32 v11, v10')
        a('v_permlane32_swap_b32 v10, v11')
        a('v_max_f32 v10, v10, v11')
        for r in range(16):
            a(f'v_sub_f32 v{NM+r}, 0, v10')
            a(f'v_sub_f32 v{MD+r}, v{MD+r}, v10')
            a(f'v_sub_f32 v{MF+r}, v{MF+r}, v10')
        self.attn_loop(f'v[{NM}:{NM+15}]', None)

    def attn_B(self):
        a = self.a
        FB1 = a.newlabel('AT_FB1'); FB2 = a.newlabel('AT_FB2'); FB3 = a.newlabel('AT_FB3'); DONE = a.newlabel('AT_DONE')
        FB2L = a.newlabel('AT_FB2L')
        if self.args.aprio:
            L = self.if_wave('ge', 4)
            a(f's_setprio {self.args.aprio}')
            a.label(L)
        if self.args.force_fallback:
            a(f's_branch {FB1}')
        self.norm_check(FB1)
        def stage1_if_needed():
            D = a.newlabel('S1_D')
            a(f's_add_u32 s62, s{sLAYER}, 1')
            a('s_lshr_b32 s62, s62, 1')
            a(f'v_mov_b32 v11, {L_CNTA}')
            a('ds_read_b32 v12, v11')
            a('s_waitcnt lgkmcnt(0)')
            a('v_readfirstlane_b32 s61, v12')
            a('s_cmp_ge_u32 s61, s62')
            a(f's_cbranch_scc1 {D}')
            a('s_call_b64 s[88:89], SUB_IMPORT1')
            a.label(D)
        self.stage1_if_needed = stage1_if_needed
        def sync_point(i):
            if i == self.args.fli:
                SK = self.if_wave('ge', 4)
                self.light_flag()
                a.label(SK)
            if i == 0:
                SK = self.if_wave('eq', 4)
                stage1_if_needed()
                a.label(SK)
            SK = a.newlabel('AT_SY')
            a(f's_cmp_lg_u32 s{sRB}, {i}')
            a(f's_cbranch_scc1 {SK}')
            self.cnt_wait(L_CNTA)
            self.norm_check(FB2)
            a.label(SK)
            if i == 4:
                SK = self.if_wave('eq', 4)
                if self.args.fb: self.fstamp(56)
                a('s_call_b64 s[88:89], SUB_IMPORT2')
                if self.args.fb: self.fstamp(57)
                a.label(SK)
                if self.args.aprio:
                    SK = self.if_wave('ge', 4)
                    a('s_setprio 0')
                    a.label(SK)
            if i >= 4:
                SK = a.newlabel('AT_SYB')
                a(f's_cmp_lg_u32 s{sRB}, {i-4}')
                a(f's_cbranch_scc1 {SK}')
                self.cnt_wait(L_CNTB)
                self.norm_check(FB3)
                a.label(SK)
        self.attn_loop('0', sync_point)
        a(f's_branch {DONE}')
        a.label(FB1)
        a('s_waitcnt lgkmcnt(0)')
        L = self.if_wave('ge', 4)
        self.light_flag()
        L4 = self.if_wave('eq', 4)
        stage1_if_needed()
        a.label(L4)
        a.label(L)
        self.cnt_wait(L_CNTA)
        a.label(FB2)
        L = self.if_wave('ge', 4)
        L4 = self.if_wave('eq', 4)
        a('s_call_b64 s[88:89], SUB_IMPORT2')
        a.label(L4)
        self.cnt_wait(L_CNTB)
        a.label(L)
        a.label(FB3)
        a('s_setprio 0')
        a('s_waitcnt vmcnt(0) lgkmcnt(0)')
        self.attn_true()
        a.label(DONE)

    def phi(self, r, tA, tB, sel_lo=False):
        a = self.a
        a(f'v_mul_f32 v{tA}, v102, v{r}')
        a(f'v_fma_f32 v{tB}, v101, v{r}, s52')
        a(f'v_exp_f32_e64 v{tA}, v{tA} clamp')
        a(f'v_max_f32 v{tB}, s52, v{tB}')
        if not sel_lo:
            a(f'v_add_f32 v{r}, v{tA}, v{tB}')
        else:
            a(f'v_add_f32 v{tA}, v{tA}, v{tB}')
            a(f'v_mul_f32 v{r}, v101, v{r}')
            a(f'v_cndmask_b32 v{r}, v{r}, v{tA}, {LO}')

    def epi_A(self):
        a = self.a
        A0, A1 = self.ACC0, self.ACC1
        QA, QB = self.QA, self.QB
        a('s_mov_b32 s53, 0x3fb8aa3b')
        a('v_mul_f32 v102, s53, v101')
        a('s_mov_b32 s52, 0x358637bd')
        t = 0
        def ph(r, sel=False):
            nonlocal t
            self.phi(r, 106 + 2 * (t % 4), 107 + 2 * (t % 4), sel); t += 1
        for r in list(range(A0 + 12, A0 + 16)) + list(range(A1, A1 + 4)): ph(r)
        for r in range(A1 + 4, A1 + 12): a(f'v_mul_f32 v{r}, v101, v{r}')
        for r in range(A1 + 12, A1 + 16): ph(r, True)
        pk = {'B0g3': (126, A0+12), 'B1g0': (128, A1), 'B1g1': (130, A1+4), 'B1g2': (132, A1+8), 'B1g3': (134, A1+12)}
        for n, (d, s_) in pk.items():
            a(f'v_cvt_pk_bf16_f32 v{d}, v{s_}, v{s_+1}')
            a(f'v_cvt_pk_bf16_f32 v{d+1}, v{s_+2}, v{s_+3}')
        self.write_img({n: d for n, (d, _) in pk.items()})
        a('s_waitcnt lgkmcnt(0)')
        a('s_barrier')

    def epi_A_q(self):
        a = self.a
        A0 = self.ACC0
        QA, QB = self.QA, self.QB
        a('s_mov_b32 s52, 0x358637bd')
        for t, r in enumerate(range(A0, A0 + 12)): self.phi(r, 106 + 2 * (t % 3), 107 + 2 * (t % 3))
        for j in range(4): a(f'v_cvt_pk_bf16_f32 v{QA+j}, v{A0+2*j}, v{A0+2*j+1}')
        a(f'v_cvt_pk_bf16_f32 v{QB}, v{A0+8}, v{A0+9}')
        a(f'v_cvt_pk_bf16_f32 v{QB+1}, v{A0+10}, v{A0+11}')
        a('v_mov_b32 v13, 0')
        a(f'v_mov_b32 v{QB+2}, 0')
        a(f'v_mov_b32 v{QB+3}, 0')
        for j in range(2): a(f'v_cndmask_b32 v{QB+j}, v13, v{QB+j}, {LO}')

    def linear_attn(self):
        a = self.a
        QA, QB = self.QA, self.QB
        L = self.if_wave('ge', 4)
        if self.args.wosig:
            a(f's_add_u32 s59, s{sLAYER}, 1')
            self.lds_wait('s59')
        if not self.args.nowo: self.dma_wo(0, 4)
        a.label(L)
        LS = a.newlabel('LA_ST')
        a(f's_cmp_lg_u32 s{sLAYER}, 0')
        a(f's_cbranch_scc1 {LS}')
        self.late_touch()
        L = self.if_wave('ge', 1)
        self.stash_load(1)
        a.label(L)
        a.label(LS)
        L = self.if_wave('ge', 1)
        self.epi_A_q()
        a.label(L)
        E = self.if_wave('eq', 0)
        a('v_lshrrev_b32 v11, 5, v1')
        a('v_bfe_u32 v12, v1, 2, 2')
        a('v_lshlrev_b32 v13, 2, v11')
        a('v_add_u32 v12, v12, v13')
        a('v_add_u32 v12, 256, v12')
        a('v_mul_u32_u24 v12, 48, v12')
        a('v_and_b32 v13, 3, v1')
        a('v_bfe_u32 v107, v1, 4, 1')
        a('v_min_u32 v15, 1, v13')
        a('v_lshlrev_b32 v15, 3, v15')
        a('v_add_u32 v15, 32, v15')
        a('v_lshlrev_b32 v14, 3, v13')
        a('v_and_b32 v106, 1, v13')
        a('v_lshlrev_b32 v106, 4, v106')
        a('v_lshrrev_b32 v108, 1, v13')
        a('v_lshlrev_b32 v108, 3, v108')
        a('v_add_u32 v106, v106, v108')
        a('v_cmp_eq_u32 vcc, 1, v107')
        a('v_cndmask_b32 v14, v14, v15, vcc')
        a('v_cndmask_b32 v106, v106, v15, vcc')
        a('v_add_u32 v104, v12, v106')
        a('v_add_u32 v105, v12, v14')
        a(f'v_add_u32 v105, {VIMG}, v105')
        D = 32
        NB = 4
        def rd(s2):
            s = 112 + 8 * (s2 % NB)
            a(f'ds_read_b64_tr_b16 v[{s}:{s+1}], v104 offset:{s2*768}')
            a(f'ds_read_b64_tr_b16 v[{s+2}:{s+3}], v104 offset:{s2*768+384}')
            a(f'ds_read_b64_tr_b16 v[{s+4}:{s+5}], v105 offset:{s2*768}')
            a(f'ds_read_b64_tr_b16 v[{s+6}:{s+7}], v105 offset:{s2*768+384}')
        for s2 in range(NB - 1): rd(s2)
        for s2 in range(16):
            if s2 + NB - 1 < 16: rd(s2 + NB - 1)
            pend = min(NB - 1, 15 - s2)
            a(f's_waitcnt lgkmcnt({4*pend})')
            s = 112 + 8 * (s2 % NB)
            a(f'{MF32} v[{D}:{D+15}], v[{s}:{s+3}], v[{s+4}:{s+7}], {"0" if s2 == 0 else f"v[{D}:{D+15}]"}')
        (None if self.args.fq else self.fstamp(53))
        a(f's_lshr_b32 s50, s{sLAYER}, 1')
        a(f's_mul_i32 s50, s50, {KVP_SZ}')
        a(f's_add_u32 s50, s50, {WS_KVP}')
        a(f's_lshl_b32 s51, s{sH}, 15')
        a('s_add_u32 s50, s50, s51')
        a(f's_lshl_b32 s51, s{sJ}, 12')
        a('s_add_u32 s51, s51, s50')
        a(f's_add_u32 s53, s{sLAYER}, 17')
        a(f's_add_u32 s53, s53, s{sNONCE}')
        for g in range(3):
            b = 48 + 4 * g
            a(f'v_cvt_pk_bf16_f32 v{b}, v{D+4*g}, v{D+4*g+1}')
            a(f'v_cvt_pk_bf16_f32 v{b+1}, v{D+4*g+2}, v{D+4*g+3}')
            a(f'v_mov_b32 v{b+2}, s53')
            a(f'v_mov_b32 v{b+3}, s53')
        for g in range(3):
            b = 48 + 4 * g
            a(f'buffer_store_dwordx4 v[{b}:{b+3}], v2, {srd(S_WS)}, s51 offen offset:{g*1024} sc1')
        (None if self.args.fq else self.fstamp(54))
        IB = [16, 28, 40, 52, 64, 76, 104, 116]
        PL = a.newlabel('KV_POLL'); PD = a.newlabel('KV_DONE')
        self.epi_A_q()
        if not self.args.noprepoll:
            PP = a.newlabel('KV_PP'); PPD = a.newlabel('KV_PPD')
            a('v_and_b32 v10, 7, v1')
            a('v_lshlrev_b32 v10, 12, v10')
            a('v_add_u32 v10, 2048, v10')
            a('s_mov_b32 s60, 0')
            a.label(PP)
            a(f'buffer_load_dwordx4 v[88:91], v10, {srd(S_WS)}, s50 offen sc1')
            a('s_waitcnt vmcnt(0)')
            a('v_mov_b32 v92, s53')
            a('v_bitop3_b32 v88, v90, v91, v92 bitop3:0x7e')
            a('v_cmp_ne_u32 vcc, 0, v88')
            a('s_and_b32 s61, vcc_lo, 0xff')
            a('s_cmp_eq_u32 s61, 0')
            a(f's_cbranch_scc1 {PPD}')
            a('s_add_u32 s60, s60, 1')
            a(f's_cmp_lt_u32 s60, {self.args.spin}')
            a(f's_cbranch_scc1 {PP}')
            a.label(PPD)
        a('s_mov_b32 s60, 0')
        a.label(PL)
        a('s_mov_b32 s54, s50')
        for j in range(8):
            for g in range(3):
                r = IB[j] + 4 * g
                a(f'buffer_load_dwordx4 v[{r}:{r+3}], v2, {srd(S_WS)}, s54 offen offset:{g*1024} sc1')
            if j < 7: a('s_add_u32 s54, s54, 4096')
        a('v_mov_b32 v88, 0')
        a('v_mov_b32 v89, s53')
        for j in range(8):
            a(f's_waitcnt vmcnt({3*(7-j)})')
            r = IB[j]
            a(f'v_bitop3_b32 v90, v{r+2}, v{r+3}, v89 bitop3:0x7e')
            a(f'v_bitop3_b32 v91, v{r+6}, v{r+7}, v89 bitop3:0x7e')
            a(f'v_bitop3_b32 v92, v{r+10}, v{r+11}, v89 bitop3:0x7e')
            a('v_or3_b32 v88, v88, v90, v91')
            a('v_or_b32 v88, v88, v92')
        a('v_cmp_ne_u32 vcc, 0, v88')
        a('s_cmp_eq_u64 vcc, 0')
        a(f's_cbranch_scc1 {PD}')
        a(f's_cmp_lg_u32 s{sDEAD}, 0')
        a(f's_cbranch_scc1 {PD}')
        a('s_add_u32 s60, s60, 1')
        a(f's_cmp_lt_u32 s60, {self.args.spin}')
        a(f's_cbranch_scc1 {PL}')
        a(f's_mov_b32 s{sDEAD}, 1')
        a.label(PD)
        (None if self.args.fq else self.fstamp(55))
        a(f's_add_u32 s59, s{sLAYER}, 1')
        self.lds_signal('s59')
        a('v_mov_b32 v88, 0x00003f80')
        a('v_mov_b32 v89, 0x3f800000')
        acc = [128 + k for k in range(12)]
        for k in range(12): a(f'v_mov_b32 v{acc[k]}, 0')
        for j in range(8):
            for g in range(3):
                for h2 in range(2):
                    src = IB[j] + 4 * g + h2
                    a(f'v_dot2c_f32_bf16 v{acc[4*g + 2*h2]}, v{src}, v88')
                    a(f'v_dot2c_f32_bf16 v{acc[4*g + 2*h2 + 1]}, v{src}, v89')
        (None if self.args.fq else self.fstamp(56))
        for j in range(6): a(f'v_cvt_pk_bf16_f32 v{64+j}, v{acc[2*j]}, v{acc[2*j+1]}')
        LS0 = a.newlabel('LA_ST0')
        a(f's_cmp_lg_u32 s{sLAYER}, 0')
        a(f's_cbranch_scc1 {LS0}')
        self.stash_load(1)
        a.label(LS0)
        a(f'ds_write_b128 v2, v[64:67] offset:{L_KV}')
        a('v_lshlrev_b32 v13, 3, v1')
        a(f'ds_write_b64 v13, v[68:69] offset:{L_KV+1024}')
        a.label(E)
        a('s_waitcnt lgkmcnt(0)')
        a('s_barrier')
        a('v_lshlrev_b32 v13, 3, v1')
        a(f'ds_read_b128 v[64:67], v2 offset:{L_KV}')
        a(f'ds_read_b64 v[68:69], v13 offset:{L_KV+1024}')
        a('v_mov_b32 v70, 0\nv_mov_b32 v71, 0')
        a('s_waitcnt lgkmcnt(0)')
        a(f'{MF32} v[16:31], v[64:67], v[{QA}:{QA+3}], 0')
        a(f'{MF32} v[16:31], v[68:71], v[{QB}:{QB+3}], v[16:31]')

    def o_addr_lane(self):
        a = self.a
        a('v_bfe_u32 v11, v1, 4, 1')
        a(f'v_mul_u32_u24 v11, {OBS}, v11')
        a('v_and_b32 v12, 15, v1')
        a('v_lshlrev_b32 v12, 4, v12')
        a('v_add_u32 v11, v11, v12')
        a('v_lshrrev_b32 v12, 5, v1')
        a(f's_mul_i32 s51, s{sH}, 5')
        a('v_add_u32 v12, s51, v12')
        def qoff(dst, q):
            a(f'v_lshrrev_b32 v14, 3, {q}')
            a(f'v_lshlrev_b32 {dst}, 10, v14')
            a(f'v_bfe_u32 v14, {q}, 2, 1')
            a('v_lshlrev_b32 v14, 9, v14')
            a(f'v_add_u32 {dst}, {dst}, v14')
            a(f'v_and_b32 v14, 1, {q}')
            a('v_lshlrev_b32 v14, 8, v14')
            a(f'v_add_u32 {dst}, {dst}, v14')
            a(f'v_bfe_u32 v14, {q}, 1, 1')
            a('v_lshlrev_b32 v14, 3, v14')
            a(f'v_add_u32 {dst}, {dst}, v14')
            a(f'v_add_u32 {dst}, {dst}, v11')
        qoff('v40', 'v12')
        a('v_add_u32 v13, 2, v12')
        qoff('v41', 'v13')
        a('s_add_u32 s51, s51, 4')
        a('v_mov_b32 v13, s51')
        qoff('v42', 'v13')

    def o_addr(self):
        a = self.a
        a(f's_lshl_b32 s50, s{sJ}, 4')
        a(f's_lshl_b32 s51, s{sRB}, 1')
        a('s_add_u32 s50, s50, s51')
        a(f's_mul_i32 s50, s50, {OBS}')
        a(f's_add_u32 s50, s50, s{sOF}')

    def finalize_o(self, eps):
        a = self.a
        self.o_addr()
        a(f'v_cndmask_b32 v10, v24, v28, {LO}')
        if eps: a('v_add_f32 v10, 0x358637bd, v10')
        a('v_rcp_f32 v10, v10')
        for r in range(12): a(f'v_mul_f32 v{16+r}, v10, v{16+r}')
        for j in range(6): a(f'v_cvt_pk_bf16_f32 v{32+j}, v{16+2*j}, v{17+2*j}')
        a(f'buffer_store_dwordx2 v[32:33], v{vPO[0]}, {srd(S_WS)}, s50 offen')
        a(f'buffer_store_dwordx2 v[34:35], v{vPO[1]}, {srd(S_WS)}, s50 offen')
        a('s_mov_b64 exec, 0xffffffff')
        a(f'buffer_store_dwordx2 v[36:37], v{vPO[2]}, {srd(S_WS)}, s50 offen')
        a('s_mov_b64 exec, -1')
        a('s_waitcnt vmcnt(0)')

    def wo_phase(self):
        a = self.a
        OFR = 16; WF = 96; AC = 48; XOR_ = [88, 90, 92, 94, 136]
        HELP = a.newlabel('WO_HELP')
        a(f's_cmp_ge_u32 s{sW}, 4')
        a(f's_cbranch_scc1 {HELP}')
        a(f's_lshr_b32 s50, s{sH}, 3')
        a(f's_and_b32 s51, s{sH}, 7')
        a(f's_and_b32 s52, s{sW}, 1')
        a(f's_lshr_b32 s53, s{sW}, 1')
        a(f's_lshl_b32 s54, s{sJ}, 4')
        a('s_lshl_b32 s55, s50, 2')
        a('s_add_u32 s54, s54, s55')
        a('s_lshl_b32 s55, s52, 1')
        a('s_add_u32 s54, s54, s55')
        a(f's_mul_i32 s55, s54, {OBS}')
        a('s_mul_i32 s56, s53, 10240')
        a('s_add_u32 s55, s55, s56')
        a(f's_add_u32 s55, s55, s{sOF}')
        a(f's_add_u32 s56, s55, {OBS}')
        a('s_cmp_eq_u32 s53, 0')
        a('s_cselect_b32 s57, s55, s56')
        a('s_cselect_b32 s56, s56, s55')
        a('s_mov_b32 s55, s57')
        vq = VQ()
        def oload(i):
            for aa in range(2):
                r = OFR + 8 * (i % 4) + 4 * aa
                sb = 's55' if aa == 0 else 's56'
                a(f'buffer_load_dwordx4 v[{r}:{r+3}], v2, {srd(S_WS)}, {sb} offen offset:{(i % 4) * 1024} sc1')
                vq.push(('o', i))
            if i % 4 == 3:
                a('s_add_u32 s55, s55, 4096\ns_add_u32 s56, s56, 4096')
        PF = 3
        for i in range(PF): oload(i)
        (self.fstamp(59) if self.args.flayer else None)
        a('s_mul_i32 s60, s53, 51200')
        a(f's_add_u32 s60, s60, {R_O}')
        a('v_add_u32 v11, s60, v2')
        def wrd1(i, c):
            s = WF + 20 * (i % 2)
            a(f'ds_read_b128 v[{s+4*c}:{s+4*c+3}], v11 offset:{(i*5 + c)*1024}')
        for c in range(5): wrd1(0, c)
        a('s_add_u32 s57, s54, s53')
        a('s_lshr_b32 s58, s57, 1')
        a(f's_mul_i32 s58, s58, {RBS}')
        a('s_mul_i32 s59, s51, 5120')
        a('s_add_u32 s58, s58, s59')
        a('s_and_b32 s59, s57, 1')
        a('s_lshl_b32 s59, s59, 8')
        a('s_add_u32 s58, s58, s59')
        a(f's_add_u32 s59, s58, s{sXF}')
        a('v_lshrrev_b32 v10, 5, v1')
        a('v_lshlrev_b32 v10, 9, v10')
        a('v_and_b32 v12, 15, v1')
        a('v_lshlrev_b32 v12, 4, v12')
        a('v_add_u32 v10, v10, v12')
        a('v_bfe_u32 v12, v1, 4, 1')
        a('v_lshlrev_b32 v12, 3, v12')
        a('v_add_u32 v10, v10, v12')
        (self.fstamp(60) if self.args.flayer else None)
        for i in range(10):
            s = WF + 20 * (i % 2)
            a(f's_waitcnt vmcnt({vq.cnt(("o", i))})')
            if i == 1 and self.args.flayer: self.fstamp(61)
            for c in range(5):
                lg = 4 if i < 9 else (4 - c)
                a(f's_waitcnt lgkmcnt({lg})')
                for aa in range(2):
                    d = AC + 20 * aa + 4 * c; o = OFR + 8 * (i % 4) + 4 * aa
                    cc = '0' if i == 0 else f'v[{d}:{d+3}]'
                    a(f'{MF16} v[{d}:{d+3}], v[{s+4*c}:{s+4*c+3}], v[{o}:{o+3}], {cc}')
                if i < 9: wrd1(i + 1, c)
                if c == 1 and i + PF < 10: oload(i + PF)
                if c == 3 and i >= 5:
                    cc = i - 5
                    if cc == 4: a('s_add_u32 s59, s59, 4096')
                    a(f'buffer_load_dwordx2 v[{XOR_[cc]}:{XOR_[cc]+1}], v10, {srd(S_WS)}, s59 offen offset:{(cc % 4) * 1024} sc1')
                    vq.push('res')
        (self.fstamp(62) if self.args.flayer else None)
        a(f's_mul_i32 s60, s{sW}, 5120')
        a(f's_add_u32 s60, s60, {SCR}')
        a('v_add_u32 v12, s60, v2')
        for c in range(5): a(f'ds_write_b128 v12, v[{AC+20+4*c}:{AC+20+4*c+3}] offset:{c*1024}')
        a('s_waitcnt vmcnt(0)')
        for c in range(5):
            x0, x1 = XOR_[c], XOR_[c] + 1
            b = 100 + 4 * c
            a(f'v_lshlrev_b32 v{b}, 16, v{x0}\nv_and_b32 v{b+1}, 0xffff0000, v{x0}\nv_lshlrev_b32 v{b+2}, 16, v{x1}\nv_and_b32 v{b+3}, 0xffff0000, v{x1}')
            for r in range(4): a(f'v_add_f32 v{AC+4*c+r}, v{AC+4*c+r}, v{b+r}')
        a('s_waitcnt lgkmcnt(0)')
        a.label(HELP)
        a('s_barrier')
        self.stamp(9, True)
        H2 = a.newlabel('WO_H2'); H3 = a.newlabel('WO_H3')
        a(f's_cmp_ge_u32 s{sW}, 4')
        a(f's_cbranch_scc1 {H2}')
        a(f's_xor_b32 s60, s{sW}, 2')
        a('s_mul_i32 s60, s60, 5120')
        a(f's_add_u32 s60, s60, {SCR}')
        a('v_add_u32 v12, s60, v2')
        for c in range(5): a(f'ds_read_b128 v[{16+4*c}:{19+4*c}], v12 offset:{c*1024}')
        a('s_waitcnt lgkmcnt(0)')
        for c in range(5):
            for r in range(4): a(f'v_add_f32 v{AC+4*c+r}, v{AC+4*c+r}, v{16+4*c+r}')
            a(f'v_cvt_pk_bf16_f32 v{120+2*c}, v{AC+4*c}, v{AC+4*c+1}')
            a(f'v_cvt_pk_bf16_f32 v{121+2*c}, v{AC+4*c+2}, v{AC+4*c+3}')
        LAST = a.newlabel('WO_LAST')
        a(f's_cmp_eq_u32 s{sLAYER}, 3')
        a(f's_cbranch_scc1 {LAST}')
        a(f's_add_u32 s59, s58, s{sXFN}')
        for c in range(5):
            if c == 4: a('s_add_u32 s59, s59, 4096')
            a(f'buffer_store_dwordx2 v[{120+2*c}:{121+2*c}], v10, {srd(S_WS)}, s59 offen offset:{(c % 4) * 1024}')
        a(f'v_add_f32 v40, v{AC}, v{AC+1}')
        a(f'v_add_f32 v42, v{AC+2}, v{AC+3}')
        a(f'v_mul_f32 v41, v{AC}, v{AC}')
        a(f'v_mul_f32 v43, v{AC+1}, v{AC+1}')
        a(f'v_fmac_f32 v41, v{AC+2}, v{AC+2}')
        a(f'v_fmac_f32 v43, v{AC+3}, v{AC+3}')
        for k in range(4, 20, 2):
            a(f'v_add_f32 v40, v40, v{AC+k}')
            a(f'v_add_f32 v42, v42, v{AC+k+1}')
            a(f'v_fmac_f32 v41, v{AC+k}, v{AC+k}')
            a(f'v_fmac_f32 v43, v{AC+k+1}, v{AC+k+1}')
        a('v_add_f32 v40, v40, v42')
        a('v_add_f32 v41, v41, v43')
        a('v_mov_b32 v42, v40\nv_mov_b32 v43, v41')
        a('v_permlane16_swap_b32 v40, v42')
        a('v_permlane16_swap_b32 v41, v43')
        a('v_add_f32 v40, v40, v42\nv_add_f32 v41, v41, v43')
        a('v_mov_b32 v42, v40\nv_mov_b32 v43, v41')
        a('v_permlane32_swap_b32 v40, v42')
        a('v_permlane32_swap_b32 v41, v43')
        a('v_add_f32 v40, v40, v42\nv_add_f32 v41, v41, v43')
        a('s_lshl_b32 s60, s57, 10')
        a('s_lshl_b32 s61, s51, 3')
        a('s_add_u32 s60, s60, s61')
        a(f's_add_u32 s60, s60, s{sSTN}')
        a('v_lshlrev_b32 v42, 6, v1')
        a('s_mov_b64 exec, 0xffff')
        a(f'buffer_store_dwordx2 v[40:41], v42, {srd(S_WS)}, s60 offen')
        a('s_mov_b64 exec, -1')
        self.stash_writeback()
        a('s_waitcnt lgkmcnt(0)')
        a(f's_branch {H3}')
        a.label(LAST)
        a('s_mul_i32 s60, s57, 20480')
        a('s_mul_i32 s61, s51, 160')
        a('s_add_u32 s60, s60, s61')
        a('v_and_b32 v42, 15, v1')
        a('v_mul_u32_u24 v42, 1280, v42')
        a('v_lshrrev_b32 v43, 4, v1')
        a('v_lshlrev_b32 v43, 3, v43')
        a('v_add_u32 v42, v42, v43')
        for c in range(5):
            a(f'buffer_store_dwordx2 v[{120+2*c}:{121+2*c}], v42, {srd(S_OUT)}, s60 offen offset:{c*32}')
        a(f's_branch {H3}')
        a.label(H2)
        self.stash_writeback()
        a('s_waitcnt lgkmcnt(0)')
        a.label(H3)

    def set_layer_bases(self):
        a = self.a
        if self.args.noreuse:
            a(f's_mul_i32 s50, s{sLAYER}, {XF_SZ}')
            a(f's_add_u32 s{sXF}, s50, {WS_XF}')
            a(f's_add_u32 s{sXFN}, s{sXF}, {XF_SZ}')
            a(f's_add_u32 s{sOF}, s50, {WS_OF}')
            a(f's_mul_i32 s50, s{sLAYER}, {ST_SZ}')
            a(f's_add_u32 s{sST}, s50, {WS_ST}')
            a(f's_add_u32 s{sSTN}, s{sST}, {ST_SZ}')
            return
        a(f's_and_b32 s51, s{sLAYER}, 1')
        a(f's_mul_i32 s50, s51, {XF_SZ}')
        a(f's_add_u32 s{sXF}, s50, {WS_XF}')
        a(f's_sub_u32 s{sXFN}, {2*WS_XF + XF_SZ}, s{sXF}')
        a(f's_mov_b32 s{sOF}, {WS_OF}')
        a(f's_mul_i32 s50, s51, {ST_SZ}')
        a(f's_add_u32 s{sST}, s50, {WS_ST}')
        a(f's_sub_u32 s{sSTN}, {2*WS_ST + ST_SZ}, s{sST}')

    def build(self):
        a = self.a
        args = self.args
        if args.prof: a('v_mov_b32 v9, 0')
        self.stamp(0)
        if args.prof:
            a('s_memtime s[86:87]')
            a('s_waitcnt lgkmcnt(0)')
        self.entry()
        self.p0()
        self.stamp(1)
        def between0():
            self.colsum_raw_others()
        self.first_sync()
        self.setup_persistent()
        self.stamp(2)
        a('s_waitcnt vmcnt(0)')
        self.fstamp(59)
        a('v_and_b32 v12, 31, v1')
        a('v_lshlrev_b32 v12, 2, v12')
        a('s_mov_b64 exec, 0xffffffff')
        a(f'ds_add_f32 v12, v160 offset:{L_CS}')
        a(f'ds_add_f32 v12, v161 offset:{L_CS+128}')
        a('s_mov_b64 exec, -1')
        self.stash_writeback(mat=0)
        a('s_waitcnt lgkmcnt(0)')
        a('s_barrier')
        a(f'ds_read_b32 v{vCSA}, v12 offset:{L_CS}')
        a(f'ds_read_b32 v{vCSA+1}, v12 offset:{L_CS+128}')
        a(f'v_mov_b32 v11, {L_MODE}')
        a('ds_read_b32 v10, v11')
        a('s_waitcnt lgkmcnt(0)')
        a(f'v_readfirstlane_b32 s{sMODE}, v10')
        a.label('L_LAYER')
        self.set_layer_bases()
        self.qkv_main(packed=True)
        self.ln_fix(packed=True)
        L0 = a.newlabel('L0_CHK')
        a(f's_cmp_lg_u32 s{sLAYER}, 0')
        a(f's_cbranch_scc1 {L0}')
        L = self.if_wave('eq', 0)
        self.check_packs()
        a.label(L)
        a.label(L0)
        self.stamp(3, True)
        a.label('L_AFTERQKV')
        if args.stop == 'qkv':
            SK = a.newlabel('DBG')
            a(f's_cmp_lg_u32 s{sLAYER}, {args.layer}')
            a(f's_cbranch_scc1 {SK}')
            for r in range(16, 48): a(f'v_mul_f32 v{r}, v101, v{r}')
            self.dbg_dump(list(range(16, 48, 4)), 0)
            a('s_branch L_END')
            a.label(SK)
        a(f's_bitcmp1_b32 s{sLAYER}, 0')
        a('s_cbranch_scc1 L_BLAYER')
        self.epi_A()
        self.stamp(4, True)
        self.linear_attn()
        self.stamp(6, True)
        self.finalize_o(eps=True)
        LC = a.newlabel('CSB')
        a(f's_cmp_lg_u32 s{sLAYER}, 0')
        a(f's_cbranch_scc1 {LC}')
        self.stash_cs_sum(1)
        a.label(LC)
        a('s_branch L_ODONE')
        a.label('L_BLAYER')
        self.epi_B()
        L = self.if_wave('ge', 4)
        self.epi_B_q()
        a.label(L)
        self.stamp(4, True)
        self.cstamp(57)
        self.attn_B()
        self.cstamp(59)
        self.stamp(6, True)
        self.finalize_o(eps=False)
        L = self.if_wave('lt', 4)
        self.dma_wo(1, 0)
        a.label(L)
        self.stamp(7, True)
        self.lbar(poller=4, between=lambda: a('s_waitcnt vmcnt(0)'))
        a('s_branch L_BAR1DONE')
        a.label('L_ODONE')
        self.stamp(7, True)
        self.lbar(between=lambda: a('s_waitcnt vmcnt(0)'))
        a.label('L_BAR1DONE')
        self.stamp(8, True)
        if args.stop == 'o':
            a(f's_cmp_eq_u32 s{sLAYER}, {args.layer}')
            a('s_cbranch_scc1 L_END')
        self.wo_phase()
        self.stamp(10, True)
        a(f's_cmp_eq_u32 s{sLAYER}, 3')
        a('s_cbranch_scc1 L_FIN')
        L = self.if_wave('lt', 4)
        a('s_waitcnt vmcnt(0)')
        a.label(L)
        self.stamp(11, True)
        self.lbar(between=lambda: a('s_waitcnt vmcnt(0)'))
        self.stamp(12, True)
        if args.stop == 'x':
            a(f's_cmp_eq_u32 s{sLAYER}, {args.layer}')
            a('s_cbranch_scc1 L_END')
        a(f's_add_u32 s{sLAYER}, s{sLAYER}, 1')
        a('s_branch L_LAYER')
        a.label('L_FIN')
        a('s_waitcnt vmcnt(0)')
        self.stamp(51)
        if args.prof:
            a('s_memtime s[82:83]')
            a('s_waitcnt lgkmcnt(0)')
            a('s_sub_u32 s82, s82, s86')
            a('v_writelane_b32 v9, s82, 52')
        self.stamp_out()
        a('L_END:')
        a('s_endpgm')
        for name, st, mt in (('SUB_IMPORT1', 1, None), ('SUB_IMPORT1T', 1, self.args.maxtry), ('SUB_IMPORT2', 2, None)):
            a.label(name)
            a('s_nop 4')
            self.import_solo(st, mt)
            a('s_nop 4')
            a('s_setpc_b64 s[88:89]')
        a.label('L_CODE_END')
        body = a.finalize(verbose=True)
        hdr = open("header.txt").read() + f"""; generated by my generator script gen/gen2.py (hand-designed persistent kernel)
; @launch grid=(256,1,1) block=(512,1,1) lds={LDS_BYTES}
.amdgcn_target "amdgcn-amd-amdhsa--gfx950"
.text
.globl {KNAME}
.p2align 8
.type {KNAME},@function
{KNAME}:
"""
        ftr = f""".section .rodata,"a"
.p2align 6
.amdhsa_kernel {KNAME}
  .amdhsa_next_free_vgpr 256
  .amdhsa_next_free_sgpr 102
  .amdhsa_accum_offset 256
  .amdhsa_group_segment_fixed_size 0
  .amdhsa_kernarg_size 72
  .amdhsa_user_sgpr_count 2
  .amdhsa_user_sgpr_kernarg_segment_ptr 1
  .amdhsa_system_sgpr_workgroup_id_x 1
  .amdhsa_float_denorm_mode_32 3
  .amdhsa_float_denorm_mode_16_64 3
.end_amdhsa_kernel
"""
        return hdr + body + ftr

    def between0(self):
        pass

    def first_sync(self):
        a = self.a
        a('s_barrier')
        a(f's_add_u32 s{sEPOCH}, s{sEPOCH}, 1')
        L = self.if_wave('eq', 0)
        self.stamp(60)
        self.check_hello()
        self.stamp(61)
        G1 = a.newlabel('LB_GEN'); G2 = a.newlabel('LB_ST')
        a(f's_lshl_b32 s50, s{sJ}, 8')
        a(f's_add_u32 s50, s50, {WS_LFLAG}')
        a(f's_lshl_b32 s51, s{sH}, 2')
        a('s_add_u32 s51, s51, s50')
        a(f's_add_u32 s62, s{sEPOCH}, s{sNONCE}')
        a('v_mov_b32 v10, s62')
        a('v_mov_b32 v11, 0')
        a(f's_cmp_lg_u32 s{sMODE}, 0')
        a(f's_cbranch_scc1 {G1}')
        a('s_mov_b64 exec, 1')
        a(f'buffer_store_dword v10, v11, {srd(S_WS)}, s51 offen')
        a('s_mov_b64 exec, -1')
        a(f's_branch {G2}')
        a.label(G1)
        a('buffer_wbl2 sc1')
        a('s_waitcnt vmcnt(0)')
        a('s_mov_b64 exec, 1')
        a(f'buffer_store_dword v10, v11, {srd(S_WS)}, s51 offen sc1')
        a('s_mov_b64 exec, -1')
        a.label(G2)
        a(f'v_mov_b32 v10, s{sMODE}')
        a(f'v_mov_b32 v11, {L_MODE}')
        a('ds_write_b32 v11, v10')
        a('s_waitcnt lgkmcnt(0)')
        a.label(L)
        L = self.if_wave('ge', 1)
        L23 = a.newlabel('FS_23')
        a(f's_sub_u32 s50, s{sW}, 2')
        a('s_cmp_lt_u32 s50, 2')
        a(f's_cbranch_scc1 {L23}')
        a.label(L)
        self.poll_packA()
        self.stashA_load()
        LX = a.newlabel('FS_X')
        a(f's_branch {LX}')
        a.label(L23)
        self.poll_packA()
        self.stashA_load()
        self.p0_packs()
        a.label(LX)
        L = self.if_wave('eq', 0)
        a(f's_lshl_b32 s50, s{sJ}, 8')
        a(f's_add_u32 s50, s50, {WS_LFLAG}')
        a('v_and_b32 v11, 31, v1')
        a('v_lshlrev_b32 v11, 2, v11')
        self.poll('v11', 's50', 32, f's{sEPOCH}')
        G3 = a.newlabel('LB_NOINV')
        a(f's_cmp_eq_u32 s{sMODE}, 0')
        a(f's_cbranch_scc1 {G3}')
        a('buffer_inv sc1')
        a('s_waitcnt vmcnt(0)')
        a.label(G3)
        self.stamp(62)
        a.label(L)

if __name__ == '__main__':
    import struct
    ap = argparse.ArgumentParser()
    ap.add_argument('-o', default='out.s')
    ap.add_argument('--stop', default='')
    ap.add_argument('--layer', type=int, default=0)
    ap.add_argument('--spin', type=int, default=20000)
    ap.add_argument('--flayer', type=int, default=1)
    ap.add_argument('--cyc', action='store_true')
    ap.add_argument('--prof', action='store_true')
    ap.add_argument('--noreuse', action='store_true')
    ap.add_argument('--wosig', action='store_true')
    ap.add_argument('--nocodepf', action='store_true')
    ap.add_argument('--fq', action='store_true')
    ap.add_argument('--xring', type=int, default=8)
    ap.add_argument('--prio', type=int, default=0)
    ap.add_argument('--kvsleep', type=int, default=6)
    ap.add_argument('--nowo', action='store_true')
    ap.add_argument('--fb', action='store_true')
    ap.add_argument('--npre', type=int, default=8)
    ap.add_argument('--clk', action='store_true')
    ap.add_argument('--e_now', action='store_true')
    ap.add_argument('--e_m16', action='store_true')
    ap.add_argument('--e_nox', action='store_true')
    ap.add_argument('--fe', action='store_true')
    ap.add_argument('--maxtry', type=int, default=2)
    ap.add_argument('--noprepoll', action='store_true')
    ap.add_argument('--e_half', action='store_true')
    ap.add_argument('--e_dummy', action='store_true')
    ap.add_argument('--aprio', type=int, default=1)
    ap.add_argument('--fli', type=int, default=0)
    ap.add_argument('--notouch', action='store_true')
    ap.add_argument('--force_generic', action='store_true')
    ap.add_argument('--force_fallback', action='store_true')
    ap.add_argument('--T', type=float, default=56.0)
    args = ap.parse_args()
    args.t2hex = hex(struct.unpack('<I', struct.pack('<f', args.T * args.T))[0])
    g = G(args)
    open(args.o, 'w').write(g.build())
```

```python
import sys, argparse
sys.path.insert(0, 'gen')
from asmlib import Asm

KNAME = "interleave_layers__linear_attn_block__sliding_block__prompt_kernel"

WS_LFLAG = 0x0000
WS_XFLAG = 0x4000
WS_XF = 0x100000;  XF_SZ = 0x2B0000
RBS = 41984
OBS = 21504
WS_OF = 0x1000000
WS_ST = 0x2000000; ST_SZ = 0x20000
WS_KVX = 0x2200000; KVX_SZ = 0x600000
WS_KVP = 0x3000000; KVP_SZ = 0x100000
WS_PW = 0x4000000; PW_SZ = 81920
WS_PCS = 0x4800000
WS_PO = 0x4900000; PO_SZ = 102400
WS_DBG = 0x8000000

KIMG, VIMG = 0, 24576
L_MISC = 49152
L_CS = L_MISC + 1024
L_KN = L_MISC + 2048
L_KV = L_MISC + 4096
L_MODE = 61424
R_O = 61440
PWL = 81920
RW0 = 71424
WK, WQ, WV = RW0, RW0 + 30768, RW0 + 61536
TK, TQ, TV = 0, 4096, 8192
TBOFF = 12288
SCR = 0
TO = 24576
L_SIG = L_MISC + 3072
L_CNTA = L_MISC + 3080
L_CNTB = L_MISC + 3084
L_MD = L_MISC + 6144
LDS_BYTES = 163840

S_WS, S_X0, S_WQA, S_WOA, S_WQB, S_WOB, S_OUT, S_DBG = 4, 8, 12, 16, 20, 24, 28, 32
sJ, sH, sW, sMODE, sDEAD, sEPOCH, sLAYER, sRB = 36, 37, 38, 39, 40, 41, 42, 43
sLO32 = 44
sXF, sOF, sST = 46, 47, 48
sXCC = 49
sXFN, sSTN = 90, 91
sNONCE = 93
sNEED = 96
sSH = 97
WS_GXCC = 0x2000
WS_XKN = 0x8000
L_NONCE = 61428
LO = f's[{sLO32}:{sLO32+1}]'

def srd(n): return f's[{n}:{n+3}]'

QUADS = {
    0: [(('q', 0), ('q', 1)), (('q', 2), ('q', 3)), (('q', 4), ('q', 5)), (('k', 4), ('k', 3))],
    1: [(('k', 0), ('k', 1)), (('v', 0), ('v', 1)), (('v', 2), ('v', 3)), (('k', 2), ('v', 4))],
}
def quad_off(sec, i, bases):
    bk, bq, bv = bases
    if sec == 'k': return bk + (i + 1) * 8
    if sec == 'q': return bq + i * 8
    return bv + i * 8

vCSA, vCSB = 188, 190
vPI = [4, 5, 6, 7, 8]
vPA = [176, 177, 178]
vPO = [179, 180, 181]
def stash_reg(mat, i):
    if mat == 0: return 192 + 4 * i
    return 144 + 4 * i if i < 4 else 232 + 4 * (i - 4)

MF32 = 'v_mfma_f32_32x32x16_bf16'
MF16 = 'v_mfma_f32_16x16x32_bf16'

class VQ:
    def __init__(self): self.q = []
    def push(self, tag): self.q.append(tag)
    def cnt(self, tag):
        i = max(k for k, t in enumerate(self.q) if t == tag)
        return min(63, len(self.q) - 1 - i)

class G:
    def __init__(self, args):
        self.a = Asm(); self.args = args

    def stamp(self, idx, per_layer=False):
        if not self.args.prof: return
        a = self.a
        a('s_memtime s[82:83]' if self.args.cyc else 's_memrealtime s[82:83]')
        a('s_waitcnt lgkmcnt(0)')
        if per_layer:
            a(f's_mul_i32 s84, s{sLAYER}, 12')
            a(f's_add_u32 s84, s84, {idx}')
            a('s_mov_b32 m0, s84')
            a('s_nop 1')
            a('v_writelane_b32 v9, s82, m0')
        else:
            a(f'v_writelane_b32 v9, s82, {idx}')
    def cstamp(self, idx):
        if not (self.args.prof and self.args.clk): return
        a = self.a
        SK = a.newlabel('CST')
        a(f's_cmp_lg_u32 s{sLAYER}, {self.args.flayer}')
        a(f's_cbranch_scc1 {SK}')
        a('s_memtime s[82:83]')
        a('s_waitcnt lgkmcnt(0)')
        a(f'v_writelane_b32 v9, s82, {idx}')
        a('s_memrealtime s[82:83]')
        a('s_waitcnt lgkmcnt(0)')
        a(f'v_writelane_b32 v9, s82, {idx+1}')
        a.label(SK)
    def fstamp(self, idx):
        if not self.args.prof or self.args.clk: return
        a = self.a
        SK = a.newlabel('FST')
        a(f's_cmp_lg_u32 s{sLAYER}, {self.args.flayer}')
        a(f's_cbranch_scc1 {SK}')
        self.stamp(idx)
        a.label(SK)
    def stamp_out(self):
        if not self.args.prof: return
        a = self.a
        a('s_lshl_b32 s50, s2, 3')
        a(f's_add_u32 s50, s50, s{sW}')
        a('s_lshl_b32 s50, s50, 8')
        a(f's_add_u32 s50, s50, {WS_DBG + 0x400000}')
        a('v_lshlrev_b32 v10, 2, v1')
        a(f'buffer_store_dword v9, v10, {srd(S_WS)}, s50 offen')
        a('s_waitcnt vmcnt(0)')
    def dbg_dump(self, regs, slot):
        a = self.a
        n = len(regs)
        a(f's_mul_i32 s50, s2, {8*n*1024}')
        a(f's_mul_i32 s51, s{sW}, {n*1024}')
        a('s_add_u32 s50, s50, s51')
        a(f's_add_u32 s50, s50, {WS_DBG + slot}')
        for i, r in enumerate(regs):
            a(f'buffer_store_dwordx4 v[{r}:{r+3}], v2, {srd(S_WS)}, s50 offen')
            a('s_add_u32 s50, s50, 1024')
        a('s_waitcnt vmcnt(0)')

    def if_wave(self, cond, val):
        a = self.a
        L = a.newlabel('W')
        inv = {'eq': 's_cmp_lg_u32', 'lt': 's_cmp_ge_u32', 'ge': 's_cmp_lt_u32'}[cond]
        a(f'{inv} s{sW}, {val}')
        a(f's_cbranch_scc1 {L}')
        return L

    def tr_bases(self, d0, d1, bases, tmp=10):
        a = self.a
        t, u, w = f'v{tmp}', f'v{tmp+1}', f'v{tmp+2}'
        a(f'v_bfe_u32 {t}, v1, 4, 1')
        a(f'v_lshlrev_b32 {t}, 2, {t}')
        a(f'v_and_b32 {u}, 3, v1')
        a(f'v_add_u32 {t}, {t}, {u}')
        for B, d in ((0, d0), (1, d1)):
            offs = [quad_off(*QUADS[B][x >> 1][x & 1], bases) for x in range(8)]
            a(f'v_mov_b32 v{d}, {offs[0]}')
            for x in range(1, 8):
                a(f'v_cmp_eq_u32 vcc, {x}, {t}')
                a(f'v_mov_b32 {w}, {offs[x]}')
                a(f'v_cndmask_b32 v{d}, v{d}, {w}, vcc')
        a(f'v_bfe_u32 {u}, v1, 2, 2')
        a(f'v_mul_u32_u24 {u}, 192, {u}')
        a(f'v_lshrrev_b32 {w}, 5, v1')
        a(f'v_mul_u32_u24 {w}, 96, {w}')
        a(f'v_add_u32 {u}, {u}, {w}')
        a(f'v_add_u32 v{d0}, v{d0}, {u}')
        a(f'v_add_u32 v{d1}, v{d1}, {u}')

    def raw_patterns(self):
        a = self.a
        a(f's_mul_i32 s50, s{sH}, 40')
        for u in range(3):
            d = f'v{4+u}'
            a(f'v_add_u32 v10, {64*u}, v1')
            a('v_mul_u32_u24 v11, 21846, v10')
            a('v_lshrrev_b32 v11, 16, v11')
            a('v_mul_u32_u24 v12, 3, v11')
            a('v_sub_u32 v12, v10, v12')
            a('v_lshlrev_b32 v12, 4, v12')
            a('v_and_b32 v13, 0x30, v11')
            a('v_and_b32 v14, 3, v11')
            a('v_lshlrev_b32 v14, 2, v14')
            a('v_add_u32 v13, v13, v14')
            a('v_bfe_u32 v14, v11, 2, 2')
            a('v_add_u32 v13, v13, v14')
            a('v_mul_u32_u24 v13, 3840, v13')
            a('v_add_u32 v13, v13, v12')
            a(f'v_add_u32 {d}, s50, v13')

    def entry(self):
        a = self.a
        a('s_cmp_ge_u32 s2, 256')
        a('s_cbranch_scc1 L_END')
        a('s_load_dwordx16 s[64:79], s[0:1], 0')
        a('s_load_dwordx2 s[80:81], s[0:1], 64')
        a(f's_getreg_b32 s{sXCC}, hwreg(HW_REG_XCC_ID, 0, 4)')
        if self.args.permute:
            a('s_lshr_b32 s50, s2, 5')
            a('s_and_b32 s51, s2, 31')
            a('s_lshl_b32 s51, s51, 3')
            a('s_add_u32 s2, s50, s51')
        a(f's_and_b32 s{sJ}, s2, 7')
        a(f's_lshr_b32 s{sH}, s2, 3')
        a('v_lshrrev_b32 v3, 6, v0')
        a('v_and_b32 v1, 63, v0')
        a(f'v_readfirstlane_b32 s{sW}, v3')
        a('v_lshlrev_b32 v2, 4, v1')
        a(f's_mov_b32 s{sLO32}, -1')
        a(f's_mov_b32 s{sLO32+1}, 0')
        a(f's_mov_b32 s{sMODE}, 0')
        a(f's_mov_b32 s{sDEAD}, 0')
        a(f's_mov_b32 s{sEPOCH}, 0')
        a(f's_mov_b32 s{sLAYER}, 0')
        a(f's_sub_u32 s50, 7, s{sW}')
        a(f's_sub_u32 s51, s{sW}, 4')
        a(f's_cmp_lt_u32 s{sW}, 4')
        a(f's_cselect_b32 s{sRB}, s50, s51')
        a(f's_add_u32 s{sSH}, s{sW}, s{sJ}')
        a(f's_and_b32 s{sSH}, s{sSH}, 7')
        a('s_waitcnt lgkmcnt(0)')
        def mk(dst, src, size):
            a(f's_mov_b32 s{dst}, s{src}')
            a(f's_and_b32 s{dst+1}, s{src+1}, 0xffff')
            a(f's_mov_b32 s{dst+2}, {size}')
            a(f's_mov_b32 s{dst+3}, 0x20000')
        mk(S_DBG, 78, 256)
        a(f's_mov_b32 s{sNONCE}, 0')
        self.nonce_create()
        mk(S_X0, 64, 2621440)
        mk(S_WS, 80, 0x10000000)
        mk(S_WQA, 66, 2457600)
        L = self.if_wave('eq', 1)
        self.raw_patterns()
        self.raw_part_dma(S_WQA, 0)
        a.label(L)
        self.p0_xloads()
        self.raw_patterns()
        mk(S_WOA, 68, 819200)
        mk(S_WQB, 72, 2457600); mk(S_WOB, 74, 819200); mk(S_OUT, 76, 2621440)

    def nonce_create(self):
        a = self.a
        E = a.newlabel('NC_E')
        a(f's_or_b32 s50, s2, s{sW}')
        a('s_cmp_lg_u32 s50, 0')
        a(f's_cbranch_scc1 {E}')
        a('s_memrealtime s[50:51]')
        a('s_waitcnt lgkmcnt(0)')
        a('s_mul_i32 s50, s50, 0x9E3779B1')
        a('s_mul_i32 s51, s51, 0x85EBCA77')
        a('s_xor_b32 s50, s50, s51')
        a('s_lshr_b32 s51, s50, 15')
        a('s_xor_b32 s50, s50, s51')
        a('s_mul_i32 s50, s50, 0x2C1B3C6D')
        a('s_andn2_b32 s50, s50, 0x7f')
        a(f's_or_b32 s{sNONCE}, s50, 0x40')
        a(f'v_mov_b32 v10, s{sNONCE}')
        a('v_lshlrev_b32 v11, 6, v1')
        a('s_mov_b64 exec, 0xf')
        a(f'buffer_store_dword v10, v11, {srd(S_DBG)}, 0 offen sc1')
        a('s_mov_b64 exec, -1')
        a.label(E)

    def init_flags(self):
        a = self.a
        G = a.newlabel('NON_GET'); D = a.newlabel('NON_DONE'); L = a.newlabel('NON_POLL')
        a('s_cmp_lg_u32 s2, 0')
        a(f's_cbranch_scc0 {D}')
        a.label(G)
        a('s_mov_b32 s60, 0')
        a(f's_and_b32 s50, s{sH}, 3')
        a('s_lshl_b32 s50, s50, 6')
        a('v_mov_b32 v11, s50')
        a('s_waitcnt vmcnt(0)')
        a.label(L)
        a(f'buffer_load_dword v12, v11, {srd(S_DBG)}, 0 offen sc1')
        a('s_waitcnt vmcnt(0)')
        a(f'v_readfirstlane_b32 s{sNONCE}, v12')
        a(f's_cmp_lg_u32 s{sNONCE}, 0')
        a(f's_cbranch_scc1 {D}')
        a('s_sleep 4')
        a('s_add_u32 s60, s60, 1')
        a(f's_cmp_lt_u32 s60, {self.args.spin}')
        a(f's_cbranch_scc1 {L}')
        a(f's_mov_b32 s{sDEAD}, 1')
        a.label(D)
        a(f's_lshl_b32 s50, s{sJ}, 8')
        a(f's_lshl_b32 s51, s{sH}, 2')
        a('s_add_u32 s50, s50, s51')
        a(f's_add_u32 s50, s50, {WS_GXCC}')
        a(f's_and_b32 s51, s{sXCC}, 7')
        a(f's_add_u32 s51, s51, s{sNONCE}')
        a('s_add_u32 s51, s51, 8')
        a('v_mov_b32 v10, s51')
        a('v_mov_b32 v11, 0')
        a('s_mov_b64 exec, 1')
        a(f'buffer_store_dword v10, v11, {srd(S_WS)}, s50 offen sc1')
        a('s_mov_b64 exec, -1')
        a(f'v_mov_b32 v10, s{sNONCE}')
        a(f'v_mov_b32 v11, {L_NONCE}')
        a('ds_write_b32 v11, v10')

    def dma_raw(self, srdW, items):
        a = self.a
        base = {'k': WK, 'q': WQ, 'v': WV}
        soff = {'k': 1280 - 8, 'q': 0, 'v': 2560}
        for sec, Gi in items:
            a(f's_add_u32 s55, s92, {Gi}')
            a('s_cmp_ge_u32 s55, 10')
            a('s_cselect_b32 s56, 10, 0')
            a('s_sub_u32 s55, s55, s56')
            a(f's_mul_i32 s56, s55, {64*3840}')
            a(f's_add_u32 s50, s56, {soff[sec]}')
            a('s_mul_i32 s55, s55, 3072')
            for u in range(3):
                a(f's_add_u32 m0, s55, {base[sec] + u*1024}')
                a(f'buffer_load_dwordx4 v{4+u}, {srd(srdW)}, s50 offen lds')

    def dma_packed(self, nw, w0):
        a = self.a
        per = 80 // nw
        a(f's_add_u32 s50, s{sLAYER}, 1')
        a('s_and_b32 s50, s50, 1')
        a('s_lshl_b32 s50, s50, 5')
        a(f's_add_u32 s50, s50, s{sH}')
        a(f's_mul_i32 s50, s50, {PW_SZ}')
        a(f's_sub_u32 s51, s{sW}, {w0}')
        a(f's_mul_i32 s51, s51, {per*1024}')
        a('s_add_u32 s50, s50, s51')
        a(f's_add_u32 s50, s50, {WS_PW}')
        a(f's_add_u32 s51, s51, {PWL}')
        for i in range(per):
            a(f's_add_u32 m0, s51, {i*1024}')
            if i % 4 == 0 and i > 0: a('s_add_u32 s50, s50, 4096')
            a(f'buffer_load_dwordx4 v2, {srd(S_WS)}, s50 offen sc1 lds') if i % 4 == 0 else None
            if i % 4 != 0:
                a(f's_add_u32 s52, s50, {(i%4)*1024}')
                a(f'buffer_load_dwordx4 v2, {srd(S_WS)}, s52 offen sc1 lds')

    def dma_wo(self, mat, w0):
        a = self.a
        a(f's_and_b32 s50, s{sH}, 7')
        a(f's_add_u32 s50, s50, {mat*8}')
        a(f's_mul_i32 s50, s50, {PO_SZ}')
        a(f's_sub_u32 s51, s{sW}, {w0}')
        a('s_mul_i32 s51, s51, 25600')
        a('s_add_u32 s50, s50, s51')
        a(f's_add_u32 s50, s50, {WS_PO}')
        a(f's_add_u32 s51, s51, {R_O}')
        for i in range(25):
            a(f's_add_u32 m0, s51, {i*1024}')
            a(f's_add_u32 s52, s50, {i*1024}')
            a(f'buffer_load_dwordx4 v2, {srd(S_WS)}, s52 offen sc1 lds')

    def touch_w(self, w0, nw):
        a = self.a
        E = a.newlabel('TW_E')
        a(f's_cmp_eq_u32 s{sLAYER}, 3')
        a(f's_cbranch_scc1 {E}')
        a(f's_add_u32 s50, s{sLAYER}, 1')
        a('s_and_b32 s50, s50, 1')
        a('s_lshl_b32 s50, s50, 5')
        a(f's_add_u32 s50, s50, s{sH}')
        a(f's_mul_i32 s50, s50, {PW_SZ}')
        a(f's_add_u32 s50, s50, {WS_PW}')
        a('v_lshlrev_b32 v11, 7, v1')
        per = -(-10 // nw)
        for t in range(per):
            SK = a.newlabel('TW_SK')
            a(f's_sub_u32 s51, s{sW}, {w0}')
            a(f's_add_u32 s51, s51, {t*nw}')
            a('s_cmp_ge_u32 s51, 10')
            a(f's_cbranch_scc1 {SK}')
            a(f's_add_u32 s51, s51, s{sJ}')
            a('s_cmp_ge_u32 s51, 10')
            a('s_cselect_b32 s52, 10, 0')
            a('s_sub_u32 s51, s51, s52')
            a('s_lshl_b32 s51, s51, 13')
            a('s_add_u32 s51, s51, s50')
            a(f'buffer_load_dword v{250+t}, v11, {srd(S_WS)}, s51 offen sc1')
            a.label(SK)
        a.label(E)

    def check_packs(self):
        a = self.a
        a(f's_lshl_b32 s54, s{sH}, 3')
        self.xflag_addr('s52', 's54')
        a('v_and_b32 v11, 7, v1')
        a('v_lshlrev_b32 v11, 6, v11')
        a('v_add_u32 v11, 16, v11')
        a('s_mov_b32 s53, 1')
        self.poll('v11', 's52', 8, 's53')
        for mat in range(2):
            a(f's_and_b32 s50, s{sH}, 7')
            a(f's_add_u32 s50, s50, {mat*8}')
            a('s_mul_i32 s53, s50, 20')
            a('v_min_u32 v11, 19, v1')
            a('v_add_u32 v11, s53, v11')
            a('v_and_b32 v11, 255, v11')
            a('v_lshlrev_b32 v11, 6, v11')
            a(f's_mov_b32 s52, {WS_XFLAG + 24}')
            a('s_mov_b32 s53, 1')
            self.poll('v11', 's52', 20, 's53')

    def lds_signal(self, val_s):
        a = self.a
        a(f'v_mov_b32 v11, {L_SIG}')
        a(f'v_mov_b32 v12, {val_s}')
        a('ds_write_b32 v11, v12')
    def lds_wait(self, val_s):
        a = self.a
        L = a.newlabel('LW'); D = a.newlabel('LWD')
        a(f'v_mov_b32 v11, {L_SIG}')
        a('s_mov_b32 s60, 0')
        a.label(L)
        a('ds_read_b32 v12, v11')
        a('s_waitcnt lgkmcnt(0)')
        a('v_readfirstlane_b32 s61, v12')
        a(f's_cmp_eq_u32 s61, {val_s}')
        a(f's_cbranch_scc1 {D}')
        a('s_sleep 1')
        a('s_add_u32 s60, s60, 1')
        a('s_cmp_lt_u32 s60, 0x100000')
        a(f's_cbranch_scc1 {L}')
        a.label(D)

    def poll(self, vaddr, soff, nlanes, target_s, tmp='v12'):
        a = self.a
        L = a.newlabel('POLL'); D = a.newlabel('POLLD')
        a(f's_cmp_lg_u32 s{sDEAD}, 0')
        a(f's_cbranch_scc1 {D}')
        a('s_mov_b32 s60, 0')
        a(f's_add_u32 s63, s{sNONCE}, {target_s}')
        mask = (1 << nlanes) - 1
        a.label(L)
        a(f'buffer_load_dword {tmp}, {vaddr}, {srd(S_WS)}, {soff} offen sc1')
        a('s_waitcnt vmcnt(0)')
        a(f'v_subrev_u32 {tmp}, s63, {tmp}')
        a(f'v_cmp_lt_u32 vcc, 7, {tmp}')
        a(f's_and_b32 s61, vcc_lo, {hex(mask & 0xffffffff)}')
        a('s_cmp_eq_u32 s61, 0')
        a(f's_cbranch_scc1 {D}')
        a('s_add_u32 s60, s60, 1')
        a(f's_cmp_lt_u32 s60, {self.args.spin}')
        a(f's_cbranch_scc1 {L}')
        a(f's_mov_b32 s{sDEAD}, 1')
        a.label(D)

    def check_hello(self):
        a = self.a
        L = a.newlabel('HELLO'); D = a.newlabel('HELLOD')
        a('s_mov_b32 s60, 0')
        a('v_and_b32 v11, 31, v1')
        a('v_lshlrev_b32 v11, 2, v11')
        a(f's_lshl_b32 s50, s{sJ}, 8')
        a(f's_add_u32 s50, s50, {WS_GXCC}')
        a(f's_add_u32 s63, s{sNONCE}, 8')
        a.label(L)
        a(f'buffer_load_dword v12, v11, {srd(S_WS)}, s50 offen sc1')
        a('s_waitcnt vmcnt(0)')
        a('v_subrev_u32 v12, s63, v12')
        a('v_cmp_lt_u32 vcc, 7, v12')
        a('s_cmp_eq_u64 vcc, 0')
        a(f's_cbranch_scc1 {D}')
        a('s_add_u32 s60, s60, 1')
        a(f's_cmp_lt_u32 s60, {self.args.spin}')
        a(f's_cbranch_scc1 {L}')
        a(f's_mov_b32 s{sDEAD}, 1')
        a.label(D)
        a(f's_and_b32 s51, s{sXCC}, 7')
        a('v_cmp_ne_u32 vcc, s51, v12')
        a('s_cmp_lg_u64 vcc, 0')
        a(f's_cselect_b32 s{sMODE}, 1, 0')
        if self.args.force_generic:
            a(f's_mov_b32 s{sMODE}, 1')

    def lbar(self, first=False, between=None, poller=0, after_flag=None):
        a = self.a
        a('s_barrier')
        a(f's_add_u32 s{sEPOCH}, s{sEPOCH}, 1')
        W0 = a.newlabel('LB_NOT0'); E = a.newlabel('LB_END')
        a(f's_cmp_lg_u32 s{sW}, {poller}')
        a(f's_cbranch_scc1 {W0}')
        if first:
            self.stamp(60)
            self.check_hello()
            self.stamp(61)
        G1 = a.newlabel('LB_GEN'); G2 = a.newlabel('LB_ST')
        a(f's_lshl_b32 s50, s{sJ}, 8')
        a(f's_add_u32 s50, s50, {WS_LFLAG}')
        a(f's_lshl_b32 s51, s{sH}, 2')
        a('s_add_u32 s51, s51, s50')
        a(f's_add_u32 s62, s{sEPOCH}, s{sNONCE}')
        a('v_mov_b32 v10, s62')
        a('v_mov_b32 v11, 0')
        a(f's_cmp_lg_u32 s{sMODE}, 0')
        a(f's_cbranch_scc1 {G1}')
        a('s_mov_b64 exec, 1')
        a(f'buffer_store_dword v10, v11, {srd(S_WS)}, s51 offen')
        a('s_mov_b64 exec, -1')
        a(f's_branch {G2}')
        a.label(G1)
        a('buffer_wbl2 sc1')
        a('s_waitcnt vmcnt(0)')
        a('s_mov_b64 exec, 1')
        a(f'buffer_store_dword v10, v11, {srd(S_WS)}, s51 offen sc1')
        a('s_mov_b64 exec, -1')
        a.label(G2)
        if after_flag: after_flag()
        a('v_and_b32 v11, 31, v1')
        a('v_lshlrev_b32 v11, 2, v11')
        self.poll('v11', 's50', 32, f's{sEPOCH}')
        if after_flag: a('s_waitcnt lgkmcnt(0)')
        if first: self.stamp(62)
        G3 = a.newlabel('LB_NOINV')
        a(f's_cmp_eq_u32 s{sMODE}, 0')
        a(f's_cbranch_scc1 {G3}')
        a('buffer_inv sc1')
        a('s_waitcnt vmcnt(0)')
        a.label(G3)
        if first:
            a(f'v_mov_b32 v10, s{sMODE}')
            a(f'v_mov_b32 v11, {L_MODE}')
            a('ds_write_b32 v11, v10')
            a('s_waitcnt lgkmcnt(0)')
        a(f's_branch {E}')
        a.label(W0)
        if between: between()
        a.label(E)
        a('s_barrier')
        if first:
            a(f'v_mov_b32 v11, {L_MODE}')
            a('ds_read_b32 v10, v11')
            a('s_waitcnt lgkmcnt(0)')
            a(f'v_readfirstlane_b32 s{sMODE}, v10')

    def xflag_addr(self, dst, wg_s):
        a = self.a
        a(f's_lshl_b32 {dst}, {wg_s}, 6')
        a(f's_add_u32 {dst}, {dst}, {WS_XFLAG}')

    def set_xflag(self, word, val_s, saddr='s52', vt=('v11', 'v12')):
        a = self.a
        self.xflag_addr(saddr, 's2')
        if isinstance(word, int): a(f's_add_u32 {saddr}, {saddr}, {word*4}')
        else: a(f's_add_u32 {saddr}, {saddr}, {word}')
        a(f's_add_u32 s63, s{sNONCE}, {val_s}')
        a(f'v_mov_b32 {vt[0]}, s63')
        a(f'v_mov_b32 {vt[1]}, 0')
        a('s_mov_b64 exec, 1')
        a(f'buffer_store_dword {vt[0]}, {vt[1]}, {srd(S_WS)}, {saddr} offen sc1')
        a('s_mov_b64 exec, -1')

    def pack5(self, vb0, vb1, imm0, mat, with_cs, fb=16):
        a = self.a
        a(f's_add_u32 s50, s{sH}, {mat*32}')
        a(f's_mul_i32 s50, s50, {PW_SZ}')
        a(f's_mul_i32 s51, s{sJ}, {5*2048}')
        a('s_add_u32 s50, s50, s51')
        a(f's_add_u32 s50, s50, {WS_PW}')
        for i in range(5):
            s = fb + 8 * i
            o = imm0(i)
            a(f'ds_read_b64_tr_b16 v[{s}:{s+1}], {vb0} offset:{o}')
            a(f'ds_read_b64_tr_b16 v[{s+2}:{s+3}], {vb0} offset:{o+48}')
            a(f'ds_read_b64_tr_b16 v[{s+4}:{s+5}], {vb1} offset:{o}')
            a(f'ds_read_b64_tr_b16 v[{s+6}:{s+7}], {vb1} offset:{o+48}')
        a('s_mov_b32 s74, 0x00f00000')
        a('s_mov_b32 s75, 0x00f00000')
        a('v_mov_b32 v104, 0')
        a('s_waitcnt lgkmcnt(0)')
        for i in range(5):
            s = fb + 8 * i
            for r in range(4): a(f'v_cndmask_b32 v{s+r}, v{s+r}, v104, s[74:75]')
        for i in range(5):
            s = fb + 8 * i
            a(f'buffer_store_dwordx4 v[{s}:{s+3}], v2, {srd(S_WS)}, s50 offen sc1')
            a(f'buffer_store_dwordx4 v[{s+4}:{s+7}], v2, {srd(S_WS)}, s50 offen offset:1024 sc1')
            a('s_add_u32 s50, s50, 2048')
        if with_cs:
            for r in range(108, 112): a(f'v_mov_b32 v{r}, 0x3f803f80')
            for i in range(5):
                s = fb + 8 * i
                a(f'{MF32} v[112:127], v[108:111], v[{s}:{s+3}], {"0" if i == 0 else "v[112:127]"}')
                a(f'{MF32} v[128:143], v[108:111], v[{s+4}:{s+7}], {"0" if i == 0 else "v[128:143]"}')
            a('v_mov_b32 v104, v112')
            a('v_mov_b32 v105, v128')
            self.store_cs(mat, 104)

    def store_cs(self, mat, r):
        a = self.a
        a(f's_add_u32 s50, s{sH}, {mat*32}')
        a('s_lshl_b32 s50, s50, 3')
        a(f's_add_u32 s50, s50, s{sJ}')
        a('s_lshl_b32 s50, s50, 8')
        a(f's_add_u32 s50, s50, {WS_PCS}')
        a('v_lshlrev_b32 v12, 3, v1')
        a('s_mov_b64 exec, 0xffffffff')
        a(f'buffer_store_dwordx2 v[{r}:{r+1}], v12, {srd(S_WS)}, s50 offen sc1')
        a('s_mov_b64 exec, -1')

    def stash_writeback(self, mat=None):
        a = self.a
        if mat is not None:
            a(f's_mul_i32 s62, s{sSH}, 10240')
            a(f's_add_u32 s62, s62, {PWL}')
            a('v_add_u32 v13, s62, v2')
            for i in range(10):
                r = stash_reg(mat, i)
                a(f'ds_write_b128 v13, v[{r}:{r+3}] offset:{i*1024}')
            return
        E = a.newlabel('SW_E'); LA = a.newlabel('SW_A')
        a(f's_cmp_eq_u32 s{sLAYER}, 3')
        a(f's_cbranch_scc1 {E}')
        a(f's_mul_i32 s62, s{sSH}, 10240')
        a(f's_add_u32 s62, s62, {PWL}')
        a('v_add_u32 v13, s62, v2')
        a(f's_bitcmp1_b32 s{sLAYER}, 0')
        a(f's_cbranch_scc1 {LA}')
        for i in range(10):
            r = stash_reg(1, i)
            a(f'ds_write_b128 v13, v[{r}:{r+3}] offset:{i*1024}')
        a(f's_branch {E}')
        a.label(LA)
        for i in range(10):
            r = stash_reg(0, i)
            a(f'ds_write_b128 v13, v[{r}:{r+3}] offset:{i*1024}')
        a.label(E)

    def stash_load(self, mat):
        a = self.a
        a(f's_add_u32 s50, s{sH}, {32*mat}')
        a(f's_mul_i32 s50, s50, {PW_SZ}')
        a(f's_mul_i32 s51, s{sSH}, 10240')
        a('s_add_u32 s50, s50, s51')
        a(f's_add_u32 s50, s50, {WS_PW}')
        for i in range(10):
            r = stash_reg(mat, i)
            if i % 4 == 0 and i > 0: a('s_add_u32 s50, s50, 4096')
            a(f'buffer_load_dwordx4 v[{r}:{r+3}], v2, {srd(S_WS)}, s50 offen offset:{(i%4)*1024} sc1')
        a('v_and_b32 v11, 31, v1')
        a('v_lshlrev_b32 v11, 3, v11')
        a(f's_add_u32 s52, s{sH}, {32*mat}')
        a('s_lshl_b32 s52, s52, 11')
        a(f's_add_u32 s52, s52, {WS_PCS}')
        for j in range(8):
            a(f'buffer_load_dwordx2 v[{160+2*j}:{161+2*j}], v11, {srd(S_WS)}, s52 offen offset:{j*256} sc1')

    def stash_cs_sum(self, mat):
        a = self.a
        d = vCSA if mat == 0 else vCSB
        a(f'v_add_f32 v{d}, v160, v162')
        a(f'v_add_f32 v{d+1}, v161, v163')
        for j in range(2, 8):
            a(f'v_add_f32 v{d}, v{d}, v{160+2*j}')
            a(f'v_add_f32 v{d+1}, v{d+1}, v{161+2*j}')

    def wait_hello(self):
        a = self.a
        L = a.newlabel('WH'); D = a.newlabel('WHD')
        a('s_mov_b32 s60, 0')
        a('v_lshlrev_b32 v11, 2, v1')
        a.label(L)
        a(f'buffer_load_dword v12, v11, {srd(S_DBG)}, 0 offen sc1')
        a('s_waitcnt vmcnt(0)')
        a('v_and_b32 v13, 0x80808080, v12')
        a('v_cmp_ne_u32 vcc, 0x80808080, v13')
        a('s_cmp_eq_u64 vcc, 0')
        a(f's_cbranch_scc1 {D}')
        a('s_sleep 2')
        a('s_add_u32 s60, s60, 1')
        a(f's_cmp_lt_u32 s60, {self.args.spin}')
        a(f's_cbranch_scc1 {L}')
        a(f's_mov_b32 s{sDEAD}, 1')
        a.label(D)

    def poll_packA(self):
        a = self.a
        a(f's_lshl_b32 s54, s{sH}, 3')
        a(f's_add_u32 s54, s54, s{sSH}')
        self.xflag_addr('s52', 's54')
        a('v_mov_b32 v11, 20')
        a('s_mov_b32 s53, 1')
        self.poll('v11', 's52', 1, 's53')

    def stashA_load(self):
        a = self.a
        a(f's_mul_i32 s50, s{sH}, {PW_SZ}')
        a(f's_mul_i32 s51, s{sSH}, 10240')
        a('s_add_u32 s50, s50, s51')
        a(f's_add_u32 s50, s50, {WS_PW}')
        for i in range(10):
            r = stash_reg(0, i)
            if i % 4 == 0 and i > 0: a('s_add_u32 s50, s50, 4096')
            a(f'buffer_load_dwordx4 v[{r}:{r+3}], v2, {srd(S_WS)}, s50 offen offset:{(i%4)*1024} sc1')
        a('v_and_b32 v11, 31, v1')
        a('v_lshlrev_b32 v11, 3, v11')
        a(f's_lshl_b32 s52, s{sH}, 3')
        a(f's_add_u32 s52, s52, s{sSH}')
        a('s_lshl_b32 s52, s52, 8')
        a(f's_add_u32 s52, s52, {WS_PCS}')
        a(f'buffer_load_dwordx2 v[160:161], v11, {srd(S_WS)}, s52 offen sc1')

    def p0_xloads(self):
        a = self.a
        if not self.args.noreuse:
            L4 = self.if_wave('eq', 4)
            a(f's_lshl_b32 s52, s{sJ}, 3')
            a(f's_lshr_b32 s53, s{sH}, 2')
            a('s_add_u32 s52, s52, s53')
            a(f's_mul_i32 s52, s52, {RBS}')
            a(f's_and_b32 s53, s{sH}, 3')
            a('s_lshl_b32 s53, s53, 7')
            a('s_add_u32 s52, s52, s53')
            a(f's_add_u32 s52, s52, {WS_XF}')
            a('v_lshlrev_b32 v30, 9, v1')
            a(f'buffer_load_dword v31, v30, {srd(S_WS)}, s52 offen')
            a('s_add_u32 s52, s52, 32768')
            a('s_mov_b64 exec, 0xffff')
            a(f'buffer_load_dword v31, v30, {srd(S_WS)}, s52 offen')
            a(f's_lshl_b32 s52, s{sJ}, 14')
            a(f's_lshl_b32 s53, s{sH}, 9')
            a('s_add_u32 s52, s52, s53')
            a(f's_add_u32 s52, s52, {WS_ST}')
            a('v_lshlrev_b32 v30, 7, v1')
            a('s_mov_b64 exec, 0xf')
            a(f'buffer_load_dword v31, v30, {srd(S_WS)}, s52 offen')
            a('s_mov_b64 exec, -1')
            a.label(L4)
        if not self.args.nocodepf:
            L7 = self.if_wave('eq', 7)
            LC = a.newlabel('CPF')
            a(f's_cmp_ge_u32 s{sH}, 6')
            a(f's_cbranch_scc1 {LC}')
            a('s_getpc_b64 s[56:57]')
            a.label('L_PCREF')
            a(f's_sub_u32 s56, s56, L_PCREF-{KNAME}')
            a('s_subb_u32 s57, s57, 0')
            a(f's_lshl_b32 s53, s{sH}, 13')
            a('v_lshlrev_b32 v30, 7, v1')
            a('v_add_u32 v30, s53, v30')
            a(f's_mov_b32 s58, L_CODE_END-{KNAME}-4')
            a('v_min_u32 v30, s58, v30')
            a('global_load_dword v31, v30, s[56:57]')
            a.label(LC)
            a.label(L7)
        a(f's_lshl_b32 s50, s{sJ}, 8')
        a(f's_lshl_b32 s51, s{sH}, 3')
        a('s_add_u32 s50, s50, s51')
        a('s_mul_i32 s52, s50, 1280')
        a('v_and_b32 v10, 7, v0')
        a('v_lshrrev_b32 v11, 3, v0')
        a('v_mul_u32_u24 v12, 1280, v10')
        a('v_lshlrev_b32 v13, 4, v11')
        a('v_add_u32 v12, v12, v13')
        a(f'buffer_load_dwordx4 v[16:19], v12, {srd(S_X0)}, s52 offen')
        a('v_mov_b32 v20, 0\nv_mov_b32 v21, 0\nv_mov_b32 v22, 0\nv_mov_b32 v23, 0')
        L = self.if_wave('lt', 2)
        a(f'buffer_load_dwordx4 v[20:23], v12, {srd(S_X0)}, s52 offen offset:1024')
        a.label(L)

    def late_touch(self):
        a = self.a
        if self.args.noreuse: return
        a('v_lshlrev_b32 v13, 7, v1')
        for w in (6, 5):
            Lw = self.if_wave('eq', w)
            if w == 5:
                a(f's_lshl_b32 s52, s{sJ}, 3')
                a(f's_lshr_b32 s53, s{sH}, 2')
                a('s_add_u32 s52, s52, s53')
                a(f's_mul_i32 s52, s52, {RBS}')
                a(f's_and_b32 s53, s{sH}, 3')
                a('s_mul_i32 s53, s53, 10240')
                a('s_add_u32 s52, s52, s53')
                a(f's_add_u32 s52, s52, {WS_XF + XF_SZ}')
            else:
                a(f's_lshl_b32 s52, s{sJ}, 4')
                a(f's_lshr_b32 s53, s{sH}, 1')
                a('s_add_u32 s52, s52, s53')
                a(f's_mul_i32 s52, s52, {OBS}')
                a(f's_and_b32 s53, s{sH}, 1')
                a('s_mul_i32 s53, s53, 10240')
                a('s_add_u32 s52, s52, s53')
                a(f's_add_u32 s52, s52, {WS_OF}')
            a(f'buffer_load_dword v182, v13, {srd(S_WS)}, s52 offen')
            a('s_add_u32 s52, s52, 8192')
            a('s_mov_b64 exec, 0xffff')
            a(f'buffer_load_dword v182, v13, {srd(S_WS)}, s52 offen')
            a('s_mov_b64 exec, -1')
            a.label(Lw)
        L7 = self.if_wave('eq', 7)
        a(f's_lshl_b32 s52, s{sJ}, 14')
        a(f's_lshl_b32 s53, s{sH}, 9')
        a('s_add_u32 s52, s52, s53')
        a(f's_add_u32 s52, s52, {WS_ST + ST_SZ}')
        a('s_mov_b64 exec, 0xf')
        a(f'buffer_load_dword v182, v13, {srd(S_WS)}, s52 offen')
        a('s_mov_b64 exec, -1')
        a.label(L7)

    def wo_item_dma(self, n, item_s):
        a = self.a
        a(f's_mul_hi_u32 s55, {item_s}, 0xccccccd')
        a('s_mul_i32 s56, s55, 20')
        a(f's_sub_u32 s56, {item_s}, s56')
        a('s_and_b32 s57, s55, 7')
        a('s_mul_i32 s57, s57, 160')
        a('s_mul_i32 s56, s56, 40960')
        a('s_add_u32 s56, s56, s57')
        A = a.newlabel('WOI_A'); E = a.newlabel('WOI_E')
        a('s_cmp_lt_u32 s55, 8')
        a(f's_cbranch_scc1 {A}')
        for u in range(5):
            a(f's_mov_b32 m0, {TO + n*5120 + u*1024}')
            a(f'buffer_load_dwordx4 v{24+u}, {srd(S_WOB)}, s56 offen lds')
        a(f's_branch {E}')
        a.label(A)
        for u in range(5):
            a(f's_mov_b32 m0, {TO + n*5120 + u*1024}')
            a(f'buffer_load_dwordx4 v{24+u}, {srd(S_WOA)}, s56 offen lds')
        a.label(E)

    def wo_item_pack(self, n, item_s):
        a = self.a
        for c in range(5):
            for sx in range(2):
                a(f'ds_read_b64_tr_b16 v[{32+4*c+2*sx}:{33+4*c+2*sx}], v30 offset:{TO + n*5120 + sx*1280 + c*32}')
        a(f's_mul_i32 s55, {item_s}, 5120')
        a(f's_add_u32 s55, s55, {WS_PO}')
        a('s_waitcnt lgkmcnt(0)')
        for c in range(5):
            if c == 4: a('s_add_u32 s55, s55, 4096')
            a(f'buffer_store_dwordx4 v[{32+4*c}:{35+4*c}], v2, {srd(S_WS)}, s55 offen offset:{(c%4)*1024} sc1')

    def raw_part_dma(self, srdW, toff):
        a = self.a
        a(f's_mul_i32 s53, s{sJ}, {80*3840}')
        for sec, tb, so in (('k', TK, 1280 - 8), ('q', TQ, 0), ('v', TV, 2560)):
            for u in range(4):
                a(f's_mov_b32 m0, {toff + tb + u*1024}')
                a(f's_add_u32 s54, s53, {so + (64*3840 if u == 3 else 0)}')
                if u == 3: a('s_mov_b32 exec_hi, 0xffff')
                a(f'buffer_load_dwordx4 v{4 + (u % 3)}, {srd(srdW)}, s54 offen lds')
                if u == 3: a('s_mov_b64 exec, -1')

    def p0(self):
        a = self.a
        self.fstamp(53)
        self.fstamp(54)
        L = self.if_wave('eq', 0)
        self.init_flags()
        a.label(L)
        a(f's_lshl_b32 s53, s{sJ}, 3')
        a(f's_lshr_b32 s54, s{sH}, 2')
        a('s_add_u32 s53, s53, s54')
        a(f's_mul_i32 s53, s53, {RBS}')
        a(f's_and_b32 s54, s{sH}, 3')
        a('s_lshl_b32 s54, s54, 7')
        a('s_add_u32 s53, s53, s54')
        a(f's_add_u32 s53, s53, {WS_XF}')
        a('v_and_b32 v10, 7, v0')
        a('v_lshrrev_b32 v11, 3, v0')
        a('v_lshrrev_b32 v13, 1, v11')
        a('v_lshlrev_b32 v13, 10, v13')
        a('v_and_b32 v14, 1, v11')
        a('v_lshlrev_b32 v14, 9, v14')
        a('v_add_u32 v13, v13, v14')
        a('v_lshlrev_b32 v14, 4, v10')
        a('v_add_u32 v13, v13, v14')
        a('s_add_u32 s54, s53, 32768')
        L = self.if_wave('eq', 1)
        a('v_mov_b32 v40, v13')
        a('s_mov_b32 s94, s53')
        self.tr_bases(106, 107, (TK, TQ, TV))
        a('s_waitcnt vmcnt(2)')
        self.pack5('v106', 'v107', lambda i: i * 768, 0, True, fb=48)
        a('v_mov_b32 v13, v40')
        a('s_mov_b32 s53, s94')
        a('s_add_u32 s54, s53, 32768')
        a('s_waitcnt vmcnt(11)')
        a.label(L)
        Lw = a.newlabel('P0_XW')
        a(f's_cmp_eq_u32 s{sW}, 1')
        a(f's_cbranch_scc1 {Lw}')
        a('s_waitcnt vmcnt(0)')
        a.label(Lw)
        self.fstamp(55)
        a(f'buffer_store_dwordx4 v[16:19], v13, {srd(S_WS)}, s53 offen')
        L = self.if_wave('lt', 2)
        a(f'buffer_store_dwordx4 v[20:23], v13, {srd(S_WS)}, s54 offen')
        a.label(L)
        DD = a.newlabel('P0_DMAD')
        L = self.if_wave('eq', 2)
        a('s_mov_b32 s94, s53')
        a('s_mov_b32 s95, s54')
        self.raw_part_dma(S_WQB, TBOFF)
        a('s_mov_b32 s53, s94')
        a('s_mov_b32 s54, s95')
        a.label(L)
        L = self.if_wave('eq', 3)
        for u in range(5):
            d = f'v{24+u}'
            a(f'v_add_u32 v15, {64*u}, v1')
            a('v_mul_u32_u24 v3, 6554, v15')
            a('v_lshrrev_b32 v3, 16, v3')
            a(f'v_mul_u32_u24 {d}, 10, v3')
            a(f'v_sub_u32 {d}, v15, {d}')
            a(f'v_lshlrev_b32 {d}, 4, {d}')
            a('v_mul_u32_u24 v3, 1280, v3')
            a(f'v_add_u32 {d}, {d}, v3')
        a('s_mov_b32 s58, s2')
        self.wo_item_dma(0, 's58')
        L2 = a.newlabel('P0_NOI2')
        a('s_cmp_ge_u32 s2, 64')
        a(f's_cbranch_scc1 {L2}')
        a('s_add_u32 s59, s2, 256')
        self.wo_item_dma(1, 's59')
        a.label(L2)
        a.label(L)
        a('v_mov_b32 v34, 0\nv_mov_b32 v35, 0')
        for r in range(16, 24):
            a(f'v_lshlrev_b32 v36, 16, v{r}')
            a(f'v_and_b32 v37, 0xffff0000, v{r}')
            a('v_add_f32 v34, v34, v36')
            a('v_fmac_f32 v35, v36, v36')
            a('v_add_f32 v34, v34, v37')
            a('v_fmac_f32 v35, v37, v37')
        for reg in (34, 35):
            a(f'v_mov_b32_dpp v36, v{reg} row_ror:8 row_mask:0xf bank_mask:0xf')
            a(f'v_add_f32 v{reg}, v{reg}, v36')
            a(f'v_mov_b32 v36, v{reg}')
            a(f'v_permlane16_swap_b32 v{reg}, v36')
            a(f'v_add_f32 v{reg}, v{reg}, v36')
            a(f'v_mov_b32 v36, v{reg}')
            a(f'v_permlane32_swap_b32 v{reg}, v36')
            a(f'v_add_f32 v{reg}, v{reg}, v36')
        P0S = L_MISC
        a(f's_lshl_b32 s50, s{sW}, 6')
        a('v_lshlrev_b32 v36, 3, v1')
        a('v_add_u32 v36, s50, v36')
        a('s_mov_b64 exec, 0xff')
        a(f'ds_write_b64 v36, v[34:35] offset:{P0S}')
        a('s_mov_b64 exec, -1')
        a('v_mov_b32 v10, 0')
        a(f'v_mov_b32 v11, {L_SIG}')
        a('ds_write_b32 v11, v10')
        a(f'ds_write_b32 v11, v10 offset:{L_CNTA - L_SIG}')
        a(f'ds_write_b32 v11, v10 offset:{L_CNTB - L_SIG}')
        a('v_lshlrev_b32 v11, 2, v1')
        a(f'ds_write_b32 v11, v10 offset:{L_CS}')
        a('s_waitcnt lgkmcnt(0)')
        self.fstamp(56)
        a('s_barrier')
        self.fstamp(57)
        a(f'v_mov_b32 v11, {L_NONCE}')
        a('ds_read_b32 v10, v11')
        a('s_waitcnt lgkmcnt(0)')
        a(f'v_readfirstlane_b32 s{sNONCE}, v10')
        L = self.if_wave('eq', 0)
        a('v_lshrrev_b32 v10, 2, v1')
        a('v_and_b32 v10, 7, v10')
        a('v_lshlrev_b32 v11, 3, v10')
        for w in range(8):
            a(f'ds_read_b64 v[{28+2*w}:{29+2*w}], v11 offset:{P0S + w*64}')
        a('s_waitcnt lgkmcnt(0)')
        for w in range(1, 8):
            a(f'v_add_f32 v28, v28, v{28+2*w}')
            a(f'v_add_f32 v29, v29, v{29+2*w}')
        a('v_and_b32 v12, 3, v1')
        a('v_cmp_eq_u32 vcc, 0, v12')
        a('v_mov_b32 v30, 0\nv_mov_b32 v31, 0')
        a('v_cndmask_b32 v28, v30, v28, vcc')
        a('v_cndmask_b32 v29, v30, v29, vcc')
        a(f's_lshl_b32 s50, s{sJ}, 8')
        a(f's_lshl_b32 s51, s{sH}, 3')
        a('s_add_u32 s50, s50, s51')
        a('s_lshl_b32 s50, s50, 6')
        a(f's_add_u32 s50, s50, {WS_ST}')
        a('s_mov_b64 exec, 0xffffffff')
        a(f'buffer_store_dwordx4 v[28:31], v2, {srd(S_WS)}, s50 offen')
        a('s_mov_b64 exec, -1')
        a.label(L)
        for w, n in ((2, 12), (3, 5)):
            Lx = self.if_wave('eq', w)
            a(f's_waitcnt vmcnt({n})')
            a.label(Lx)
        Ly = a.newlabel('P0_W23')
        a(f's_sub_u32 s50, s{sW}, 2')
        a('s_cmp_lt_u32 s50, 2')
        a(f's_cbranch_scc1 {Ly}')
        a('s_waitcnt vmcnt(0)')
        a.label(Ly)
        L = self.if_wave('eq', 1)
        self.set_xflag(5, 1)
        a.label(L)
        self.fstamp(58)

    def p0_packs(self):
        a = self.a
        a('s_waitcnt vmcnt(11)')
        L = self.if_wave('eq', 2)
        self.tr_bases(106, 107, (TK + TBOFF, TQ + TBOFF, TV + TBOFF))
        self.pack5('v106', 'v107', lambda i: i * 768, 1, True)
        a.label(L)
        L = self.if_wave('eq', 3)
        a('v_bfe_u32 v30, v1, 5, 1')
        a('v_lshlrev_b32 v30, 4, v30')
        a('v_bfe_u32 v12, v1, 4, 1')
        a('v_lshlrev_b32 v12, 2, v12')
        a('v_add_u32 v30, v30, v12')
        a('v_bfe_u32 v12, v1, 2, 2')
        a('v_add_u32 v30, v30, v12')
        a('v_mul_u32_u24 v30, 160, v30')
        a('v_and_b32 v12, 3, v1')
        a('v_lshlrev_b32 v12, 3, v12')
        a('v_add_u32 v30, v30, v12')
        a('s_mov_b32 s58, s2')
        self.wo_item_pack(0, 's58')
        L2 = a.newlabel('P0_NOI2B')
        a('s_cmp_ge_u32 s2, 64')
        a(f's_cbranch_scc1 {L2}')
        a('s_add_u32 s59, s2, 256')
        self.wo_item_pack(1, 's59')
        a.label(L2)
        a.label(L)

    ACC0, ACC1 = 16, 32
    XR = 48
    WB = 80
    def qkv_main(self, packed):
        a = self.a
        A0, A1, XR, WB = self.ACC0, self.ACC1, self.XR, self.WB
        a.comment('QKV main ' + ('packed' if packed else 'raw'))
        self.cstamp(53)
        if self.args.prio:
            L = self.if_wave('ge', 4)
            a(f's_setprio {self.args.prio}')
            a.label(L)
        vq = VQ()
        a(f's_lshl_b32 s50, s{sJ}, 3')
        a(f's_add_u32 s50, s50, s{sRB}')
        a(f's_lshl_b32 s51, s50, 11')
        a(f's_mul_i32 s50, s50, {RBS}')
        a(f's_add_u32 s50, s50, s{sXF}')
        def xload(ks):
            r = XR + 4 * (ks % 8)
            if ks % 4 == 0 and ks > 0: a('s_add_u32 s50, s50, 4096')
            a(f'buffer_load_dwordx4 v[{r}:{r+3}], v2, {srd(S_WS)}, s50 offen offset:{(ks % 4) * 1024} sc1')
            vq.push(('x', ks))
        NPRE = self.args.npre
        for ks in range(min(4, NPRE)): xload(ks)
        if packed:
            a(f'v_add_u32 v3, {PWL}, v2')
            a(f'v_add_u32 v15, {PWL + 40960}, v2')
            def wread(ks):
                s = WB + 8 * (ks % 3)
                b = 'v3' if ks < 20 else 'v15'
                o = (ks % 20) * 2048
                a(f'ds_read_b128 v[{s}:{s+3}], {b} offset:{o}')
                if not self.args.e_half: a(f'ds_read_b128 v[{s+4}:{s+7}], {b} offset:{o+1024}')
            nrd = 1 if self.args.e_half else 2
        else:
            def wread(ks):
                s = WB + 8 * (ks % 3)
                a(f'ds_read_b64_tr_b16 v[{s}:{s+1}], v7 offset:{ks*768}')
                a(f'ds_read_b64_tr_b16 v[{s+2}:{s+3}], v7 offset:{ks*768+48}')
                a(f'ds_read_b64_tr_b16 v[{s+4}:{s+5}], v8 offset:{ks*768}')
                a(f'ds_read_b64_tr_b16 v[{s+6}:{s+7}], v8 offset:{ks*768+48}')
            nrd = 4
        wread(0); wread(1)
        for ks in range(4, NPRE): xload(ks)
        nxt = [NPRE]
        a(f's_add_u32 s51, s51, s{sST}')
        a('v_and_b32 v10, 31, v1')
        a('v_lshlrev_b32 v11, 3, v10')
        a('v_lshlrev_b32 v10, 6, v10')
        a('v_lshrrev_b32 v12, 5, v1')
        a('v_lshlrev_b32 v12, 5, v12')
        a('v_add_u32 v10, v10, v12')
        late = [f'buffer_load_dwordx4 v[104:107], v10, {srd(S_WS)}, s51 offen sc1',
                f'buffer_load_dwordx4 v[108:111], v10, {srd(S_WS)}, s51 offen offset:16 sc1']
        lnpre = self.ln_pre_instrs()
        if self.args.fq: self.fstamp(53)
        for ks in range(40):
            if self.args.fq and ks in (1, 8, 20, 39): self.fstamp({1: 54, 8: 55, 20: 56, 39: 57}[ks])
            if ks + 2 < 40 and not self.args.e_now: wread(ks + 2)
            lg = nrd * min(2, 39 - ks)
            a(f's_waitcnt vmcnt({vq.cnt(("x", ks))}) lgkmcnt({lg})')
            s = WB + 8 * (ks % 3); x = XR + 4 * (ks % 8)
            c0 = '0' if ks == 0 else f'v[{A0}:{A0+15}]'
            c1 = '0' if ks == 0 else f'v[{A1}:{A1+15}]'
            if self.args.e_m16:
                for q in range(2):
                    for (AA, so) in ((A0, s), (A1, s + 4)):
                        d = AA + 4 * q + 8 * (ks % 2)
                        a(f'{MF16} v[{d}:{d+3}], v[{so}:{so+3}], v[{x}:{x+3}], {"0" if ks < 2 else f"v[{d}:{d+3}]"}')
            else:
                sA = 140 if self.args.e_dummy else s
                a(f'{MF32} v[{A0}:{A0+15}], v[{sA}:{sA+3}], v[{x}:{x+3}], {c0}')
                s1 = s if self.args.e_half else (136 if self.args.e_dummy else s + 4)
                a(f'{MF32} v[{A1}:{A1+15}], v[{s1}:{s1+3}], v[{x}:{x+3}], {c1}')
            nis = 0
            while nxt[0] < 40 and nxt[0] <= ks + 8 and nis < 2:
                if self.args.e_nox:
                    vq.push(('x', nxt[0]))
                    vq.q.pop(); vq.q.insert(0, ('x', nxt[0]))
                else: xload(nxt[0])
                nxt[0] += 1; nis += 1
            if ks == 10:
                LF = a.newlabel('QK_FL')
                a(f's_cmp_lg_u32 s{sLAYER}, 0')
                a(f's_cbranch_scc1 {LF}')
                for w, word in ((2, 4), (3, 6)):
                    L = self.if_wave('eq', w)
                    self.set_xflag(word, 1, saddr='s54', vt=('v13', 'v14'))
                    a.label(L)
                a.label(LF)
            if ks >= 12 and ks % 2 == 0 and late:
                a(late.pop(0)); vq.push('late')
            if ks >= 25:
                n = -(-len(lnpre) // (39 - ks)) if ks < 39 else len(lnpre)
                for _ in range(min(n, len(lnpre))): a(lnpre.pop(0))
        assert not late and not lnpre
        self.cstamp(55)
        if self.args.prio: a('s_setprio 0')
        a('s_waitcnt vmcnt(0)')
        if self.args.fq: self.fstamp(58)

    def colsum_raw(self):
        a = self.a
        WB = self.WB
        a(f's_mul_i32 s52, s{sW}, 768')
        a('v_add_u32 v12, s52, v7')
        a('v_add_u32 v13, s52, v8')
        for r in range(108, 112): a(f'v_mov_b32 v{r}, 0x3f803f80')
        for i in range(5):
            s = 16 + 8 * i
            a(f'ds_read_b64_tr_b16 v[{s}:{s+1}], v12 offset:{i*6144}')
            a(f'ds_read_b64_tr_b16 v[{s+2}:{s+3}], v12 offset:{i*6144+48}')
            a(f'ds_read_b64_tr_b16 v[{s+4}:{s+5}], v13 offset:{i*6144}')
            a(f'ds_read_b64_tr_b16 v[{s+6}:{s+7}], v13 offset:{i*6144+48}')
        a('s_waitcnt lgkmcnt(0)')
        for i in range(5):
            s = 16 + 8 * i
            a(f'{MF32} v[112:127], v[108:111], v[{s}:{s+3}], {"0" if i == 0 else "v[112:127]"}')
            a(f'{MF32} v[128:143], v[108:111], v[{s+4}:{s+7}], {"0" if i == 0 else "v[128:143]"}')
        a('v_and_b32 v12, 31, v1')
        a('v_lshlrev_b32 v12, 2, v12')
        a('s_mov_b64 exec, 0xffffffff')
        a(f'ds_add_f32 v12, v112 offset:{L_CS}')
        a(f'ds_add_f32 v12, v128 offset:{L_CS+128}')
        a('s_mov_b64 exec, -1')
        a('s_waitcnt lgkmcnt(0)')

    def ln_pre_instrs(self):
        I = []
        I += [f's_bitcmp1_b32 s{sLAYER}, 0', 's_cselect_b64 s[70:71], -1, 0',
              f'v_cndmask_b32 v116, v{vCSA}, v{vCSB}, s[70:71]', f'v_cndmask_b32 v117, v{vCSA+1}, v{vCSB+1}, s[70:71]']
        I += ['v_add_f32 v104, v104, v106', 'v_add_f32 v105, v105, v107', 'v_add_f32 v108, v108, v110', 'v_add_f32 v109, v109, v111',
              'v_add_f32 v112, v104, v108', 'v_add_f32 v113, v105, v109', 'v_mov_b32 v114, v112', 'v_mov_b32 v115, v113',
              'v_mov_b32 v122, 0', 'v_mov_b32 v123, 0',
              'v_permlane32_swap_b32 v112, v114', 'v_permlane32_swap_b32 v113, v115',
              'v_add_f32 v112, v112, v114', 'v_add_f32 v113, v113, v115', 's_mov_b32 s72, 0x3acccccd',
              'v_mul_f32 v112, s72, v112', 'v_mul_f32 v113, s72, v113', 'v_fma_f32 v113, -v112, v112, v113',
              'v_add_f32 v113, 0x3727c5ac, v113', 'v_rsq_f32 v132, v113',
              'v_sub_f32 v114, 0, v112', 'v_cvt_pk_bf16_f32 v120, v114, v114', 'v_lshlrev_b32 v115, 16, v120',
              'v_sub_f32 v115, v114, v115', 'v_cvt_pk_bf16_f32 v121, v115, v122',
              f'v_cndmask_b32 v120, v122, v120, {LO}', f'v_cndmask_b32 v121, v122, v121, {LO}']
        for src, dst in ((116, 124), (117, 128)):
            I += [f'v_cvt_pk_bf16_f32 v118, v{src}, v{src}', 'v_lshlrev_b32 v118, 16, v118', f'v_sub_f32 v119, v{src}, v118',
                  f'v_cvt_pk_bf16_f32 v{dst}, v118, v119', f'v_cvt_pk_bf16_f32 v{dst+1}, v118, v122',
                  f'v_cndmask_b32 v{dst}, v122, v{dst}, {LO}', f'v_cndmask_b32 v{dst+1}, v122, v{dst+1}, {LO}',
                  f'v_mov_b32 v{dst+2}, 0', f'v_mov_b32 v{dst+3}, 0']
        return I

    def ln_fix(self, packed):
        a = self.a
        A0, A1 = self.ACC0, self.ACC1
        a(f'{MF32} v[{A0}:{A0+15}], v[124:127], v[120:123], v[{A0}:{A0+15}]')
        a(f'{MF32} v[{A1}:{A1+15}], v[128:131], v[120:123], v[{A1}:{A1+15}]')
        a('v_mov_b32 v101, v132')

    def img_addr_regs(self):
        a = self.a
        a('v_and_b32 v10, 31, v1')
        a(f's_lshl_b32 s50, s{sRB}, 5')
        a('s_add_u32 s50, s50, 256')
        a('v_add_u32 v10, s50, v10')
        a('v_mul_u32_u24 v10, 48, v10')
        a('v_lshrrev_b32 v11, 5, v1')
        a('v_lshlrev_b32 v12, 4, v11')
        a('v_add_u32 v120, v10, v12')
        a('v_lshlrev_b32 v12, 3, v11')
        a('v_sub_u32 v121, v10, v12')
        a('v_add_u32 v121, 32, v121')
        a('v_add_u32 v122, v10, v12')
        a(f'v_add_u32 v122, {VIMG}, v122')
        a(f'v_mul_u32_u24 v12, {VIMG + 32 - 8}, v11')
        a('v_add_u32 v123, v10, v12')
        a('v_add_u32 v123, 8, v123')
        a(f'v_mul_u32_u24 v12, {VIMG}, v11')
        a('v_add_u32 v124, v10, v12')
        a('v_add_u32 v124, 40, v124')

    def setup_persistent(self):
        a = self.a
        self.img_addr_regs()
        for k in range(5): a(f'v_mov_b32 v{vPI[k]}, v{120+k}')
        self.attn_addr()
        for k in range(3): a(f'v_mov_b32 v{vPA[k]}, v{105+k}')
        self.o_addr_lane()
        for k in range(3): a(f'v_mov_b32 v{vPO[k]}, v{40+k}')
        L = self.if_wave('eq', 5)
        self.attn_masks_md(32)
        for q in range(4):
            a(f'ds_write_b128 v2, v[{32+4*q}:{35+4*q}] offset:{L_MD + q*1024}')
        a('s_waitcnt lgkmcnt(0)')
        a.label(L)

    def write_img(self, regs):
        a = self.a
        a(f'ds_write_b64 v{vPI[0]}, v[{regs["B1g0"]}:{regs["B1g0"]+1}]')
        a(f'ds_write_b64 v{vPI[1]}, v[{regs["B0g3"]}:{regs["B0g3"]+1}]')
        a(f'ds_write_b64 v{vPI[2]}, v[{regs["B1g1"]}:{regs["B1g1"]+1}]')
        a(f'ds_write_b64 v{vPI[2]}, v[{regs["B1g2"]}:{regs["B1g2"]+1}] offset:16')
        a(f'ds_write_b64 v{vPI[3]}, v[{regs["B1g3"]}:{regs["B1g3"]+1}]')
        a('v_mov_b32 v12, 0x3f80')
        a('v_mov_b32 v13, 0')
        a(f'v_cndmask_b32 v12, v12, v13, {LO}')
        a(f'ds_write_b64 v{vPI[4]}, v[12:13]')

    def wave_max(self, reg, tmp):
        a = self.a
        for ror in (8, 4, 2, 1):
            a(f'v_mov_b32_dpp v{tmp}, v{reg} row_ror:{ror} row_mask:0xf bank_mask:0xf')
            a(f'v_max_f32 v{reg}, v{reg}, v{tmp}')
        a(f'v_mov_b32 v{tmp}, v{reg}')
        a(f'v_permlane16_swap_b32 v{reg}, v{tmp}')
        a(f'v_max_f32 v{reg}, v{reg}, v{tmp}')
        a(f'v_mov_b32 v{tmp}, v{reg}')
        a(f'v_permlane32_swap_b32 v{reg}, v{tmp}')
        a(f'v_max_f32 v{reg}, v{reg}, v{tmp}')

    QA, QB = 96, 100
    vQN = 104
    def kvx_base(self, dst, wg_s):
        a = self.a
        a(f's_lshr_b32 {dst}, s{sLAYER}, 1')
        a(f's_mul_i32 {dst}, {dst}, {KVX_SZ}')
        a(f's_add_u32 {dst}, {dst}, {WS_KVX}')
        a(f's_mul_i32 s63, {wg_s}, 24576')
        a(f's_add_u32 {dst}, {dst}, s63')

    def export_own(self):
        a = self.a
        a(f's_mul_i32 s50, s{sRB}, 1536')
        a('v_add_u32 v60, s50, v2')
        a('v_add_u32 v62, 12800, v60')
        a('v_add_u32 v61, 1024, v60')
        a('v_add_u32 v63, 11776, v60')
        a(f'v_cndmask_b32 v61, v63, v61, {LO}')
        a('v_add_u32 v63, 12288, v61')
        a(f'v_add_u32 v10, {VIMG}, v61')
        a(f'v_cndmask_b32 v63, v10, v63, {LO}')
        a('ds_read_b128 v[48:51], v60 offset:12288')
        a('ds_read_b128 v[52:55], v63')
        a(f'ds_read_b128 v[56:59], v62 offset:{VIMG}')
        self.kvx_base('s51', 's2')
        a('s_waitcnt lgkmcnt(0)')
        a(f'buffer_store_dwordx4 v[48:51], v60, {srd(S_WS)}, s51 offen sc1')
        a(f'buffer_store_dwordx4 v[52:55], v61, {srd(S_WS)}, s51 offen sc1')
        a(f'buffer_store_dwordx4 v[56:59], v62, {srd(S_WS)}, s51 offen sc1')

    def set_block_flag(self):
        a = self.a
        a(f's_lshl_b32 s53, s{sRB}, 2')
        a('s_add_u32 s53, s53, 32')
        a(f's_add_u32 s54, s{sLAYER}, 1')
        self.set_xflag('s53', 's54')

    def epi_B(self):
        a = self.a
        A0, A1 = self.ACC0, self.ACC1
        QA, QB = self.QA, self.QB
        a(f's_mov_b32 s{sNEED}, 1')
        a('s_mov_b32 s52, 0x3ea52b5c')
        a('v_mul_f32 v102, s52, v101')
        for r in range(12, 16): a(f'v_mul_f32 v{A0+r}, v101, v{A0+r}')
        for r in range(16): a(f'v_mul_f32 v{A1+r}, v101, v{A1+r}')
        pk = {'B0g3': (106, A0+12), 'B1g0': (108, A1), 'B1g1': (110, A1+4), 'B1g2': (112, A1+8), 'B1g3': (114, A1+12)}
        for n, (d, s_) in pk.items():
            a(f'v_cvt_pk_bf16_f32 v{d}, v{s_}, v{s_+1}')
            a(f'v_cvt_pk_bf16_f32 v{d+1}, v{s_+2}, v{s_+3}')
        self.write_img({n: d for n, (d, _) in pk.items()})
        a(f'v_mul_f32 v118, v{A0+12}, v{A0+12}')
        for r in [A0+13, A0+14, A0+15, A1, A1+1, A1+2, A1+3]: a(f'v_fmac_f32 v118, v{r}, v{r}')
        a(f'v_mul_f32 v119, v{A1+12}, v{A1+12}')
        for r in range(13, 16): a(f'v_fmac_f32 v119, v{A1+r}, v{A1+r}')
        a('v_mov_b32 v13, 0')
        a(f'v_cndmask_b32 v119, v13, v119, {LO}')
        a('v_add_f32 v118, v118, v119')
        a('v_mov_b32 v119, v118')
        a('v_permlane32_swap_b32 v118, v119')
        a('v_add_f32 v118, v118, v119')
        a('s_waitcnt lgkmcnt(0)')
        NOEXP = a.newlabel('EB_NOEXP')
        a(f's_cmp_eq_u32 s{sJ}, 7')
        a(f's_cbranch_scc1 {NOEXP}')
        if self.args.fe: self.fstamp(53)
        self.export_own()
        if self.args.fe: self.fstamp(54)
        a.label(NOEXP)
        self.wave_max(118, 117)
        NOEXP2 = a.newlabel('EB_NOEXP2')
        a(f's_cmp_eq_u32 s{sJ}, 7')
        a(f's_cbranch_scc1 {NOEXP2}')
        a('s_lshl_b32 s52, s2, 6')
        a(f's_add_u32 s52, s52, {WS_XKN}')
        a(f's_lshl_b32 s53, s{sRB}, 2')
        a('v_mov_b32 v12, s53')
        a('s_mov_b64 exec, 1')
        a(f'buffer_store_dword v118, v12, {srd(S_WS)}, s52 offen sc1')
        a('s_mov_b64 exec, -1')
        a.label(NOEXP2)
        a(f's_lshl_b32 s50, s{sW}, 2')
        a('v_mov_b32 v12, s50')
        a('s_mov_b64 exec, 1')
        a(f'ds_write_b32 v12, v118 offset:{L_KN}')
        a('s_mov_b64 exec, -1')
        L = self.if_wave('eq', 0)
        a('v_lshlrev_b32 v12, 2, v1')
        a('v_mov_b32 v13, 0')
        a('s_mov_b64 exec, 0xff')
        a(f'ds_write_b32 v12, v13 offset:{L_KN+32}')
        a('s_mov_b64 exec, -1')
        a.label(L)
        L = self.if_wave('lt', 4)
        self.epi_B_q()
        a.label(L)
        for q in range(4):
            a(f'ds_read_b128 v[{self.AMD+4*q}:{self.AMD+4*q+3}], v2 offset:{L_MD + q*1024}')
        L = self.if_wave('lt', 4)
        LJ = a.newlabel('EB_J7')
        a(f's_cmp_eq_u32 s{sJ}, 7')
        a(f's_cbranch_scc1 {LJ}')
        if self.args.fe: self.fstamp(55)
        a('s_waitcnt vmcnt(0)')
        if self.args.fe: self.fstamp(56)
        self.set_block_flag()
        a.label(LJ)
        if self.args.maxtry > 0:
            L0 = self.if_wave('eq', 0)
            self.s1_issue(self.args.maxtry)
            a(f'v_mov_b32 v11, {L_SIG}')
            a(f'v_mov_b32 v12, s{sNEED}')
            a('ds_write_b32 v11, v12 offset:16')
            a.label(L0)
        a.label(L)
        if self.args.fe: self.fstamp(57)
        a('s_waitcnt lgkmcnt(0)')
        a('s_barrier')

    def epi_B_q(self):
        a = self.a
        A0 = self.ACC0
        QA, QB = self.QA, self.QB
        for r in range(0, 12): a(f'v_mul_f32 v{A0+r}, v102, v{A0+r}')
        for j in range(4): a(f'v_cvt_pk_bf16_f32 v{QA+j}, v{A0+2*j}, v{A0+2*j+1}')
        a(f'v_cvt_pk_bf16_f32 v{QB}, v{A0+8}, v{A0+9}')
        a(f'v_cvt_pk_bf16_f32 v{QB+1}, v{A0+10}, v{A0+11}')
        a('v_mul_f32 v116, v16, v16')
        for r in range(1, 8): a(f'v_fmac_f32 v116, v{A0+r}, v{A0+r}')
        a(f'v_mul_f32 v117, v{A0+8}, v{A0+8}')
        for r in range(9, 12): a(f'v_fmac_f32 v117, v{A0+r}, v{A0+r}')
        a('v_mov_b32 v13, 0')
        a(f'v_mov_b32 v{QB+2}, 0x3f80')
        a(f'v_mov_b32 v{QB+3}, 0')
        for j in range(3): a(f'v_cndmask_b32 v{QB+j}, v13, v{QB+j}, {LO}')
        a(f'v_cndmask_b32 v117, v13, v117, {LO}')
        a('v_add_f32 v116, v116, v117')
        a('v_mov_b32 v117, v116')
        a('v_permlane32_swap_b32 v116, v117')
        a(f'v_add_f32 v{self.vQN}, v116, v117')
        self.wave_max(self.vQN, 116)

    def imp_addr(self, st):
        a = self.a
        half = 6144 if st == 1 else 0
        a('v_lshlrev_b32 v10, 4, v0')
        a(f'v_add_u32 v184, {half}, v10')
        a(f'v_add_u32 v185, {half + 4096}, v10')
        a(f'v_add_u32 v186, {12288 + half - 2048}, v10')
        a('v_cmp_gt_u32 vcc, 2048, v10')
        a('v_cndmask_b32 v185, v186, v185, vcc')
        a(f'v_add_u32 v186, {12288 + half + 2048}, v10')
        a(f'v_add_u32 v187, {VIMG - 12288}, v185')
        a('v_cndmask_b32 v187, v187, v185, vcc')

    def imp_flagload(self, st):
        a = self.a
        a('s_sub_u32 s54, s2, 1')
        self.xflag_addr('s52', 's54')
        a('v_and_b32 v11, 3, v1')
        a('v_lshlrev_b32 v11, 2, v11')
        a(f'v_add_u32 v11, {32 + (16 if st == 1 else 0)}, v11')
        a(f'buffer_load_dword v176, v11, {srd(S_WS)}, s52 offen sc1')

    def imp_loads(self, st):
        a = self.a
        a('s_sub_u32 s54, s2, 1')
        self.kvx_base('s51', 's54')
        a(f'buffer_load_dwordx4 v[160:163], v184, {srd(S_WS)}, s51 offen sc1')
        a(f'buffer_load_dwordx4 v[164:167], v185, {srd(S_WS)}, s51 offen sc1')
        a(f'buffer_load_dwordx4 v[168:171], v186, {srd(S_WS)}, s51 offen sc1')
        a('s_lshl_b32 s52, s54, 6')
        a(f's_add_u32 s52, s52, {WS_XKN + (16 if st == 1 else 0)}')
        a('v_and_b32 v11, 3, v1')
        a('v_lshlrev_b32 v11, 2, v11')
        a(f'buffer_load_dword v172, v11, {srd(S_WS)}, s52 offen sc1')

    def imp_try(self, st, nyounger):
        a = self.a
        N = a.newlabel('IT_NO'); E = a.newlabel('IT_E')
        a(f's_waitcnt vmcnt({nyounger})')
        a(f's_add_u32 s63, s{sNONCE}, s{sLAYER}')
        a('s_add_u32 s63, s63, 1')
        a('v_subrev_u32 v176, s63, v176')
        a('v_cmp_lt_u32 vcc, 7, v176')
        a('s_and_b32 s61, vcc_lo, 0xf')
        a('s_cmp_eq_u32 s61, 0')
        a(f's_cbranch_scc0 {N}')
        self.imp_addr(st)
        self.imp_loads(st)
        a(f's_mov_b32 s{sNEED}, 0')
        a(f's_branch {E}')
        a.label(N)
        a(f's_mov_b32 s{sNEED}, 1')
        a.label(E)

    def imp_fill_vals(self, nK, tsrc):
        pass

    def imp_finish(self, st):
        a = self.a
        FILL = a.newlabel('IM_FILL'); E = a.newlabel('IM_END')
        a(f's_cmp_eq_u32 s{sJ}, 0')
        a(f's_cbranch_scc1 {FILL}')
        a('s_sub_u32 s54, s2, 1')
        self.xflag_addr('s52', 's54')
        a(f's_add_u32 s53, s{sLAYER}, 1')
        a('v_and_b32 v11, 3, v1')
        a('v_lshlrev_b32 v11, 2, v11')
        a('v_add_u32 v11, 48, v11')
        self.poll('v11', 's52', 4, 's53')
        self.imp_addr(1)
        self.imp_loads(1)
        a('s_waitcnt vmcnt(0)')
        a('ds_write_b128 v184, v[160:163]')
        a('ds_write_b128 v187, v[164:167]')
        a(f'ds_write_b128 v186, v[168:171] offset:{VIMG - 12288}')
        for ror in (2, 1):
            a(f'v_mov_b32_dpp v173, v172 row_ror:{ror} row_mask:0xf bank_mask:0xf')
            a('v_max_f32 v172, v172, v173')
        a(f'v_mov_b32 v12, {L_KN + 32}')
        a('s_mov_b64 exec, 1')
        a('ds_write_b32 v12, v172')
        a('s_mov_b64 exec, -1')
        a(f's_branch {E}')
        a.label(FILL)
        self.imp_addr(1)
        a('v_lshlrev_b32 v10, 4, v0')
        for r in range(160, 172): a(f'v_mov_b32 v{r}, 0')
        for n, reg in ((0, 162), (1, 166)):
            a(f'v_lshrrev_b32 v11, 4, v10')
            a(f'v_add_u32 v11, {n*256}, v11')
            a('v_mul_u32_u24 v12, 21846, v11')
            a('v_lshrrev_b32 v12, 16, v12')
            a('v_mul_u32_u24 v12, 3, v12')
            a('v_sub_u32 v12, v11, v12')
            a('v_cmp_eq_u32 s[70:71], 2, v12')
            if n == 1:
                a('v_cmp_gt_u32 vcc, 2048, v10')
                a('s_and_b64 s[70:71], s[70:71], vcc')
            a('v_mov_b32 v13, 0xf14a')
            a(f'v_cndmask_b32 v{reg}, v{reg}, v13, s[70:71]')
        a('ds_write_b128 v184, v[160:163]')
        a('ds_write_b128 v187, v[164:167]')
        a(f'ds_write_b128 v186, v[168:171] offset:{VIMG - 12288}')
        a(f'v_mov_b32 v12, {L_KN + 32}')
        a('s_mov_b64 exec, 1')
        a('ds_write_b32 v12, v160')
        a('s_mov_b64 exec, -1')
        a.label(E)
        a('s_waitcnt lgkmcnt(0)')

    S1K = [160, 164, 168, 172, 184, 108]; S1V = [128, 132, 136, 140, 48, 52]
    def s1_issue(self, maxtry):
        a = self.a
        E = a.newlabel('S1_E'); Z = a.newlabel('S1_Z')
        a(f's_mov_b32 s{sNEED}, 0')
        a(f's_cmp_eq_u32 s{sJ}, 0')
        a(f's_cbranch_scc1 {E}')
        a('s_sub_u32 s54, s2, 1')
        self.xflag_addr('s52', 's54')
        a('v_and_b32 v11, 3, v1')
        a('v_lshlrev_b32 v11, 2, v11')
        a('v_add_u32 v11, 48, v11')
        if maxtry is None:
            a(f's_add_u32 s53, s{sLAYER}, 1')
            self.poll('v11', 's52', 4, 's53')
        else:
            L = a.newlabel('S1_TRY'); OK = a.newlabel('S1_OK')
            a('s_mov_b32 s60, 0')
            a(f's_add_u32 s63, s{sNONCE}, s{sLAYER}')
            a('s_add_u32 s63, s63, 1')
            a.label(L)
            a(f'buffer_load_dword v12, v11, {srd(S_WS)}, s52 offen sc1')
            a('s_waitcnt vmcnt(0)')
            a('v_subrev_u32 v12, s63, v12')
            a('v_cmp_lt_u32 vcc, 7, v12')
            a('s_and_b32 s61, vcc_lo, 0xf')
            a('s_cmp_eq_u32 s61, 0')
            a(f's_cbranch_scc1 {OK}')
            a('s_add_u32 s60, s60, 1')
            a(f's_cmp_lt_u32 s60, {maxtry}')
            a(f's_cbranch_scc1 {L}')
            a(f's_mov_b32 s{sNEED}, 1')
            a(f's_branch {E}')
            a.label(OK)
        self.kvx_base('s51', 's54')
        a(f's_add_u32 s55, s51, {12288 + 6144}')
        a('s_add_u32 s51, s51, 6144')
        a('s_lshl_b32 s52, s54, 6')
        a(f's_add_u32 s52, s52, {WS_XKN + 16}')
        a('v_and_b32 v11, 3, v1')
        a('v_lshlrev_b32 v11, 2, v11')
        a(f'buffer_load_dword v14, v11, {srd(S_WS)}, s52 offen sc1')
        for n in range(6):
            if n == 4: a('s_add_u32 s51, s51, 4096')
            r = self.S1K[n]
            a(f'buffer_load_dwordx4 v[{r}:{r+3}], v2, {srd(S_WS)}, s51 offen offset:{(n%4)*1024} sc1')
        for n in range(6):
            if n == 4: a('s_add_u32 s55, s55, 4096')
            r = self.S1V[n]
            a(f'buffer_load_dwordx4 v[{r}:{r+3}], v2, {srd(S_WS)}, s55 offen offset:{(n%4)*1024} sc1')
        a.label(E)

    def s1_finish(self):
        a = self.a
        FILL = a.newlabel('S1_FILL'); E = a.newlabel('S1_END')
        half = 6144
        a(f's_cmp_eq_u32 s{sJ}, 0')
        a(f's_cbranch_scc1 {FILL}')
        a('s_waitcnt vmcnt(12)')
        for ror in (2, 1):
            a(f'v_mov_b32_dpp v15, v14 row_ror:{ror} row_mask:0xf bank_mask:0xf')
            a('v_max_f32 v14, v14, v15')
        a(f'v_mov_b32 v12, {L_KN + 32}')
        a('s_mov_b64 exec, 1')
        a('ds_write_b32 v12, v14')
        a('s_mov_b64 exec, -1')
        for n in range(6):
            r = self.S1K[n]
            a(f's_waitcnt vmcnt({11 - n})')
            a(f'ds_write_b128 v2, v[{r}:{r+3}] offset:{KIMG + half + n*1024}')
        for n in range(6):
            r = self.S1V[n]
            a(f's_waitcnt vmcnt({5 - n})')
            a(f'ds_write_b128 v2, v[{r}:{r+3}] offset:{VIMG + half + n*1024}')
        a(f's_branch {E}')
        a.label(FILL)
        for r in range(160, 168): a(f'v_mov_b32 v{r}, 0')
        for n in range(6):
            a(f'v_add_u32 v11, {n*64}, v1')
            a('v_mul_u32_u24 v12, 21846, v11')
            a('v_lshrrev_b32 v12, 16, v12')
            a('v_mul_u32_u24 v12, 3, v12')
            a('v_sub_u32 v12, v11, v12')
            a('v_cmp_eq_u32 vcc, 2, v12')
            a('v_mov_b32 v13, 0xf14a')
            a('v_cndmask_b32 v162, v160, v13, vcc')
            a(f'ds_write_b128 v2, v[160:163] offset:{KIMG + half + n*1024}')
            a(f'ds_write_b128 v2, v[164:167] offset:{VIMG + half + n*1024}')
        a.label(E)
        a('s_waitcnt lgkmcnt(0)')
        self.cnt_inc(L_CNTA)
        a('s_waitcnt lgkmcnt(0)')

    I2R = [160, 164, 168, 172, 184, 108]
    def i2_flag(self):
        a = self.a
        a('s_sub_u32 s54, s2, 1')
        self.xflag_addr('s52', 's54')
        a('v_and_b32 v11, 3, v1')
        a('v_lshlrev_b32 v11, 2, v11')
        a('v_add_u32 v11, 32, v11')
        a(f'buffer_load_dword v182, v11, {srd(S_WS)}, s52 offen sc1')
    def i2_loads(self):
        a = self.a
        a('s_sub_u32 s54, s2, 1')
        self.kvx_base('s51', 's54')
        a(f's_sub_u32 s55, s{sW}, 6')
        a('s_mul_i32 s55, s55, 12288')
        a('s_add_u32 s51, s51, s55')
        a('s_lshl_b32 s52, s54, 6')
        a(f's_add_u32 s52, s52, {WS_XKN}')
        a('v_and_b32 v11, 3, v1')
        a('v_lshlrev_b32 v11, 2, v11')
        a(f'buffer_load_dword v183, v11, {srd(S_WS)}, s52 offen sc1')
        for n in range(6):
            r = self.I2R[n]
            if n == 4: a('s_add_u32 s51, s51, 4096')
            a(f'buffer_load_dwordx4 v[{r}:{r+3}], v2, {srd(S_WS)}, s51 offen offset:{(n%4)*1024} sc1')
    def i2_try(self):
        a = self.a
        N = a.newlabel('I2T_N'); E = a.newlabel('I2T_E')
        a('s_waitcnt vmcnt(0)')
        a(f's_add_u32 s63, s{sNONCE}, s{sLAYER}')
        a('s_add_u32 s63, s63, 1')
        a('v_subrev_u32 v182, s63, v182')
        a('v_cmp_lt_u32 vcc, 7, v182')
        a('s_and_b32 s61, vcc_lo, 0xf')
        a('s_cmp_eq_u32 s61, 0')
        a(f's_cbranch_scc0 {N}')
        self.i2_loads()
        a(f's_mov_b32 s{sNEED}, 0')
        a(f's_branch {E}')
        a.label(N)
        a(f's_mov_b32 s{sNEED}, 1')
        a.label(E)
    def i2_finish(self):
        a = self.a
        FILL = a.newlabel('I2F_FILL'); E = a.newlabel('I2F_E'); GO = a.newlabel('I2F_GO')
        a(f's_sub_u32 s55, s{sW}, 6')
        a(f's_mul_i32 s55, s55, {VIMG}')
        a('v_add_u32 v13, s55, v2')
        a(f's_cmp_eq_u32 s{sJ}, 0')
        a(f's_cbranch_scc1 {FILL}')
        a(f's_cmp_eq_u32 s{sNEED}, 0')
        a(f's_cbranch_scc1 {GO}')
        a('s_sub_u32 s54, s2, 1')
        self.xflag_addr('s52', 's54')
        a(f's_add_u32 s53, s{sLAYER}, 1')
        a('v_and_b32 v11, 3, v1')
        a('v_lshlrev_b32 v11, 2, v11')
        a('v_add_u32 v11, 32, v11')
        self.poll('v11', 's52', 4, 's53')
        self.i2_loads()
        a.label(GO)
        a('s_waitcnt vmcnt(0)')
        for n in range(6):
            r = self.I2R[n]
            a(f'ds_write_b128 v13, v[{r}:{r+3}] offset:{n*1024}')
        for ror in (2, 1):
            a(f'v_mov_b32_dpp v15, v183 row_ror:{ror} row_mask:0xf bank_mask:0xf')
            a('v_max_f32 v183, v183, v15')
        a(f'v_mov_b32 v12, {L_KN + 36}')
        a('s_mov_b64 exec, 1')
        a('ds_write_b32 v12, v183')
        a('s_mov_b64 exec, -1')
        a(f's_branch {E}')
        a.label(FILL)
        for r in range(160, 164): a(f'v_mov_b32 v{r}, 0')
        for n in range(6):
            a(f'v_add_u32 v11, {n*64}, v1')
            a('v_mul_u32_u24 v12, 21846, v11')
            a('v_lshrrev_b32 v12, 16, v12')
            a('v_mul_u32_u24 v12, 3, v12')
            a('v_sub_u32 v12, v11, v12')
            a('v_cmp_eq_u32 vcc, 2, v12')
            a(f's_cmp_eq_u32 s{sW}, 6')
            a('s_cselect_b32 s55, 0xf14a, 0')
            a('v_mov_b32 v14, s55')
            a('v_cndmask_b32 v162, v160, v14, vcc')
            a(f'ds_write_b128 v13, v[160:163] offset:{n*1024}')
        a.label(E)
        a('s_waitcnt lgkmcnt(0)')
        self.cnt_inc(L_CNTB)
        a('s_waitcnt lgkmcnt(0)')

    def cnt_inc(self, addr):
        a = self.a
        a(f'v_mov_b32 v11, {addr}')
        a('v_mov_b32 v12, 1')
        a('s_mov_b64 exec, 1')
        a('ds_add_u32 v11, v12')
        a('s_mov_b64 exec, -1')

    def cnt_wait(self, addr):
        a = self.a
        L = a.newlabel('CW'); D = a.newlabel('CWD')
        a(f's_add_u32 s62, s{sLAYER}, 1')
        if addr == L_CNTA: a('s_lshr_b32 s62, s62, 1')
        a(f'v_mov_b32 v11, {addr}')
        a('s_mov_b32 s60, 0')
        a.label(L)
        a('ds_read_b32 v12, v11')
        a('s_waitcnt lgkmcnt(0)')
        a('v_readfirstlane_b32 s61, v12')
        a('s_cmp_ge_u32 s61, s62')
        a(f's_cbranch_scc1 {D}')
        a('s_sleep 1')
        a('s_add_u32 s60, s60, 1')
        a('s_cmp_lt_u32 s60, 0x200000')
        a(f's_cbranch_scc1 {L}')
        a.label(D)

    def light_flag(self):
        a = self.a
        E = a.newlabel('LF_E')
        a(f's_cmp_eq_u32 s{sJ}, 7')
        a(f's_cbranch_scc1 {E}')
        a('s_waitcnt vmcnt(0)')
        self.set_block_flag()
        a.label(E)

    def attn_addr(self):
        a = self.a
        a('v_and_b32 v10, 31, v1')
        a(f's_lshl_b32 s50, s{sRB}, 5')
        a('v_add_u32 v10, s50, v10')
        a('v_mul_u32_u24 v10, 48, v10')
        a('v_lshrrev_b32 v11, 5, v1')
        a('v_lshlrev_b32 v12, 4, v11')
        a('v_add_u32 v105, v10, v12')
        a('v_add_u32 v106, 32, v10')
        a('v_bfe_u32 v12, v1, 2, 2')
        a('v_lshlrev_b32 v13, 2, v11')
        a('v_add_u32 v12, v12, v13')
        a('v_add_u32 v12, s50, v12')
        a('v_mul_u32_u24 v12, 48, v12')
        a('v_and_b32 v13, 3, v1')
        a('v_lshlrev_b32 v14, 3, v13')
        a('v_min_u32 v15, 1, v13')
        a('v_lshlrev_b32 v15, 3, v15')
        a('v_add_u32 v15, 32, v15')
        a('v_bfe_u32 v13, v1, 4, 1')
        a('v_cmp_eq_u32 vcc, 1, v13')
        a('v_cndmask_b32 v14, v14, v15, vcc')
        a('v_add_u32 v12, v12, v14')
        a(f'v_add_u32 v107, {VIMG}, v12')

    def attn_masks_md(self, MD):
        a = self.a
        a('v_and_b32 v10, 31, v1')
        a('v_lshrrev_b32 v11, 5, v1')
        a('v_lshlrev_b32 v13, 2, v11')
        a('v_sub_u32 v10, v10, v13')
        a('v_mov_b32 v14, 0xf149f2ca')
        a('v_mov_b32 v15, 0')
        conds = ['s[70:71]', 's[72:73]', 's[74:75]', 's[76:77]']
        for r0 in range(0, 16, 4):
            for q in range(4):
                r = r0 + q
                kk = 8 * (r >> 2) + (r & 3)
                a(f'v_cmp_le_i32 {conds[q]}, {kk}, v10')
            for q in range(4):
                r = r0 + q
                a(f'v_cndmask_b32 v{MD+r}, v14, v15, {conds[q]}')

    def make_mf(self, r0, r1):
        for r in range(r0, r1):
            self.a(f'v_sub_f32 v{self.AMF+r}, 0xf149f2ca, v{self.AMD+r}')

    def norm_check(self, fail_label):
        a = self.a
        a('v_and_b32 v11, 15, v1')
        a('v_lshlrev_b32 v11, 2, v11')
        a(f'ds_read_b32 v12, v11 offset:{L_KN}')
        a('s_waitcnt lgkmcnt(0)')
        for ror in (8, 4, 2, 1):
            a(f'v_mov_b32_dpp v13, v12 row_ror:{ror} row_mask:0xf bank_mask:0xf')
            a('v_max_f32 v12, v12, v13')
        a(f'v_mul_f32 v12, v{self.vQN}, v12')
        a(f's_mov_b32 s50, {self.args.t2hex}')
        a('v_mov_b32 v13, s50')
        a('v_cmp_nle_f32 vcc, v12, v13')
        a('s_cmp_lg_u64 vcc, 0')
        a(f's_cbranch_scc1 {fail_label}')

    AO, AMD, AMF, AVF, AKF, ASB, ANM = 16, 32, 48, 64, 80, 112, 160
    def at_kread(self, i):
        n = 8 - i; s = self.AKF + 8 * (i % 2)
        self.a(f'ds_read_b128 v[{s}:{s+3}], v{vPA[0]} offset:{n*1536}')
        self.a(f'ds_read_b128 v[{s+4}:{s+7}], v{vPA[1]} offset:{n*1536}')
    def at_vread(self, i):
        n = 8 - i; s = self.AVF + 8 * (i % 2)
        for s2 in range(2):
            for sx in range(2):
                self.a(f'ds_read_b64_tr_b16 v[{s+4*s2+2*sx}:{s+4*s2+2*sx+1}], v{vPA[2]} offset:{n*1536 + s2*768 + sx*384}')
    def at_smfma(self, i, part, cz):
        s = self.AKF + 8 * (i % 2); d = self.ASB + 16 * (i % 2)
        MD, MF, QA, QB = self.AMD, self.AMF, self.QA, self.QB
        if part == 0:
            c = f'v[{MD}:{MD+15}]' if i == 0 else f'v[{MF}:{MF+15}]' if i == 8 else cz
            self.a(f'{MF32} v[{d}:{d+15}], v[{s}:{s+3}], v[{QA}:{QA+3}], {c}')
        else:
            self.a(f'{MF32} v[{d}:{d+15}], v[{s+4}:{s+7}], v[{QB}:{QB+3}], v[{d}:{d+15}]')

    def attn_loop(self, cz, sync):
        a = self.a
        O, VF, SB = self.AO, self.AVF, self.ASB
        self.at_kread(0); self.at_vread(0)
        a('s_waitcnt lgkmcnt(4)')
        self.at_smfma(0, 0, cz); self.at_smfma(0, 1, cz)
        for i in range(9):
            d = SB + 16 * (i % 2)
            if sync and self.args.fi: self.fstamp(53 + i)
            if i < 8:
                if sync: sync(i)
                self.at_kread(i + 1)
                self.at_vread(i + 1)
                for r in range(0, 4): a(f'v_exp_f32 v{d+r}, v{d+r}')
                a('s_waitcnt lgkmcnt(4)')
                self.at_smfma(i + 1, 0, cz)
                for r in range(4, 8): a(f'v_exp_f32 v{d+r}, v{d+r}')
                if sync and i in (5, 6): self.make_mf(8 * (i - 5), 8 * (i - 5) + 8)
                for j in range(0, 2): a(f'v_cvt_pk_bf16_f32 v{d+j}, v{d+2*j}, v{d+2*j+1}')
                self.at_smfma(i + 1, 1, cz)
                for j in range(2, 4): a(f'v_cvt_pk_bf16_f32 v{d+j}, v{d+2*j}, v{d+2*j+1}')
                for r in range(8, 12): a(f'v_exp_f32 v{d+r}, v{d+r}')
            else:
                for r in range(0, 8): a(f'v_exp_f32 v{d+r}, v{d+r}')
                for j in range(0, 4): a(f'v_cvt_pk_bf16_f32 v{d+j}, v{d+2*j}, v{d+2*j+1}')
                a('s_waitcnt lgkmcnt(0)')
                for r in range(8, 12): a(f'v_exp_f32 v{d+r}, v{d+r}')
            s = VF + 8 * (i % 2)
            a(f'{MF32} v[{O}:{O+15}], v[{s}:{s+3}], v[{d}:{d+3}], {"0" if i == 0 else f"v[{O}:{O+15}]"}')
            for r in range(12, 16): a(f'v_exp_f32 v{d+r}, v{d+r}')
            for j in range(4, 8): a(f'v_cvt_pk_bf16_f32 v{d+j}, v{d+2*j}, v{d+2*j+1}')
            a(f'{MF32} v[{O}:{O+15}], v[{s+4}:{s+7}], v[{d+4}:{d+7}], v[{O}:{O+15}]')

    def attn_true(self):
        a = self.a
        MD, MF, SB, NM = self.AMD, self.AMF, self.ASB, self.ANM
        self.make_mf(0, 16)
        a('v_mov_b32 v10, 0xff7fffff')
        a('v_mov_b32 v11, 0xff7fffff')
        self.at_kread(0)
        for i in range(9):
            if i < 8:
                self.at_kread(i + 1); a('s_waitcnt lgkmcnt(2)')
            else: a('s_waitcnt lgkmcnt(0)')
            self.at_smfma(i, 0, '0'); self.at_smfma(i, 1, '0')
            d = SB + 16 * (i % 2)
            for k in range(0, 16, 4):
                a(f'v_max3_f32 v10, v10, v{d+k}, v{d+k+1}')
                a(f'v_max3_f32 v11, v11, v{d+k+2}, v{d+k+3}')
        a('v_max_f32 v10, v10, v11')
        a('v_mov_b32 v11, v10')
        a('v_permlane32_swap_b32 v10, v11')
        a('v_max_f32 v10, v10, v11')
        for r in range(16):
            a(f'v_sub_f32 v{NM+r}, 0, v10')
            a(f'v_sub_f32 v{MD+r}, v{MD+r}, v10')
            a(f'v_sub_f32 v{MF+r}, v{MF+r}, v10')
        self.attn_loop(f'v[{NM}:{NM+15}]', None)

    def attn_B(self):
        a = self.a
        FB1 = a.newlabel('AT_FB1'); FB2 = a.newlabel('AT_FB2'); FB3 = a.newlabel('AT_FB3'); DONE = a.newlabel('AT_DONE')
        FB2L = a.newlabel('AT_FB2L')
        if self.args.aprio:
            L = self.if_wave('ge', 4)
            a(f's_setprio {self.args.aprio}')
            a.label(L)
        L = self.if_wave('eq', 0)
        LN = a.newlabel('AT_W0N')
        a(f's_cmp_lg_u32 s{sNEED}, 0')
        a(f's_cbranch_scc1 {LN}')
        a('s_call_b64 s[88:89], SUB_S1FIN')
        a.label(LN)
        a.label(L)
        if self.args.force_fallback:
            a(f's_branch {FB1}')
        self.norm_check(FB1)
        def stage1_if_needed():
            D = a.newlabel('S1_D')
            a(f'v_mov_b32 v11, {L_SIG}')
            a('ds_read_b32 v12, v11 offset:16')
            a('s_waitcnt lgkmcnt(0)')
            a('v_readfirstlane_b32 s61, v12')
            a('s_cmp_eq_u32 s61, 0')
            a(f's_cbranch_scc1 {D}')
            a('s_call_b64 s[88:89], SUB_IMPORT1')
            a.label(D)
        self.stage1_if_needed = stage1_if_needed
        def sync_point(i):
            if i == self.args.fli:
                SK = self.if_wave('ge', 4)
                self.light_flag()
                a.label(SK)
            if i == 0:
                SK = self.if_wave('eq', 4)
                stage1_if_needed()
                a.label(SK)
            SK = a.newlabel('AT_SY')
            a(f's_cmp_lg_u32 s{sRB}, {i}')
            a(f's_cbranch_scc1 {SK}')
            self.cnt_wait(L_CNTA)
            self.norm_check(FB2)
            a.label(SK)
            if i in (1, 2, 3, 4):
                SK = self.if_wave('ge', 6)
                if i == 1:
                    LJ = a.newlabel('AT_J0'); a(f's_cmp_eq_u32 s{sJ}, 0'); a(f's_cbranch_scc1 {LJ}')
                    self.i2_flag()
                    a.label(LJ)
                if i == 2:
                    LJ = a.newlabel('AT_J0'); a(f's_cmp_eq_u32 s{sJ}, 0'); a(f's_cbranch_scc1 {LJ}')
                    self.i2_try()
                    LR = a.newlabel('AT_R2'); a(f's_cmp_eq_u32 s{sNEED}, 0'); a(f's_cbranch_scc1 {LR}')
                    self.i2_flag()
                    a.label(LR)
                    a.label(LJ)
                if i == 3:
                    LJ = a.newlabel('AT_J0'); a(f's_cmp_eq_u32 s{sJ}, 0'); a(f's_cbranch_scc1 {LJ}')
                    a(f's_cmp_eq_u32 s{sNEED}, 0'); a(f's_cbranch_scc1 {LJ}')
                    self.i2_try()
                    a.label(LJ)
                if i == 4:
                    a('s_call_b64 s[88:89], SUB_IMPORT2')
                a.label(SK)
            if i == 4 and self.args.aprio:
                SK = self.if_wave('ge', 4)
                a('s_setprio 0')
                a.label(SK)
            if i >= 4:
                SK = a.newlabel('AT_SYB')
                a(f's_cmp_lg_u32 s{sRB}, {i-4}')
                a(f's_cbranch_scc1 {SK}')
                self.cnt_wait(L_CNTB)
                self.norm_check(FB3)
                a.label(SK)
        self.attn_loop('0', sync_point)
        a(f's_branch {DONE}')
        a.label(FB1)
        a('s_waitcnt lgkmcnt(0)')
        L = self.if_wave('ge', 4)
        self.light_flag()
        L4 = self.if_wave('eq', 4)
        stage1_if_needed()
        a.label(L4)
        a.label(L)
        self.cnt_wait(L_CNTA)
        a.label(FB2)
        L = self.if_wave('ge', 4)
        L6 = self.if_wave('ge', 6)
        a('s_waitcnt vmcnt(0)')
        a(f's_mov_b32 s{sNEED}, 1')
        a('s_call_b64 s[88:89], SUB_IMPORT2')
        a.label(L6)
        self.cnt_wait(L_CNTB)
        a.label(L)
        a.label(FB3)
        a('s_setprio 0')
        a('s_waitcnt vmcnt(0) lgkmcnt(0)')
        self.attn_true()
        a.label(DONE)

    def phi(self, r, tA, tB, sel_lo=False):
        a = self.a
        a(f'v_mul_f32 v{tA}, v102, v{r}')
        a(f'v_fma_f32 v{tB}, v101, v{r}, s52')
        a(f'v_exp_f32_e64 v{tA}, v{tA} clamp')
        a(f'v_max_f32 v{tB}, s52, v{tB}')
        if not sel_lo:
            a(f'v_add_f32 v{r}, v{tA}, v{tB}')
        else:
            a(f'v_add_f32 v{tA}, v{tA}, v{tB}')
            a(f'v_mul_f32 v{r}, v101, v{r}')
            a(f'v_cndmask_b32 v{r}, v{r}, v{tA}, {LO}')

    def epi_A(self):
        a = self.a
        A0, A1 = self.ACC0, self.ACC1
        QA, QB = self.QA, self.QB
        a('s_mov_b32 s53, 0x3fb8aa3b')
        a('v_mul_f32 v102, s53, v101')
        a('s_mov_b32 s52, 0x358637bd')
        t = 0
        def ph(r, sel=False):
            nonlocal t
            self.phi(r, 106 + 2 * (t % 4), 107 + 2 * (t % 4), sel); t += 1
        for r in list(range(A0 + 12, A0 + 16)) + list(range(A1, A1 + 4)): ph(r)
        for r in range(A1 + 4, A1 + 12): a(f'v_mul_f32 v{r}, v101, v{r}')
        for r in range(A1 + 12, A1 + 16): ph(r, True)
        pk = {'B0g3': (126, A0+12), 'B1g0': (128, A1), 'B1g1': (130, A1+4), 'B1g2': (132, A1+8), 'B1g3': (134, A1+12)}
        for n, (d, s_) in pk.items():
            a(f'v_cvt_pk_bf16_f32 v{d}, v{s_}, v{s_+1}')
            a(f'v_cvt_pk_bf16_f32 v{d+1}, v{s_+2}, v{s_+3}')
        self.write_img({n: d for n, (d, _) in pk.items()})
        a('s_waitcnt lgkmcnt(0)')
        a('s_barrier')

    def epi_A_q(self):
        a = self.a
        A0 = self.ACC0
        QA, QB = self.QA, self.QB
        a('s_mov_b32 s52, 0x358637bd')
        for t, r in enumerate(range(A0, A0 + 12)): self.phi(r, 106 + 2 * (t % 3), 107 + 2 * (t % 3))
        for j in range(4): a(f'v_cvt_pk_bf16_f32 v{QA+j}, v{A0+2*j}, v{A0+2*j+1}')
        a(f'v_cvt_pk_bf16_f32 v{QB}, v{A0+8}, v{A0+9}')
        a(f'v_cvt_pk_bf16_f32 v{QB+1}, v{A0+10}, v{A0+11}')
        a('v_mov_b32 v13, 0')
        a(f'v_mov_b32 v{QB+2}, 0')
        a(f'v_mov_b32 v{QB+3}, 0')
        for j in range(2): a(f'v_cndmask_b32 v{QB+j}, v13, v{QB+j}, {LO}')

    def linear_attn(self):
        a = self.a
        QA, QB = self.QA, self.QB
        L = self.if_wave('ge', 4)
        if self.args.wosig:
            a(f's_add_u32 s59, s{sLAYER}, 1')
            self.lds_wait('s59')
        if not self.args.nowo: self.dma_wo(0, 4)
        a.label(L)
        LS = a.newlabel('LA_ST')
        a(f's_cmp_lg_u32 s{sLAYER}, 0')
        a(f's_cbranch_scc1 {LS}')
        self.late_touch()
        L = self.if_wave('ge', 1)
        self.stash_load(1)
        a.label(L)
        a.label(LS)
        L = self.if_wave('ge', 1)
        self.epi_A_q()
        a.label(L)
        E = self.if_wave('eq', 0)
        a('v_lshrrev_b32 v11, 5, v1')
        a('v_bfe_u32 v12, v1, 2, 2')
        a('v_lshlrev_b32 v13, 2, v11')
        a('v_add_u32 v12, v12, v13')
        a('v_add_u32 v12, 256, v12')
        a('v_mul_u32_u24 v12, 48, v12')
        a('v_and_b32 v13, 3, v1')
        a('v_bfe_u32 v107, v1, 4, 1')
        a('v_min_u32 v15, 1, v13')
        a('v_lshlrev_b32 v15, 3, v15')
        a('v_add_u32 v15, 32, v15')
        a('v_lshlrev_b32 v14, 3, v13')
        a('v_and_b32 v106, 1, v13')
        a('v_lshlrev_b32 v106, 4, v106')
        a('v_lshrrev_b32 v108, 1, v13')
        a('v_lshlrev_b32 v108, 3, v108')
        a('v_add_u32 v106, v106, v108')
        a('v_cmp_eq_u32 vcc, 1, v107')
        a('v_cndmask_b32 v14, v14, v15, vcc')
        a('v_cndmask_b32 v106, v106, v15, vcc')
        a('v_add_u32 v104, v12, v106')
        a('v_add_u32 v105, v12, v14')
        a(f'v_add_u32 v105, {VIMG}, v105')
        D = 32
        NB = 4
        def rd(s2):
            s = 112 + 8 * (s2 % NB)
            a(f'ds_read_b64_tr_b16 v[{s}:{s+1}], v104 offset:{s2*768}')
            a(f'ds_read_b64_tr_b16 v[{s+2}:{s+3}], v104 offset:{s2*768+384}')
            a(f'ds_read_b64_tr_b16 v[{s+4}:{s+5}], v105 offset:{s2*768}')
            a(f'ds_read_b64_tr_b16 v[{s+6}:{s+7}], v105 offset:{s2*768+384}')
        for s2 in range(NB - 1): rd(s2)
        for s2 in range(16):
            if s2 + NB - 1 < 16: rd(s2 + NB - 1)
            pend = min(NB - 1, 15 - s2)
            a(f's_waitcnt lgkmcnt({4*pend})')
            s = 112 + 8 * (s2 % NB)
            a(f'{MF32} v[{D}:{D+15}], v[{s}:{s+3}], v[{s+4}:{s+7}], {"0" if s2 == 0 else f"v[{D}:{D+15}]"}')
        (None if self.args.fq else self.fstamp(53))
        a(f's_lshr_b32 s50, s{sLAYER}, 1')
        a(f's_mul_i32 s50, s50, {KVP_SZ}')
        a(f's_add_u32 s50, s50, {WS_KVP}')
        a(f's_lshl_b32 s51, s{sH}, 15')
        a('s_add_u32 s50, s50, s51')
        a(f's_lshl_b32 s51, s{sJ}, 12')
        a('s_add_u32 s51, s51, s50')
        a(f's_add_u32 s53, s{sLAYER}, 17')
        a(f's_add_u32 s53, s53, s{sNONCE}')
        for g in range(3):
            b = 48 + 4 * g
            a(f'v_cvt_pk_bf16_f32 v{b}, v{D+4*g}, v{D+4*g+1}')
            a(f'v_cvt_pk_bf16_f32 v{b+1}, v{D+4*g+2}, v{D+4*g+3}')
            a(f'v_mov_b32 v{b+2}, s53')
            a(f'v_mov_b32 v{b+3}, s53')
        for g in range(3):
            b = 48 + 4 * g
            a(f'buffer_store_dwordx4 v[{b}:{b+3}], v2, {srd(S_WS)}, s51 offen offset:{g*1024} sc1')
        (None if self.args.fq else self.fstamp(54))
        IB = [16, 28, 40, 52, 64, 76, 104, 116]
        PL = a.newlabel('KV_POLL'); PD = a.newlabel('KV_DONE')
        self.epi_A_q()
        if not self.args.noprepoll:
            PP = a.newlabel('KV_PP'); PPD = a.newlabel('KV_PPD')
            a('v_and_b32 v10, 7, v1')
            a('v_lshlrev_b32 v10, 12, v10')
            a('v_add_u32 v10, 2048, v10')
            a('s_mov_b32 s60, 0')
            a.label(PP)
            a(f'buffer_load_dwordx4 v[88:91], v10, {srd(S_WS)}, s50 offen sc1')
            a('s_waitcnt vmcnt(0)')
            a('v_mov_b32 v92, s53')
            a('v_bitop3_b32 v88, v90, v91, v92 bitop3:0x7e')
            a('v_cmp_ne_u32 vcc, 0, v88')
            a('s_and_b32 s61, vcc_lo, 0xff')
            a('s_cmp_eq_u32 s61, 0')
            a(f's_cbranch_scc1 {PPD}')
            a('s_add_u32 s60, s60, 1')
            a(f's_cmp_lt_u32 s60, {self.args.spin}')
            a(f's_cbranch_scc1 {PP}')
            a.label(PPD)
        a('s_mov_b32 s60, 0')
        a.label(PL)
        a('s_mov_b32 s54, s50')
        for j in range(8):
            for g in range(3):
                r = IB[j] + 4 * g
                a(f'buffer_load_dwordx4 v[{r}:{r+3}], v2, {srd(S_WS)}, s54 offen offset:{g*1024} sc1')
            if j < 7: a('s_add_u32 s54, s54, 4096')
        a('v_mov_b32 v88, 0')
        a('v_mov_b32 v89, s53')
        for j in range(8):
            a(f's_waitcnt vmcnt({3*(7-j)})')
            r = IB[j]
            a(f'v_bitop3_b32 v90, v{r+2}, v{r+3}, v89 bitop3:0x7e')
            a(f'v_bitop3_b32 v91, v{r+6}, v{r+7}, v89 bitop3:0x7e')
            a(f'v_bitop3_b32 v92, v{r+10}, v{r+11}, v89 bitop3:0x7e')
            a('v_or3_b32 v88, v88, v90, v91')
            a('v_or_b32 v88, v88, v92')
        a('v_cmp_ne_u32 vcc, 0, v88')
        a('s_cmp_eq_u64 vcc, 0')
        a(f's_cbranch_scc1 {PD}')
        a(f's_cmp_lg_u32 s{sDEAD}, 0')
        a(f's_cbranch_scc1 {PD}')
        a('s_add_u32 s60, s60, 1')
        a(f's_cmp_lt_u32 s60, {self.args.spin}')
        a(f's_cbranch_scc1 {PL}')
        a(f's_mov_b32 s{sDEAD}, 1')
        a.label(PD)
        (None if self.args.fq else self.fstamp(55))
        a(f's_add_u32 s59, s{sLAYER}, 1')
        self.lds_signal('s59')
        a('v_mov_b32 v88, 0x00003f80')
        a('v_mov_b32 v89, 0x3f800000')
        acc = [128 + k for k in range(12)]
        for k in range(12): a(f'v_mov_b32 v{acc[k]}, 0')
        for j in range(8):
            for g in range(3):
                for h2 in range(2):
                    src = IB[j] + 4 * g + h2
                    a(f'v_dot2c_f32_bf16 v{acc[4*g + 2*h2]}, v{src}, v88')
                    a(f'v_dot2c_f32_bf16 v{acc[4*g + 2*h2 + 1]}, v{src}, v89')
        (None if self.args.fq else self.fstamp(56))
        for j in range(6): a(f'v_cvt_pk_bf16_f32 v{64+j}, v{acc[2*j]}, v{acc[2*j+1]}')
        LS0 = a.newlabel('LA_ST0')
        a(f's_cmp_lg_u32 s{sLAYER}, 0')
        a(f's_cbranch_scc1 {LS0}')
        self.stash_load(1)
        a.label(LS0)
        a(f'ds_write_b128 v2, v[64:67] offset:{L_KV}')
        a('v_lshlrev_b32 v13, 3, v1')
        a(f'ds_write_b64 v13, v[68:69] offset:{L_KV+1024}')
        a.label(E)
        a('s_waitcnt lgkmcnt(0)')
        a('s_barrier')
        a('v_lshlrev_b32 v13, 3, v1')
        a(f'ds_read_b128 v[64:67], v2 offset:{L_KV}')
        a(f'ds_read_b64 v[68:69], v13 offset:{L_KV+1024}')
        a('v_mov_b32 v70, 0\nv_mov_b32 v71, 0')
        a('s_waitcnt lgkmcnt(0)')
        a(f'{MF32} v[16:31], v[64:67], v[{QA}:{QA+3}], 0')
        a(f'{MF32} v[16:31], v[68:71], v[{QB}:{QB+3}], v[16:31]')

    def o_addr_lane(self):
        a = self.a
        a('v_bfe_u32 v11, v1, 4, 1')
        a(f'v_mul_u32_u24 v11, {OBS}, v11')
        a('v_and_b32 v12, 15, v1')
        a('v_lshlrev_b32 v12, 4, v12')
        a('v_add_u32 v11, v11, v12')
        a('v_lshrrev_b32 v12, 5, v1')
        a(f's_mul_i32 s51, s{sH}, 5')
        a('v_add_u32 v12, s51, v12')
        def qoff(dst, q):
            a(f'v_lshrrev_b32 v14, 3, {q}')
            a(f'v_lshlrev_b32 {dst}, 10, v14')
            a(f'v_bfe_u32 v14, {q}, 2, 1')
            a('v_lshlrev_b32 v14, 9, v14')
            a(f'v_add_u32 {dst}, {dst}, v14')
            a(f'v_and_b32 v14, 1, {q}')
            a('v_lshlrev_b32 v14, 8, v14')
            a(f'v_add_u32 {dst}, {dst}, v14')
            a(f'v_bfe_u32 v14, {q}, 1, 1')
            a('v_lshlrev_b32 v14, 3, v14')
            a(f'v_add_u32 {dst}, {dst}, v14')
            a(f'v_add_u32 {dst}, {dst}, v11')
        qoff('v40', 'v12')
        a('v_add_u32 v13, 2, v12')
        qoff('v41', 'v13')
        a('s_add_u32 s51, s51, 4')
        a('v_mov_b32 v13, s51')
        qoff('v42', 'v13')

    def o_addr(self):
        a = self.a
        a(f's_lshl_b32 s50, s{sJ}, 4')
        a(f's_lshl_b32 s51, s{sRB}, 1')
        a('s_add_u32 s50, s50, s51')
        a(f's_mul_i32 s50, s50, {OBS}')
        a(f's_add_u32 s50, s50, s{sOF}')

    def finalize_o(self, eps):
        a = self.a
        self.o_addr()
        a(f'v_cndmask_b32 v10, v24, v28, {LO}')
        if eps: a('v_add_f32 v10, 0x358637bd, v10')
        a('v_rcp_f32 v10, v10')
        for r in range(12): a(f'v_mul_f32 v{16+r}, v10, v{16+r}')
        for j in range(6): a(f'v_cvt_pk_bf16_f32 v{32+j}, v{16+2*j}, v{17+2*j}')
        a(f'buffer_store_dwordx2 v[32:33], v{vPO[0]}, {srd(S_WS)}, s50 offen')
        a(f'buffer_store_dwordx2 v[34:35], v{vPO[1]}, {srd(S_WS)}, s50 offen')
        a('s_mov_b64 exec, 0xffffffff')
        a(f'buffer_store_dwordx2 v[36:37], v{vPO[2]}, {srd(S_WS)}, s50 offen')
        a('s_mov_b64 exec, -1')
        a('s_waitcnt vmcnt(0)')

    def wo_phase(self):
        a = self.a
        OFR = 16; WF = 96; AC = 48; XOR_ = [88, 90, 92, 94, 136]
        HELP = a.newlabel('WO_HELP')
        a(f's_cmp_ge_u32 s{sW}, 4')
        a(f's_cbranch_scc1 {HELP}')
        a(f's_lshr_b32 s50, s{sH}, 3')
        a(f's_and_b32 s51, s{sH}, 7')
        a(f's_and_b32 s52, s{sW}, 1')
        a(f's_lshr_b32 s53, s{sW}, 1')
        a(f's_lshl_b32 s54, s{sJ}, 4')
        a('s_lshl_b32 s55, s50, 2')
        a('s_add_u32 s54, s54, s55')
        a('s_lshl_b32 s55, s52, 1')
        a('s_add_u32 s54, s54, s55')
        a(f's_mul_i32 s55, s54, {OBS}')
        a('s_mul_i32 s56, s53, 10240')
        a('s_add_u32 s55, s55, s56')
        a(f's_add_u32 s55, s55, s{sOF}')
        a(f's_add_u32 s56, s55, {OBS}')
        a('s_cmp_eq_u32 s53, 0')
        a('s_cselect_b32 s57, s55, s56')
        a('s_cselect_b32 s56, s56, s55')
        a('s_mov_b32 s55, s57')
        vq = VQ()
        def oload(i):
            for aa in range(2):
                r = OFR + 8 * (i % 4) + 4 * aa
                sb = 's55' if aa == 0 else 's56'
                a(f'buffer_load_dwordx4 v[{r}:{r+3}], v2, {srd(S_WS)}, {sb} offen offset:{(i % 4) * 1024} sc1')
                vq.push(('o', i))
            if i % 4 == 3:
                a('s_add_u32 s55, s55, 4096\ns_add_u32 s56, s56, 4096')
        PF = 3
        for i in range(PF): oload(i)
        (self.fstamp(59) if self.args.flayer else None)
        a('s_mul_i32 s60, s53, 51200')
        a(f's_add_u32 s60, s60, {R_O}')
        a('v_add_u32 v11, s60, v2')
        def wrd1(i, c):
            s = WF + 20 * (i % 2)
            a(f'ds_read_b128 v[{s+4*c}:{s+4*c+3}], v11 offset:{(i*5 + c)*1024}')
        for c in range(5): wrd1(0, c)
        a('s_add_u32 s57, s54, s53')
        a('s_lshr_b32 s58, s57, 1')
        a(f's_mul_i32 s58, s58, {RBS}')
        a('s_mul_i32 s59, s51, 5120')
        a('s_add_u32 s58, s58, s59')
        a('s_and_b32 s59, s57, 1')
        a('s_lshl_b32 s59, s59, 8')
        a('s_add_u32 s58, s58, s59')
        a(f's_add_u32 s59, s58, s{sXF}')
        a('v_lshrrev_b32 v10, 5, v1')
        a('v_lshlrev_b32 v10, 9, v10')
        a('v_and_b32 v12, 15, v1')
        a('v_lshlrev_b32 v12, 4, v12')
        a('v_add_u32 v10, v10, v12')
        a('v_bfe_u32 v12, v1, 4, 1')
        a('v_lshlrev_b32 v12, 3, v12')
        a('v_add_u32 v10, v10, v12')
        (self.fstamp(60) if self.args.flayer else None)
        for i in range(10):
            s = WF + 20 * (i % 2)
            a(f's_waitcnt vmcnt({vq.cnt(("o", i))})')
            if i == 1 and self.args.flayer: self.fstamp(61)
            for c in range(5):
                lg = 4 if i < 9 else (4 - c)
                a(f's_waitcnt lgkmcnt({lg})')
                for aa in range(2):
                    d = AC + 20 * aa + 4 * c; o = OFR + 8 * (i % 4) + 4 * aa
                    cc = '0' if i == 0 else f'v[{d}:{d+3}]'
                    a(f'{MF16} v[{d}:{d+3}], v[{s+4*c}:{s+4*c+3}], v[{o}:{o+3}], {cc}')
                if i < 9: wrd1(i + 1, c)
                if c == 1 and i + PF < 10: oload(i + PF)
                if c == 3 and i >= 5:
                    cc = i - 5
                    if cc == 4: a('s_add_u32 s59, s59, 4096')
                    a(f'buffer_load_dwordx2 v[{XOR_[cc]}:{XOR_[cc]+1}], v10, {srd(S_WS)}, s59 offen offset:{(cc % 4) * 1024} sc1')
                    vq.push('res')
        (self.fstamp(62) if self.args.flayer else None)
        a(f's_mul_i32 s60, s{sW}, 5120')
        a(f's_add_u32 s60, s60, {SCR}')
        a('v_add_u32 v12, s60, v2')
        for c in range(5): a(f'ds_write_b128 v12, v[{AC+20+4*c}:{AC+20+4*c+3}] offset:{c*1024}')
        a('s_waitcnt vmcnt(0)')
        for c in range(5):
            x0, x1 = XOR_[c], XOR_[c] + 1
            b = 100 + 4 * c
            a(f'v_lshlrev_b32 v{b}, 16, v{x0}\nv_and_b32 v{b+1}, 0xffff0000, v{x0}\nv_lshlrev_b32 v{b+2}, 16, v{x1}\nv_and_b32 v{b+3}, 0xffff0000, v{x1}')
            for r in range(4): a(f'v_add_f32 v{AC+4*c+r}, v{AC+4*c+r}, v{b+r}')
        a('s_waitcnt lgkmcnt(0)')
        a.label(HELP)
        a('s_barrier')
        self.stamp(9, True)
        H2 = a.newlabel('WO_H2'); H3 = a.newlabel('WO_H3')
        a(f's_cmp_ge_u32 s{sW}, 4')
        a(f's_cbranch_scc1 {H2}')
        a(f's_xor_b32 s60, s{sW}, 2')
        a('s_mul_i32 s60, s60, 5120')
        a(f's_add_u32 s60, s60, {SCR}')
        a('v_add_u32 v12, s60, v2')
        for c in range(5): a(f'ds_read_b128 v[{16+4*c}:{19+4*c}], v12 offset:{c*1024}')
        a('s_waitcnt lgkmcnt(0)')
        for c in range(5):
            for r in (0, 2): a(f'v_pk_add_f32 v[{AC+4*c+r}:{AC+4*c+r+1}], v[{AC+4*c+r}:{AC+4*c+r+1}], v[{16+4*c+r}:{16+4*c+r+1}]')
            a(f'v_cvt_pk_bf16_f32 v{120+2*c}, v{AC+4*c}, v{AC+4*c+1}')
            a(f'v_cvt_pk_bf16_f32 v{121+2*c}, v{AC+4*c+2}, v{AC+4*c+3}')
        LAST = a.newlabel('WO_LAST')
        a(f's_cmp_eq_u32 s{sLAYER}, 3')
        a(f's_cbranch_scc1 {LAST}')
        a(f's_add_u32 s59, s58, s{sXFN}')
        for c in range(5):
            if c == 4: a('s_add_u32 s59, s59, 4096')
            a(f'buffer_store_dwordx2 v[{120+2*c}:{121+2*c}], v10, {srd(S_WS)}, s59 offen offset:{(c % 4) * 1024}')
        a(f'v_pk_add_f32 v[36:37], v[{AC}:{AC+1}], v[{AC+2}:{AC+3}]')
        a(f'v_pk_mul_f32 v[38:39], v[{AC}:{AC+1}], v[{AC}:{AC+1}]')
        a(f'v_pk_fma_f32 v[38:39], v[{AC+2}:{AC+3}], v[{AC+2}:{AC+3}], v[38:39]')
        for k in range(4, 20, 2):
            a(f'v_pk_add_f32 v[36:37], v[36:37], v[{AC+k}:{AC+k+1}]')
            a(f'v_pk_fma_f32 v[38:39], v[{AC+k}:{AC+k+1}], v[{AC+k}:{AC+k+1}], v[38:39]')
        a('v_add_f32 v40, v36, v37')
        a('v_add_f32 v41, v38, v39')
        a('v_mov_b32 v42, v40\nv_mov_b32 v43, v41')
        a('v_permlane16_swap_b32 v40, v42')
        a('v_permlane16_swap_b32 v41, v43')
        a('v_add_f32 v40, v40, v42\nv_add_f32 v41, v41, v43')
        a('v_mov_b32 v42, v40\nv_mov_b32 v43, v41')
        a('v_permlane32_swap_b32 v40, v42')
        a('v_permlane32_swap_b32 v41, v43')
        a('v_add_f32 v40, v40, v42\nv_add_f32 v41, v41, v43')
        a('s_lshl_b32 s60, s57, 10')
        a('s_lshl_b32 s61, s51, 3')
        a('s_add_u32 s60, s60, s61')
        a(f's_add_u32 s60, s60, s{sSTN}')
        a('v_lshlrev_b32 v42, 6, v1')
        a('s_mov_b64 exec, 0xffff')
        a(f'buffer_store_dwordx2 v[40:41], v42, {srd(S_WS)}, s60 offen')
        a('s_mov_b64 exec, -1')
        a(f's_branch {H3}')
        a.label(LAST)
        a('s_mul_i32 s60, s57, 20480')
        a('s_mul_i32 s61, s51, 160')
        a('s_add_u32 s60, s60, s61')
        a('v_and_b32 v42, 15, v1')
        a('v_mul_u32_u24 v42, 1280, v42')
        a('v_lshrrev_b32 v43, 4, v1')
        a('v_lshlrev_b32 v43, 3, v43')
        a('v_add_u32 v42, v42, v43')
        for c in range(5):
            if self.args.e_noout: continue
            a(f'buffer_store_dwordx2 v[{120+2*c}:{121+2*c}], v42, {srd(S_OUT)}, s60 offen offset:{c*32} {self.args.outflag}')
        a(f's_branch {H3}')
        a.label(H2)
        self.stash_writeback()
        a('s_waitcnt lgkmcnt(0)')
        a.label(H3)

    def set_layer_bases(self):
        a = self.a
        if self.args.noreuse:
            a(f's_mul_i32 s50, s{sLAYER}, {XF_SZ}')
            a(f's_add_u32 s{sXF}, s50, {WS_XF}')
            a(f's_add_u32 s{sXFN}, s{sXF}, {XF_SZ}')
            a(f's_add_u32 s{sOF}, s50, {WS_OF}')
            a(f's_mul_i32 s50, s{sLAYER}, {ST_SZ}')
            a(f's_add_u32 s{sST}, s50, {WS_ST}')
            a(f's_add_u32 s{sSTN}, s{sST}, {ST_SZ}')
            return
        a(f's_and_b32 s51, s{sLAYER}, 1')
        a(f's_mul_i32 s50, s51, {XF_SZ}')
        a(f's_add_u32 s{sXF}, s50, {WS_XF}')
        a(f's_sub_u32 s{sXFN}, {2*WS_XF + XF_SZ}, s{sXF}')
        a(f's_mov_b32 s{sOF}, {WS_OF}')
        a(f's_mul_i32 s50, s51, {ST_SZ}')
        a(f's_add_u32 s{sST}, s50, {WS_ST}')
        a(f's_sub_u32 s{sSTN}, {2*WS_ST + ST_SZ}, s{sST}')

    def build(self):
        a = self.a
        args = self.args
        if args.prof: a('v_mov_b32 v9, 0')
        self.stamp(0)
        if args.prof:
            a('s_memtime s[86:87]')
            a('s_waitcnt lgkmcnt(0)')
        self.entry()
        self.p0()
        self.stamp(1)
        def between0():
            self.colsum_raw_others()
        self.first_sync()
        self.setup_persistent()
        self.stamp(2)
        a('s_waitcnt vmcnt(0)')
        self.fstamp(59)
        a('v_and_b32 v12, 31, v1')
        a('v_lshlrev_b32 v12, 2, v12')
        a('s_mov_b64 exec, 0xffffffff')
        a(f'ds_add_f32 v12, v160 offset:{L_CS}')
        a(f'ds_add_f32 v12, v161 offset:{L_CS+128}')
        a('s_mov_b64 exec, -1')
        self.stash_writeback(mat=0)
        a('s_waitcnt lgkmcnt(0)')
        a('s_barrier')
        a(f'ds_read_b32 v{vCSA}, v12 offset:{L_CS}')
        a(f'ds_read_b32 v{vCSA+1}, v12 offset:{L_CS+128}')
        a(f'v_mov_b32 v11, {L_MODE}')
        a('ds_read_b32 v10, v11')
        a('s_waitcnt lgkmcnt(0)')
        a(f'v_readfirstlane_b32 s{sMODE}, v10')
        a.label('L_LAYER')
        self.set_layer_bases()
        self.qkv_main(packed=True)
        self.ln_fix(packed=True)
        L0 = a.newlabel('L0_CHK')
        a(f's_cmp_lg_u32 s{sLAYER}, 0')
        a(f's_cbranch_scc1 {L0}')
        L = self.if_wave('eq', 0)
        self.check_packs()
        a.label(L)
        a.label(L0)
        self.stamp(3, True)
        a.label('L_AFTERQKV')
        if args.stop == 'qkv':
            SK = a.newlabel('DBG')
            a(f's_cmp_lg_u32 s{sLAYER}, {args.layer}')
            a(f's_cbranch_scc1 {SK}')
            for r in range(16, 48): a(f'v_mul_f32 v{r}, v101, v{r}')
            self.dbg_dump(list(range(16, 48, 4)), 0)
            a('s_branch L_END')
            a.label(SK)
        a(f's_bitcmp1_b32 s{sLAYER}, 0')
        a('s_cbranch_scc1 L_BLAYER')
        self.epi_A()
        self.stamp(4, True)
        self.linear_attn()
        self.stamp(6, True)
        self.finalize_o(eps=True)
        LC = a.newlabel('CSB')
        a(f's_cmp_lg_u32 s{sLAYER}, 0')
        a(f's_cbranch_scc1 {LC}')
        self.stash_cs_sum(1)
        a.label(LC)
        a('s_branch L_ODONE')
        a.label('L_BLAYER')
        self.epi_B()
        L = self.if_wave('ge', 4)
        self.epi_B_q()
        a.label(L)
        self.stamp(4, True)
        self.cstamp(57)
        self.attn_B()
        self.cstamp(59)
        self.stamp(6, True)
        self.finalize_o(eps=False)
        L = self.if_wave('lt', 4)
        self.dma_wo(1, 0)
        a.label(L)
        self.stamp(7, True)
        self.lbar(poller=4, between=lambda: a('s_waitcnt vmcnt(0)'))
        a('s_branch L_BAR1DONE')
        a.label('L_ODONE')
        self.stamp(7, True)
        self.lbar(between=lambda: a('s_waitcnt vmcnt(0)'))
        a.label('L_BAR1DONE')
        self.stamp(8, True)
        if args.stop == 'o':
            a(f's_cmp_eq_u32 s{sLAYER}, {args.layer}')
            a('s_cbranch_scc1 L_END')
        self.wo_phase()
        self.stamp(10, True)
        a(f's_cmp_eq_u32 s{sLAYER}, 3')
        a('s_cbranch_scc1 L_FIN')
        L = self.if_wave('lt', 4)
        a('s_waitcnt vmcnt(0)')
        a.label(L)
        self.stamp(11, True)
        def bw2():
            L = self.if_wave('lt', 4)
            self.stash_writeback()
            a('s_waitcnt lgkmcnt(0)')
            a.label(L)
        self.lbar(between=bw2, after_flag=self.stash_writeback)
        self.stamp(12, True)
        if args.stop == 'x':
            a(f's_cmp_eq_u32 s{sLAYER}, {args.layer}')
            a('s_cbranch_scc1 L_END')
        a(f's_add_u32 s{sLAYER}, s{sLAYER}, 1')
        a('s_branch L_LAYER')
        a.label('L_FIN')
        a('s_waitcnt vmcnt(0)')
        self.stamp(51)
        if args.prof:
            a('s_memtime s[82:83]')
            a('s_waitcnt lgkmcnt(0)')
            a('s_sub_u32 s82, s82, s86')
            a('v_writelane_b32 v9, s82, 52')
        self.stamp_out()
        a('L_END:')
        a('s_endpgm')
        a.label('SUB_IMPORT1')
        a('s_nop 4')
        self.s1_issue(None)
        a.label('SUB_S1FIN')
        a('s_nop 4')
        self.s1_finish()
        a('s_nop 4')
        a('s_setpc_b64 s[88:89]')
        a.label('SUB_IMPORT2')
        a('s_nop 4')
        self.i2_finish()
        a('s_nop 4')
        a('s_setpc_b64 s[88:89]')
        a.label('L_CODE_END')
        body = a.finalize(verbose=True)
        hdr = open("header.txt").read() + f"""; generated by my generator script gen/gen2.py (hand-designed persistent kernel)
; @launch grid=(256,1,1) block=(512,1,1) lds={LDS_BYTES}
.amdgcn_target "amdgcn-amd-amdhsa--gfx950"
.text
.globl {KNAME}
.p2align 8
.type {KNAME},@function
{KNAME}:
"""
        ftr = f""".section .rodata,"a"
.p2align 6
.amdhsa_kernel {KNAME}
  .amdhsa_next_free_vgpr 256
  .amdhsa_next_free_sgpr 102
  .amdhsa_accum_offset 256
  .amdhsa_group_segment_fixed_size 0
  .amdhsa_kernarg_size 72
  .amdhsa_user_sgpr_count 2
  .amdhsa_user_sgpr_kernarg_segment_ptr 1
  .amdhsa_system_sgpr_workgroup_id_x 1
  .amdhsa_float_denorm_mode_32 3
  .amdhsa_float_denorm_mode_16_64 3
.end_amdhsa_kernel
"""
        return hdr + body + ftr

    def between0(self):
        pass

    def first_sync(self):
        a = self.a
        a('s_barrier')
        a(f's_add_u32 s{sEPOCH}, s{sEPOCH}, 1')
        L = self.if_wave('eq', 0)
        self.stamp(60)
        self.check_hello()
        self.stamp(61)
        G1 = a.newlabel('LB_GEN'); G2 = a.newlabel('LB_ST')
        a(f's_lshl_b32 s50, s{sJ}, 8')
        a(f's_add_u32 s50, s50, {WS_LFLAG}')
        a(f's_lshl_b32 s51, s{sH}, 2')
        a('s_add_u32 s51, s51, s50')
        a(f's_add_u32 s62, s{sEPOCH}, s{sNONCE}')
        a('v_mov_b32 v10, s62')
        a('v_mov_b32 v11, 0')
        a(f's_cmp_lg_u32 s{sMODE}, 0')
        a(f's_cbranch_scc1 {G1}')
        a('s_mov_b64 exec, 1')
        a(f'buffer_store_dword v10, v11, {srd(S_WS)}, s51 offen')
        a('s_mov_b64 exec, -1')
        a(f's_branch {G2}')
        a.label(G1)
        a('buffer_wbl2 sc1')
        a('s_waitcnt vmcnt(0)')
        a('s_mov_b64 exec, 1')
        a(f'buffer_store_dword v10, v11, {srd(S_WS)}, s51 offen sc1')
        a('s_mov_b64 exec, -1')
        a.label(G2)
        a(f'v_mov_b32 v10, s{sMODE}')
        a(f'v_mov_b32 v11, {L_MODE}')
        a('ds_write_b32 v11, v10')
        a('s_waitcnt lgkmcnt(0)')
        a.label(L)
        L = self.if_wave('ge', 1)
        L23 = a.newlabel('FS_23')
        a(f's_sub_u32 s50, s{sW}, 2')
        a('s_cmp_lt_u32 s50, 2')
        a(f's_cbranch_scc1 {L23}')
        a.label(L)
        self.poll_packA()
        self.stashA_load()
        LX = a.newlabel('FS_X')
        a(f's_branch {LX}')
        a.label(L23)
        self.poll_packA()
        self.stashA_load()
        self.p0_packs()
        a.label(LX)
        L = self.if_wave('eq', 0)
        a(f's_lshl_b32 s50, s{sJ}, 8')
        a(f's_add_u32 s50, s50, {WS_LFLAG}')
        a('v_and_b32 v11, 31, v1')
        a('v_lshlrev_b32 v11, 2, v11')
        self.poll('v11', 's50', 32, f's{sEPOCH}')
        G3 = a.newlabel('LB_NOINV')
        a(f's_cmp_eq_u32 s{sMODE}, 0')
        a(f's_cbranch_scc1 {G3}')
        a('buffer_inv sc1')
        a('s_waitcnt vmcnt(0)')
        a.label(G3)
        self.stamp(62)
        a.label(L)

if __name__ == '__main__':
    import struct
    ap = argparse.ArgumentParser()
    ap.add_argument('-o', default='out.s')
    ap.add_argument('--stop', default='')
    ap.add_argument('--layer', type=int, default=0)
    ap.add_argument('--spin', type=int, default=20000)
    ap.add_argument('--flayer', type=int, default=1)
    ap.add_argument('--cyc', action='store_true')
    ap.add_argument('--prof', action='store_true')
    ap.add_argument('--noreuse', action='store_true')
    ap.add_argument('--wosig', action='store_true')
    ap.add_argument('--nocodepf', action='store_true')
    ap.add_argument('--fq', action='store_true')
    ap.add_argument('--xring', type=int, default=8)
    ap.add_argument('--prio', type=int, default=0)
    ap.add_argument('--kvsleep', type=int, default=6)
    ap.add_argument('--nowo', action='store_true')
    ap.add_argument('--fb', action='store_true')
    ap.add_argument('--npre', type=int, default=8)
    ap.add_argument('--clk', action='store_true')
    ap.add_argument('--e_now', action='store_true')
    ap.add_argument('--e_m16', action='store_true')
    ap.add_argument('--e_nox', action='store_true')
    ap.add_argument('--fe', action='store_true')
    ap.add_argument('--maxtry', type=int, default=2)
    ap.add_argument('--noprepoll', action='store_true')
    ap.add_argument('--e_half', action='store_true')
    ap.add_argument('--e_dummy', action='store_true')
    ap.add_argument('--fi', action='store_true')
    ap.add_argument('--e_noout', action='store_true')
    ap.add_argument('--outflag', default='')
    ap.add_argument('--permute', action='store_true')
    ap.add_argument('--aprio', type=int, default=1)
    ap.add_argument('--fli', type=int, default=0)
    ap.add_argument('--notouch', action='store_true')
    ap.add_argument('--force_generic', action='store_true')
    ap.add_argument('--force_fallback', action='store_true')
    ap.add_argument('--T', type=float, default=56.0)
    args = ap.parse_args()
    args.t2hex = hex(struct.unpack('<I', struct.pack('<f', args.T * args.T))[0])
    g = G(args)
    open(args.o, 'w').write(g.build())
```

```python
import sys, argparse
sys.path.insert(0, 'gen')
from asmlib import Asm

KNAME = "interleave_layers__linear_attn_block__sliding_block__prompt_kernel"

WS_LFLAG = 0x0000
WS_XFLAG = 0x4000
WS_XF = 0x100000;  XF_SZ = 0x2B0000
RBS = 41984
OBS = 21504
WS_OF = 0x1000000
WS_ST = 0x2000000; ST_SZ = 0x20000
WS_KVX = 0x2200000; KVX_SZ = 0x600000
WS_KVP = 0x3000000; KVP_SZ = 0x100000
WS_PW = 0x4000000; PW_SZ = 81920
WS_PCS = 0x4800000
WS_PO = 0x4900000; PO_SZ = 102400
WS_DBG = 0x8000000

KIMG, VIMG = 0, 24576
L_MISC = 49152
L_CS = L_MISC + 1024
L_KN = L_MISC + 2048
L_KV = L_MISC + 4096
L_MODE = 61424
R_O = 61440
PWL = 81920
RW0 = 71424
WK, WQ, WV = RW0, RW0 + 30768, RW0 + 61536
TK, TQ, TV = 0, 4096, 8192
TBOFF = 12288
SCR = 0
TO = 24576
L_SIG = L_MISC + 3072
L_CNTA = L_MISC + 3080
L_CNTB = L_MISC + 3084
L_MD = L_MISC + 6144
LDS_BYTES = 163840

S_WS, S_X0, S_WQA, S_WOA, S_WQB, S_WOB, S_OUT, S_DBG = 4, 8, 12, 16, 20, 24, 28, 32
sJ, sH, sW, sMODE, sDEAD, sEPOCH, sLAYER, sRB = 36, 37, 38, 39, 40, 41, 42, 43
sLO32 = 44
sXF, sOF, sST = 46, 47, 48
sXCC = 49
sXFN, sSTN = 90, 91
sNONCE = 93
sNEED = 96
sSH = 97
WS_GXCC = 0x2000
WS_XKN = 0x8000
L_NONCE = 61428
LO = f's[{sLO32}:{sLO32+1}]'

def srd(n): return f's[{n}:{n+3}]'

QUADS = {
    0: [(('q', 0), ('q', 1)), (('q', 2), ('q', 3)), (('q', 4), ('q', 5)), (('k', 4), ('k', 3))],
    1: [(('k', 0), ('k', 1)), (('v', 0), ('v', 1)), (('v', 2), ('v', 3)), (('k', 2), ('v', 4))],
}
def quad_off(sec, i, bases):
    bk, bq, bv = bases
    if sec == 'k': return bk + (i + 1) * 8
    if sec == 'q': return bq + i * 8
    return bv + i * 8

vCSA, vCSB = 188, 190
vPI = [4, 5, 6, 7, 8]
vPA = [176, 177, 178]
vPO = [179, 180, 181]
def stash_reg(mat, i):
    if mat == 0: return 192 + 4 * i
    return 144 + 4 * i if i < 4 else 232 + 4 * (i - 4)

MF32 = 'v_mfma_f32_32x32x16_bf16'
MF16 = 'v_mfma_f32_16x16x32_bf16'

class VQ:
    def __init__(self): self.q = []
    def push(self, tag): self.q.append(tag)
    def cnt(self, tag):
        i = max(k for k, t in enumerate(self.q) if t == tag)
        return min(63, len(self.q) - 1 - i)

class G:
    def __init__(self, args):
        self.a = Asm(); self.args = args

    def stamp(self, idx, per_layer=False):
        if not self.args.prof: return
        a = self.a
        a('s_memtime s[82:83]' if self.args.cyc else 's_memrealtime s[82:83]')
        a('s_waitcnt lgkmcnt(0)')
        if per_layer:
            a(f's_mul_i32 s99, s{sLAYER}, 12')
            a(f's_add_u32 s99, s99, {idx}')
            a('s_mov_b32 m0, s99')
            a('s_nop 1')
            a('v_writelane_b32 v9, s82, m0')
        else:
            a(f'v_writelane_b32 v9, s82, {idx}')
    def cstamp(self, idx):
        if not (self.args.prof and self.args.clk): return
        a = self.a
        SK = a.newlabel('CST')
        a(f's_cmp_lg_u32 s{sLAYER}, {self.args.flayer}')
        a(f's_cbranch_scc1 {SK}')
        a('s_memtime s[82:83]')
        a('s_waitcnt lgkmcnt(0)')
        a(f'v_writelane_b32 v9, s82, {idx}')
        a('s_memrealtime s[82:83]')
        a('s_waitcnt lgkmcnt(0)')
        a(f'v_writelane_b32 v9, s82, {idx+1}')
        a.label(SK)
    def fstamp(self, idx):
        if not self.args.prof or self.args.clk: return
        a = self.a
        SK = a.newlabel('FST')
        a(f's_cmp_lg_u32 s{sLAYER}, {self.args.flayer}')
        a(f's_cbranch_scc1 {SK}')
        self.stamp(idx)
        a.label(SK)
    def stamp_out(self):
        if not self.args.prof: return
        a = self.a
        a('s_lshl_b32 s50, s2, 3')
        a(f's_add_u32 s50, s50, s{sW}')
        a('s_lshl_b32 s50, s50, 8')
        a(f's_add_u32 s50, s50, {WS_DBG + 0x400000}')
        a('v_lshlrev_b32 v10, 2, v1')
        a(f'buffer_store_dword v9, v10, {srd(S_WS)}, s50 offen')
        a('s_waitcnt vmcnt(0)')
    def dbg_dump(self, regs, slot):
        a = self.a
        n = len(regs)
        a(f's_mul_i32 s50, s2, {8*n*1024}')
        a(f's_mul_i32 s51, s{sW}, {n*1024}')
        a('s_add_u32 s50, s50, s51')
        a(f's_add_u32 s50, s50, {WS_DBG + slot}')
        for i, r in enumerate(regs):
            a(f'buffer_store_dwordx4 v[{r}:{r+3}], v2, {srd(S_WS)}, s50 offen')
            a('s_add_u32 s50, s50, 1024')
        a('s_waitcnt vmcnt(0)')

    def if_wave(self, cond, val):
        a = self.a
        L = a.newlabel('W')
        inv = {'eq': 's_cmp_lg_u32', 'lt': 's_cmp_ge_u32', 'ge': 's_cmp_lt_u32'}[cond]
        a(f'{inv} s{sW}, {val}')
        a(f's_cbranch_scc1 {L}')
        return L

    def tr_bases(self, d0, d1, bases, tmp=10):
        a = self.a
        t, u, w = f'v{tmp}', f'v{tmp+1}', f'v{tmp+2}'
        a(f'v_bfe_u32 {t}, v1, 4, 1')
        a(f'v_lshlrev_b32 {t}, 2, {t}')
        a(f'v_and_b32 {u}, 3, v1')
        a(f'v_add_u32 {t}, {t}, {u}')
        for B, d in ((0, d0), (1, d1)):
            offs = [quad_off(*QUADS[B][x >> 1][x & 1], bases) for x in range(8)]
            a(f'v_mov_b32 v{d}, {offs[0]}')
            for x in range(1, 8):
                a(f'v_cmp_eq_u32 vcc, {x}, {t}')
                a(f'v_mov_b32 {w}, {offs[x]}')
                a(f'v_cndmask_b32 v{d}, v{d}, {w}, vcc')
        a(f'v_bfe_u32 {u}, v1, 2, 2')
        a(f'v_mul_u32_u24 {u}, 192, {u}')
        a(f'v_lshrrev_b32 {w}, 5, v1')
        a(f'v_mul_u32_u24 {w}, 96, {w}')
        a(f'v_add_u32 {u}, {u}, {w}')
        a(f'v_add_u32 v{d0}, v{d0}, {u}')
        a(f'v_add_u32 v{d1}, v{d1}, {u}')

    def raw_patterns(self):
        a = self.a
        a(f's_mul_i32 s50, s{sH}, 40')
        for u in range(3):
            d = f'v{4+u}'
            a(f'v_add_u32 v10, {64*u}, v1')
            a('v_mul_u32_u24 v11, 21846, v10')
            a('v_lshrrev_b32 v11, 16, v11')
            a('v_mul_u32_u24 v12, 3, v11')
            a('v_sub_u32 v12, v10, v12')
            a('v_lshlrev_b32 v12, 4, v12')
            a('v_and_b32 v13, 0x30, v11')
            a('v_and_b32 v14, 3, v11')
            a('v_lshlrev_b32 v14, 2, v14')
            a('v_add_u32 v13, v13, v14')
            a('v_bfe_u32 v14, v11, 2, 2')
            a('v_add_u32 v13, v13, v14')
            a('v_mul_u32_u24 v13, 3840, v13')
            a('v_add_u32 v13, v13, v12')
            a(f'v_add_u32 {d}, s50, v13')

    def entry(self):
        a = self.a
        a('s_cmp_ge_u32 s2, 256')
        a('s_cbranch_scc1 L_END')
        a('s_load_dwordx16 s[64:79], s[0:1], 0')
        a('s_load_dwordx2 s[80:81], s[0:1], 64')
        a(f's_getreg_b32 s{sXCC}, hwreg(HW_REG_XCC_ID, 0, 4)')
        if self.args.permute:
            a('s_lshr_b32 s50, s2, 5')
            a('s_and_b32 s51, s2, 31')
            a('s_lshl_b32 s51, s51, 3')
            a('s_add_u32 s2, s50, s51')
        a(f's_and_b32 s{sJ}, s2, 7')
        a(f's_lshr_b32 s{sH}, s2, 3')
        a('v_lshrrev_b32 v3, 6, v0')
        a('v_and_b32 v1, 63, v0')
        a(f'v_readfirstlane_b32 s{sW}, v3')
        a('v_lshlrev_b32 v2, 4, v1')
        a(f's_mov_b32 s{sLO32}, -1')
        a(f's_mov_b32 s{sLO32+1}, 0')
        a(f's_mov_b32 s{sMODE}, 0')
        a(f's_mov_b32 s{sDEAD}, 0')
        a(f's_mov_b32 s{sEPOCH}, 0')
        a(f's_mov_b32 s{sLAYER}, 0')
        a(f's_sub_u32 s50, 7, s{sW}')
        a(f's_sub_u32 s51, s{sW}, 4')
        a(f's_cmp_lt_u32 s{sW}, 4')
        a(f's_cselect_b32 s{sRB}, s50, s51')
        a(f's_add_u32 s{sSH}, s{sW}, s{sJ}')
        a(f's_and_b32 s{sSH}, s{sSH}, 7')
        self.raw_patterns()
        a('s_waitcnt lgkmcnt(0)')
        def mk(dst, src, size):
            a(f's_mov_b32 s{dst}, s{src}')
            a(f's_and_b32 s{dst+1}, s{src+1}, 0xffff')
            a(f's_mov_b32 s{dst+2}, {size}')
            a(f's_mov_b32 s{dst+3}, 0x20000')
        mk(S_DBG, 78, 256)
        a(f's_mov_b32 s{sNONCE}, 0')
        self.nonce_create()
        mk(S_X0, 64, 2621440)
        mk(S_WS, 80, 0x10000000)
        mk(S_WQA, 66, 2457600)
        L = self.if_wave('eq', 1)
        self.raw_part_dma(S_WQA, 0)
        a.label(L)
        self.p0_xloads()
        mk(S_WOA, 68, 819200)
        mk(S_WQB, 72, 2457600); mk(S_WOB, 74, 819200); mk(S_OUT, 76, 2621440)

    def nonce_create(self):
        a = self.a
        E = a.newlabel('NC_E')
        a(f's_or_b32 s50, s2, s{sW}')
        a('s_cmp_lg_u32 s50, 0')
        a(f's_cbranch_scc1 {E}')
        a('s_memrealtime s[50:51]')
        a('s_waitcnt lgkmcnt(0)')
        a('s_mul_i32 s50, s50, 0x9E3779B1')
        a('s_mul_i32 s51, s51, 0x85EBCA77')
        a('s_xor_b32 s50, s50, s51')
        a('s_lshr_b32 s51, s50, 15')
        a('s_xor_b32 s50, s50, s51')
        a('s_mul_i32 s50, s50, 0x2C1B3C6D')
        a('s_andn2_b32 s50, s50, 0x7f')
        a(f's_or_b32 s{sNONCE}, s50, 0x40')
        a(f'v_mov_b32 v10, s{sNONCE}')
        a('v_lshlrev_b32 v11, 6, v1')
        a('s_mov_b64 exec, 0xf')
        a(f'buffer_store_dword v10, v11, {srd(S_DBG)}, 0 offen sc1')
        a('s_mov_b64 exec, -1')
        a.label(E)

    def init_flags(self):
        a = self.a
        G = a.newlabel('NON_GET'); D = a.newlabel('NON_DONE'); L = a.newlabel('NON_POLL')
        a('s_cmp_lg_u32 s2, 0')
        a(f's_cbranch_scc0 {D}')
        a.label(G)
        a('s_mov_b32 s60, 0')
        a(f's_and_b32 s50, s{sH}, 3')
        a('s_lshl_b32 s50, s50, 6')
        a('v_mov_b32 v11, s50')
        a('s_waitcnt vmcnt(0)')
        a.label(L)
        a(f'buffer_load_dword v12, v11, {srd(S_DBG)}, 0 offen sc1')
        a('s_waitcnt vmcnt(0)')
        a(f'v_readfirstlane_b32 s{sNONCE}, v12')
        a(f's_cmp_lg_u32 s{sNONCE}, 0')
        a(f's_cbranch_scc1 {D}')
        a('s_sleep 4')
        a('s_add_u32 s60, s60, 1')
        a(f's_cmp_lt_u32 s60, {self.args.spin}')
        a(f's_cbranch_scc1 {L}')
        a(f's_mov_b32 s{sDEAD}, 1')
        a.label(D)
        a(f's_lshl_b32 s50, s{sJ}, 8')
        a(f's_lshl_b32 s51, s{sH}, 2')
        a('s_add_u32 s50, s50, s51')
        a(f's_add_u32 s50, s50, {WS_GXCC}')
        a(f's_and_b32 s51, s{sXCC}, 7')
        a(f's_add_u32 s51, s51, s{sNONCE}')
        a('s_add_u32 s51, s51, 8')
        a('v_mov_b32 v10, s51')
        a('v_mov_b32 v11, 0')
        a('s_mov_b64 exec, 1')
        a(f'buffer_store_dword v10, v11, {srd(S_WS)}, s50 offen sc1')
        a('s_mov_b64 exec, -1')
        a(f'v_mov_b32 v10, s{sNONCE}')
        a(f'v_mov_b32 v11, {L_NONCE}')
        a('ds_write_b32 v11, v10')

    def dma_raw(self, srdW, items):
        a = self.a
        base = {'k': WK, 'q': WQ, 'v': WV}
        soff = {'k': 1280 - 8, 'q': 0, 'v': 2560}
        for sec, Gi in items:
            a(f's_add_u32 s55, s92, {Gi}')
            a('s_cmp_ge_u32 s55, 10')
            a('s_cselect_b32 s56, 10, 0')
            a('s_sub_u32 s55, s55, s56')
            a(f's_mul_i32 s56, s55, {64*3840}')
            a(f's_add_u32 s50, s56, {soff[sec]}')
            a('s_mul_i32 s55, s55, 3072')
            for u in range(3):
                a(f's_add_u32 m0, s55, {base[sec] + u*1024}')
                a(f'buffer_load_dwordx4 v{4+u}, {srd(srdW)}, s50 offen lds')

    def dma_packed(self, nw, w0):
        a = self.a
        per = 80 // nw
        a(f's_add_u32 s50, s{sLAYER}, 1')
        a('s_and_b32 s50, s50, 1')
        a('s_lshl_b32 s50, s50, 5')
        a(f's_add_u32 s50, s50, s{sH}')
        a(f's_mul_i32 s50, s50, {PW_SZ}')
        a(f's_sub_u32 s51, s{sW}, {w0}')
        a(f's_mul_i32 s51, s51, {per*1024}')
        a('s_add_u32 s50, s50, s51')
        a(f's_add_u32 s50, s50, {WS_PW}')
        a(f's_add_u32 s51, s51, {PWL}')
        for i in range(per):
            a(f's_add_u32 m0, s51, {i*1024}')
            if i % 4 == 0 and i > 0: a('s_add_u32 s50, s50, 4096')
            a(f'buffer_load_dwordx4 v2, {srd(S_WS)}, s50 offen sc1 lds') if i % 4 == 0 else None
            if i % 4 != 0:
                a(f's_add_u32 s52, s50, {(i%4)*1024}')
                a(f'buffer_load_dwordx4 v2, {srd(S_WS)}, s52 offen sc1 lds')

    def dma_wo(self, mat, w0):
        a = self.a
        a(f's_and_b32 s50, s{sH}, 7')
        a(f's_add_u32 s50, s50, {mat*8}')
        a(f's_mul_i32 s50, s50, {PO_SZ}')
        a(f's_sub_u32 s51, s{sW}, {w0}')
        a('s_mul_i32 s51, s51, 25600')
        a('s_add_u32 s50, s50, s51')
        a(f's_add_u32 s50, s50, {WS_PO}')
        a(f's_add_u32 s51, s51, {R_O}')
        for i in range(25):
            a(f's_add_u32 m0, s51, {i*1024}')
            a(f's_add_u32 s52, s50, {i*1024}')
            a(f'buffer_load_dwordx4 v2, {srd(S_WS)}, s52 offen sc1 lds')

    def touch_w(self, w0, nw):
        a = self.a
        E = a.newlabel('TW_E')
        a(f's_cmp_eq_u32 s{sLAYER}, 3')
        a(f's_cbranch_scc1 {E}')
        a(f's_add_u32 s50, s{sLAYER}, 1')
        a('s_and_b32 s50, s50, 1')
        a('s_lshl_b32 s50, s50, 5')
        a(f's_add_u32 s50, s50, s{sH}')
        a(f's_mul_i32 s50, s50, {PW_SZ}')
        a(f's_add_u32 s50, s50, {WS_PW}')
        a('v_lshlrev_b32 v11, 7, v1')
        per = -(-10 // nw)
        for t in range(per):
            SK = a.newlabel('TW_SK')
            a(f's_sub_u32 s51, s{sW}, {w0}')
            a(f's_add_u32 s51, s51, {t*nw}')
            a('s_cmp_ge_u32 s51, 10')
            a(f's_cbranch_scc1 {SK}')
            a(f's_add_u32 s51, s51, s{sJ}')
            a('s_cmp_ge_u32 s51, 10')
            a('s_cselect_b32 s52, 10, 0')
            a('s_sub_u32 s51, s51, s52')
            a('s_lshl_b32 s51, s51, 13')
            a('s_add_u32 s51, s51, s50')
            a(f'buffer_load_dword v{250+t}, v11, {srd(S_WS)}, s51 offen sc1')
            a.label(SK)
        a.label(E)

    def check_packs(self):
        a = self.a
        a(f's_lshl_b32 s54, s{sH}, 3')
        self.xflag_addr('s52', 's54')
        a('v_and_b32 v11, 7, v1')
        a('v_lshlrev_b32 v11, 6, v11')
        a('v_add_u32 v11, 16, v11')
        a('s_mov_b32 s53, 1')
        self.poll('v11', 's52', 8, 's53')
        for mat in range(2):
            a(f's_and_b32 s50, s{sH}, 7')
            a(f's_add_u32 s50, s50, {mat*8}')
            a('s_mul_i32 s53, s50, 20')
            a('v_min_u32 v11, 19, v1')
            a('v_add_u32 v11, s53, v11')
            a('v_and_b32 v11, 255, v11')
            a('v_lshlrev_b32 v11, 6, v11')
            a(f's_mov_b32 s52, {WS_XFLAG + 24}')
            a('s_mov_b32 s53, 1')
            self.poll('v11', 's52', 20, 's53')

    def lds_signal(self, val_s):
        a = self.a
        a(f'v_mov_b32 v11, {L_SIG}')
        a(f'v_mov_b32 v12, {val_s}')
        a('ds_write_b32 v11, v12')
    def lds_wait(self, val_s):
        a = self.a
        L = a.newlabel('LW'); D = a.newlabel('LWD')
        a(f'v_mov_b32 v11, {L_SIG}')
        a('s_mov_b32 s60, 0')
        a.label(L)
        a('ds_read_b32 v12, v11')
        a('s_waitcnt lgkmcnt(0)')
        a('v_readfirstlane_b32 s61, v12')
        a(f's_cmp_eq_u32 s61, {val_s}')
        a(f's_cbranch_scc1 {D}')
        a('s_sleep 1')
        a('s_add_u32 s60, s60, 1')
        a('s_cmp_lt_u32 s60, 0x100000')
        a(f's_cbranch_scc1 {L}')
        a.label(D)

    def poll(self, vaddr, soff, nlanes, target_s, tmp='v12'):
        a = self.a
        L = a.newlabel('POLL'); D = a.newlabel('POLLD')
        a(f's_cmp_lg_u32 s{sDEAD}, 0')
        a(f's_cbranch_scc1 {D}')
        a('s_mov_b32 s60, 0')
        a(f's_add_u32 s63, s{sNONCE}, {target_s}')
        mask = (1 << nlanes) - 1
        a.label(L)
        a(f'buffer_load_dword {tmp}, {vaddr}, {srd(S_WS)}, {soff} offen sc1')
        a('s_waitcnt vmcnt(0)')
        a(f'v_subrev_u32 {tmp}, s63, {tmp}')
        a(f'v_cmp_lt_u32 vcc, 7, {tmp}')
        a(f's_and_b32 s61, vcc_lo, {hex(mask & 0xffffffff)}')
        a('s_cmp_eq_u32 s61, 0')
        a(f's_cbranch_scc1 {D}')
        a('s_add_u32 s60, s60, 1')
        a(f's_cmp_lt_u32 s60, {self.args.spin}')
        a(f's_cbranch_scc1 {L}')
        a(f's_mov_b32 s{sDEAD}, 1')
        a.label(D)

    def check_hello(self):
        a = self.a
        L = a.newlabel('HELLO'); D = a.newlabel('HELLOD')
        a('s_mov_b32 s60, 0')
        a('v_and_b32 v11, 31, v1')
        a('v_lshlrev_b32 v11, 2, v11')
        a(f's_lshl_b32 s50, s{sJ}, 8')
        a(f's_add_u32 s50, s50, {WS_GXCC}')
        a(f's_add_u32 s63, s{sNONCE}, 8')
        a.label(L)
        a(f'buffer_load_dword v12, v11, {srd(S_WS)}, s50 offen sc1')
        a('s_waitcnt vmcnt(0)')
        a('v_subrev_u32 v12, s63, v12')
        a('v_cmp_lt_u32 vcc, 7, v12')
        a('s_cmp_eq_u64 vcc, 0')
        a(f's_cbranch_scc1 {D}')
        a('s_add_u32 s60, s60, 1')
        a(f's_cmp_lt_u32 s60, {self.args.spin}')
        a(f's_cbranch_scc1 {L}')
        a(f's_mov_b32 s{sDEAD}, 1')
        a.label(D)
        a(f's_and_b32 s51, s{sXCC}, 7')
        a('v_cmp_ne_u32 vcc, s51, v12')
        a('s_cmp_lg_u64 vcc, 0')
        a(f's_cselect_b32 s{sMODE}, 1, 0')
        if self.args.force_generic:
            a(f's_mov_b32 s{sMODE}, 1')

    def lbar(self, first=False, between=None, poller=0, after_flag=None):
        a = self.a
        a('s_barrier')
        a(f's_add_u32 s{sEPOCH}, s{sEPOCH}, 1')
        W0 = a.newlabel('LB_NOT0'); E = a.newlabel('LB_END')
        a(f's_cmp_lg_u32 s{sW}, {poller}')
        a(f's_cbranch_scc1 {W0}')
        if first:
            self.stamp(60)
            self.check_hello()
            self.stamp(61)
        G1 = a.newlabel('LB_GEN'); G2 = a.newlabel('LB_ST')
        a(f's_lshl_b32 s50, s{sJ}, 8')
        a(f's_add_u32 s50, s50, {WS_LFLAG}')
        a(f's_lshl_b32 s51, s{sH}, 2')
        a('s_add_u32 s51, s51, s50')
        a(f's_add_u32 s62, s{sEPOCH}, s{sNONCE}')
        a('v_mov_b32 v10, s62')
        a('v_mov_b32 v11, 0')
        a(f's_cmp_lg_u32 s{sMODE}, 0')
        a(f's_cbranch_scc1 {G1}')
        a('s_mov_b64 exec, 1')
        a(f'buffer_store_dword v10, v11, {srd(S_WS)}, s51 offen')
        a('s_mov_b64 exec, -1')
        a(f's_branch {G2}')
        a.label(G1)
        a('buffer_wbl2 sc1')
        a('s_waitcnt vmcnt(0)')
        a('s_mov_b64 exec, 1')
        a(f'buffer_store_dword v10, v11, {srd(S_WS)}, s51 offen sc1')
        a('s_mov_b64 exec, -1')
        a.label(G2)
        if after_flag: after_flag()
        a('v_and_b32 v11, 31, v1')
        a('v_lshlrev_b32 v11, 2, v11')
        self.poll('v11', 's50', 32, f's{sEPOCH}')
        if after_flag: a('s_waitcnt lgkmcnt(0)')
        if first: self.stamp(62)
        G3 = a.newlabel('LB_NOINV')
        a(f's_cmp_eq_u32 s{sMODE}, 0')
        a(f's_cbranch_scc1 {G3}')
        a('buffer_inv sc1')
        a('s_waitcnt vmcnt(0)')
        a.label(G3)
        if first:
            a(f'v_mov_b32 v10, s{sMODE}')
            a(f'v_mov_b32 v11, {L_MODE}')
            a('ds_write_b32 v11, v10')
            a('s_waitcnt lgkmcnt(0)')
        a(f's_branch {E}')
        a.label(W0)
        if between: between()
        a.label(E)
        a('s_barrier')
        if first:
            a(f'v_mov_b32 v11, {L_MODE}')
            a('ds_read_b32 v10, v11')
            a('s_waitcnt lgkmcnt(0)')
            a(f'v_readfirstlane_b32 s{sMODE}, v10')

    def xflag_addr(self, dst, wg_s):
        a = self.a
        a(f's_lshl_b32 {dst}, {wg_s}, 6')
        a(f's_add_u32 {dst}, {dst}, {WS_XFLAG}')

    def set_xflag(self, word, val_s, saddr='s52', vt=('v11', 'v12')):
        a = self.a
        self.xflag_addr(saddr, 's2')
        if isinstance(word, int): a(f's_add_u32 {saddr}, {saddr}, {word*4}')
        else: a(f's_add_u32 {saddr}, {saddr}, {word}')
        a(f's_add_u32 s63, s{sNONCE}, {val_s}')
        a(f'v_mov_b32 {vt[0]}, s63')
        a(f'v_mov_b32 {vt[1]}, 0')
        a('s_mov_b64 exec, 1')
        a(f'buffer_store_dword {vt[0]}, {vt[1]}, {srd(S_WS)}, {saddr} offen sc1')
        a('s_mov_b64 exec, -1')

    def pack5(self, vb0, vb1, imm0, mat, with_cs, fb=16):
        a = self.a
        a(f's_add_u32 s50, s{sH}, {mat*32}')
        a(f's_mul_i32 s50, s50, {PW_SZ}')
        a(f's_mul_i32 s51, s{sJ}, {5*2048}')
        a('s_add_u32 s50, s50, s51')
        a(f's_add_u32 s50, s50, {WS_PW}')
        for i in range(5):
            s = fb + 8 * i
            o = imm0(i)
            a(f'ds_read_b64_tr_b16 v[{s}:{s+1}], {vb0} offset:{o}')
            a(f'ds_read_b64_tr_b16 v[{s+2}:{s+3}], {vb0} offset:{o+48}')
            a(f'ds_read_b64_tr_b16 v[{s+4}:{s+5}], {vb1} offset:{o}')
            a(f'ds_read_b64_tr_b16 v[{s+6}:{s+7}], {vb1} offset:{o+48}')
        a('s_mov_b32 s74, 0x00f00000')
        a('s_mov_b32 s75, 0x00f00000')
        a('v_mov_b32 v104, 0')
        a('s_waitcnt lgkmcnt(0)')
        for i in range(5):
            s = fb + 8 * i
            for r in range(4): a(f'v_cndmask_b32 v{s+r}, v{s+r}, v104, s[74:75]')
        for i in range(5):
            s = fb + 8 * i
            a(f'buffer_store_dwordx4 v[{s}:{s+3}], v2, {srd(S_WS)}, s50 offen sc1')
            a(f'buffer_store_dwordx4 v[{s+4}:{s+7}], v2, {srd(S_WS)}, s50 offen offset:1024 sc1')
            a('s_add_u32 s50, s50, 2048')
        if with_cs:
            for r in range(108, 112): a(f'v_mov_b32 v{r}, 0x3f803f80')
            for i in range(5):
                s = fb + 8 * i
                a(f'{MF32} v[112:127], v[108:111], v[{s}:{s+3}], {"0" if i == 0 else "v[112:127]"}')
                a(f'{MF32} v[128:143], v[108:111], v[{s+4}:{s+7}], {"0" if i == 0 else "v[128:143]"}')
            a('v_mov_b32 v104, v112')
            a('v_mov_b32 v105, v128')
            self.store_cs(mat, 104)

    def store_cs(self, mat, r):
        a = self.a
        a(f's_add_u32 s50, s{sH}, {mat*32}')
        a('s_lshl_b32 s50, s50, 3')
        a(f's_add_u32 s50, s50, s{sJ}')
        a('s_lshl_b32 s50, s50, 8')
        a(f's_add_u32 s50, s50, {WS_PCS}')
        a('v_lshlrev_b32 v12, 3, v1')
        a('s_mov_b64 exec, 0xffffffff')
        a(f'buffer_store_dwordx2 v[{r}:{r+1}], v12, {srd(S_WS)}, s50 offen sc1')
        a('s_mov_b64 exec, -1')

    def stash_writeback(self, mat=None):
        a = self.a
        if mat is not None:
            a(f's_mul_i32 s62, s{sSH}, 10240')
            a(f's_add_u32 s62, s62, {PWL}')
            a('v_add_u32 v13, s62, v2')
            for i in range(10):
                r = stash_reg(mat, i)
                a(f'ds_write_b128 v13, v[{r}:{r+3}] offset:{i*1024}')
            return
        E = a.newlabel('SW_E'); LA = a.newlabel('SW_A')
        a(f's_cmp_eq_u32 s{sLAYER}, 3')
        a(f's_cbranch_scc1 {E}')
        a(f's_mul_i32 s62, s{sSH}, 10240')
        a(f's_add_u32 s62, s62, {PWL}')
        a('v_add_u32 v13, s62, v2')
        a(f's_bitcmp1_b32 s{sLAYER}, 0')
        a(f's_cbranch_scc1 {LA}')
        for i in range(10):
            r = stash_reg(1, i)
            a(f'ds_write_b128 v13, v[{r}:{r+3}] offset:{i*1024}')
        a(f's_branch {E}')
        a.label(LA)
        for i in range(10):
            r = stash_reg(0, i)
            a(f'ds_write_b128 v13, v[{r}:{r+3}] offset:{i*1024}')
        a.label(E)

    def stash_writeback_next(self):
        a = self.a
        E = a.newlabel('SWN_E'); LB = a.newlabel('SWN_B')
        a(f's_mul_i32 s62, s{sSH}, 10240')
        a(f's_add_u32 s62, s62, {PWL}')
        a('v_add_u32 v13, s62, v2')
        a(f's_bitcmp1_b32 s{sLAYER}, 0')
        a(f's_cbranch_scc1 {LB}')
        for i in range(10):
            r = stash_reg(0, i)
            a(f'ds_write_b128 v13, v[{r}:{r+3}] offset:{i*1024}')
        a(f's_branch {E}')
        a.label(LB)
        for i in range(10):
            r = stash_reg(1, i)
            a(f'ds_write_b128 v13, v[{r}:{r+3}] offset:{i*1024}')
        a.label(E)

    def stash_load(self, mat):
        a = self.a
        a(f's_add_u32 s50, s{sH}, {32*mat}')
        a(f's_mul_i32 s50, s50, {PW_SZ}')
        a(f's_mul_i32 s51, s{sSH}, 10240')
        a('s_add_u32 s50, s50, s51')
        a(f's_add_u32 s50, s50, {WS_PW}')
        for i in range(10):
            r = stash_reg(mat, i)
            if i % 4 == 0 and i > 0: a('s_add_u32 s50, s50, 4096')
            a(f'buffer_load_dwordx4 v[{r}:{r+3}], v2, {srd(S_WS)}, s50 offen offset:{(i%4)*1024} sc1')
        a('v_and_b32 v11, 31, v1')
        a('v_lshlrev_b32 v11, 3, v11')
        a(f's_add_u32 s52, s{sH}, {32*mat}')
        a('s_lshl_b32 s52, s52, 11')
        a(f's_add_u32 s52, s52, {WS_PCS}')
        for j in range(8):
            a(f'buffer_load_dwordx2 v[{160+2*j}:{161+2*j}], v11, {srd(S_WS)}, s52 offen offset:{j*256} sc1')

    def stash_cs_sum(self, mat):
        a = self.a
        d = vCSA if mat == 0 else vCSB
        a(f'v_add_f32 v{d}, v160, v162')
        a(f'v_add_f32 v{d+1}, v161, v163')
        for j in range(2, 8):
            a(f'v_add_f32 v{d}, v{d}, v{160+2*j}')
            a(f'v_add_f32 v{d+1}, v{d+1}, v{161+2*j}')

    def wait_hello(self):
        a = self.a
        L = a.newlabel('WH'); D = a.newlabel('WHD')
        a('s_mov_b32 s60, 0')
        a('v_lshlrev_b32 v11, 2, v1')
        a.label(L)
        a(f'buffer_load_dword v12, v11, {srd(S_DBG)}, 0 offen sc1')
        a('s_waitcnt vmcnt(0)')
        a('v_and_b32 v13, 0x80808080, v12')
        a('v_cmp_ne_u32 vcc, 0x80808080, v13')
        a('s_cmp_eq_u64 vcc, 0')
        a(f's_cbranch_scc1 {D}')
        a('s_sleep 2')
        a('s_add_u32 s60, s60, 1')
        a(f's_cmp_lt_u32 s60, {self.args.spin}')
        a(f's_cbranch_scc1 {L}')
        a(f's_mov_b32 s{sDEAD}, 1')
        a.label(D)

    def poll_packA(self):
        a = self.a
        a(f's_lshl_b32 s54, s{sH}, 3')
        a(f's_add_u32 s54, s54, s{sSH}')
        self.xflag_addr('s52', 's54')
        a('v_mov_b32 v11, 20')
        a('s_mov_b32 s53, 1')
        self.poll('v11', 's52', 1, 's53')

    def stashA_load(self):
        a = self.a
        a(f's_mul_i32 s50, s{sH}, {PW_SZ}')
        a(f's_mul_i32 s51, s{sSH}, 10240')
        a('s_add_u32 s50, s50, s51')
        a(f's_add_u32 s50, s50, {WS_PW}')
        for i in range(10):
            r = stash_reg(0, i)
            if i % 4 == 0 and i > 0: a('s_add_u32 s50, s50, 4096')
            a(f'buffer_load_dwordx4 v[{r}:{r+3}], v2, {srd(S_WS)}, s50 offen offset:{(i%4)*1024} sc1')
        a('v_and_b32 v11, 31, v1')
        a('v_lshlrev_b32 v11, 3, v11')
        a(f's_lshl_b32 s52, s{sH}, 3')
        a(f's_add_u32 s52, s52, s{sSH}')
        a('s_lshl_b32 s52, s52, 8')
        a(f's_add_u32 s52, s52, {WS_PCS}')
        a(f'buffer_load_dwordx2 v[160:161], v11, {srd(S_WS)}, s52 offen sc1')

    def p0_xloads(self):
        a = self.a
        if not self.args.noreuse:
            L4 = self.if_wave('eq', 4)
            a(f's_lshl_b32 s52, s{sJ}, 3')
            a(f's_lshr_b32 s53, s{sH}, 2')
            a('s_add_u32 s52, s52, s53')
            a(f's_mul_i32 s52, s52, {RBS}')
            a(f's_and_b32 s53, s{sH}, 3')
            a('s_lshl_b32 s53, s53, 7')
            a('s_add_u32 s52, s52, s53')
            a(f's_add_u32 s52, s52, {WS_XF}')
            a('v_lshlrev_b32 v30, 9, v1')
            a(f'buffer_load_dword v31, v30, {srd(S_WS)}, s52 offen')
            a('s_add_u32 s52, s52, 32768')
            a('s_mov_b64 exec, 0xffff')
            a(f'buffer_load_dword v31, v30, {srd(S_WS)}, s52 offen')
            a(f's_lshl_b32 s52, s{sJ}, 14')
            a(f's_lshl_b32 s53, s{sH}, 9')
            a('s_add_u32 s52, s52, s53')
            a(f's_add_u32 s52, s52, {WS_ST}')
            a('v_lshlrev_b32 v30, 7, v1')
            a('s_mov_b64 exec, 0xf')
            a(f'buffer_load_dword v31, v30, {srd(S_WS)}, s52 offen')
            a('s_mov_b64 exec, -1')
            a.label(L4)
        if not self.args.nocodepf:
            L7 = self.if_wave('eq', 7)
            LC = a.newlabel('CPF')
            a(f's_cmp_ge_u32 s{sH}, 6')
            a(f's_cbranch_scc1 {LC}')
            a('s_getpc_b64 s[56:57]')
            a.label('L_PCREF')
            a(f's_sub_u32 s56, s56, L_PCREF-{KNAME}')
            a('s_subb_u32 s57, s57, 0')
            a(f's_lshl_b32 s53, s{sH}, 13')
            a('v_lshlrev_b32 v30, 7, v1')
            a('v_add_u32 v30, s53, v30')
            a(f's_mov_b32 s58, L_CODE_END-{KNAME}-4')
            a('v_min_u32 v30, s58, v30')
            a('global_load_dword v31, v30, s[56:57]')
            a.label(LC)
            a.label(L7)
        a(f's_lshl_b32 s50, s{sJ}, 8')
        a(f's_lshl_b32 s51, s{sH}, 3')
        a('s_add_u32 s50, s50, s51')
        a('s_mul_i32 s52, s50, 1280')
        a('v_and_b32 v10, 7, v0')
        a('v_lshrrev_b32 v11, 3, v0')
        a('v_mul_u32_u24 v12, 1280, v10')
        a('v_lshlrev_b32 v13, 4, v11')
        a('v_add_u32 v12, v12, v13')
        a(f'buffer_load_dwordx4 v[16:19], v12, {srd(S_X0)}, s52 offen')
        a('v_mov_b32 v20, 0\nv_mov_b32 v21, 0\nv_mov_b32 v22, 0\nv_mov_b32 v23, 0')
        L = self.if_wave('lt', 2)
        a(f'buffer_load_dwordx4 v[20:23], v12, {srd(S_X0)}, s52 offen offset:1024')
        a.label(L)

    def late_touch(self):
        a = self.a
        if self.args.noreuse: return
        a('v_lshlrev_b32 v13, 7, v1')
        for w in (6, 5):
            Lw = self.if_wave('eq', w)
            if w == 5:
                a(f's_lshl_b32 s52, s{sJ}, 3')
                a(f's_lshr_b32 s53, s{sH}, 2')
                a('s_add_u32 s52, s52, s53')
                a(f's_mul_i32 s52, s52, {RBS}')
                a(f's_and_b32 s53, s{sH}, 3')
                a('s_mul_i32 s53, s53, 10240')
                a('s_add_u32 s52, s52, s53')
                a(f's_add_u32 s52, s52, {WS_XF + XF_SZ}')
            else:
                a(f's_lshl_b32 s52, s{sJ}, 4')
                a(f's_lshr_b32 s53, s{sH}, 1')
                a('s_add_u32 s52, s52, s53')
                a(f's_mul_i32 s52, s52, {OBS}')
                a(f's_and_b32 s53, s{sH}, 1')
                a('s_mul_i32 s53, s53, 10240')
                a('s_add_u32 s52, s52, s53')
                a(f's_add_u32 s52, s52, {WS_OF}')
            a(f'buffer_load_dword v182, v13, {srd(S_WS)}, s52 offen')
            a('s_add_u32 s52, s52, 8192')
            a('s_mov_b64 exec, 0xffff')
            a(f'buffer_load_dword v182, v13, {srd(S_WS)}, s52 offen')
            a('s_mov_b64 exec, -1')
            a.label(Lw)
        L7 = self.if_wave('eq', 7)
        a(f's_lshl_b32 s52, s{sJ}, 14')
        a(f's_lshl_b32 s53, s{sH}, 9')
        a('s_add_u32 s52, s52, s53')
        a(f's_add_u32 s52, s52, {WS_ST + ST_SZ}')
        a('s_mov_b64 exec, 0xf')
        a(f'buffer_load_dword v182, v13, {srd(S_WS)}, s52 offen')
        a('s_mov_b64 exec, -1')
        a.label(L7)

    def wo_item_dma(self, n, item_s):
        a = self.a
        a(f's_mul_hi_u32 s55, {item_s}, 0xccccccd')
        a('s_mul_i32 s56, s55, 20')
        a(f's_sub_u32 s56, {item_s}, s56')
        a('s_and_b32 s57, s55, 7')
        a('s_mul_i32 s57, s57, 160')
        a('s_mul_i32 s56, s56, 40960')
        a('s_add_u32 s56, s56, s57')
        A = a.newlabel('WOI_A'); E = a.newlabel('WOI_E')
        a('s_cmp_lt_u32 s55, 8')
        a(f's_cbranch_scc1 {A}')
        for u in range(5):
            a(f's_mov_b32 m0, {TO + n*5120 + u*1024}')
            a(f'buffer_load_dwordx4 v{24+u}, {srd(S_WOB)}, s56 offen lds')
        a(f's_branch {E}')
        a.label(A)
        for u in range(5):
            a(f's_mov_b32 m0, {TO + n*5120 + u*1024}')
            a(f'buffer_load_dwordx4 v{24+u}, {srd(S_WOA)}, s56 offen lds')
        a.label(E)

    def wo_item_pack(self, n, item_s):
        a = self.a
        for c in range(5):
            for sx in range(2):
                a(f'ds_read_b64_tr_b16 v[{32+4*c+2*sx}:{33+4*c+2*sx}], v30 offset:{TO + n*5120 + sx*1280 + c*32}')
        a(f's_mul_i32 s55, {item_s}, 5120')
        a(f's_add_u32 s55, s55, {WS_PO}')
        a('s_waitcnt lgkmcnt(0)')
        for c in range(5):
            if c == 4: a('s_add_u32 s55, s55, 4096')
            a(f'buffer_store_dwordx4 v[{32+4*c}:{35+4*c}], v2, {srd(S_WS)}, s55 offen offset:{(c%4)*1024} sc1')

    def raw_part_dma(self, srdW, toff):
        a = self.a
        a(f's_mul_i32 s53, s{sJ}, {80*3840}')
        for sec, tb, so in (('k', TK, 1280 - 8), ('q', TQ, 0), ('v', TV, 2560)):
            for u in range(4):
                a(f's_mov_b32 m0, {toff + tb + u*1024}')
                a(f's_add_u32 s54, s53, {so + (64*3840 if u == 3 else 0)}')
                if u == 3: a('s_mov_b32 exec_hi, 0xffff')
                a(f'buffer_load_dwordx4 v{4 + (u % 3)}, {srd(srdW)}, s54 offen lds')
                if u == 3: a('s_mov_b64 exec, -1')

    def p0(self):
        a = self.a
        self.fstamp(53)
        self.fstamp(54)
        L = self.if_wave('eq', 0)
        self.init_flags()
        a.label(L)
        a(f's_lshl_b32 s53, s{sJ}, 3')
        a(f's_lshr_b32 s54, s{sH}, 2')
        a('s_add_u32 s53, s53, s54')
        a(f's_mul_i32 s53, s53, {RBS}')
        a(f's_and_b32 s54, s{sH}, 3')
        a('s_lshl_b32 s54, s54, 7')
        a('s_add_u32 s53, s53, s54')
        a(f's_add_u32 s53, s53, {WS_XF}')
        a('v_and_b32 v10, 7, v0')
        a('v_lshrrev_b32 v11, 3, v0')
        a('v_lshrrev_b32 v13, 1, v11')
        a('v_lshlrev_b32 v13, 10, v13')
        a('v_and_b32 v14, 1, v11')
        a('v_lshlrev_b32 v14, 9, v14')
        a('v_add_u32 v13, v13, v14')
        a('v_lshlrev_b32 v14, 4, v10')
        a('v_add_u32 v13, v13, v14')
        a('s_add_u32 s54, s53, 32768')
        L = self.if_wave('eq', 1)
        a('v_mov_b32 v40, v13')
        a('s_mov_b32 s94, s53')
        self.tr_bases(106, 107, (TK, TQ, TV))
        a('s_waitcnt vmcnt(2)')
        self.pack5('v106', 'v107', lambda i: i * 768, 0, True, fb=48)
        a('v_mov_b32 v13, v40')
        a('s_mov_b32 s53, s94')
        a('s_add_u32 s54, s53, 32768')
        a('s_waitcnt vmcnt(11)')
        a.label(L)
        Lw = a.newlabel('P0_XW')
        a(f's_cmp_eq_u32 s{sW}, 1')
        a(f's_cbranch_scc1 {Lw}')
        a('s_waitcnt vmcnt(0)')
        a.label(Lw)
        self.fstamp(55)
        a(f'buffer_store_dwordx4 v[16:19], v13, {srd(S_WS)}, s53 offen')
        L = self.if_wave('lt', 2)
        a(f'buffer_store_dwordx4 v[20:23], v13, {srd(S_WS)}, s54 offen')
        a.label(L)
        DD = a.newlabel('P0_DMAD')
        L = self.if_wave('eq', 2)
        a('s_mov_b32 s94, s53')
        a('s_mov_b32 s95, s54')
        self.raw_part_dma(S_WQB, TBOFF)
        a('s_mov_b32 s53, s94')
        a('s_mov_b32 s54, s95')
        a.label(L)
        L = self.if_wave('eq', 3)
        for u in range(5):
            d = f'v{24+u}'
            a(f'v_add_u32 v15, {64*u}, v1')
            a('v_mul_u32_u24 v3, 6554, v15')
            a('v_lshrrev_b32 v3, 16, v3')
            a(f'v_mul_u32_u24 {d}, 10, v3')
            a(f'v_sub_u32 {d}, v15, {d}')
            a(f'v_lshlrev_b32 {d}, 4, {d}')
            a('v_mul_u32_u24 v3, 1280, v3')
            a(f'v_add_u32 {d}, {d}, v3')
        a('s_mov_b32 s58, s2')
        self.wo_item_dma(0, 's58')
        L2 = a.newlabel('P0_NOI2')
        a('s_cmp_ge_u32 s2, 64')
        a(f's_cbranch_scc1 {L2}')
        a('s_add_u32 s59, s2, 256')
        self.wo_item_dma(1, 's59')
        a.label(L2)
        a.label(L)
        a('v_mov_b32 v34, 0\nv_mov_b32 v35, 0')
        for r in range(16, 24):
            a(f'v_lshlrev_b32 v36, 16, v{r}')
            a(f'v_and_b32 v37, 0xffff0000, v{r}')
            a('v_add_f32 v34, v34, v36')
            a('v_fmac_f32 v35, v36, v36')
            a('v_add_f32 v34, v34, v37')
            a('v_fmac_f32 v35, v37, v37')
        for reg in (34, 35):
            a(f'v_mov_b32_dpp v36, v{reg} row_ror:8 row_mask:0xf bank_mask:0xf')
            a(f'v_add_f32 v{reg}, v{reg}, v36')
            a(f'v_mov_b32 v36, v{reg}')
            a(f'v_permlane16_swap_b32 v{reg}, v36')
            a(f'v_add_f32 v{reg}, v{reg}, v36')
            a(f'v_mov_b32 v36, v{reg}')
            a(f'v_permlane32_swap_b32 v{reg}, v36')
            a(f'v_add_f32 v{reg}, v{reg}, v36')
        P0S = L_MISC
        a(f's_lshl_b32 s50, s{sW}, 6')
        a('v_lshlrev_b32 v36, 3, v1')
        a('v_add_u32 v36, s50, v36')
        a('s_mov_b64 exec, 0xff')
        a(f'ds_write_b64 v36, v[34:35] offset:{P0S}')
        a('s_mov_b64 exec, -1')
        a('v_mov_b32 v10, 0')
        a(f'v_mov_b32 v11, {L_SIG}')
        a('ds_write_b32 v11, v10')
        a(f'ds_write_b32 v11, v10 offset:{L_CNTA - L_SIG}')
        a(f'ds_write_b32 v11, v10 offset:{L_CNTB - L_SIG}')
        a('v_lshlrev_b32 v11, 2, v1')
        a(f'ds_write_b32 v11, v10 offset:{L_CS}')
        a('s_waitcnt lgkmcnt(0)')
        self.fstamp(56)
        a('s_barrier')
        self.fstamp(57)
        a(f'v_mov_b32 v11, {L_NONCE}')
        a('ds_read_b32 v10, v11')
        a('s_waitcnt lgkmcnt(0)')
        a(f'v_readfirstlane_b32 s{sNONCE}, v10')
        L = self.if_wave('eq', 0)
        a('v_lshrrev_b32 v10, 2, v1')
        a('v_and_b32 v10, 7, v10')
        a('v_lshlrev_b32 v11, 3, v10')
        for w in range(8):
            a(f'ds_read_b64 v[{28+2*w}:{29+2*w}], v11 offset:{P0S + w*64}')
        a('s_waitcnt lgkmcnt(0)')
        for w in range(1, 8):
            a(f'v_add_f32 v28, v28, v{28+2*w}')
            a(f'v_add_f32 v29, v29, v{29+2*w}')
        a('v_and_b32 v12, 3, v1')
        a('v_cmp_eq_u32 vcc, 0, v12')
        a('v_mov_b32 v30, 0\nv_mov_b32 v31, 0')
        a('v_cndmask_b32 v28, v30, v28, vcc')
        a('v_cndmask_b32 v29, v30, v29, vcc')
        a(f's_lshl_b32 s50, s{sJ}, 8')
        a(f's_lshl_b32 s51, s{sH}, 3')
        a('s_add_u32 s50, s50, s51')
        a('s_lshl_b32 s50, s50, 6')
        a(f's_add_u32 s50, s50, {WS_ST}')
        a('s_mov_b64 exec, 0xffffffff')
        a(f'buffer_store_dwordx4 v[28:31], v2, {srd(S_WS)}, s50 offen')
        a('s_mov_b64 exec, -1')
        a.label(L)
        for w, n in ((2, 12), (3, 5)):
            Lx = self.if_wave('eq', w)
            a(f's_waitcnt vmcnt({n})')
            a.label(Lx)
        Ly = a.newlabel('P0_W23')
        a(f's_sub_u32 s50, s{sW}, 2')
        a('s_cmp_lt_u32 s50, 2')
        a(f's_cbranch_scc1 {Ly}')
        a('s_waitcnt vmcnt(0)')
        a.label(Ly)
        L = self.if_wave('eq', 1)
        self.set_xflag(5, 1)
        a.label(L)
        self.fstamp(58)

    def p0_packs(self):
        a = self.a
        a('s_waitcnt vmcnt(11)')
        L = self.if_wave('eq', 2)
        self.tr_bases(106, 107, (TK + TBOFF, TQ + TBOFF, TV + TBOFF))
        self.pack5('v106', 'v107', lambda i: i * 768, 1, True)
        a.label(L)
        L = self.if_wave('eq', 3)
        a('v_bfe_u32 v30, v1, 5, 1')
        a('v_lshlrev_b32 v30, 4, v30')
        a('v_bfe_u32 v12, v1, 4, 1')
        a('v_lshlrev_b32 v12, 2, v12')
        a('v_add_u32 v30, v30, v12')
        a('v_bfe_u32 v12, v1, 2, 2')
        a('v_add_u32 v30, v30, v12')
        a('v_mul_u32_u24 v30, 160, v30')
        a('v_and_b32 v12, 3, v1')
        a('v_lshlrev_b32 v12, 3, v12')
        a('v_add_u32 v30, v30, v12')
        a('s_mov_b32 s58, s2')
        self.wo_item_pack(0, 's58')
        L2 = a.newlabel('P0_NOI2B')
        a('s_cmp_ge_u32 s2, 64')
        a(f's_cbranch_scc1 {L2}')
        a('s_add_u32 s59, s2, 256')
        self.wo_item_pack(1, 's59')
        a.label(L2)
        a.label(L)

    ACC0, ACC1 = 16, 32
    XR = 48
    WB = 80
    def qkv_main(self, packed):
        a = self.a
        A0, A1, XR, WB = self.ACC0, self.ACC1, self.XR, self.WB
        a.comment('QKV main ' + ('packed' if packed else 'raw'))
        self.cstamp(53)
        if self.args.prio:
            L = self.if_wave('ge', 4)
            a(f's_setprio {self.args.prio}')
            a.label(L)
        vq = VQ()
        a('s_mov_b32 s50, s84')
        def xload(ks):
            r = XR + 4 * (ks % 8)
            if ks % 4 == 0 and ks > 0: a('s_add_u32 s50, s50, 4096')
            a(f'buffer_load_dwordx4 v[{r}:{r+3}], v2, {srd(S_WS)}, s50 offen offset:{(ks % 4) * 1024} sc1')
            vq.push(('x', ks))
        NPRE = self.args.npre
        for ks in range(min(4, NPRE)): xload(ks)
        if packed:
            a(f'v_add_u32 v3, {PWL}, v2')
            a(f'v_add_u32 v15, {PWL + 40960}, v2')
            def wread(ks):
                s = WB + 8 * (ks % 3)
                b = 'v3' if ks < 20 else 'v15'
                o = (ks % 20) * 2048
                a(f'ds_read_b128 v[{s}:{s+3}], {b} offset:{o}')
                if not self.args.e_half: a(f'ds_read_b128 v[{s+4}:{s+7}], {b} offset:{o+1024}')
            nrd = 1 if self.args.e_half else 2
        else:
            def wread(ks):
                s = WB + 8 * (ks % 3)
                a(f'ds_read_b64_tr_b16 v[{s}:{s+1}], v7 offset:{ks*768}')
                a(f'ds_read_b64_tr_b16 v[{s+2}:{s+3}], v7 offset:{ks*768+48}')
                a(f'ds_read_b64_tr_b16 v[{s+4}:{s+5}], v8 offset:{ks*768}')
                a(f'ds_read_b64_tr_b16 v[{s+6}:{s+7}], v8 offset:{ks*768+48}')
            nrd = 4
        wread(0); wread(1)
        for ks in range(4, NPRE): xload(ks)
        nxt = [NPRE]
        a('s_mov_b32 s51, s85')
        a('v_and_b32 v10, 31, v1')
        a('v_lshlrev_b32 v11, 3, v10')
        a('v_lshlrev_b32 v10, 6, v10')
        a('v_lshrrev_b32 v12, 5, v1')
        a('v_lshlrev_b32 v12, 5, v12')
        a('v_add_u32 v10, v10, v12')
        late = [f'buffer_load_dwordx4 v[104:107], v10, {srd(S_WS)}, s51 offen sc1',
                f'buffer_load_dwordx4 v[108:111], v10, {srd(S_WS)}, s51 offen offset:16 sc1']
        lnpre = self.ln_pre_instrs()
        if self.args.fq: self.fstamp(53)
        for ks in range(40):
            if self.args.fq and ks in (1, 8, 20, 39): self.fstamp({1: 54, 8: 55, 20: 56, 39: 57}[ks])
            if ks + 2 < 40 and not self.args.e_now: wread(ks + 2)
            lg = nrd * min(2, 39 - ks)
            a(f's_waitcnt vmcnt({vq.cnt(("x", ks))}) lgkmcnt({lg})')
            s = WB + 8 * (ks % 3); x = XR + 4 * (ks % 8)
            c0 = '0' if ks == 0 else f'v[{A0}:{A0+15}]'
            c1 = '0' if ks == 0 else f'v[{A1}:{A1+15}]'
            if self.args.e_m16:
                for q in range(2):
                    for (AA, so) in ((A0, s), (A1, s + 4)):
                        d = AA + 4 * q + 8 * (ks % 2)
                        a(f'{MF16} v[{d}:{d+3}], v[{so}:{so+3}], v[{x}:{x+3}], {"0" if ks < 2 else f"v[{d}:{d+3}]"}')
            else:
                sA = 140 if self.args.e_dummy else s
                a(f'{MF32} v[{A0}:{A0+15}], v[{sA}:{sA+3}], v[{x}:{x+3}], {c0}')
                s1 = s if self.args.e_half else (136 if self.args.e_dummy else s + 4)
                a(f'{MF32} v[{A1}:{A1+15}], v[{s1}:{s1+3}], v[{x}:{x+3}], {c1}')
            nis = 0
            while nxt[0] < 40 and nxt[0] <= ks + 8 and nis < 2:
                if self.args.e_nox:
                    vq.push(('x', nxt[0]))
                    vq.q.pop(); vq.q.insert(0, ('x', nxt[0]))
                else: xload(nxt[0])
                nxt[0] += 1; nis += 1
            if ks == 10:
                LF = a.newlabel('QK_FL')
                a(f's_cmp_lg_u32 s{sLAYER}, 0')
                a(f's_cbranch_scc1 {LF}')
                for w, word in ((2, 4), (3, 6)):
                    L = self.if_wave('eq', w)
                    self.set_xflag(word, 1, saddr='s54', vt=('v13', 'v14'))
                    a.label(L)
                a.label(LF)
            if ks >= 12 and ks % 2 == 0 and late:
                a(late.pop(0)); vq.push('late')
            if ks >= 25:
                n = -(-len(lnpre) // (39 - ks)) if ks < 39 else len(lnpre)
                for _ in range(min(n, len(lnpre))): a(lnpre.pop(0))
        assert not late and not lnpre
        self.cstamp(55)
        if self.args.prio: a('s_setprio 0')
        a('s_waitcnt vmcnt(0)')
        if self.args.fq: self.fstamp(58)

    def colsum_raw(self):
        a = self.a
        WB = self.WB
        a(f's_mul_i32 s52, s{sW}, 768')
        a('v_add_u32 v12, s52, v7')
        a('v_add_u32 v13, s52, v8')
        for r in range(108, 112): a(f'v_mov_b32 v{r}, 0x3f803f80')
        for i in range(5):
            s = 16 + 8 * i
            a(f'ds_read_b64_tr_b16 v[{s}:{s+1}], v12 offset:{i*6144}')
            a(f'ds_read_b64_tr_b16 v[{s+2}:{s+3}], v12 offset:{i*6144+48}')
            a(f'ds_read_b64_tr_b16 v[{s+4}:{s+5}], v13 offset:{i*6144}')
            a(f'ds_read_b64_tr_b16 v[{s+6}:{s+7}], v13 offset:{i*6144+48}')
        a('s_waitcnt lgkmcnt(0)')
        for i in range(5):
            s = 16 + 8 * i
            a(f'{MF32} v[112:127], v[108:111], v[{s}:{s+3}], {"0" if i == 0 else "v[112:127]"}')
            a(f'{MF32} v[128:143], v[108:111], v[{s+4}:{s+7}], {"0" if i == 0 else "v[128:143]"}')
        a('v_and_b32 v12, 31, v1')
        a('v_lshlrev_b32 v12, 2, v12')
        a('s_mov_b64 exec, 0xffffffff')
        a(f'ds_add_f32 v12, v112 offset:{L_CS}')
        a(f'ds_add_f32 v12, v128 offset:{L_CS+128}')
        a('s_mov_b64 exec, -1')
        a('s_waitcnt lgkmcnt(0)')

    def ln_pre_instrs(self):
        I = []
        I += [f's_bitcmp1_b32 s{sLAYER}, 0', 's_cselect_b64 s[70:71], -1, 0',
              f'v_cndmask_b32 v116, v{vCSA}, v{vCSB}, s[70:71]', f'v_cndmask_b32 v117, v{vCSA+1}, v{vCSB+1}, s[70:71]']
        I += ['v_add_f32 v104, v104, v106', 'v_add_f32 v105, v105, v107', 'v_add_f32 v108, v108, v110', 'v_add_f32 v109, v109, v111',
              'v_add_f32 v112, v104, v108', 'v_add_f32 v113, v105, v109', 'v_mov_b32 v114, v112', 'v_mov_b32 v115, v113',
              'v_mov_b32 v122, 0', 'v_mov_b32 v123, 0',
              'v_permlane32_swap_b32 v112, v114', 'v_permlane32_swap_b32 v113, v115',
              'v_add_f32 v112, v112, v114', 'v_add_f32 v113, v113, v115', 's_mov_b32 s72, 0x3acccccd',
              'v_mul_f32 v112, s72, v112', 'v_mul_f32 v113, s72, v113', 'v_fma_f32 v113, -v112, v112, v113',
              'v_add_f32 v113, 0x3727c5ac, v113', 'v_rsq_f32 v132, v113',
              'v_sub_f32 v114, 0, v112', 'v_cvt_pk_bf16_f32 v120, v114, v114', 'v_lshlrev_b32 v115, 16, v120',
              'v_sub_f32 v115, v114, v115', 'v_cvt_pk_bf16_f32 v121, v115, v122',
              f'v_cndmask_b32 v120, v122, v120, {LO}', f'v_cndmask_b32 v121, v122, v121, {LO}']
        for src, dst in ((116, 124), (117, 128)):
            I += [f'v_cvt_pk_bf16_f32 v118, v{src}, v{src}', 'v_lshlrev_b32 v118, 16, v118', f'v_sub_f32 v119, v{src}, v118',
                  f'v_cvt_pk_bf16_f32 v{dst}, v118, v119', f'v_cvt_pk_bf16_f32 v{dst+1}, v118, v122',
                  f'v_cndmask_b32 v{dst}, v122, v{dst}, {LO}', f'v_cndmask_b32 v{dst+1}, v122, v{dst+1}, {LO}',
                  f'v_mov_b32 v{dst+2}, 0', f'v_mov_b32 v{dst+3}, 0']
        return I

    def ln_fix(self, packed):
        a = self.a
        A0, A1 = self.ACC0, self.ACC1
        a(f'{MF32} v[{A0}:{A0+15}], v[124:127], v[120:123], v[{A0}:{A0+15}]')
        a(f'{MF32} v[{A1}:{A1+15}], v[128:131], v[120:123], v[{A1}:{A1+15}]')
        a('v_mov_b32 v101, v132')

    def img_addr_regs(self):
        a = self.a
        a('v_and_b32 v10, 31, v1')
        a(f's_lshl_b32 s50, s{sRB}, 5')
        a('s_add_u32 s50, s50, 256')
        a('v_add_u32 v10, s50, v10')
        a('v_mul_u32_u24 v10, 48, v10')
        a('v_lshrrev_b32 v11, 5, v1')
        a('v_lshlrev_b32 v12, 4, v11')
        a('v_add_u32 v120, v10, v12')
        a('v_lshlrev_b32 v12, 3, v11')
        a('v_sub_u32 v121, v10, v12')
        a('v_add_u32 v121, 32, v121')
        a('v_add_u32 v122, v10, v12')
        a(f'v_add_u32 v122, {VIMG}, v122')
        a(f'v_mul_u32_u24 v12, {VIMG + 32 - 8}, v11')
        a('v_add_u32 v123, v10, v12')
        a('v_add_u32 v123, 8, v123')
        a(f'v_mul_u32_u24 v12, {VIMG}, v11')
        a('v_add_u32 v124, v10, v12')
        a('v_add_u32 v124, 40, v124')

    def setup_persistent(self):
        a = self.a
        self.img_addr_regs()
        for k in range(5): a(f'v_mov_b32 v{vPI[k]}, v{120+k}')
        self.attn_addr()
        for k in range(3): a(f'v_mov_b32 v{vPA[k]}, v{105+k}')
        self.o_addr_lane()
        for k in range(3): a(f'v_mov_b32 v{vPO[k]}, v{40+k}')
        L = self.if_wave('eq', 5)
        self.attn_masks_md(32)
        for q in range(4):
            a(f'ds_write_b128 v2, v[{32+4*q}:{35+4*q}] offset:{L_MD + q*1024}')
        a('s_waitcnt lgkmcnt(0)')
        a.label(L)

    def write_img(self, regs):
        a = self.a
        a(f'ds_write_b64 v{vPI[0]}, v[{regs["B1g0"]}:{regs["B1g0"]+1}]')
        a(f'ds_write_b64 v{vPI[1]}, v[{regs["B0g3"]}:{regs["B0g3"]+1}]')
        a(f'ds_write_b64 v{vPI[2]}, v[{regs["B1g1"]}:{regs["B1g1"]+1}]')
        a(f'ds_write_b64 v{vPI[2]}, v[{regs["B1g2"]}:{regs["B1g2"]+1}] offset:16')
        a(f'ds_write_b64 v{vPI[3]}, v[{regs["B1g3"]}:{regs["B1g3"]+1}]')
        a('v_mov_b32 v12, 0x3f80')
        a('v_mov_b32 v13, 0')
        a(f'v_cndmask_b32 v12, v12, v13, {LO}')
        a(f'ds_write_b64 v{vPI[4]}, v[12:13]')

    def wave_max(self, reg, tmp):
        a = self.a
        for ror in (8, 4, 2, 1):
            a(f'v_mov_b32_dpp v{tmp}, v{reg} row_ror:{ror} row_mask:0xf bank_mask:0xf')
            a(f'v_max_f32 v{reg}, v{reg}, v{tmp}')
        a(f'v_mov_b32 v{tmp}, v{reg}')
        a(f'v_permlane16_swap_b32 v{reg}, v{tmp}')
        a(f'v_max_f32 v{reg}, v{reg}, v{tmp}')
        a(f'v_mov_b32 v{tmp}, v{reg}')
        a(f'v_permlane32_swap_b32 v{reg}, v{tmp}')
        a(f'v_max_f32 v{reg}, v{reg}, v{tmp}')

    QA, QB = 96, 100
    vQN = 104
    def kvx_base(self, dst, wg_s):
        a = self.a
        a(f's_lshr_b32 {dst}, s{sLAYER}, 1')
        a(f's_mul_i32 {dst}, {dst}, {KVX_SZ}')
        a(f's_add_u32 {dst}, {dst}, {WS_KVX}')
        a(f's_mul_i32 s63, {wg_s}, 24576')
        a(f's_add_u32 {dst}, {dst}, s63')

    def export_own(self):
        a = self.a
        a(f's_mul_i32 s50, s{sRB}, 1536')
        a('v_add_u32 v60, s50, v2')
        a('v_add_u32 v62, 12800, v60')
        a('v_add_u32 v61, 1024, v60')
        a('v_add_u32 v63, 11776, v60')
        a(f'v_cndmask_b32 v61, v63, v61, {LO}')
        a('v_add_u32 v63, 12288, v61')
        a(f'v_add_u32 v10, {VIMG}, v61')
        a(f'v_cndmask_b32 v63, v10, v63, {LO}')
        a('ds_read_b128 v[48:51], v60 offset:12288')
        a('ds_read_b128 v[52:55], v63')
        a(f'ds_read_b128 v[56:59], v62 offset:{VIMG}')
        self.kvx_base('s51', 's2')
        a('s_waitcnt lgkmcnt(0)')
        a(f'buffer_store_dwordx4 v[48:51], v60, {srd(S_WS)}, s51 offen sc1')
        a(f'buffer_store_dwordx4 v[52:55], v61, {srd(S_WS)}, s51 offen sc1')
        a(f'buffer_store_dwordx4 v[56:59], v62, {srd(S_WS)}, s51 offen sc1')

    def set_block_flag(self):
        a = self.a
        a(f's_lshl_b32 s53, s{sRB}, 2')
        a('s_add_u32 s53, s53, 32')
        a(f's_add_u32 s54, s{sLAYER}, 1')
        self.set_xflag('s53', 's54')

    def epi_B(self):
        a = self.a
        A0, A1 = self.ACC0, self.ACC1
        QA, QB = self.QA, self.QB
        a(f's_mov_b32 s{sNEED}, 1')
        a('s_mov_b32 s52, 0x3ea52b5c')
        a('v_mul_f32 v102, s52, v101')
        for r in range(12, 16): a(f'v_mul_f32 v{A0+r}, v101, v{A0+r}')
        for r in range(16): a(f'v_mul_f32 v{A1+r}, v101, v{A1+r}')
        pk = {'B0g3': (106, A0+12), 'B1g0': (108, A1), 'B1g1': (110, A1+4), 'B1g2': (112, A1+8), 'B1g3': (114, A1+12)}
        for n, (d, s_) in pk.items():
            a(f'v_cvt_pk_bf16_f32 v{d}, v{s_}, v{s_+1}')
            a(f'v_cvt_pk_bf16_f32 v{d+1}, v{s_+2}, v{s_+3}')
        self.write_img({n: d for n, (d, _) in pk.items()})
        a(f'v_mul_f32 v118, v{A0+12}, v{A0+12}')
        for r in [A0+13, A0+14, A0+15, A1, A1+1, A1+2, A1+3]: a(f'v_fmac_f32 v118, v{r}, v{r}')
        a(f'v_mul_f32 v119, v{A1+12}, v{A1+12}')
        for r in range(13, 16): a(f'v_fmac_f32 v119, v{A1+r}, v{A1+r}')
        a('v_mov_b32 v13, 0')
        a(f'v_cndmask_b32 v119, v13, v119, {LO}')
        a('v_add_f32 v118, v118, v119')
        a('v_mov_b32 v119, v118')
        a('v_permlane32_swap_b32 v118, v119')
        a('v_add_f32 v118, v118, v119')
        a('s_waitcnt lgkmcnt(0)')
        NOEXP = a.newlabel('EB_NOEXP')
        a(f's_cmp_eq_u32 s{sJ}, 7')
        a(f's_cbranch_scc1 {NOEXP}')
        if self.args.fe: self.fstamp(53)
        self.export_own()
        if self.args.fe: self.fstamp(54)
        a.label(NOEXP)
        self.wave_max(118, 117)
        NOEXP2 = a.newlabel('EB_NOEXP2')
        a(f's_cmp_eq_u32 s{sJ}, 7')
        a(f's_cbranch_scc1 {NOEXP2}')
        a('s_lshl_b32 s52, s2, 6')
        a(f's_add_u32 s52, s52, {WS_XKN}')
        a(f's_lshl_b32 s53, s{sRB}, 2')
        a('v_mov_b32 v12, s53')
        a('s_mov_b64 exec, 1')
        a(f'buffer_store_dword v118, v12, {srd(S_WS)}, s52 offen sc1')
        a('s_mov_b64 exec, -1')
        a.label(NOEXP2)
        a(f's_lshl_b32 s50, s{sW}, 2')
        a('v_mov_b32 v12, s50')
        a('s_mov_b64 exec, 1')
        a(f'ds_write_b32 v12, v118 offset:{L_KN}')
        a('s_mov_b64 exec, -1')
        L = self.if_wave('eq', 0)
        a('v_lshlrev_b32 v12, 2, v1')
        a('v_mov_b32 v13, 0')
        a('s_mov_b64 exec, 0xff')
        a(f'ds_write_b32 v12, v13 offset:{L_KN+32}')
        a('s_mov_b64 exec, -1')
        a.label(L)
        L = self.if_wave('lt', 4)
        self.epi_B_q()
        a.label(L)
        for q in range(4):
            a(f'ds_read_b128 v[{self.AMD+4*q}:{self.AMD+4*q+3}], v2 offset:{L_MD + q*1024}')
        L = self.if_wave('lt', 4)
        LJ = a.newlabel('EB_J7')
        a(f's_cmp_eq_u32 s{sJ}, 7')
        a(f's_cbranch_scc1 {LJ}')
        if self.args.fe: self.fstamp(55)
        a('s_waitcnt vmcnt(0)')
        if self.args.fe: self.fstamp(56)
        self.set_block_flag()
        a.label(LJ)
        if self.args.maxtry > 0:
            L0 = self.if_wave('eq', 0)
            self.s1_issue(self.args.maxtry)
            a(f'v_mov_b32 v11, {L_SIG}')
            a(f'v_mov_b32 v12, s{sNEED}')
            a('ds_write_b32 v11, v12 offset:16')
            a.label(L0)
        a.label(L)
        if self.args.fe: self.fstamp(57)
        if self.args.fli < 0:
            L = self.if_wave('ge', 4)
            self.light_flag()
            a.label(L)
        a('s_waitcnt lgkmcnt(0)')
        a('s_barrier')

    def epi_B_q(self):
        a = self.a
        A0 = self.ACC0
        QA, QB = self.QA, self.QB
        for r in range(0, 12): a(f'v_mul_f32 v{A0+r}, v102, v{A0+r}')
        for j in range(4): a(f'v_cvt_pk_bf16_f32 v{QA+j}, v{A0+2*j}, v{A0+2*j+1}')
        a(f'v_cvt_pk_bf16_f32 v{QB}, v{A0+8}, v{A0+9}')
        a(f'v_cvt_pk_bf16_f32 v{QB+1}, v{A0+10}, v{A0+11}')
        a('v_mul_f32 v116, v16, v16')
        for r in range(1, 8): a(f'v_fmac_f32 v116, v{A0+r}, v{A0+r}')
        a(f'v_mul_f32 v117, v{A0+8}, v{A0+8}')
        for r in range(9, 12): a(f'v_fmac_f32 v117, v{A0+r}, v{A0+r}')
        a('v_mov_b32 v13, 0')
        a(f'v_mov_b32 v{QB+2}, 0x3f80')
        a(f'v_mov_b32 v{QB+3}, 0')
        for j in range(3): a(f'v_cndmask_b32 v{QB+j}, v13, v{QB+j}, {LO}')
        a(f'v_cndmask_b32 v117, v13, v117, {LO}')
        a('v_add_f32 v116, v116, v117')
        a('v_mov_b32 v117, v116')
        a('v_permlane32_swap_b32 v116, v117')
        a(f'v_add_f32 v{self.vQN}, v116, v117')
        self.wave_max(self.vQN, 116)

    def imp_addr(self, st):
        a = self.a
        half = 6144 if st == 1 else 0
        a('v_lshlrev_b32 v10, 4, v0')
        a(f'v_add_u32 v184, {half}, v10')
        a(f'v_add_u32 v185, {half + 4096}, v10')
        a(f'v_add_u32 v186, {12288 + half - 2048}, v10')
        a('v_cmp_gt_u32 vcc, 2048, v10')
        a('v_cndmask_b32 v185, v186, v185, vcc')
        a(f'v_add_u32 v186, {12288 + half + 2048}, v10')
        a(f'v_add_u32 v187, {VIMG - 12288}, v185')
        a('v_cndmask_b32 v187, v187, v185, vcc')

    def imp_flagload(self, st):
        a = self.a
        a('s_sub_u32 s54, s2, 1')
        self.xflag_addr('s52', 's54')
        a('v_and_b32 v11, 3, v1')
        a('v_lshlrev_b32 v11, 2, v11')
        a(f'v_add_u32 v11, {32 + (16 if st == 1 else 0)}, v11')
        a(f'buffer_load_dword v176, v11, {srd(S_WS)}, s52 offen sc1')

    def imp_loads(self, st):
        a = self.a
        a('s_sub_u32 s54, s2, 1')
        self.kvx_base('s51', 's54')
        a(f'buffer_load_dwordx4 v[160:163], v184, {srd(S_WS)}, s51 offen sc1')
        a(f'buffer_load_dwordx4 v[164:167], v185, {srd(S_WS)}, s51 offen sc1')
        a(f'buffer_load_dwordx4 v[168:171], v186, {srd(S_WS)}, s51 offen sc1')
        a('s_lshl_b32 s52, s54, 6')
        a(f's_add_u32 s52, s52, {WS_XKN + (16 if st == 1 else 0)}')
        a('v_and_b32 v11, 3, v1')
        a('v_lshlrev_b32 v11, 2, v11')
        a(f'buffer_load_dword v172, v11, {srd(S_WS)}, s52 offen sc1')

    def imp_try(self, st, nyounger):
        a = self.a
        N = a.newlabel('IT_NO'); E = a.newlabel('IT_E')
        a(f's_waitcnt vmcnt({nyounger})')
        a(f's_add_u32 s63, s{sNONCE}, s{sLAYER}')
        a('s_add_u32 s63, s63, 1')
        a('v_subrev_u32 v176, s63, v176')
        a('v_cmp_lt_u32 vcc, 7, v176')
        a('s_and_b32 s61, vcc_lo, 0xf')
        a('s_cmp_eq_u32 s61, 0')
        a(f's_cbranch_scc0 {N}')
        self.imp_addr(st)
        self.imp_loads(st)
        a(f's_mov_b32 s{sNEED}, 0')
        a(f's_branch {E}')
        a.label(N)
        a(f's_mov_b32 s{sNEED}, 1')
        a.label(E)

    def imp_fill_vals(self, nK, tsrc):
        pass

    def imp_finish(self, st):
        a = self.a
        FILL = a.newlabel('IM_FILL'); E = a.newlabel('IM_END')
        a(f's_cmp_eq_u32 s{sJ}, 0')
        a(f's_cbranch_scc1 {FILL}')
        a('s_sub_u32 s54, s2, 1')
        self.xflag_addr('s52', 's54')
        a(f's_add_u32 s53, s{sLAYER}, 1')
        a('v_and_b32 v11, 3, v1')
        a('v_lshlrev_b32 v11, 2, v11')
        a('v_add_u32 v11, 48, v11')
        self.poll('v11', 's52', 4, 's53')
        self.imp_addr(1)
        self.imp_loads(1)
        a('s_waitcnt vmcnt(0)')
        a('ds_write_b128 v184, v[160:163]')
        a('ds_write_b128 v187, v[164:167]')
        a(f'ds_write_b128 v186, v[168:171] offset:{VIMG - 12288}')
        for ror in (2, 1):
            a(f'v_mov_b32_dpp v173, v172 row_ror:{ror} row_mask:0xf bank_mask:0xf')
            a('v_max_f32 v172, v172, v173')
        a(f'v_mov_b32 v12, {L_KN + 32}')
        a('s_mov_b64 exec, 1')
        a('ds_write_b32 v12, v172')
        a('s_mov_b64 exec, -1')
        a(f's_branch {E}')
        a.label(FILL)
        self.imp_addr(1)
        a('v_lshlrev_b32 v10, 4, v0')
        for r in range(160, 172): a(f'v_mov_b32 v{r}, 0')
        for n, reg in ((0, 162), (1, 166)):
            a(f'v_lshrrev_b32 v11, 4, v10')
            a(f'v_add_u32 v11, {n*256}, v11')
            a('v_mul_u32_u24 v12, 21846, v11')
            a('v_lshrrev_b32 v12, 16, v12')
            a('v_mul_u32_u24 v12, 3, v12')
            a('v_sub_u32 v12, v11, v12')
            a('v_cmp_eq_u32 s[70:71], 2, v12')
            if n == 1:
                a('v_cmp_gt_u32 vcc, 2048, v10')
                a('s_and_b64 s[70:71], s[70:71], vcc')
            a('v_mov_b32 v13, 0xf14a')
            a(f'v_cndmask_b32 v{reg}, v{reg}, v13, s[70:71]')
        a('ds_write_b128 v184, v[160:163]')
        a('ds_write_b128 v187, v[164:167]')
        a(f'ds_write_b128 v186, v[168:171] offset:{VIMG - 12288}')
        a(f'v_mov_b32 v12, {L_KN + 32}')
        a('s_mov_b64 exec, 1')
        a('ds_write_b32 v12, v160')
        a('s_mov_b64 exec, -1')
        a.label(E)
        a('s_waitcnt lgkmcnt(0)')

    S1K = [160, 164, 168, 172, 184, 108]; S1V = [128, 132, 136, 140, 48, 52]
    def s1_issue(self, maxtry):
        a = self.a
        E = a.newlabel('S1_E'); Z = a.newlabel('S1_Z')
        a(f's_mov_b32 s{sNEED}, 0')
        a(f's_cmp_eq_u32 s{sJ}, 0')
        a(f's_cbranch_scc1 {E}')
        a('s_sub_u32 s54, s2, 1')
        self.xflag_addr('s52', 's54')
        a('v_and_b32 v11, 3, v1')
        a('v_lshlrev_b32 v11, 2, v11')
        a('v_add_u32 v11, 48, v11')
        if maxtry is None:
            a(f's_add_u32 s53, s{sLAYER}, 1')
            self.poll('v11', 's52', 4, 's53')
        else:
            L = a.newlabel('S1_TRY'); OK = a.newlabel('S1_OK')
            a('s_mov_b32 s60, 0')
            a(f's_add_u32 s63, s{sNONCE}, s{sLAYER}')
            a('s_add_u32 s63, s63, 1')
            a.label(L)
            a(f'buffer_load_dword v12, v11, {srd(S_WS)}, s52 offen sc1')
            a('s_waitcnt vmcnt(0)')
            a('v_subrev_u32 v12, s63, v12')
            a('v_cmp_lt_u32 vcc, 7, v12')
            a('s_and_b32 s61, vcc_lo, 0xf')
            a('s_cmp_eq_u32 s61, 0')
            a(f's_cbranch_scc1 {OK}')
            a('s_add_u32 s60, s60, 1')
            a(f's_cmp_lt_u32 s60, {maxtry}')
            a(f's_cbranch_scc1 {L}')
            a(f's_mov_b32 s{sNEED}, 1')
            a(f's_branch {E}')
            a.label(OK)
        self.kvx_base('s51', 's54')
        a(f's_add_u32 s55, s51, {12288 + 6144}')
        a('s_add_u32 s51, s51, 6144')
        a('s_lshl_b32 s52, s54, 6')
        a(f's_add_u32 s52, s52, {WS_XKN + 16}')
        a('v_and_b32 v11, 3, v1')
        a('v_lshlrev_b32 v11, 2, v11')
        a(f'buffer_load_dword v14, v11, {srd(S_WS)}, s52 offen sc1')
        for n in range(6):
            if n == 4: a('s_add_u32 s51, s51, 4096')
            r = self.S1K[n]
            a(f'buffer_load_dwordx4 v[{r}:{r+3}], v2, {srd(S_WS)}, s51 offen offset:{(n%4)*1024} sc1')
        for n in range(6):
            if n == 4: a('s_add_u32 s55, s55, 4096')
            r = self.S1V[n]
            a(f'buffer_load_dwordx4 v[{r}:{r+3}], v2, {srd(S_WS)}, s55 offen offset:{(n%4)*1024} sc1')
        a.label(E)

    def s1_finish(self):
        a = self.a
        FILL = a.newlabel('S1_FILL'); E = a.newlabel('S1_END')
        half = 6144
        a(f's_cmp_eq_u32 s{sJ}, 0')
        a(f's_cbranch_scc1 {FILL}')
        a('s_waitcnt vmcnt(12)')
        for ror in (2, 1):
            a(f'v_mov_b32_dpp v15, v14 row_ror:{ror} row_mask:0xf bank_mask:0xf')
            a('v_max_f32 v14, v14, v15')
        a(f'v_mov_b32 v12, {L_KN + 32}')
        a('s_mov_b64 exec, 1')
        a('ds_write_b32 v12, v14')
        a('s_mov_b64 exec, -1')
        for n in range(6):
            r = self.S1K[n]
            a(f's_waitcnt vmcnt({11 - n})')
            a(f'ds_write_b128 v2, v[{r}:{r+3}] offset:{KIMG + half + n*1024}')
        for n in range(6):
            r = self.S1V[n]
            a(f's_waitcnt vmcnt({5 - n})')
            a(f'ds_write_b128 v2, v[{r}:{r+3}] offset:{VIMG + half + n*1024}')
        a(f's_branch {E}')
        a.label(FILL)
        for r in range(160, 168): a(f'v_mov_b32 v{r}, 0')
        for n in range(6):
            a(f'v_add_u32 v11, {n*64}, v1')
            a('v_mul_u32_u24 v12, 21846, v11')
            a('v_lshrrev_b32 v12, 16, v12')
            a('v_mul_u32_u24 v12, 3, v12')
            a('v_sub_u32 v12, v11, v12')
            a('v_cmp_eq_u32 vcc, 2, v12')
            a('v_mov_b32 v13, 0xf14a')
            a('v_cndmask_b32 v162, v160, v13, vcc')
            a(f'ds_write_b128 v2, v[160:163] offset:{KIMG + half + n*1024}')
            a(f'ds_write_b128 v2, v[164:167] offset:{VIMG + half + n*1024}')
        a.label(E)
        a('s_waitcnt lgkmcnt(0)')
        self.cnt_inc(L_CNTA)
        a('s_waitcnt lgkmcnt(0)')

    I2R = [160, 164, 168, 172, 184, 108]
    def i2_flag(self):
        a = self.a
        a('s_sub_u32 s54, s2, 1')
        self.xflag_addr('s52', 's54')
        a('v_and_b32 v11, 3, v1')
        a('v_lshlrev_b32 v11, 2, v11')
        a('v_add_u32 v11, 32, v11')
        a(f'buffer_load_dword v182, v11, {srd(S_WS)}, s52 offen sc1')
    def i2_loads(self):
        a = self.a
        a('s_sub_u32 s54, s2, 1')
        self.kvx_base('s51', 's54')
        a(f's_sub_u32 s55, s{sW}, 6')
        a('s_mul_i32 s55, s55, 12288')
        a('s_add_u32 s51, s51, s55')
        a('s_lshl_b32 s52, s54, 6')
        a(f's_add_u32 s52, s52, {WS_XKN}')
        a('v_and_b32 v11, 3, v1')
        a('v_lshlrev_b32 v11, 2, v11')
        a(f'buffer_load_dword v183, v11, {srd(S_WS)}, s52 offen sc1')
        for n in range(6):
            r = self.I2R[n]
            if n == 4: a('s_add_u32 s51, s51, 4096')
            a(f'buffer_load_dwordx4 v[{r}:{r+3}], v2, {srd(S_WS)}, s51 offen offset:{(n%4)*1024} sc1')
    def i2_try(self):
        a = self.a
        N = a.newlabel('I2T_N'); E = a.newlabel('I2T_E')
        a('s_waitcnt vmcnt(0)')
        a(f's_add_u32 s63, s{sNONCE}, s{sLAYER}')
        a('s_add_u32 s63, s63, 1')
        a('v_subrev_u32 v182, s63, v182')
        a('v_cmp_lt_u32 vcc, 7, v182')
        a('s_and_b32 s61, vcc_lo, 0xf')
        a('s_cmp_eq_u32 s61, 0')
        a(f's_cbranch_scc0 {N}')
        self.i2_loads()
        a(f's_mov_b32 s{sNEED}, 0')
        a(f's_branch {E}')
        a.label(N)
        a(f's_mov_b32 s{sNEED}, 1')
        a.label(E)
    def i2_finish(self):
        a = self.a
        FILL = a.newlabel('I2F_FILL'); E = a.newlabel('I2F_E'); GO = a.newlabel('I2F_GO')
        a(f's_sub_u32 s55, s{sW}, 6')
        a(f's_mul_i32 s55, s55, {VIMG}')
        a('v_add_u32 v13, s55, v2')
        a(f's_cmp_eq_u32 s{sJ}, 0')
        a(f's_cbranch_scc1 {FILL}')
        a(f's_cmp_eq_u32 s{sNEED}, 0')
        a(f's_cbranch_scc1 {GO}')
        a('s_sub_u32 s54, s2, 1')
        self.xflag_addr('s52', 's54')
        a(f's_add_u32 s53, s{sLAYER}, 1')
        a('v_and_b32 v11, 3, v1')
        a('v_lshlrev_b32 v11, 2, v11')
        a('v_add_u32 v11, 32, v11')
        self.poll('v11', 's52', 4, 's53')
        self.i2_loads()
        a.label(GO)
        a('s_waitcnt vmcnt(0)')
        for n in range(6):
            r = self.I2R[n]
            a(f'ds_write_b128 v13, v[{r}:{r+3}] offset:{n*1024}')
        for ror in (2, 1):
            a(f'v_mov_b32_dpp v15, v183 row_ror:{ror} row_mask:0xf bank_mask:0xf')
            a('v_max_f32 v183, v183, v15')
        a(f'v_mov_b32 v12, {L_KN + 36}')
        a('s_mov_b64 exec, 1')
        a('ds_write_b32 v12, v183')
        a('s_mov_b64 exec, -1')
        a(f's_branch {E}')
        a.label(FILL)
        for r in range(160, 164): a(f'v_mov_b32 v{r}, 0')
        for n in range(6):
            a(f'v_add_u32 v11, {n*64}, v1')
            a('v_mul_u32_u24 v12, 21846, v11')
            a('v_lshrrev_b32 v12, 16, v12')
            a('v_mul_u32_u24 v12, 3, v12')
            a('v_sub_u32 v12, v11, v12')
            a('v_cmp_eq_u32 vcc, 2, v12')
            a(f's_cmp_eq_u32 s{sW}, 6')
            a('s_cselect_b32 s55, 0xf14a, 0')
            a('v_mov_b32 v14, s55')
            a('v_cndmask_b32 v162, v160, v14, vcc')
            a(f'ds_write_b128 v13, v[160:163] offset:{n*1024}')
        a.label(E)
        a('s_waitcnt lgkmcnt(0)')
        self.cnt_inc(L_CNTB)
        a('s_waitcnt lgkmcnt(0)')

    def cnt_inc(self, addr):
        a = self.a
        a(f'v_mov_b32 v11, {addr}')
        a('v_mov_b32 v12, 1')
        a('s_mov_b64 exec, 1')
        a('ds_add_u32 v11, v12')
        a('s_mov_b64 exec, -1')

    def cnt_wait(self, addr):
        a = self.a
        L = a.newlabel('CW'); D = a.newlabel('CWD')
        a(f's_add_u32 s62, s{sLAYER}, 1')
        if addr == L_CNTA: a('s_lshr_b32 s62, s62, 1')
        a(f'v_mov_b32 v11, {addr}')
        a('s_mov_b32 s60, 0')
        a.label(L)
        a('ds_read_b32 v12, v11')
        a('s_waitcnt lgkmcnt(0)')
        a('v_readfirstlane_b32 s61, v12')
        a('s_cmp_ge_u32 s61, s62')
        a(f's_cbranch_scc1 {D}')
        a('s_sleep 1')
        a('s_add_u32 s60, s60, 1')
        a('s_cmp_lt_u32 s60, 0x200000')
        a(f's_cbranch_scc1 {L}')
        a.label(D)

    def light_flag(self):
        a = self.a
        E = a.newlabel('LF_E')
        a(f's_cmp_eq_u32 s{sJ}, 7')
        a(f's_cbranch_scc1 {E}')
        a('s_waitcnt vmcnt(0)')
        self.set_block_flag()
        a.label(E)

    def attn_addr(self):
        a = self.a
        a('v_and_b32 v10, 31, v1')
        a(f's_lshl_b32 s50, s{sRB}, 5')
        a('v_add_u32 v10, s50, v10')
        a('v_mul_u32_u24 v10, 48, v10')
        a('v_lshrrev_b32 v11, 5, v1')
        a('v_lshlrev_b32 v12, 4, v11')
        a('v_add_u32 v105, v10, v12')
        a('v_add_u32 v106, 32, v10')
        a('v_bfe_u32 v12, v1, 2, 2')
        a('v_lshlrev_b32 v13, 2, v11')
        a('v_add_u32 v12, v12, v13')
        a('v_add_u32 v12, s50, v12')
        a('v_mul_u32_u24 v12, 48, v12')
        a('v_and_b32 v13, 3, v1')
        a('v_lshlrev_b32 v14, 3, v13')
        a('v_min_u32 v15, 1, v13')
        a('v_lshlrev_b32 v15, 3, v15')
        a('v_add_u32 v15, 32, v15')
        a('v_bfe_u32 v13, v1, 4, 1')
        a('v_cmp_eq_u32 vcc, 1, v13')
        a('v_cndmask_b32 v14, v14, v15, vcc')
        a('v_add_u32 v12, v12, v14')
        a(f'v_add_u32 v107, {VIMG}, v12')

    def attn_masks_md(self, MD):
        a = self.a
        a('v_and_b32 v10, 31, v1')
        a('v_lshrrev_b32 v11, 5, v1')
        a('v_lshlrev_b32 v13, 2, v11')
        a('v_sub_u32 v10, v10, v13')
        a('v_mov_b32 v14, 0xf149f2ca')
        a('v_mov_b32 v15, 0')
        conds = ['s[70:71]', 's[72:73]', 's[74:75]', 's[76:77]']
        for r0 in range(0, 16, 4):
            for q in range(4):
                r = r0 + q
                kk = 8 * (r >> 2) + (r & 3)
                a(f'v_cmp_le_i32 {conds[q]}, {kk}, v10')
            for q in range(4):
                r = r0 + q
                a(f'v_cndmask_b32 v{MD+r}, v14, v15, {conds[q]}')

    def make_mf(self, r0, r1):
        for r in range(r0, r1):
            self.a(f'v_sub_f32 v{self.AMF+r}, 0xf149f2ca, v{self.AMD+r}')

    def norm_check(self, fail_label):
        a = self.a
        a('v_and_b32 v11, 15, v1')
        a('v_lshlrev_b32 v11, 2, v11')
        a(f'ds_read_b32 v12, v11 offset:{L_KN}')
        a('s_waitcnt lgkmcnt(0)')
        for ror in (8, 4, 2, 1):
            a(f'v_mov_b32_dpp v13, v12 row_ror:{ror} row_mask:0xf bank_mask:0xf')
            a('v_max_f32 v12, v12, v13')
        a(f'v_mul_f32 v12, v{self.vQN}, v12')
        a(f's_mov_b32 s50, {self.args.t2hex}')
        a('v_mov_b32 v13, s50')
        a('v_cmp_nle_f32 vcc, v12, v13')
        a('s_cmp_lg_u64 vcc, 0')
        a(f's_cbranch_scc1 {fail_label}')

    AO, AMD, AMF, AVF, AKF, ASB, ANM = 16, 32, 48, 64, 80, 112, 160
    def at_kread(self, i):
        n = 8 - i; s = self.AKF + 8 * (i % 2)
        self.a(f'ds_read_b128 v[{s}:{s+3}], v{vPA[0]} offset:{n*1536}')
        self.a(f'ds_read_b128 v[{s+4}:{s+7}], v{vPA[1]} offset:{n*1536}')
    def at_vread(self, i):
        n = 8 - i; s = self.AVF + 8 * (i % 2)
        for s2 in range(2):
            for sx in range(2):
                self.a(f'ds_read_b64_tr_b16 v[{s+4*s2+2*sx}:{s+4*s2+2*sx+1}], v{vPA[2]} offset:{n*1536 + s2*768 + sx*384}')
    def at_smfma(self, i, part, cz):
        s = self.AKF + 8 * (i % 2); d = self.ASB + 16 * (i % 2)
        MD, MF, QA, QB = self.AMD, self.AMF, self.QA, self.QB
        if part == 0:
            c = f'v[{MD}:{MD+15}]' if i == 0 else f'v[{MF}:{MF+15}]' if i == 8 else cz
            self.a(f'{MF32} v[{d}:{d+15}], v[{s}:{s+3}], v[{QA}:{QA+3}], {c}')
        else:
            self.a(f'{MF32} v[{d}:{d+15}], v[{s+4}:{s+7}], v[{QB}:{QB+3}], v[{d}:{d+15}]')

    def attn_loop(self, cz, sync):
        a = self.a
        O, VF, SB = self.AO, self.AVF, self.ASB
        def pv(i, k):
            s = VF + 8 * (i % 2) + 4 * k; d = SB + 16 * (i % 2) + 4 * k
            c = '0' if (i == 0 and k == 0) else f'v[{O}:{O+15}]'
            a(f'{MF32} v[{O}:{O+15}], v[{s}:{s+3}], v[{d}:{d+3}], {c}')
        self.at_kread(0); self.at_vread(0)
        a('s_waitcnt lgkmcnt(4)')
        self.at_smfma(0, 0, cz); self.at_smfma(0, 1, cz)
        for i in range(9):
            d = SB + 16 * (i % 2)
            if sync and self.args.fi: self.fstamp(53 + i)
            ex = lambda r0, r1: [a(f'v_exp_f32 v{d+r}, v{d+r}') for r in range(r0, r1)]
            cv = lambda j0, j1: [a(f'v_cvt_pk_bf16_f32 v{d+j}, v{d+2*j}, v{d+2*j+1}') for j in range(j0, j1)]
            if i < 8:
                if sync: sync(i)
                self.at_kread(i + 1)
                ex(0, 4)
                if i > 0: pv(i - 1, 1)
                self.at_vread(i + 1)
                a('s_waitcnt lgkmcnt(4)')
                self.at_smfma(i + 1, 0, cz)
                ex(4, 8)
                if sync and i in (5, 6): self.make_mf(8 * (i - 5), 8 * (i - 5) + 8)
                cv(0, 2)
                ex(8, 12)
                self.at_smfma(i + 1, 1, cz)
                cv(2, 4)
                ex(12, 16)
                pv(i, 0)
                cv(4, 8)
            else:
                ex(0, 4)
                pv(i - 1, 1)
                ex(4, 8)
                cv(0, 2)
                ex(8, 12)
                cv(2, 4)
                a('s_waitcnt lgkmcnt(0)')
                ex(12, 16)
                pv(i, 0)
                cv(4, 8)
                pv(i, 1)

    def attn_true(self):
        a = self.a
        MD, MF, SB, NM = self.AMD, self.AMF, self.ASB, self.ANM
        self.make_mf(0, 16)
        a('v_mov_b32 v10, 0xff7fffff')
        a('v_mov_b32 v11, 0xff7fffff')
        self.at_kread(0)
        for i in range(9):
            if i < 8:
                self.at_kread(i + 1); a('s_waitcnt lgkmcnt(2)')
            else: a('s_waitcnt lgkmcnt(0)')
            self.at_smfma(i, 0, '0'); self.at_smfma(i, 1, '0')
            d = SB + 16 * (i % 2)
            for k in range(0, 16, 4):
                a(f'v_max3_f32 v10, v10, v{d+k}, v{d+k+1}')
                a(f'v_max3_f32 v11, v11, v{d+k+2}, v{d+k+3}')
        a('v_max_f32 v10, v10, v11')
        a('v_mov_b32 v11, v10')
        a('v_permlane32_swap_b32 v10, v11')
        a('v_max_f32 v10, v10, v11')
        for r in range(16):
            a(f'v_sub_f32 v{NM+r}, 0, v10')
            a(f'v_sub_f32 v{MD+r}, v{MD+r}, v10')
            a(f'v_sub_f32 v{MF+r}, v{MF+r}, v10')
        self.attn_loop(f'v[{NM}:{NM+15}]', None)

    def attn_B(self):
        a = self.a
        FB1 = a.newlabel('AT_FB1'); FB2 = a.newlabel('AT_FB2'); FB3 = a.newlabel('AT_FB3'); DONE = a.newlabel('AT_DONE')
        FB2L = a.newlabel('AT_FB2L')
        if self.args.aprio:
            L = self.if_wave('ge', 4)
            a(f's_setprio {self.args.aprio}')
            a.label(L)
        L = self.if_wave('eq', 0)
        LN = a.newlabel('AT_W0N')
        a(f's_cmp_lg_u32 s{sNEED}, 0')
        a(f's_cbranch_scc1 {LN}')
        a('s_call_b64 s[88:89], SUB_S1FIN')
        a.label(LN)
        a.label(L)
        if self.args.force_fallback:
            a(f's_branch {FB1}')
        self.norm_check(FB1)
        def stage1_if_needed():
            D = a.newlabel('S1_D')
            a(f'v_mov_b32 v11, {L_SIG}')
            a('ds_read_b32 v12, v11 offset:16')
            a('s_waitcnt lgkmcnt(0)')
            a('v_readfirstlane_b32 s61, v12')
            a('s_cmp_eq_u32 s61, 0')
            a(f's_cbranch_scc1 {D}')
            a('s_call_b64 s[88:89], SUB_IMPORT1')
            a.label(D)
        self.stage1_if_needed = stage1_if_needed
        def sync_point(i):
            if i == self.args.fli:
                SK = self.if_wave('ge', 4)
                self.light_flag()
                a.label(SK)
            if i == 0:
                SK = self.if_wave('eq', 4)
                stage1_if_needed()
                a.label(SK)
            SK = a.newlabel('AT_SY')
            a(f's_cmp_lg_u32 s{sRB}, {i}')
            a(f's_cbranch_scc1 {SK}')
            self.cnt_wait(L_CNTA)
            self.norm_check(FB2)
            a.label(SK)
            if i in (1, 2, 3, 4):
                SK = self.if_wave('ge', 6)
                if i == 1:
                    LJ = a.newlabel('AT_J0'); a(f's_cmp_eq_u32 s{sJ}, 0'); a(f's_cbranch_scc1 {LJ}')
                    self.i2_flag()
                    a.label(LJ)
                if i == 2:
                    LJ = a.newlabel('AT_J0'); a(f's_cmp_eq_u32 s{sJ}, 0'); a(f's_cbranch_scc1 {LJ}')
                    self.i2_try()
                    LR = a.newlabel('AT_R2'); a(f's_cmp_eq_u32 s{sNEED}, 0'); a(f's_cbranch_scc1 {LR}')
                    self.i2_flag()
                    a.label(LR)
                    a.label(LJ)
                if i == 3:
                    LJ = a.newlabel('AT_J0'); a(f's_cmp_eq_u32 s{sJ}, 0'); a(f's_cbranch_scc1 {LJ}')
                    a(f's_cmp_eq_u32 s{sNEED}, 0'); a(f's_cbranch_scc1 {LJ}')
                    self.i2_try()
                    a.label(LJ)
                if i == 4:
                    a('s_call_b64 s[88:89], SUB_IMPORT2')
                a.label(SK)
            if i == 4 and self.args.aprio:
                SK = self.if_wave('ge', 4)
                a('s_setprio 0')
                a.label(SK)
            if i >= 4:
                SK = a.newlabel('AT_SYB')
                a(f's_cmp_lg_u32 s{sRB}, {i-4}')
                a(f's_cbranch_scc1 {SK}')
                self.cnt_wait(L_CNTB)
                self.norm_check(FB3)
                a.label(SK)
        self.attn_loop('0', sync_point)
        a(f's_branch {DONE}')
        a.label(FB1)
        a('s_waitcnt lgkmcnt(0)')
        L = self.if_wave('ge', 4)
        if self.args.fli >= 0: self.light_flag()
        L4 = self.if_wave('eq', 4)
        stage1_if_needed()
        a.label(L4)
        a.label(L)
        self.cnt_wait(L_CNTA)
        a.label(FB2)
        L = self.if_wave('ge', 4)
        L6 = self.if_wave('ge', 6)
        a('s_waitcnt vmcnt(0)')
        a(f's_mov_b32 s{sNEED}, 1')
        a('s_call_b64 s[88:89], SUB_IMPORT2')
        a.label(L6)
        self.cnt_wait(L_CNTB)
        a.label(L)
        a.label(FB3)
        a('s_setprio 0')
        a('s_waitcnt vmcnt(0) lgkmcnt(0)')
        self.attn_true()
        a.label(DONE)

    def phi(self, r, tA, tB, sel_lo=False):
        a = self.a
        a(f'v_mul_f32 v{tA}, v102, v{r}')
        a(f'v_fma_f32 v{tB}, v101, v{r}, s52')
        a(f'v_exp_f32_e64 v{tA}, v{tA} clamp')
        a(f'v_max_f32 v{tB}, s52, v{tB}')
        if not sel_lo:
            a(f'v_add_f32 v{r}, v{tA}, v{tB}')
        else:
            a(f'v_add_f32 v{tA}, v{tA}, v{tB}')
            a(f'v_mul_f32 v{r}, v101, v{r}')
            a(f'v_cndmask_b32 v{r}, v{r}, v{tA}, {LO}')

    def epi_A(self):
        a = self.a
        A0, A1 = self.ACC0, self.ACC1
        QA, QB = self.QA, self.QB
        a('s_mov_b32 s53, 0x3fb8aa3b')
        a('v_mul_f32 v102, s53, v101')
        a('s_mov_b32 s52, 0x358637bd')
        t = 0
        def ph(r, sel=False):
            nonlocal t
            self.phi(r, 106 + 2 * (t % 4), 107 + 2 * (t % 4), sel); t += 1
        for r in list(range(A0 + 12, A0 + 16)) + list(range(A1, A1 + 4)): ph(r)
        for r in range(A1 + 4, A1 + 12): a(f'v_mul_f32 v{r}, v101, v{r}')
        for r in range(A1 + 12, A1 + 16): ph(r, True)
        pk = {'B0g3': (126, A0+12), 'B1g0': (128, A1), 'B1g1': (130, A1+4), 'B1g2': (132, A1+8), 'B1g3': (134, A1+12)}
        for n, (d, s_) in pk.items():
            a(f'v_cvt_pk_bf16_f32 v{d}, v{s_}, v{s_+1}')
            a(f'v_cvt_pk_bf16_f32 v{d+1}, v{s_+2}, v{s_+3}')
        self.write_img({n: d for n, (d, _) in pk.items()})
        a('s_waitcnt lgkmcnt(0)')
        a('s_barrier')

    def epi_A_q(self):
        a = self.a
        A0 = self.ACC0
        QA, QB = self.QA, self.QB
        a('s_mov_b32 s52, 0x358637bd')
        for t, r in enumerate(range(A0, A0 + 12)): self.phi(r, 106 + 2 * (t % 3), 107 + 2 * (t % 3))
        for j in range(4): a(f'v_cvt_pk_bf16_f32 v{QA+j}, v{A0+2*j}, v{A0+2*j+1}')
        a(f'v_cvt_pk_bf16_f32 v{QB}, v{A0+8}, v{A0+9}')
        a(f'v_cvt_pk_bf16_f32 v{QB+1}, v{A0+10}, v{A0+11}')
        a('v_mov_b32 v13, 0')
        a(f'v_mov_b32 v{QB+2}, 0')
        a(f'v_mov_b32 v{QB+3}, 0')
        for j in range(2): a(f'v_cndmask_b32 v{QB+j}, v13, v{QB+j}, {LO}')

    def linear_attn(self):
        a = self.a
        QA, QB = self.QA, self.QB
        L = self.if_wave('ge', 4)
        if self.args.wosig:
            a(f's_add_u32 s59, s{sLAYER}, 1')
            self.lds_wait('s59')
        if not self.args.nowo: self.dma_wo(0, 4)
        a.label(L)
        LS = a.newlabel('LA_ST')
        a(f's_cmp_lg_u32 s{sLAYER}, 0')
        a(f's_cbranch_scc1 {LS}')
        self.late_touch()
        L = self.if_wave('ge', 1)
        self.stash_load(1)
        a.label(L)
        a.label(LS)
        L = self.if_wave('ge', 1)
        self.epi_A_q()
        a.label(L)
        E = self.if_wave('eq', 0)
        a('v_lshrrev_b32 v11, 5, v1')
        a('v_bfe_u32 v12, v1, 2, 2')
        a('v_lshlrev_b32 v13, 2, v11')
        a('v_add_u32 v12, v12, v13')
        a('v_add_u32 v12, 256, v12')
        a('v_mul_u32_u24 v12, 48, v12')
        a('v_and_b32 v13, 3, v1')
        a('v_bfe_u32 v107, v1, 4, 1')
        a('v_min_u32 v15, 1, v13')
        a('v_lshlrev_b32 v15, 3, v15')
        a('v_add_u32 v15, 32, v15')
        a('v_lshlrev_b32 v14, 3, v13')
        a('v_and_b32 v106, 1, v13')
        a('v_lshlrev_b32 v106, 4, v106')
        a('v_lshrrev_b32 v108, 1, v13')
        a('v_lshlrev_b32 v108, 3, v108')
        a('v_add_u32 v106, v106, v108')
        a('v_cmp_eq_u32 vcc, 1, v107')
        a('v_cndmask_b32 v14, v14, v15, vcc')
        a('v_cndmask_b32 v106, v106, v15, vcc')
        a('v_add_u32 v104, v12, v106')
        a('v_add_u32 v105, v12, v14')
        a(f'v_add_u32 v105, {VIMG}, v105')
        D = 32
        NB = 4
        def rd(s2):
            s = 112 + 8 * (s2 % NB)
            a(f'ds_read_b64_tr_b16 v[{s}:{s+1}], v104 offset:{s2*768}')
            a(f'ds_read_b64_tr_b16 v[{s+2}:{s+3}], v104 offset:{s2*768+384}')
            a(f'ds_read_b64_tr_b16 v[{s+4}:{s+5}], v105 offset:{s2*768}')
            a(f'ds_read_b64_tr_b16 v[{s+6}:{s+7}], v105 offset:{s2*768+384}')
        for s2 in range(NB - 1): rd(s2)
        for s2 in range(16):
            if s2 + NB - 1 < 16: rd(s2 + NB - 1)
            pend = min(NB - 1, 15 - s2)
            a(f's_waitcnt lgkmcnt({4*pend})')
            s = 112 + 8 * (s2 % NB)
            a(f'{MF32} v[{D}:{D+15}], v[{s}:{s+3}], v[{s+4}:{s+7}], {"0" if s2 == 0 else f"v[{D}:{D+15}]"}')
        (None if self.args.fq else self.fstamp(53))
        a(f's_lshr_b32 s50, s{sLAYER}, 1')
        a(f's_mul_i32 s50, s50, {KVP_SZ}')
        a(f's_add_u32 s50, s50, {WS_KVP}')
        a(f's_lshl_b32 s51, s{sH}, 15')
        a('s_add_u32 s50, s50, s51')
        a(f's_lshl_b32 s51, s{sJ}, 12')
        a('s_add_u32 s51, s51, s50')
        a(f's_add_u32 s53, s{sLAYER}, 17')
        a(f's_add_u32 s53, s53, s{sNONCE}')
        for g in range(3):
            b = 48 + 4 * g
            a(f'v_cvt_pk_bf16_f32 v{b}, v{D+4*g}, v{D+4*g+1}')
            a(f'v_cvt_pk_bf16_f32 v{b+1}, v{D+4*g+2}, v{D+4*g+3}')
            a(f'v_mov_b32 v{b+2}, s53')
            a(f'v_mov_b32 v{b+3}, s53')
        for g in range(3):
            b = 48 + 4 * g
            a(f'buffer_store_dwordx4 v[{b}:{b+3}], v2, {srd(S_WS)}, s51 offen offset:{g*1024} sc1')
        (None if self.args.fq else self.fstamp(54))
        IB = [16, 28, 40, 52, 64, 76, 104, 116]
        PL = a.newlabel('KV_POLL'); PD = a.newlabel('KV_DONE')
        self.epi_A_q()
        if not self.args.noprepoll:
            PP = a.newlabel('KV_PP'); PPD = a.newlabel('KV_PPD')
            a('v_and_b32 v10, 7, v1')
            a('v_lshlrev_b32 v10, 12, v10')
            a('v_add_u32 v10, 2048, v10')
            a('s_mov_b32 s60, 0')
            a.label(PP)
            a(f'buffer_load_dwordx4 v[88:91], v10, {srd(S_WS)}, s50 offen sc1')
            a('s_waitcnt vmcnt(0)')
            a('v_mov_b32 v92, s53')
            a('v_bitop3_b32 v88, v90, v91, v92 bitop3:0x7e')
            a('v_cmp_ne_u32 vcc, 0, v88')
            a('s_and_b32 s61, vcc_lo, 0xff')
            a('s_cmp_eq_u32 s61, 0')
            a(f's_cbranch_scc1 {PPD}')
            a('s_add_u32 s60, s60, 1')
            a(f's_cmp_lt_u32 s60, {self.args.spin}')
            a(f's_cbranch_scc1 {PP}')
            a.label(PPD)
        a('s_mov_b32 s60, 0')
        a.label(PL)
        a('s_mov_b32 s54, s50')
        for j in range(8):
            for g in range(3):
                r = IB[j] + 4 * g
                a(f'buffer_load_dwordx4 v[{r}:{r+3}], v2, {srd(S_WS)}, s54 offen offset:{g*1024} sc1')
            if j < 7: a('s_add_u32 s54, s54, 4096')
        a('v_mov_b32 v88, 0')
        a('v_mov_b32 v89, s53')
        for j in range(8):
            a(f's_waitcnt vmcnt({3*(7-j)})')
            r = IB[j]
            a(f'v_bitop3_b32 v90, v{r+2}, v{r+3}, v89 bitop3:0x7e')
            a(f'v_bitop3_b32 v91, v{r+6}, v{r+7}, v89 bitop3:0x7e')
            a(f'v_bitop3_b32 v92, v{r+10}, v{r+11}, v89 bitop3:0x7e')
            a('v_or3_b32 v88, v88, v90, v91')
            a('v_or_b32 v88, v88, v92')
        a('v_cmp_ne_u32 vcc, 0, v88')
        a('s_cmp_eq_u64 vcc, 0')
        a(f's_cbranch_scc1 {PD}')
        a(f's_cmp_lg_u32 s{sDEAD}, 0')
        a(f's_cbranch_scc1 {PD}')
        a('s_add_u32 s60, s60, 1')
        a(f's_cmp_lt_u32 s60, {self.args.spin}')
        a(f's_cbranch_scc1 {PL}')
        a(f's_mov_b32 s{sDEAD}, 1')
        a.label(PD)
        (None if self.args.fq else self.fstamp(55))
        a(f's_add_u32 s59, s{sLAYER}, 1')
        self.lds_signal('s59')
        a('v_mov_b32 v88, 0x00003f80')
        a('v_mov_b32 v89, 0x3f800000')
        acc = [128 + k for k in range(12)]
        for k in range(12): a(f'v_mov_b32 v{acc[k]}, 0')
        for j in range(8):
            for g in range(3):
                for h2 in range(2):
                    src = IB[j] + 4 * g + h2
                    a(f'v_dot2c_f32_bf16 v{acc[4*g + 2*h2]}, v{src}, v88')
                    a(f'v_dot2c_f32_bf16 v{acc[4*g + 2*h2 + 1]}, v{src}, v89')
        (None if self.args.fq else self.fstamp(56))
        for j in range(6): a(f'v_cvt_pk_bf16_f32 v{64+j}, v{acc[2*j]}, v{acc[2*j+1]}')
        LS0 = a.newlabel('LA_ST0')
        a(f's_cmp_lg_u32 s{sLAYER}, 0')
        a(f's_cbranch_scc1 {LS0}')
        self.stash_load(1)
        a.label(LS0)
        a(f'ds_write_b128 v2, v[64:67] offset:{L_KV}')
        a('v_lshlrev_b32 v13, 3, v1')
        a(f'ds_write_b64 v13, v[68:69] offset:{L_KV+1024}')
        a.label(E)
        a('s_waitcnt lgkmcnt(0)')
        a('s_barrier')
        a('v_lshlrev_b32 v13, 3, v1')
        a(f'ds_read_b128 v[64:67], v2 offset:{L_KV}')
        a(f'ds_read_b64 v[68:69], v13 offset:{L_KV+1024}')
        a('v_mov_b32 v70, 0\nv_mov_b32 v71, 0')
        a('s_waitcnt lgkmcnt(0)')
        a(f'{MF32} v[16:31], v[64:67], v[{QA}:{QA+3}], 0')
        a(f'{MF32} v[16:31], v[68:71], v[{QB}:{QB+3}], v[16:31]')

    def o_addr_lane(self):
        a = self.a
        a('v_bfe_u32 v11, v1, 4, 1')
        a(f'v_mul_u32_u24 v11, {OBS}, v11')
        a('v_and_b32 v12, 15, v1')
        a('v_lshlrev_b32 v12, 4, v12')
        a('v_add_u32 v11, v11, v12')
        a('v_lshrrev_b32 v12, 5, v1')
        a(f's_mul_i32 s51, s{sH}, 5')
        a('v_add_u32 v12, s51, v12')
        def qoff(dst, q):
            a(f'v_lshrrev_b32 v14, 3, {q}')
            a(f'v_lshlrev_b32 {dst}, 10, v14')
            a(f'v_bfe_u32 v14, {q}, 2, 1')
            a('v_lshlrev_b32 v14, 9, v14')
            a(f'v_add_u32 {dst}, {dst}, v14')
            a(f'v_and_b32 v14, 1, {q}')
            a('v_lshlrev_b32 v14, 8, v14')
            a(f'v_add_u32 {dst}, {dst}, v14')
            a(f'v_bfe_u32 v14, {q}, 1, 1')
            a('v_lshlrev_b32 v14, 3, v14')
            a(f'v_add_u32 {dst}, {dst}, v14')
            a(f'v_add_u32 {dst}, {dst}, v11')
        qoff('v40', 'v12')
        a('v_add_u32 v13, 2, v12')
        qoff('v41', 'v13')
        a('s_add_u32 s51, s51, 4')
        a('v_mov_b32 v13, s51')
        qoff('v42', 'v13')

    def o_addr(self):
        a = self.a
        a(f's_lshl_b32 s50, s{sJ}, 4')
        a(f's_lshl_b32 s51, s{sRB}, 1')
        a('s_add_u32 s50, s50, s51')
        a(f's_mul_i32 s50, s50, {OBS}')
        a(f's_add_u32 s50, s50, s{sOF}')

    def finalize_o(self, eps):
        a = self.a
        self.o_addr()
        a(f'v_cndmask_b32 v10, v24, v28, {LO}')
        if eps: a('v_add_f32 v10, 0x358637bd, v10')
        a('v_rcp_f32 v10, v10')
        for r in range(12): a(f'v_mul_f32 v{16+r}, v10, v{16+r}')
        for j in range(6): a(f'v_cvt_pk_bf16_f32 v{32+j}, v{16+2*j}, v{17+2*j}')
        a(f'buffer_store_dwordx2 v[32:33], v{vPO[0]}, {srd(S_WS)}, s50 offen')
        a(f'buffer_store_dwordx2 v[34:35], v{vPO[1]}, {srd(S_WS)}, s50 offen')
        a('s_mov_b64 exec, 0xffffffff')
        a(f'buffer_store_dwordx2 v[36:37], v{vPO[2]}, {srd(S_WS)}, s50 offen')
        a('s_mov_b64 exec, -1')
        a('s_waitcnt vmcnt(0)')

    def qkv_pre(self):
        a = self.a
        self.set_layer_bases()
        a(f's_lshl_b32 s50, s{sJ}, 3')
        a(f's_add_u32 s50, s50, s{sRB}')
        a(f's_lshl_b32 s85, s50, 11')
        a(f's_add_u32 s85, s85, s{sST}')
        a(f's_mul_i32 s84, s50, {RBS}')
        a(f's_add_u32 s84, s84, s{sXF}')

    def wo_pre(self):
        a = self.a
        a(f's_lshr_b32 s50, s{sH}, 3')
        a(f's_and_b32 s51, s{sH}, 7')
        a(f's_and_b32 s52, s{sW}, 1')
        a(f's_lshr_b32 s53, s{sW}, 1')
        a(f's_lshl_b32 s54, s{sJ}, 4')
        a('s_lshl_b32 s55, s50, 2')
        a('s_add_u32 s54, s54, s55')
        a('s_lshl_b32 s55, s52, 1')
        a('s_add_u32 s54, s54, s55')
        a(f's_mul_i32 s55, s54, {OBS}')
        a('s_mul_i32 s56, s53, 10240')
        a('s_add_u32 s55, s55, s56')
        a(f's_add_u32 s55, s55, s{sOF}')
        a(f's_add_u32 s56, s55, {OBS}')
        a('s_cmp_eq_u32 s53, 0')
        a('s_cselect_b32 s57, s55, s56')
        a('s_cselect_b32 s56, s56, s55')
        a('s_mov_b32 s55, s57')
        a('s_mov_b32 s84, s51\ns_mov_b32 s85, s53\ns_mov_b32 s86, s54\ns_mov_b32 s87, s55\ns_mov_b32 s98, s56')

    def wo_phase(self):
        a = self.a
        OFR = 16; WF = 96; AC = 48; XOR_ = [88, 90, 92, 94, 136]
        HELP = a.newlabel('WO_HELP')
        a(f's_cmp_ge_u32 s{sW}, 4')
        a(f's_cbranch_scc1 {HELP}')
        a('s_mov_b32 s51, s84\ns_mov_b32 s53, s85\ns_mov_b32 s54, s86\ns_mov_b32 s55, s87\ns_mov_b32 s56, s98')
        vq = VQ()
        def oload(i):
            for aa in range(2):
                r = OFR + 8 * (i % 4) + 4 * aa
                sb = 's55' if aa == 0 else 's56'
                a(f'buffer_load_dwordx4 v[{r}:{r+3}], v2, {srd(S_WS)}, {sb} offen offset:{(i % 4) * 1024} sc1')
                vq.push(('o', i))
            if i % 4 == 3:
                a('s_add_u32 s55, s55, 4096\ns_add_u32 s56, s56, 4096')
        PF = 3
        for i in range(PF): oload(i)
        (self.fstamp(59) if self.args.flayer else None)
        a('s_mul_i32 s60, s53, 51200')
        a(f's_add_u32 s60, s60, {R_O}')
        a('v_add_u32 v11, s60, v2')
        def wrd1(i, c):
            s = WF + 20 * (i % 2)
            a(f'ds_read_b128 v[{s+4*c}:{s+4*c+3}], v11 offset:{(i*5 + c)*1024}')
        for c in range(5): wrd1(0, c)
        a('s_add_u32 s57, s54, s53')
        a('s_lshr_b32 s58, s57, 1')
        a(f's_mul_i32 s58, s58, {RBS}')
        a('s_mul_i32 s59, s51, 5120')
        a('s_add_u32 s58, s58, s59')
        a('s_and_b32 s59, s57, 1')
        a('s_lshl_b32 s59, s59, 8')
        a('s_add_u32 s58, s58, s59')
        a(f's_add_u32 s59, s58, s{sXF}')
        a('v_lshrrev_b32 v10, 5, v1')
        a('v_lshlrev_b32 v10, 9, v10')
        a('v_and_b32 v12, 15, v1')
        a('v_lshlrev_b32 v12, 4, v12')
        a('v_add_u32 v10, v10, v12')
        a('v_bfe_u32 v12, v1, 4, 1')
        a('v_lshlrev_b32 v12, 3, v12')
        a('v_add_u32 v10, v10, v12')
        (self.fstamp(60) if self.args.flayer else None)
        for i in range(10):
            s = WF + 20 * (i % 2)
            a(f's_waitcnt vmcnt({vq.cnt(("o", i))})')
            if i == 1 and self.args.flayer: self.fstamp(61)
            for c in range(5):
                lg = 4 if i < 9 else (4 - c)
                a(f's_waitcnt lgkmcnt({lg})')
                for aa in range(2):
                    d = AC + 20 * aa + 4 * c; o = OFR + 8 * (i % 4) + 4 * aa
                    cc = '0' if i == 0 else f'v[{d}:{d+3}]'
                    a(f'{MF16} v[{d}:{d+3}], v[{s+4*c}:{s+4*c+3}], v[{o}:{o+3}], {cc}')
                if i < 9: wrd1(i + 1, c)
                if c == 1 and i + PF < 10: oload(i + PF)
                if c == 3 and i >= 5:
                    cc = i - 5
                    if cc == 4: a('s_add_u32 s59, s59, 4096')
                    a(f'buffer_load_dwordx2 v[{XOR_[cc]}:{XOR_[cc]+1}], v10, {srd(S_WS)}, s59 offen offset:{(cc % 4) * 1024} sc1')
                    vq.push('res')
        (self.fstamp(62) if self.args.flayer else None)
        a(f's_mul_i32 s60, s{sW}, 5120')
        a(f's_add_u32 s60, s60, {SCR}')
        a('v_add_u32 v12, s60, v2')
        for c in range(5): a(f'ds_write_b128 v12, v[{AC+20+4*c}:{AC+20+4*c+3}] offset:{c*1024}')
        a('s_waitcnt vmcnt(0)')
        for c in range(5):
            x0, x1 = XOR_[c], XOR_[c] + 1
            b = 100 + 4 * c
            a(f'v_lshlrev_b32 v{b}, 16, v{x0}\nv_and_b32 v{b+1}, 0xffff0000, v{x0}\nv_lshlrev_b32 v{b+2}, 16, v{x1}\nv_and_b32 v{b+3}, 0xffff0000, v{x1}')
            for r in range(4): a(f'v_add_f32 v{AC+4*c+r}, v{AC+4*c+r}, v{b+r}')
        a('s_waitcnt lgkmcnt(0)')
        a.label(HELP)
        a('s_barrier')
        self.stamp(9, True)
        H2 = a.newlabel('WO_H2'); H3 = a.newlabel('WO_H3')
        a(f's_cmp_ge_u32 s{sW}, 4')
        a(f's_cbranch_scc1 {H2}')
        a(f's_xor_b32 s60, s{sW}, 2')
        a('s_mul_i32 s60, s60, 5120')
        a(f's_add_u32 s60, s60, {SCR}')
        a('v_add_u32 v12, s60, v2')
        for c in range(5): a(f'ds_read_b128 v[{16+4*c}:{19+4*c}], v12 offset:{c*1024}')
        a('s_waitcnt lgkmcnt(0)')
        for c in range(5):
            for r in (0, 2): a(f'v_pk_add_f32 v[{AC+4*c+r}:{AC+4*c+r+1}], v[{AC+4*c+r}:{AC+4*c+r+1}], v[{16+4*c+r}:{16+4*c+r+1}]')
            a(f'v_cvt_pk_bf16_f32 v{120+2*c}, v{AC+4*c}, v{AC+4*c+1}')
            a(f'v_cvt_pk_bf16_f32 v{121+2*c}, v{AC+4*c+2}, v{AC+4*c+3}')
        LAST = a.newlabel('WO_LAST')
        a(f's_cmp_eq_u32 s{sLAYER}, 3')
        a(f's_cbranch_scc1 {LAST}')
        a(f's_add_u32 s59, s58, s{sXFN}')
        for c in range(5):
            if c == 4: a('s_add_u32 s59, s59, 4096')
            a(f'buffer_store_dwordx2 v[{120+2*c}:{121+2*c}], v10, {srd(S_WS)}, s59 offen offset:{(c % 4) * 1024}')
        a(f'v_pk_add_f32 v[36:37], v[{AC}:{AC+1}], v[{AC+2}:{AC+3}]')
        a(f'v_pk_mul_f32 v[38:39], v[{AC}:{AC+1}], v[{AC}:{AC+1}]')
        a(f'v_pk_fma_f32 v[38:39], v[{AC+2}:{AC+3}], v[{AC+2}:{AC+3}], v[38:39]')
        for k in range(4, 20, 2):
            a(f'v_pk_add_f32 v[36:37], v[36:37], v[{AC+k}:{AC+k+1}]')
            a(f'v_pk_fma_f32 v[38:39], v[{AC+k}:{AC+k+1}], v[{AC+k}:{AC+k+1}], v[38:39]')
        a('v_add_f32 v40, v36, v37')
        a('v_add_f32 v41, v38, v39')
        a('v_mov_b32 v42, v40\nv_mov_b32 v43, v41')
        a('v_permlane16_swap_b32 v40, v42')
        a('v_permlane16_swap_b32 v41, v43')
        a('v_add_f32 v40, v40, v42\nv_add_f32 v41, v41, v43')
        a('v_mov_b32 v42, v40\nv_mov_b32 v43, v41')
        a('v_permlane32_swap_b32 v40, v42')
        a('v_permlane32_swap_b32 v41, v43')
        a('v_add_f32 v40, v40, v42\nv_add_f32 v41, v41, v43')
        a('s_lshl_b32 s60, s57, 10')
        a('s_lshl_b32 s61, s51, 3')
        a('s_add_u32 s60, s60, s61')
        a(f's_add_u32 s60, s60, s{sSTN}')
        a('v_lshlrev_b32 v42, 6, v1')
        a('s_mov_b64 exec, 0xffff')
        a(f'buffer_store_dwordx2 v[40:41], v42, {srd(S_WS)}, s60 offen')
        a('s_mov_b64 exec, -1')
        a(f's_branch {H3}')
        a.label(LAST)
        a('s_mul_i32 s60, s57, 20480')
        a('s_mul_i32 s61, s51, 160')
        a('s_add_u32 s60, s60, s61')
        a('v_and_b32 v42, 15, v1')
        a('v_mul_u32_u24 v42, 1280, v42')
        a('v_lshrrev_b32 v43, 4, v1')
        a('v_lshlrev_b32 v43, 3, v43')
        a('v_add_u32 v42, v42, v43')
        for c in range(5):
            if self.args.e_noout: continue
            a(f'buffer_store_dwordx2 v[{120+2*c}:{121+2*c}], v42, {srd(S_OUT)}, s60 offen offset:{c*32} {self.args.outflag}')
        a(f's_branch {H3}')
        a.label(H2)
        self.stash_writeback()
        a('s_waitcnt lgkmcnt(0)')
        a.label(H3)

    def set_layer_bases(self):
        a = self.a
        if self.args.noreuse:
            a(f's_mul_i32 s50, s{sLAYER}, {XF_SZ}')
            a(f's_add_u32 s{sXF}, s50, {WS_XF}')
            a(f's_add_u32 s{sXFN}, s{sXF}, {XF_SZ}')
            a(f's_add_u32 s{sOF}, s50, {WS_OF}')
            a(f's_mul_i32 s50, s{sLAYER}, {ST_SZ}')
            a(f's_add_u32 s{sST}, s50, {WS_ST}')
            a(f's_add_u32 s{sSTN}, s{sST}, {ST_SZ}')
            return
        a(f's_and_b32 s51, s{sLAYER}, 1')
        a(f's_mul_i32 s50, s51, {XF_SZ}')
        a(f's_add_u32 s{sXF}, s50, {WS_XF}')
        a(f's_sub_u32 s{sXFN}, {2*WS_XF + XF_SZ}, s{sXF}')
        a(f's_mov_b32 s{sOF}, {WS_OF}')
        a(f's_mul_i32 s50, s51, {ST_SZ}')
        a(f's_add_u32 s{sST}, s50, {WS_ST}')
        a(f's_sub_u32 s{sSTN}, {2*WS_ST + ST_SZ}, s{sST}')

    def build(self):
        a = self.a
        args = self.args
        for _ in range(args.shift): a('s_nop 0')
        if args.prof: a('v_mov_b32 v9, 0')
        self.stamp(0)
        if args.prof:
            a('s_memtime s[100:101]')
            a('s_waitcnt lgkmcnt(0)')
        self.entry()
        self.p0()
        self.stamp(1)
        def between0():
            self.colsum_raw_others()
        self.first_sync()
        self.setup_persistent()
        self.stamp(2)
        a('s_waitcnt vmcnt(0)')
        self.fstamp(59)
        a('v_and_b32 v12, 31, v1')
        a('v_lshlrev_b32 v12, 2, v12')
        a('s_mov_b64 exec, 0xffffffff')
        a(f'ds_add_f32 v12, v160 offset:{L_CS}')
        a(f'ds_add_f32 v12, v161 offset:{L_CS+128}')
        a('s_mov_b64 exec, -1')
        self.stash_writeback(mat=0)
        self.qkv_pre()
        a('s_waitcnt lgkmcnt(0)')
        a('s_barrier')
        a(f'ds_read_b32 v{vCSA}, v12 offset:{L_CS}')
        a(f'ds_read_b32 v{vCSA+1}, v12 offset:{L_CS+128}')
        a(f'v_mov_b32 v11, {L_MODE}')
        a('ds_read_b32 v10, v11')
        a('s_waitcnt lgkmcnt(0)')
        a(f'v_readfirstlane_b32 s{sMODE}, v10')
        a.label('L_LAYER')
        self.qkv_main(packed=True)
        self.ln_fix(packed=True)
        L0 = a.newlabel('L0_CHK')
        a(f's_cmp_lg_u32 s{sLAYER}, 0')
        a(f's_cbranch_scc1 {L0}')
        L = self.if_wave('eq', 0)
        self.check_packs()
        a.label(L)
        a.label(L0)
        self.stamp(3, True)
        a.label('L_AFTERQKV')
        if args.stop == 'qkv':
            SK = a.newlabel('DBG')
            a(f's_cmp_lg_u32 s{sLAYER}, {args.layer}')
            a(f's_cbranch_scc1 {SK}')
            for r in range(16, 48): a(f'v_mul_f32 v{r}, v101, v{r}')
            self.dbg_dump(list(range(16, 48, 4)), 0)
            a('s_branch L_END')
            a.label(SK)
        a(f's_bitcmp1_b32 s{sLAYER}, 0')
        a('s_cbranch_scc1 L_BLAYER')
        self.epi_A()
        self.stamp(4, True)
        self.linear_attn()
        self.stamp(6, True)
        self.finalize_o(eps=True)
        LC = a.newlabel('CSB')
        a(f's_cmp_lg_u32 s{sLAYER}, 0')
        a(f's_cbranch_scc1 {LC}')
        self.stash_cs_sum(1)
        a.label(LC)
        a('s_branch L_ODONE')
        a.label('L_BLAYER')
        self.epi_B()
        L = self.if_wave('ge', 4)
        self.epi_B_q()
        a.label(L)
        self.stamp(4, True)
        self.cstamp(57)
        self.attn_B()
        self.cstamp(59)
        self.stamp(6, True)
        self.finalize_o(eps=False)
        L = self.if_wave('lt', 4)
        self.dma_wo(1, 0)
        a.label(L)
        self.wo_pre()
        self.stamp(7, True)
        self.lbar(poller=4, between=lambda: a('s_waitcnt vmcnt(0)'))
        a('s_branch L_BAR1DONE')
        a.label('L_ODONE')
        self.wo_pre()
        self.stamp(7, True)
        self.lbar(between=lambda: a('s_waitcnt vmcnt(0)'))
        a.label('L_BAR1DONE')
        self.stamp(8, True)
        if args.stop == 'o':
            a(f's_cmp_eq_u32 s{sLAYER}, {args.layer}')
            a('s_cbranch_scc1 L_END')
        self.wo_phase()
        self.stamp(10, True)
        a(f's_cmp_eq_u32 s{sLAYER}, 3')
        a('s_cbranch_scc1 L_FIN')
        L = self.if_wave('lt', 4)
        a('s_waitcnt vmcnt(0)')
        a.label(L)
        self.stamp(11, True)
        a(f's_add_u32 s{sLAYER}, s{sLAYER}, 1')
        self.qkv_pre()
        def bw2():
            L = self.if_wave('lt', 4)
            self.stash_writeback_next()
            a('s_waitcnt lgkmcnt(0)')
            a.label(L)
        self.lbar(between=bw2, after_flag=self.stash_writeback_next)
        self.stamp(0, True)
        if args.stop == 'x':
            a(f's_cmp_eq_u32 s{sLAYER}, {args.layer + 1}')
            a('s_cbranch_scc1 L_END')
        a('s_branch L_LAYER')
        a.label('L_FIN')
        a('s_waitcnt vmcnt(0)')
        self.stamp(51)
        if args.prof:
            a('s_memtime s[82:83]')
            a('s_waitcnt lgkmcnt(0)')
            a('s_sub_u32 s82, s82, s100')
            a('v_writelane_b32 v9, s82, 52')
        self.stamp_out()
        a('L_END:')
        a('s_endpgm')
        a.label('SUB_IMPORT1')
        a('s_nop 4')
        self.s1_issue(None)
        a.label('SUB_S1FIN')
        a('s_nop 4')
        self.s1_finish()
        a('s_nop 4')
        a('s_setpc_b64 s[88:89]')
        a.label('SUB_IMPORT2')
        a('s_nop 4')
        self.i2_finish()
        a('s_nop 4')
        a('s_setpc_b64 s[88:89]')
        a.label('L_CODE_END')
        body = a.finalize(verbose=True)
        hdr = open("header.txt").read() + f"""; generated by my generator script gen/gen2.py (hand-designed persistent kernel)
; @launch grid=(256,1,1) block=(512,1,1) lds={LDS_BYTES}
.amdgcn_target "amdgcn-amd-amdhsa--gfx950"
.text
.globl {KNAME}
.p2align 8
.type {KNAME},@function
{KNAME}:
"""
        ftr = f""".section .rodata,"a"
.p2align 6
.amdhsa_kernel {KNAME}
  .amdhsa_next_free_vgpr 256
  .amdhsa_next_free_sgpr 102
  .amdhsa_accum_offset 256
  .amdhsa_group_segment_fixed_size 0
  .amdhsa_kernarg_size 72
  .amdhsa_user_sgpr_count 2
  .amdhsa_user_sgpr_kernarg_segment_ptr 1
  .amdhsa_system_sgpr_workgroup_id_x 1
  .amdhsa_float_denorm_mode_32 3
  .amdhsa_float_denorm_mode_16_64 3
.end_amdhsa_kernel
"""
        return hdr + body + ftr

    def between0(self):
        pass

    def first_sync(self):
        a = self.a
        a('s_barrier')
        a(f's_add_u32 s{sEPOCH}, s{sEPOCH}, 1')
        L = self.if_wave('eq', 0)
        self.stamp(60)
        self.check_hello()
        self.stamp(61)
        G1 = a.newlabel('LB_GEN'); G2 = a.newlabel('LB_ST')
        a(f's_lshl_b32 s50, s{sJ}, 8')
        a(f's_add_u32 s50, s50, {WS_LFLAG}')
        a(f's_lshl_b32 s51, s{sH}, 2')
        a('s_add_u32 s51, s51, s50')
        a(f's_add_u32 s62, s{sEPOCH}, s{sNONCE}')
        a('v_mov_b32 v10, s62')
        a('v_mov_b32 v11, 0')
        a(f's_cmp_lg_u32 s{sMODE}, 0')
        a(f's_cbranch_scc1 {G1}')
        a('s_mov_b64 exec, 1')
        a(f'buffer_store_dword v10, v11, {srd(S_WS)}, s51 offen')
        a('s_mov_b64 exec, -1')
        a(f's_branch {G2}')
        a.label(G1)
        a('buffer_wbl2 sc1')
        a('s_waitcnt vmcnt(0)')
        a('s_mov_b64 exec, 1')
        a(f'buffer_store_dword v10, v11, {srd(S_WS)}, s51 offen sc1')
        a('s_mov_b64 exec, -1')
        a.label(G2)
        a(f'v_mov_b32 v10, s{sMODE}')
        a(f'v_mov_b32 v11, {L_MODE}')
        a('ds_write_b32 v11, v10')
        a('s_waitcnt lgkmcnt(0)')
        a.label(L)
        L = self.if_wave('ge', 1)
        L23 = a.newlabel('FS_23')
        a(f's_sub_u32 s50, s{sW}, 2')
        a('s_cmp_lt_u32 s50, 2')
        a(f's_cbranch_scc1 {L23}')
        a.label(L)
        self.poll_packA()
        self.stashA_load()
        LX = a.newlabel('FS_X')
        a(f's_branch {LX}')
        a.label(L23)
        self.poll_packA()
        self.stashA_load()
        self.p0_packs()
        a.label(LX)
        L = self.if_wave('eq', 0)
        a(f's_lshl_b32 s50, s{sJ}, 8')
        a(f's_add_u32 s50, s50, {WS_LFLAG}')
        a('v_and_b32 v11, 31, v1')
        a('v_lshlrev_b32 v11, 2, v11')
        self.poll('v11', 's50', 32, f's{sEPOCH}')
        G3 = a.newlabel('LB_NOINV')
        a(f's_cmp_eq_u32 s{sMODE}, 0')
        a(f's_cbranch_scc1 {G3}')
        a('buffer_inv sc1')
        a('s_waitcnt vmcnt(0)')
        a.label(G3)
        self.stamp(62)
        a.label(L)

if __name__ == '__main__':
    import struct
    ap = argparse.ArgumentParser()
    ap.add_argument('-o', default='out.s')
    ap.add_argument('--stop', default='')
    ap.add_argument('--layer', type=int, default=0)
    ap.add_argument('--spin', type=int, default=20000)
    ap.add_argument('--flayer', type=int, default=1)
    ap.add_argument('--cyc', action='store_true')
    ap.add_argument('--prof', action='store_true')
    ap.add_argument('--noreuse', action='store_true')
    ap.add_argument('--wosig', action='store_true')
    ap.add_argument('--nocodepf', action='store_true')
    ap.add_argument('--fq', action='store_true')
    ap.add_argument('--xring', type=int, default=8)
    ap.add_argument('--prio', type=int, default=0)
    ap.add_argument('--kvsleep', type=int, default=6)
    ap.add_argument('--nowo', action='store_true')
    ap.add_argument('--fb', action='store_true')
    ap.add_argument('--npre', type=int, default=8)
    ap.add_argument('--clk', action='store_true')
    ap.add_argument('--e_now', action='store_true')
    ap.add_argument('--e_m16', action='store_true')
    ap.add_argument('--e_nox', action='store_true')
    ap.add_argument('--fe', action='store_true')
    ap.add_argument('--maxtry', type=int, default=2)
    ap.add_argument('--noprepoll', action='store_true')
    ap.add_argument('--e_half', action='store_true')
    ap.add_argument('--e_dummy', action='store_true')
    ap.add_argument('--fi', action='store_true')
    ap.add_argument('--e_noout', action='store_true')
    ap.add_argument('--outflag', default='')
    ap.add_argument('--permute', action='store_true')
    ap.add_argument('--shift', type=int, default=0)
    ap.add_argument('--aprio', type=int, default=1)
    ap.add_argument('--fli', type=int, default=0)
    ap.add_argument('--notouch', action='store_true')
    ap.add_argument('--force_generic', action='store_true')
    ap.add_argument('--force_fallback', action='store_true')
    ap.add_argument('--T', type=float, default=56.0)
    args = ap.parse_args()
    args.t2hex = hex(struct.unpack('<I', struct.pack('<f', args.T * args.T))[0])
    g = G(args)
    open(args.o, 'w').write(g.build())
```

```python
import sys, argparse
sys.path.insert(0, 'gen')
from asmlib import Asm

KNAME = "interleave_layers__linear_attn_block__sliding_block__prompt_kernel"

WS_LFLAG = 0x0000
WS_XFLAG = 0x4000
WS_XF = 0x100000;  XF_SZ = 0x2B0000
RBS = 41984
OBS = 21504
WS_OF = 0x1000000
WS_ST = 0x2000000; ST_SZ = 0x20000
WS_KVX = 0x2200000; KVX_SZ = 0x600000
WS_KVP = 0x3000000; KVP_SZ = 0x100000
WS_PW = 0x4000000; PW_SZ = 81920
WS_PCS = 0x4800000
WS_PO = 0x4900000; PO_SZ = 102400
WS_DBG = 0x8000000

KIMG, VIMG = 0, 24576
L_MISC = 49152
L_CS = L_MISC + 1024
L_KN = L_MISC + 2048
L_KV = L_MISC + 4096
L_MODE = 61424
R_O = 61440
PWL = 81920
RW0 = 71424
WK, WQ, WV = RW0, RW0 + 30768, RW0 + 61536
TK, TQ, TV = 0, 4096, 8192
TBOFF = 12288
SCR = 0
TO = 24576
L_SIG = L_MISC + 3072
L_CNTA = L_MISC + 3080
L_CNTB = L_MISC + 3084
L_MD = L_MISC + 6144
LDS_BYTES = 163840

S_WS, S_X0, S_WQA, S_WOA, S_WQB, S_WOB, S_OUT, S_DBG = 4, 8, 12, 16, 20, 24, 28, 32
sJ, sH, sW, sMODE, sDEAD, sEPOCH, sLAYER, sRB = 36, 37, 38, 39, 40, 41, 42, 43
sLO32 = 44
sXF, sOF, sST = 46, 47, 48
sXCC = 49
sXFN, sSTN = 90, 91
sNONCE = 93
sNEED = 96
sSH = 97
WS_GXCC = 0x2000
WS_XKN = 0x8000
L_NONCE = 61428
LO = f's[{sLO32}:{sLO32+1}]'

def srd(n): return f's[{n}:{n+3}]'

QUADS = {
    0: [(('q', 0), ('q', 1)), (('q', 2), ('q', 3)), (('q', 4), ('q', 5)), (('k', 4), ('k', 3))],
    1: [(('k', 0), ('k', 1)), (('v', 0), ('v', 1)), (('v', 2), ('v', 3)), (('k', 2), ('v', 4))],
}
def quad_off(sec, i, bases):
    bk, bq, bv = bases
    if sec == 'k': return bk + (i + 1) * 8
    if sec == 'q': return bq + i * 8
    return bv + i * 8

vCSA, vCSB = 188, 190
vPI = [4, 5, 6, 7, 8]
vPA = [176, 177, 178]
vPO = [179, 180, 181]
def stash_reg(mat, i):
    if mat == 0: return 192 + 4 * i
    return 144 + 4 * i if i < 4 else 232 + 4 * (i - 4)

MF32 = 'v_mfma_f32_32x32x16_bf16'
MF16 = 'v_mfma_f32_16x16x32_bf16'

class VQ:
    def __init__(self): self.q = []
    def push(self, tag): self.q.append(tag)
    def cnt(self, tag):
        i = max(k for k, t in enumerate(self.q) if t == tag)
        return min(63, len(self.q) - 1 - i)

class G:
    def __init__(self, args):
        self.a = Asm(); self.args = args

    def stamp(self, idx, per_layer=False):
        if not self.args.prof: return
        a = self.a
        a('s_memtime s[82:83]' if self.args.cyc else 's_memrealtime s[82:83]')
        a('s_waitcnt lgkmcnt(0)')
        if per_layer:
            a(f's_mul_i32 s99, s{sLAYER}, 12')
            a(f's_add_u32 s99, s99, {idx}')
            a('s_mov_b32 m0, s99')
            a('s_nop 1')
            a('v_writelane_b32 v9, s82, m0')
        else:
            a(f'v_writelane_b32 v9, s82, {idx}')
    def cstamp(self, idx):
        if not (self.args.prof and self.args.clk): return
        a = self.a
        SK = a.newlabel('CST')
        a(f's_cmp_lg_u32 s{sLAYER}, {self.args.flayer}')
        a(f's_cbranch_scc1 {SK}')
        a('s_memtime s[82:83]')
        a('s_waitcnt lgkmcnt(0)')
        a(f'v_writelane_b32 v9, s82, {idx}')
        a('s_memrealtime s[82:83]')
        a('s_waitcnt lgkmcnt(0)')
        a(f'v_writelane_b32 v9, s82, {idx+1}')
        a.label(SK)
    def fstamp(self, idx):
        if not self.args.prof or self.args.clk: return
        a = self.a
        SK = a.newlabel('FST')
        a(f's_cmp_lg_u32 s{sLAYER}, {self.args.flayer}')
        a(f's_cbranch_scc1 {SK}')
        self.stamp(idx)
        a.label(SK)
    def stamp_out(self):
        if not self.args.prof: return
        a = self.a
        a('s_lshl_b32 s50, s2, 3')
        a(f's_add_u32 s50, s50, s{sW}')
        a('s_lshl_b32 s50, s50, 8')
        a(f's_add_u32 s50, s50, {WS_DBG + 0x400000}')
        a('v_lshlrev_b32 v10, 2, v1')
        a(f'buffer_store_dword v9, v10, {srd(S_WS)}, s50 offen')
        a('s_waitcnt vmcnt(0)')
    def dbg_dump(self, regs, slot):
        a = self.a
        n = len(regs)
        a(f's_mul_i32 s50, s2, {8*n*1024}')
        a(f's_mul_i32 s51, s{sW}, {n*1024}')
        a('s_add_u32 s50, s50, s51')
        a(f's_add_u32 s50, s50, {WS_DBG + slot}')
        for i, r in enumerate(regs):
            a(f'buffer_store_dwordx4 v[{r}:{r+3}], v2, {srd(S_WS)}, s50 offen')
            a('s_add_u32 s50, s50, 1024')
        a('s_waitcnt vmcnt(0)')

    def if_wave(self, cond, val):
        a = self.a
        L = a.newlabel('W')
        inv = {'eq': 's_cmp_lg_u32', 'lt': 's_cmp_ge_u32', 'ge': 's_cmp_lt_u32'}[cond]
        a(f'{inv} s{sW}, {val}')
        a(f's_cbranch_scc1 {L}')
        return L

    def tr_bases(self, d0, d1, bases, tmp=10):
        a = self.a
        t, u, w = f'v{tmp}', f'v{tmp+1}', f'v{tmp+2}'
        a(f'v_bfe_u32 {t}, v1, 4, 1')
        a(f'v_lshlrev_b32 {t}, 2, {t}')
        a(f'v_and_b32 {u}, 3, v1')
        a(f'v_add_u32 {t}, {t}, {u}')
        for B, d in ((0, d0), (1, d1)):
            offs = [quad_off(*QUADS[B][x >> 1][x & 1], bases) for x in range(8)]
            a(f'v_mov_b32 v{d}, {offs[0]}')
            for x in range(1, 8):
                a(f'v_cmp_eq_u32 vcc, {x}, {t}')
                a(f'v_mov_b32 {w}, {offs[x]}')
                a(f'v_cndmask_b32 v{d}, v{d}, {w}, vcc')
        a(f'v_bfe_u32 {u}, v1, 2, 2')
        a(f'v_mul_u32_u24 {u}, 192, {u}')
        a(f'v_lshrrev_b32 {w}, 5, v1')
        a(f'v_mul_u32_u24 {w}, 96, {w}')
        a(f'v_add_u32 {u}, {u}, {w}')
        a(f'v_add_u32 v{d0}, v{d0}, {u}')
        a(f'v_add_u32 v{d1}, v{d1}, {u}')

    def raw_patterns(self):
        a = self.a
        a(f's_mul_i32 s50, s{sH}, 40')
        for u in range(3):
            d = f'v{4+u}'
            a(f'v_add_u32 v10, {64*u}, v1')
            a('v_mul_u32_u24 v11, 21846, v10')
            a('v_lshrrev_b32 v11, 16, v11')
            a('v_mul_u32_u24 v12, 3, v11')
            a('v_sub_u32 v12, v10, v12')
            a('v_lshlrev_b32 v12, 4, v12')
            a('v_and_b32 v13, 0x30, v11')
            a('v_and_b32 v14, 3, v11')
            a('v_lshlrev_b32 v14, 2, v14')
            a('v_add_u32 v13, v13, v14')
            a('v_bfe_u32 v14, v11, 2, 2')
            a('v_add_u32 v13, v13, v14')
            a('v_mul_u32_u24 v13, 3840, v13')
            a('v_add_u32 v13, v13, v12')
            a(f'v_add_u32 {d}, s50, v13')

    def entry(self):
        a = self.a
        a('s_cmp_ge_u32 s2, 256')
        a('s_cbranch_scc1 L_END')
        a('s_load_dwordx16 s[64:79], s[0:1], 0')
        a('s_load_dwordx2 s[80:81], s[0:1], 64')
        a(f's_getreg_b32 s{sXCC}, hwreg(HW_REG_XCC_ID, 0, 4)')
        if self.args.permute:
            a('s_lshr_b32 s50, s2, 5')
            a('s_and_b32 s51, s2, 31')
            a('s_lshl_b32 s51, s51, 3')
            a('s_add_u32 s2, s50, s51')
        a(f's_and_b32 s{sJ}, s2, 7')
        a(f's_lshr_b32 s{sH}, s2, 3')
        a('v_lshrrev_b32 v3, 6, v0')
        a('v_and_b32 v1, 63, v0')
        a(f'v_readfirstlane_b32 s{sW}, v3')
        a('v_lshlrev_b32 v2, 4, v1')
        a(f's_mov_b32 s{sLO32}, -1')
        a(f's_mov_b32 s{sLO32+1}, 0')
        a(f's_mov_b32 s{sMODE}, 0')
        a(f's_mov_b32 s{sDEAD}, 0')
        a(f's_mov_b32 s{sEPOCH}, 0')
        a(f's_mov_b32 s{sLAYER}, 0')
        a(f's_sub_u32 s50, 7, s{sW}')
        a(f's_sub_u32 s51, s{sW}, 4')
        a(f's_cmp_lt_u32 s{sW}, 4')
        a(f's_cselect_b32 s{sRB}, s50, s51')
        a(f's_add_u32 s{sSH}, s{sW}, s{sJ}')
        a(f's_and_b32 s{sSH}, s{sSH}, 7')
        self.raw_patterns()
        a('s_waitcnt lgkmcnt(0)')
        def mk(dst, src, size):
            a(f's_mov_b32 s{dst}, s{src}')
            a(f's_and_b32 s{dst+1}, s{src+1}, 0xffff')
            a(f's_mov_b32 s{dst+2}, {size}')
            a(f's_mov_b32 s{dst+3}, 0x20000')
        mk(S_DBG, 78, 256)
        a(f's_mov_b32 s{sNONCE}, 0')
        self.nonce_create()
        mk(S_X0, 64, 2621440)
        mk(S_WS, 80, 0x10000000)
        mk(S_WQA, 66, 2457600)
        L = self.if_wave('eq', 1)
        self.raw_part_dma(S_WQA, 0)
        a.label(L)
        self.p0_xloads()
        mk(S_WOA, 68, 819200)
        mk(S_WQB, 72, 2457600); mk(S_WOB, 74, 819200); mk(S_OUT, 76, 2621440)

    def nonce_create(self):
        a = self.a
        E = a.newlabel('NC_E')
        a(f's_or_b32 s50, s2, s{sW}')
        a('s_cmp_lg_u32 s50, 0')
        a(f's_cbranch_scc1 {E}')
        a('s_memrealtime s[50:51]')
        a('s_waitcnt lgkmcnt(0)')
        a('s_mul_i32 s50, s50, 0x9E3779B1')
        a('s_mul_i32 s51, s51, 0x85EBCA77')
        a('s_xor_b32 s50, s50, s51')
        a('s_lshr_b32 s51, s50, 15')
        a('s_xor_b32 s50, s50, s51')
        a('s_mul_i32 s50, s50, 0x2C1B3C6D')
        a('s_andn2_b32 s50, s50, 0x7f')
        a(f's_or_b32 s{sNONCE}, s50, 0x40')
        a(f'v_mov_b32 v10, s{sNONCE}')
        a('v_lshlrev_b32 v11, 6, v1')
        a('s_mov_b64 exec, 0xf')
        a(f'buffer_store_dword v10, v11, {srd(S_DBG)}, 0 offen sc1')
        a('s_mov_b64 exec, -1')
        a.label(E)

    def init_flags(self):
        a = self.a
        G = a.newlabel('NON_GET'); D = a.newlabel('NON_DONE'); L = a.newlabel('NON_POLL')
        a('s_cmp_lg_u32 s2, 0')
        a(f's_cbranch_scc0 {D}')
        a.label(G)
        a('s_mov_b32 s60, 0')
        a(f's_and_b32 s50, s{sH}, 3')
        a('s_lshl_b32 s50, s50, 6')
        a('v_mov_b32 v11, s50')
        a('s_waitcnt vmcnt(0)')
        a.label(L)
        a(f'buffer_load_dword v12, v11, {srd(S_DBG)}, 0 offen sc1')
        a('s_waitcnt vmcnt(0)')
        a(f'v_readfirstlane_b32 s{sNONCE}, v12')
        a(f's_cmp_lg_u32 s{sNONCE}, 0')
        a(f's_cbranch_scc1 {D}')
        a('s_sleep 4')
        a('s_add_u32 s60, s60, 1')
        a(f's_cmp_lt_u32 s60, {self.args.spin}')
        a(f's_cbranch_scc1 {L}')
        a(f's_mov_b32 s{sDEAD}, 1')
        a.label(D)
        a(f's_lshl_b32 s50, s{sJ}, 8')
        a(f's_lshl_b32 s51, s{sH}, 2')
        a('s_add_u32 s50, s50, s51')
        a(f's_add_u32 s50, s50, {WS_GXCC}')
        a(f's_and_b32 s51, s{sXCC}, 7')
        a(f's_add_u32 s51, s51, s{sNONCE}')
        a('s_add_u32 s51, s51, 8')
        a('v_mov_b32 v10, s51')
        a('v_mov_b32 v11, 0')
        a('s_mov_b64 exec, 1')
        a(f'buffer_store_dword v10, v11, {srd(S_WS)}, s50 offen sc1')
        a('s_mov_b64 exec, -1')
        a(f'v_mov_b32 v10, s{sNONCE}')
        a(f'v_mov_b32 v11, {L_NONCE}')
        a('ds_write_b32 v11, v10')

    def dma_raw(self, srdW, items):
        a = self.a
        base = {'k': WK, 'q': WQ, 'v': WV}
        soff = {'k': 1280 - 8, 'q': 0, 'v': 2560}
        for sec, Gi in items:
            a(f's_add_u32 s55, s92, {Gi}')
            a('s_cmp_ge_u32 s55, 10')
            a('s_cselect_b32 s56, 10, 0')
            a('s_sub_u32 s55, s55, s56')
            a(f's_mul_i32 s56, s55, {64*3840}')
            a(f's_add_u32 s50, s56, {soff[sec]}')
            a('s_mul_i32 s55, s55, 3072')
            for u in range(3):
                a(f's_add_u32 m0, s55, {base[sec] + u*1024}')
                a(f'buffer_load_dwordx4 v{4+u}, {srd(srdW)}, s50 offen lds')

    def dma_packed(self, nw, w0):
        a = self.a
        per = 80 // nw
        a(f's_add_u32 s50, s{sLAYER}, 1')
        a('s_and_b32 s50, s50, 1')
        a('s_lshl_b32 s50, s50, 5')
        a(f's_add_u32 s50, s50, s{sH}')
        a(f's_mul_i32 s50, s50, {PW_SZ}')
        a(f's_sub_u32 s51, s{sW}, {w0}')
        a(f's_mul_i32 s51, s51, {per*1024}')
        a('s_add_u32 s50, s50, s51')
        a(f's_add_u32 s50, s50, {WS_PW}')
        a(f's_add_u32 s51, s51, {PWL}')
        for i in range(per):
            a(f's_add_u32 m0, s51, {i*1024}')
            if i % 4 == 0 and i > 0: a('s_add_u32 s50, s50, 4096')
            a(f'buffer_load_dwordx4 v2, {srd(S_WS)}, s50 offen sc1 lds') if i % 4 == 0 else None
            if i % 4 != 0:
                a(f's_add_u32 s52, s50, {(i%4)*1024}')
                a(f'buffer_load_dwordx4 v2, {srd(S_WS)}, s52 offen sc1 lds')

    def dma_wo(self, mat, w0):
        a = self.a
        a(f's_and_b32 s50, s{sH}, 7')
        a(f's_add_u32 s50, s50, {mat*8}')
        a(f's_mul_i32 s50, s50, {PO_SZ}')
        a(f's_sub_u32 s51, s{sW}, {w0}')
        a('s_mul_i32 s51, s51, 25600')
        a('s_add_u32 s50, s50, s51')
        a(f's_add_u32 s50, s50, {WS_PO}')
        a(f's_add_u32 s51, s51, {R_O}')
        for i in range(25):
            a(f's_add_u32 m0, s51, {i*1024}')
            a(f's_add_u32 s52, s50, {i*1024}')
            a(f'buffer_load_dwordx4 v2, {srd(S_WS)}, s52 offen sc1 lds')

    def touch_w(self, w0, nw):
        a = self.a
        E = a.newlabel('TW_E')
        a(f's_cmp_eq_u32 s{sLAYER}, 3')
        a(f's_cbranch_scc1 {E}')
        a(f's_add_u32 s50, s{sLAYER}, 1')
        a('s_and_b32 s50, s50, 1')
        a('s_lshl_b32 s50, s50, 5')
        a(f's_add_u32 s50, s50, s{sH}')
        a(f's_mul_i32 s50, s50, {PW_SZ}')
        a(f's_add_u32 s50, s50, {WS_PW}')
        a('v_lshlrev_b32 v11, 7, v1')
        per = -(-10 // nw)
        for t in range(per):
            SK = a.newlabel('TW_SK')
            a(f's_sub_u32 s51, s{sW}, {w0}')
            a(f's_add_u32 s51, s51, {t*nw}')
            a('s_cmp_ge_u32 s51, 10')
            a(f's_cbranch_scc1 {SK}')
            a(f's_add_u32 s51, s51, s{sJ}')
            a('s_cmp_ge_u32 s51, 10')
            a('s_cselect_b32 s52, 10, 0')
            a('s_sub_u32 s51, s51, s52')
            a('s_lshl_b32 s51, s51, 13')
            a('s_add_u32 s51, s51, s50')
            a(f'buffer_load_dword v{250+t}, v11, {srd(S_WS)}, s51 offen sc1')
            a.label(SK)
        a.label(E)

    def check_packs(self):
        a = self.a
        a(f's_lshl_b32 s54, s{sH}, 3')
        self.xflag_addr('s52', 's54')
        a('v_and_b32 v11, 7, v1')
        a('v_lshlrev_b32 v11, 6, v11')
        a('v_add_u32 v11, 16, v11')
        a('s_mov_b32 s53, 1')
        self.poll('v11', 's52', 8, 's53')
        for mat in range(2):
            a(f's_and_b32 s50, s{sH}, 7')
            a(f's_add_u32 s50, s50, {mat*8}')
            a('s_mul_i32 s53, s50, 20')
            a('v_min_u32 v11, 19, v1')
            a('v_add_u32 v11, s53, v11')
            a('v_and_b32 v11, 255, v11')
            a('v_lshlrev_b32 v11, 6, v11')
            a(f's_mov_b32 s52, {WS_XFLAG + 24}')
            a('s_mov_b32 s53, 1')
            self.poll('v11', 's52', 20, 's53')

    def lds_signal(self, val_s):
        a = self.a
        a(f'v_mov_b32 v11, {L_SIG}')
        a(f'v_mov_b32 v12, {val_s}')
        a('ds_write_b32 v11, v12')
    def lds_wait(self, val_s):
        a = self.a
        L = a.newlabel('LW'); D = a.newlabel('LWD')
        a(f'v_mov_b32 v11, {L_SIG}')
        a('s_mov_b32 s60, 0')
        a.label(L)
        a('ds_read_b32 v12, v11')
        a('s_waitcnt lgkmcnt(0)')
        a('v_readfirstlane_b32 s61, v12')
        a(f's_cmp_eq_u32 s61, {val_s}')
        a(f's_cbranch_scc1 {D}')
        a('s_sleep 1')
        a('s_add_u32 s60, s60, 1')
        a('s_cmp_lt_u32 s60, 0x100000')
        a(f's_cbranch_scc1 {L}')
        a.label(D)

    def poll(self, vaddr, soff, nlanes, target_s, tmp='v12'):
        a = self.a
        L = a.newlabel('POLL'); D = a.newlabel('POLLD')
        a(f's_cmp_lg_u32 s{sDEAD}, 0')
        a(f's_cbranch_scc1 {D}')
        a('s_mov_b32 s60, 0')
        a(f's_add_u32 s63, s{sNONCE}, {target_s}')
        mask = (1 << nlanes) - 1
        a.label(L)
        a(f'buffer_load_dword {tmp}, {vaddr}, {srd(S_WS)}, {soff} offen sc1')
        a('s_waitcnt vmcnt(0)')
        a(f'v_subrev_u32 {tmp}, s63, {tmp}')
        a(f'v_cmp_lt_u32 vcc, 7, {tmp}')
        a(f's_and_b32 s61, vcc_lo, {hex(mask & 0xffffffff)}')
        a('s_cmp_eq_u32 s61, 0')
        a(f's_cbranch_scc1 {D}')
        a('s_add_u32 s60, s60, 1')
        a(f's_cmp_lt_u32 s60, {self.args.spin}')
        a(f's_cbranch_scc1 {L}')
        a(f's_mov_b32 s{sDEAD}, 1')
        a.label(D)

    def poll_fast(self, vaddr, soff, nlanes, target_s):
        a = self.a
        R = ['v182', 'v183', 'v186', 'v187']
        L = a.newlabel('PF'); D = a.newlabel('PFD')
        a(f's_cmp_lg_u32 s{sDEAD}, 0')
        a(f's_cbranch_scc1 {D}')
        a('s_mov_b32 s60, 0')
        a(f's_add_u32 s63, s{sNONCE}, {target_s}')
        mask = (1 << nlanes) - 1
        for k in range(4):
            a(f'buffer_load_dword {R[k]}, {vaddr}, {srd(S_WS)}, {soff} offen sc1')
            if k < 3 and self.args.psleep: a(f's_sleep {self.args.psleep}')
        a.label(L)
        for k in range(4):
            a('s_waitcnt vmcnt(3)')
            a(f'v_subrev_u32 v12, s63, {R[k]}')
            a('v_cmp_lt_u32 vcc, 7, v12')
            a(f's_and_b32 s61, vcc_lo, {hex(mask & 0xffffffff)}')
            a('s_cmp_eq_u32 s61, 0')
            a(f's_cbranch_scc1 {D}')
            a(f'buffer_load_dword {R[k]}, {vaddr}, {srd(S_WS)}, {soff} offen sc1')
        a('s_add_u32 s60, s60, 1')
        a(f's_cmp_lt_u32 s60, {self.args.spin // 2}')
        a(f's_cbranch_scc1 {L}')
        a(f's_mov_b32 s{sDEAD}, 1')
        a.label(D)

    def check_hello(self):
        a = self.a
        L = a.newlabel('HELLO'); D = a.newlabel('HELLOD')
        a('s_mov_b32 s60, 0')
        a('v_and_b32 v11, 31, v1')
        a('v_lshlrev_b32 v11, 2, v11')
        a(f's_lshl_b32 s50, s{sJ}, 8')
        a(f's_add_u32 s50, s50, {WS_GXCC}')
        a(f's_add_u32 s63, s{sNONCE}, 8')
        a.label(L)
        a(f'buffer_load_dword v12, v11, {srd(S_WS)}, s50 offen sc1')
        a('s_waitcnt vmcnt(0)')
        a('v_subrev_u32 v12, s63, v12')
        a('v_cmp_lt_u32 vcc, 7, v12')
        a('s_cmp_eq_u64 vcc, 0')
        a(f's_cbranch_scc1 {D}')
        a('s_add_u32 s60, s60, 1')
        a(f's_cmp_lt_u32 s60, {self.args.spin}')
        a(f's_cbranch_scc1 {L}')
        a(f's_mov_b32 s{sDEAD}, 1')
        a.label(D)
        a(f's_and_b32 s51, s{sXCC}, 7')
        a('v_cmp_ne_u32 vcc, s51, v12')
        a('s_cmp_lg_u64 vcc, 0')
        a(f's_cselect_b32 s{sMODE}, 1, 0')
        if self.args.force_generic:
            a(f's_mov_b32 s{sMODE}, 1')

    def lbar(self, first=False, between=None, poller=0, after_flag=None):
        a = self.a
        a('s_barrier')
        a(f's_add_u32 s{sEPOCH}, s{sEPOCH}, 1')
        W0 = a.newlabel('LB_NOT0'); E = a.newlabel('LB_END')
        a(f's_cmp_lg_u32 s{sW}, {poller}')
        a(f's_cbranch_scc1 {W0}')
        if first:
            self.stamp(60)
            self.check_hello()
            self.stamp(61)
        G1 = a.newlabel('LB_GEN'); G2 = a.newlabel('LB_ST')
        a(f's_lshl_b32 s50, s{sJ}, 8')
        a(f's_add_u32 s50, s50, {WS_LFLAG}')
        a(f's_lshl_b32 s51, s{sH}, 2')
        a('s_add_u32 s51, s51, s50')
        a(f's_add_u32 s62, s{sEPOCH}, s{sNONCE}')
        a('v_mov_b32 v10, s62')
        a('v_mov_b32 v11, 0')
        a(f's_cmp_lg_u32 s{sMODE}, 0')
        a(f's_cbranch_scc1 {G1}')
        a('s_mov_b64 exec, 1')
        a(f'buffer_store_dword v10, v11, {srd(S_WS)}, s51 offen')
        a('s_mov_b64 exec, -1')
        a(f's_branch {G2}')
        a.label(G1)
        a('buffer_wbl2 sc1')
        a('s_waitcnt vmcnt(0)')
        a('s_mov_b64 exec, 1')
        a(f'buffer_store_dword v10, v11, {srd(S_WS)}, s51 offen sc1')
        a('s_mov_b64 exec, -1')
        a.label(G2)
        if after_flag: after_flag()
        a('v_and_b32 v11, 31, v1')
        a('v_lshlrev_b32 v11, 2, v11')
        (self.poll_fast if (self.args.pfast and not first) else self.poll)('v11', 's50', 32, f's{sEPOCH}')
        if after_flag: a('s_waitcnt lgkmcnt(0)')
        if first: self.stamp(62)
        G3 = a.newlabel('LB_NOINV')
        a(f's_cmp_eq_u32 s{sMODE}, 0')
        a(f's_cbranch_scc1 {G3}')
        a('buffer_inv sc1')
        a('s_waitcnt vmcnt(0)')
        a.label(G3)
        if first:
            a(f'v_mov_b32 v10, s{sMODE}')
            a(f'v_mov_b32 v11, {L_MODE}')
            a('ds_write_b32 v11, v10')
            a('s_waitcnt lgkmcnt(0)')
        a(f's_branch {E}')
        a.label(W0)
        if between: between()
        a.label(E)
        a('s_barrier')
        if first:
            a(f'v_mov_b32 v11, {L_MODE}')
            a('ds_read_b32 v10, v11')
            a('s_waitcnt lgkmcnt(0)')
            a(f'v_readfirstlane_b32 s{sMODE}, v10')

    def xflag_addr(self, dst, wg_s):
        a = self.a
        a(f's_lshl_b32 {dst}, {wg_s}, 6')
        a(f's_add_u32 {dst}, {dst}, {WS_XFLAG}')

    def set_xflag(self, word, val_s, saddr='s52', vt=('v11', 'v12')):
        a = self.a
        self.xflag_addr(saddr, 's2')
        if isinstance(word, int): a(f's_add_u32 {saddr}, {saddr}, {word*4}')
        else: a(f's_add_u32 {saddr}, {saddr}, {word}')
        a(f's_add_u32 s63, s{sNONCE}, {val_s}')
        a(f'v_mov_b32 {vt[0]}, s63')
        a(f'v_mov_b32 {vt[1]}, 0')
        a('s_mov_b64 exec, 1')
        a(f'buffer_store_dword {vt[0]}, {vt[1]}, {srd(S_WS)}, {saddr} offen sc1')
        a('s_mov_b64 exec, -1')

    def pack5(self, vb0, vb1, imm0, mat, with_cs, fb=16):
        a = self.a
        a(f's_add_u32 s50, s{sH}, {mat*32}')
        a(f's_mul_i32 s50, s50, {PW_SZ}')
        a(f's_mul_i32 s51, s{sJ}, {5*2048}')
        a('s_add_u32 s50, s50, s51')
        a(f's_add_u32 s50, s50, {WS_PW}')
        for i in range(5):
            s = fb + 8 * i
            o = imm0(i)
            a(f'ds_read_b64_tr_b16 v[{s}:{s+1}], {vb0} offset:{o}')
            a(f'ds_read_b64_tr_b16 v[{s+2}:{s+3}], {vb0} offset:{o+48}')
            a(f'ds_read_b64_tr_b16 v[{s+4}:{s+5}], {vb1} offset:{o}')
            a(f'ds_read_b64_tr_b16 v[{s+6}:{s+7}], {vb1} offset:{o+48}')
        a('s_mov_b32 s74, 0x00f00000')
        a('s_mov_b32 s75, 0x00f00000')
        a('v_mov_b32 v104, 0')
        a('s_waitcnt lgkmcnt(0)')
        for i in range(5):
            s = fb + 8 * i
            for r in range(4): a(f'v_cndmask_b32 v{s+r}, v{s+r}, v104, s[74:75]')
        for i in range(5):
            s = fb + 8 * i
            a(f'buffer_store_dwordx4 v[{s}:{s+3}], v2, {srd(S_WS)}, s50 offen sc1')
            a(f'buffer_store_dwordx4 v[{s+4}:{s+7}], v2, {srd(S_WS)}, s50 offen offset:1024 sc1')
            a('s_add_u32 s50, s50, 2048')
        if with_cs:
            for r in range(108, 112): a(f'v_mov_b32 v{r}, 0x3f803f80')
            for i in range(5):
                s = fb + 8 * i
                a(f'{MF32} v[112:127], v[108:111], v[{s}:{s+3}], {"0" if i == 0 else "v[112:127]"}')
                a(f'{MF32} v[128:143], v[108:111], v[{s+4}:{s+7}], {"0" if i == 0 else "v[128:143]"}')
            a('v_mov_b32 v104, v112')
            a('v_mov_b32 v105, v128')
            self.store_cs(mat, 104)

    def store_cs(self, mat, r):
        a = self.a
        a(f's_add_u32 s50, s{sH}, {mat*32}')
        a('s_lshl_b32 s50, s50, 3')
        a(f's_add_u32 s50, s50, s{sJ}')
        a('s_lshl_b32 s50, s50, 8')
        a(f's_add_u32 s50, s50, {WS_PCS}')
        a('v_lshlrev_b32 v12, 3, v1')
        a('s_mov_b64 exec, 0xffffffff')
        a(f'buffer_store_dwordx2 v[{r}:{r+1}], v12, {srd(S_WS)}, s50 offen sc1')
        a('s_mov_b64 exec, -1')

    def stash_writeback(self, mat=None):
        a = self.a
        if mat is not None:
            a(f's_mul_i32 s62, s{sSH}, 10240')
            a(f's_add_u32 s62, s62, {PWL}')
            a('v_add_u32 v13, s62, v2')
            for i in range(10):
                r = stash_reg(mat, i)
                a(f'ds_write_b128 v13, v[{r}:{r+3}] offset:{i*1024}')
            return
        E = a.newlabel('SW_E'); LA = a.newlabel('SW_A')
        a(f's_cmp_eq_u32 s{sLAYER}, 3')
        a(f's_cbranch_scc1 {E}')
        a(f's_mul_i32 s62, s{sSH}, 10240')
        a(f's_add_u32 s62, s62, {PWL}')
        a('v_add_u32 v13, s62, v2')
        a(f's_bitcmp1_b32 s{sLAYER}, 0')
        a(f's_cbranch_scc1 {LA}')
        for i in range(10):
            r = stash_reg(1, i)
            a(f'ds_write_b128 v13, v[{r}:{r+3}] offset:{i*1024}')
        a(f's_branch {E}')
        a.label(LA)
        for i in range(10):
            r = stash_reg(0, i)
            a(f'ds_write_b128 v13, v[{r}:{r+3}] offset:{i*1024}')
        a.label(E)

    def stash_writeback_next(self):
        a = self.a
        E = a.newlabel('SWN_E'); LB = a.newlabel('SWN_B')
        a(f's_mul_i32 s62, s{sSH}, 10240')
        a(f's_add_u32 s62, s62, {PWL}')
        a('v_add_u32 v13, s62, v2')
        a(f's_bitcmp1_b32 s{sLAYER}, 0')
        a(f's_cbranch_scc1 {LB}')
        for i in range(10):
            r = stash_reg(0, i)
            a(f'ds_write_b128 v13, v[{r}:{r+3}] offset:{i*1024}')
        a(f's_branch {E}')
        a.label(LB)
        for i in range(10):
            r = stash_reg(1, i)
            a(f'ds_write_b128 v13, v[{r}:{r+3}] offset:{i*1024}')
        a.label(E)

    def stash_load(self, mat):
        a = self.a
        a(f's_add_u32 s50, s{sH}, {32*mat}')
        a(f's_mul_i32 s50, s50, {PW_SZ}')
        a(f's_mul_i32 s51, s{sSH}, 10240')
        a('s_add_u32 s50, s50, s51')
        a(f's_add_u32 s50, s50, {WS_PW}')
        for i in range(10):
            r = stash_reg(mat, i)
            if i % 4 == 0 and i > 0: a('s_add_u32 s50, s50, 4096')
            a(f'buffer_load_dwordx4 v[{r}:{r+3}], v2, {srd(S_WS)}, s50 offen offset:{(i%4)*1024} sc1')
        a('v_and_b32 v11, 31, v1')
        a('v_lshlrev_b32 v11, 3, v11')
        a(f's_add_u32 s52, s{sH}, {32*mat}')
        a('s_lshl_b32 s52, s52, 11')
        a(f's_add_u32 s52, s52, {WS_PCS}')
        for j in range(8):
            a(f'buffer_load_dwordx2 v[{160+2*j}:{161+2*j}], v11, {srd(S_WS)}, s52 offen offset:{j*256} sc1')

    def stash_cs_sum(self, mat):
        a = self.a
        d = vCSA if mat == 0 else vCSB
        a(f'v_add_f32 v{d}, v160, v162')
        a(f'v_add_f32 v{d+1}, v161, v163')
        for j in range(2, 8):
            a(f'v_add_f32 v{d}, v{d}, v{160+2*j}')
            a(f'v_add_f32 v{d+1}, v{d+1}, v{161+2*j}')

    def wait_hello(self):
        a = self.a
        L = a.newlabel('WH'); D = a.newlabel('WHD')
        a('s_mov_b32 s60, 0')
        a('v_lshlrev_b32 v11, 2, v1')
        a.label(L)
        a(f'buffer_load_dword v12, v11, {srd(S_DBG)}, 0 offen sc1')
        a('s_waitcnt vmcnt(0)')
        a('v_and_b32 v13, 0x80808080, v12')
        a('v_cmp_ne_u32 vcc, 0x80808080, v13')
        a('s_cmp_eq_u64 vcc, 0')
        a(f's_cbranch_scc1 {D}')
        a('s_sleep 2')
        a('s_add_u32 s60, s60, 1')
        a(f's_cmp_lt_u32 s60, {self.args.spin}')
        a(f's_cbranch_scc1 {L}')
        a(f's_mov_b32 s{sDEAD}, 1')
        a.label(D)

    def poll_packA(self):
        a = self.a
        a(f's_lshl_b32 s54, s{sH}, 3')
        a(f's_add_u32 s54, s54, s{sSH}')
        self.xflag_addr('s52', 's54')
        a('v_mov_b32 v11, 20')
        a('s_mov_b32 s53, 1')
        self.poll('v11', 's52', 1, 's53')

    def stashA_load(self):
        a = self.a
        a(f's_mul_i32 s50, s{sH}, {PW_SZ}')
        a(f's_mul_i32 s51, s{sSH}, 10240')
        a('s_add_u32 s50, s50, s51')
        a(f's_add_u32 s50, s50, {WS_PW}')
        for i in range(10):
            r = stash_reg(0, i)
            if i % 4 == 0 and i > 0: a('s_add_u32 s50, s50, 4096')
            a(f'buffer_load_dwordx4 v[{r}:{r+3}], v2, {srd(S_WS)}, s50 offen offset:{(i%4)*1024} sc1')
        a('v_and_b32 v11, 31, v1')
        a('v_lshlrev_b32 v11, 3, v11')
        a(f's_lshl_b32 s52, s{sH}, 3')
        a(f's_add_u32 s52, s52, s{sSH}')
        a('s_lshl_b32 s52, s52, 8')
        a(f's_add_u32 s52, s52, {WS_PCS}')
        a(f'buffer_load_dwordx2 v[160:161], v11, {srd(S_WS)}, s52 offen sc1')

    def p0_xloads(self):
        a = self.a
        if not self.args.noreuse:
            L4 = self.if_wave('eq', 4)
            a(f's_lshl_b32 s52, s{sJ}, 3')
            a(f's_lshr_b32 s53, s{sH}, 2')
            a('s_add_u32 s52, s52, s53')
            a(f's_mul_i32 s52, s52, {RBS}')
            a(f's_and_b32 s53, s{sH}, 3')
            a('s_lshl_b32 s53, s53, 7')
            a('s_add_u32 s52, s52, s53')
            a(f's_add_u32 s52, s52, {WS_XF}')
            a('v_lshlrev_b32 v30, 9, v1')
            a(f'buffer_load_dword v31, v30, {srd(S_WS)}, s52 offen')
            a('s_add_u32 s52, s52, 32768')
            a('s_mov_b64 exec, 0xffff')
            a(f'buffer_load_dword v31, v30, {srd(S_WS)}, s52 offen')
            a(f's_lshl_b32 s52, s{sJ}, 3')
            a(f's_lshr_b32 s53, s{sH}, 2')
            a('s_add_u32 s52, s52, s53')
            a('s_lshl_b32 s52, s52, 11')
            a(f's_and_b32 s53, s{sH}, 3')
            a('s_lshl_b32 s53, s53, 7')
            a('s_add_u32 s52, s52, s53')
            a(f's_add_u32 s52, s52, {WS_ST}')
            a('v_lshlrev_b32 v30, 9, v1')
            a('s_mov_b64 exec, 0xf')
            a(f'buffer_load_dword v31, v30, {srd(S_WS)}, s52 offen')
            a('s_mov_b64 exec, -1')
            a.label(L4)
        if not self.args.nocodepf:
            L7 = self.if_wave('eq', 7)
            LC = a.newlabel('CPF')
            a(f's_cmp_ge_u32 s{sH}, 6')
            a(f's_cbranch_scc1 {LC}')
            a('s_getpc_b64 s[56:57]')
            a.label('L_PCREF')
            a(f's_sub_u32 s56, s56, L_PCREF-{KNAME}')
            a('s_subb_u32 s57, s57, 0')
            a(f's_lshl_b32 s53, s{sH}, 13')
            a('v_lshlrev_b32 v30, 7, v1')
            a('v_add_u32 v30, s53, v30')
            a(f's_mov_b32 s58, L_CODE_END-{KNAME}-4')
            a('v_min_u32 v30, s58, v30')
            a('global_load_dword v31, v30, s[56:57]')
            a.label(LC)
            a.label(L7)
        a(f's_lshl_b32 s50, s{sJ}, 8')
        a(f's_lshl_b32 s51, s{sH}, 3')
        a('s_add_u32 s50, s50, s51')
        a('s_mul_i32 s52, s50, 1280')
        a('v_and_b32 v10, 7, v0')
        a('v_lshrrev_b32 v11, 3, v0')
        a('v_mul_u32_u24 v12, 1280, v10')
        a('v_lshlrev_b32 v13, 4, v11')
        a('v_add_u32 v12, v12, v13')
        a(f'buffer_load_dwordx4 v[16:19], v12, {srd(S_X0)}, s52 offen')
        a('v_mov_b32 v20, 0\nv_mov_b32 v21, 0\nv_mov_b32 v22, 0\nv_mov_b32 v23, 0')
        L = self.if_wave('lt', 2)
        a(f'buffer_load_dwordx4 v[20:23], v12, {srd(S_X0)}, s52 offen offset:1024')
        a.label(L)

    def late_touch(self):
        a = self.a
        if self.args.noreuse: return
        a('v_lshlrev_b32 v13, 7, v1')
        for w in (6, 5):
            Lw = self.if_wave('eq', w)
            if w == 5:
                a(f's_lshl_b32 s52, s{sJ}, 3')
                a(f's_lshr_b32 s53, s{sH}, 2')
                a('s_add_u32 s52, s52, s53')
                a(f's_mul_i32 s52, s52, {RBS}')
                a(f's_and_b32 s53, s{sH}, 3')
                a('s_mul_i32 s53, s53, 10240')
                a('s_add_u32 s52, s52, s53')
                a(f's_add_u32 s52, s52, {WS_XF + XF_SZ}')
            else:
                a(f's_lshl_b32 s52, s{sJ}, 4')
                a(f's_lshr_b32 s53, s{sH}, 1')
                a('s_add_u32 s52, s52, s53')
                a(f's_mul_i32 s52, s52, {OBS}')
                a(f's_and_b32 s53, s{sH}, 1')
                a('s_mul_i32 s53, s53, 10240')
                a('s_add_u32 s52, s52, s53')
                a(f's_add_u32 s52, s52, {WS_OF}')
            a(f'buffer_load_dword v182, v13, {srd(S_WS)}, s52 offen')
            a('s_add_u32 s52, s52, 8192')
            a('s_mov_b64 exec, 0xffff')
            a(f'buffer_load_dword v182, v13, {srd(S_WS)}, s52 offen')
            a('s_mov_b64 exec, -1')
            a.label(Lw)
        L7 = self.if_wave('eq', 7)
        a(f's_lshl_b32 s52, s{sJ}, 14')
        a(f's_lshl_b32 s53, s{sH}, 9')
        a('s_add_u32 s52, s52, s53')
        a(f's_add_u32 s52, s52, {WS_ST + ST_SZ}')
        a('s_mov_b64 exec, 0xf')
        a(f'buffer_load_dword v182, v13, {srd(S_WS)}, s52 offen')
        a('s_mov_b64 exec, -1')
        a.label(L7)

    def wo_item_dma(self, n, item_s):
        a = self.a
        a(f's_mul_hi_u32 s55, {item_s}, 0xccccccd')
        a('s_mul_i32 s56, s55, 20')
        a(f's_sub_u32 s56, {item_s}, s56')
        a('s_and_b32 s57, s55, 7')
        a('s_mul_i32 s57, s57, 160')
        a('s_mul_i32 s56, s56, 40960')
        a('s_add_u32 s56, s56, s57')
        A = a.newlabel('WOI_A'); E = a.newlabel('WOI_E')
        a('s_cmp_lt_u32 s55, 8')
        a(f's_cbranch_scc1 {A}')
        for u in range(5):
            a(f's_mov_b32 m0, {TO + n*5120 + u*1024}')
            a(f'buffer_load_dwordx4 v{24+u}, {srd(S_WOB)}, s56 offen lds')
        a(f's_branch {E}')
        a.label(A)
        for u in range(5):
            a(f's_mov_b32 m0, {TO + n*5120 + u*1024}')
            a(f'buffer_load_dwordx4 v{24+u}, {srd(S_WOA)}, s56 offen lds')
        a.label(E)

    def wo_item_pack(self, n, item_s):
        a = self.a
        for c in range(5):
            for sx in range(2):
                a(f'ds_read_b64_tr_b16 v[{32+4*c+2*sx}:{33+4*c+2*sx}], v30 offset:{TO + n*5120 + sx*1280 + c*32}')
        a(f's_mul_i32 s55, {item_s}, 5120')
        a(f's_add_u32 s55, s55, {WS_PO}')
        a('s_waitcnt lgkmcnt(0)')
        for c in range(5):
            if c == 4: a('s_add_u32 s55, s55, 4096')
            a(f'buffer_store_dwordx4 v[{32+4*c}:{35+4*c}], v2, {srd(S_WS)}, s55 offen offset:{(c%4)*1024} sc1')

    def raw_part_dma(self, srdW, toff):
        a = self.a
        a(f's_mul_i32 s53, s{sJ}, {80*3840}')
        for sec, tb, so in (('k', TK, 1280 - 8), ('q', TQ, 0), ('v', TV, 2560)):
            for u in range(4):
                a(f's_mov_b32 m0, {toff + tb + u*1024}')
                a(f's_add_u32 s54, s53, {so + (64*3840 if u == 3 else 0)}')
                if u == 3: a('s_mov_b32 exec_hi, 0xffff')
                a(f'buffer_load_dwordx4 v{4 + (u % 3)}, {srd(srdW)}, s54 offen lds')
                if u == 3: a('s_mov_b64 exec, -1')

    def p0(self):
        a = self.a
        self.fstamp(53)
        self.fstamp(54)
        L = self.if_wave('eq', 0)
        self.init_flags()
        a.label(L)
        a(f's_lshl_b32 s53, s{sJ}, 3')
        a(f's_lshr_b32 s54, s{sH}, 2')
        a('s_add_u32 s53, s53, s54')
        a(f's_mul_i32 s53, s53, {RBS}')
        a(f's_and_b32 s54, s{sH}, 3')
        a('s_lshl_b32 s54, s54, 7')
        a('s_add_u32 s53, s53, s54')
        a(f's_add_u32 s53, s53, {WS_XF}')
        a('v_and_b32 v10, 7, v0')
        a('v_lshrrev_b32 v11, 3, v0')
        a('v_lshrrev_b32 v13, 1, v11')
        a('v_lshlrev_b32 v13, 10, v13')
        a('v_and_b32 v14, 1, v11')
        a('v_lshlrev_b32 v14, 9, v14')
        a('v_add_u32 v13, v13, v14')
        a('v_lshlrev_b32 v14, 4, v10')
        a('v_add_u32 v13, v13, v14')
        a('s_add_u32 s54, s53, 32768')
        L = self.if_wave('eq', 1)
        a('v_mov_b32 v40, v13')
        a('s_mov_b32 s94, s53')
        self.tr_bases(106, 107, (TK, TQ, TV))
        a('s_waitcnt vmcnt(2)')
        self.pack5('v106', 'v107', lambda i: i * 768, 0, True, fb=48)
        a('v_mov_b32 v13, v40')
        a('s_mov_b32 s53, s94')
        a('s_add_u32 s54, s53, 32768')
        a('s_waitcnt vmcnt(11)')
        a.label(L)
        Lw = a.newlabel('P0_XW')
        a(f's_cmp_eq_u32 s{sW}, 1')
        a(f's_cbranch_scc1 {Lw}')
        a('s_waitcnt vmcnt(0)')
        a.label(Lw)
        self.fstamp(55)
        a(f'buffer_store_dwordx4 v[16:19], v13, {srd(S_WS)}, s53 offen')
        L = self.if_wave('lt', 2)
        a(f'buffer_store_dwordx4 v[20:23], v13, {srd(S_WS)}, s54 offen')
        a.label(L)
        DD = a.newlabel('P0_DMAD')
        L = self.if_wave('eq', 2)
        a('s_mov_b32 s94, s53')
        a('s_mov_b32 s95, s54')
        self.raw_part_dma(S_WQB, TBOFF)
        a('s_mov_b32 s53, s94')
        a('s_mov_b32 s54, s95')
        a.label(L)
        L = self.if_wave('eq', 3)
        for u in range(5):
            d = f'v{24+u}'
            a(f'v_add_u32 v15, {64*u}, v1')
            a('v_mul_u32_u24 v3, 6554, v15')
            a('v_lshrrev_b32 v3, 16, v3')
            a(f'v_mul_u32_u24 {d}, 10, v3')
            a(f'v_sub_u32 {d}, v15, {d}')
            a(f'v_lshlrev_b32 {d}, 4, {d}')
            a('v_mul_u32_u24 v3, 1280, v3')
            a(f'v_add_u32 {d}, {d}, v3')
        a('s_mov_b32 s58, s2')
        self.wo_item_dma(0, 's58')
        L2 = a.newlabel('P0_NOI2')
        a('s_cmp_ge_u32 s2, 64')
        a(f's_cbranch_scc1 {L2}')
        a('s_add_u32 s59, s2, 256')
        self.wo_item_dma(1, 's59')
        a.label(L2)
        a.label(L)
        a('v_mov_b32 v34, 0\nv_mov_b32 v35, 0')
        for r in range(16, 24):
            a(f'v_lshlrev_b32 v36, 16, v{r}')
            a(f'v_and_b32 v37, 0xffff0000, v{r}')
            a('v_add_f32 v34, v34, v36')
            a('v_fmac_f32 v35, v36, v36')
            a('v_add_f32 v34, v34, v37')
            a('v_fmac_f32 v35, v37, v37')
        for reg in (34, 35):
            a(f'v_mov_b32_dpp v36, v{reg} row_ror:8 row_mask:0xf bank_mask:0xf')
            a(f'v_add_f32 v{reg}, v{reg}, v36')
            a(f'v_mov_b32 v36, v{reg}')
            a(f'v_permlane16_swap_b32 v{reg}, v36')
            a(f'v_add_f32 v{reg}, v{reg}, v36')
            a(f'v_mov_b32 v36, v{reg}')
            a(f'v_permlane32_swap_b32 v{reg}, v36')
            a(f'v_add_f32 v{reg}, v{reg}, v36')
        P0S = L_MISC
        a(f's_lshl_b32 s50, s{sW}, 6')
        a('v_lshlrev_b32 v36, 3, v1')
        a('v_add_u32 v36, s50, v36')
        a('s_mov_b64 exec, 0xff')
        a(f'ds_write_b64 v36, v[34:35] offset:{P0S}')
        a('s_mov_b64 exec, -1')
        a('v_mov_b32 v10, 0')
        a(f'v_mov_b32 v11, {L_SIG}')
        a('ds_write_b32 v11, v10')
        a(f'ds_write_b32 v11, v10 offset:{L_CNTA - L_SIG}')
        a(f'ds_write_b32 v11, v10 offset:{L_CNTB - L_SIG}')
        a('v_lshlrev_b32 v11, 2, v1')
        a(f'ds_write_b32 v11, v10 offset:{L_CS}')
        a('s_waitcnt lgkmcnt(0)')
        self.fstamp(56)
        a('s_barrier')
        self.fstamp(57)
        a(f'v_mov_b32 v11, {L_NONCE}')
        a('ds_read_b32 v10, v11')
        a('s_waitcnt lgkmcnt(0)')
        a(f'v_readfirstlane_b32 s{sNONCE}, v10')
        L = self.if_wave('eq', 0)
        a('v_lshrrev_b32 v10, 2, v1')
        a('v_and_b32 v10, 7, v10')
        a('v_lshlrev_b32 v11, 3, v10')
        for w in range(8):
            a(f'ds_read_b64 v[{28+2*w}:{29+2*w}], v11 offset:{P0S + w*64}')
        a('s_waitcnt lgkmcnt(0)')
        for w in range(1, 8):
            a(f'v_add_f32 v28, v28, v{28+2*w}')
            a(f'v_add_f32 v29, v29, v{29+2*w}')
        a('v_and_b32 v12, 3, v1')
        a('v_cmp_eq_u32 vcc, 0, v12')
        a('v_mov_b32 v30, 0\nv_mov_b32 v31, 0')
        a('v_cndmask_b32 v28, v30, v28, vcc')
        a('v_cndmask_b32 v29, v30, v29, vcc')
        a(f's_lshl_b32 s50, s{sJ}, 3')
        a(f's_lshr_b32 s51, s{sH}, 2')
        a('s_add_u32 s50, s50, s51')
        a('s_lshl_b32 s50, s50, 11')
        a(f's_and_b32 s51, s{sH}, 3')
        a('s_lshl_b32 s51, s51, 7')
        a('s_add_u32 s50, s50, s51')
        a(f's_add_u32 s50, s50, {WS_ST}')
        a('v_lshlrev_b32 v12, 9, v12')
        a('v_lshlrev_b32 v10, 4, v10')
        a('v_add_u32 v12, v12, v10')
        a('s_mov_b64 exec, 0xffffffff')
        a(f'buffer_store_dwordx4 v[28:31], v12, {srd(S_WS)}, s50 offen')
        a('s_mov_b64 exec, -1')
        a.label(L)
        for w, n in ((2, 12), (3, 5)):
            Lx = self.if_wave('eq', w)
            a(f's_waitcnt vmcnt({n})')
            a.label(Lx)
        Ly = a.newlabel('P0_W23')
        a(f's_sub_u32 s50, s{sW}, 2')
        a('s_cmp_lt_u32 s50, 2')
        a(f's_cbranch_scc1 {Ly}')
        a('s_waitcnt vmcnt(0)')
        a.label(Ly)
        L = self.if_wave('eq', 1)
        self.set_xflag(5, 1)
        a.label(L)
        self.fstamp(58)

    def p0_packs(self):
        a = self.a
        a('s_waitcnt vmcnt(11)')
        L = self.if_wave('eq', 2)
        self.tr_bases(106, 107, (TK + TBOFF, TQ + TBOFF, TV + TBOFF))
        self.pack5('v106', 'v107', lambda i: i * 768, 1, True)
        a.label(L)
        L = self.if_wave('eq', 3)
        a('v_bfe_u32 v30, v1, 5, 1')
        a('v_lshlrev_b32 v30, 4, v30')
        a('v_bfe_u32 v12, v1, 4, 1')
        a('v_lshlrev_b32 v12, 2, v12')
        a('v_add_u32 v30, v30, v12')
        a('v_bfe_u32 v12, v1, 2, 2')
        a('v_add_u32 v30, v30, v12')
        a('v_mul_u32_u24 v30, 160, v30')
        a('v_and_b32 v12, 3, v1')
        a('v_lshlrev_b32 v12, 3, v12')
        a('v_add_u32 v30, v30, v12')
        a('s_mov_b32 s58, s2')
        self.wo_item_pack(0, 's58')
        L2 = a.newlabel('P0_NOI2B')
        a('s_cmp_ge_u32 s2, 64')
        a(f's_cbranch_scc1 {L2}')
        a('s_add_u32 s59, s2, 256')
        self.wo_item_pack(1, 's59')
        a.label(L2)
        a.label(L)

    ACC0, ACC1 = 16, 32
    XR = 48
    WB = 80
    def qkv_main(self, packed):
        a = self.a
        A0, A1, XR, WB = self.ACC0, self.ACC1, self.XR, self.WB
        a.comment('QKV main ' + ('packed' if packed else 'raw'))
        self.cstamp(53)
        if self.args.prio:
            L = self.if_wave('ge', 4)
            a(f's_setprio {self.args.prio}')
            a.label(L)
        vq = VQ()
        a('s_mov_b32 s50, s84')
        def xload(ks):
            r = XR + 4 * (ks % 8)
            if ks % 4 == 0 and ks > 0: a('s_add_u32 s50, s50, 4096')
            a(f'buffer_load_dwordx4 v[{r}:{r+3}], v2, {srd(S_WS)}, s50 offen offset:{(ks % 4) * 1024} sc1')
            vq.push(('x', ks))
        NPRE = self.args.npre
        for ks in range(min(4, NPRE)): xload(ks)
        if packed:
            a(f'v_add_u32 v3, {PWL}, v2')
            a(f'v_add_u32 v15, {PWL + 40960}, v2')
            def wread(ks):
                s = WB + 8 * (ks % 3)
                b = 'v3' if ks < 20 else 'v15'
                o = (ks % 20) * 2048
                a(f'ds_read_b128 v[{s}:{s+3}], {b} offset:{o}')
                if not self.args.e_half: a(f'ds_read_b128 v[{s+4}:{s+7}], {b} offset:{o+1024}')
            nrd = 1 if self.args.e_half else 2
        else:
            def wread(ks):
                s = WB + 8 * (ks % 3)
                a(f'ds_read_b64_tr_b16 v[{s}:{s+1}], v7 offset:{ks*768}')
                a(f'ds_read_b64_tr_b16 v[{s+2}:{s+3}], v7 offset:{ks*768+48}')
                a(f'ds_read_b64_tr_b16 v[{s+4}:{s+5}], v8 offset:{ks*768}')
                a(f'ds_read_b64_tr_b16 v[{s+6}:{s+7}], v8 offset:{ks*768+48}')
            nrd = 4
        wread(0); wread(1)
        for ks in range(4, NPRE): xload(ks)
        nxt = [NPRE]
        a('s_mov_b32 s51, s85')
        late = [f'buffer_load_dwordx4 v[104:107], v2, {srd(S_WS)}, s51 offen sc1',
                f'buffer_load_dwordx4 v[108:111], v2, {srd(S_WS)}, s51 offen offset:1024 sc1']
        lnpre = self.ln_pre_instrs()
        if self.args.fq: self.fstamp(53)
        for ks in range(40):
            if self.args.fq and ks in (1, 8, 20, 39): self.fstamp({1: 54, 8: 55, 20: 56, 39: 57}[ks])
            if ks + 2 < 40 and not self.args.e_now: wread(ks + 2)
            lg = nrd * min(2, 39 - ks)
            a(f's_waitcnt vmcnt({vq.cnt(("x", ks))}) lgkmcnt({lg})')
            s = WB + 8 * (ks % 3); x = XR + 4 * (ks % 8)
            c0 = '0' if ks == 0 else f'v[{A0}:{A0+15}]'
            c1 = '0' if ks == 0 else f'v[{A1}:{A1+15}]'
            if self.args.e_m16:
                for q in range(2):
                    for (AA, so) in ((A0, s), (A1, s + 4)):
                        d = AA + 4 * q + 8 * (ks % 2)
                        a(f'{MF16} v[{d}:{d+3}], v[{so}:{so+3}], v[{x}:{x+3}], {"0" if ks < 2 else f"v[{d}:{d+3}]"}')
            else:
                sA = 140 if self.args.e_dummy else s
                a(f'{MF32} v[{A0}:{A0+15}], v[{sA}:{sA+3}], v[{x}:{x+3}], {c0}')
                s1 = s if self.args.e_half else (136 if self.args.e_dummy else s + 4)
                a(f'{MF32} v[{A1}:{A1+15}], v[{s1}:{s1+3}], v[{x}:{x+3}], {c1}')
            nis = 0
            while nxt[0] < 40 and nxt[0] <= ks + 8 and nis < 2:
                if self.args.e_nox:
                    vq.push(('x', nxt[0]))
                    vq.q.pop(); vq.q.insert(0, ('x', nxt[0]))
                else: xload(nxt[0])
                nxt[0] += 1; nis += 1
            if ks == 10:
                LF = a.newlabel('QK_FL')
                a(f's_cmp_lg_u32 s{sLAYER}, 0')
                a(f's_cbranch_scc1 {LF}')
                for w, word in ((2, 4), (3, 6)):
                    L = self.if_wave('eq', w)
                    self.set_xflag(word, 1, saddr='s54', vt=('v13', 'v14'))
                    a.label(L)
                a.label(LF)
            if ks >= 12 and ks % 2 == 0 and late:
                a(late.pop(0)); vq.push('late')
            if ks >= 25:
                n = -(-len(lnpre) // (39 - ks)) if ks < 39 else len(lnpre)
                for _ in range(min(n, len(lnpre))): a(lnpre.pop(0))
        assert not late and not lnpre
        self.cstamp(55)
        if self.args.prio: a('s_setprio 0')
        a('s_waitcnt vmcnt(0)')
        if self.args.fq: self.fstamp(58)

    def colsum_raw(self):
        a = self.a
        WB = self.WB
        a(f's_mul_i32 s52, s{sW}, 768')
        a('v_add_u32 v12, s52, v7')
        a('v_add_u32 v13, s52, v8')
        for r in range(108, 112): a(f'v_mov_b32 v{r}, 0x3f803f80')
        for i in range(5):
            s = 16 + 8 * i
            a(f'ds_read_b64_tr_b16 v[{s}:{s+1}], v12 offset:{i*6144}')
            a(f'ds_read_b64_tr_b16 v[{s+2}:{s+3}], v12 offset:{i*6144+48}')
            a(f'ds_read_b64_tr_b16 v[{s+4}:{s+5}], v13 offset:{i*6144}')
            a(f'ds_read_b64_tr_b16 v[{s+6}:{s+7}], v13 offset:{i*6144+48}')
        a('s_waitcnt lgkmcnt(0)')
        for i in range(5):
            s = 16 + 8 * i
            a(f'{MF32} v[112:127], v[108:111], v[{s}:{s+3}], {"0" if i == 0 else "v[112:127]"}')
            a(f'{MF32} v[128:143], v[108:111], v[{s+4}:{s+7}], {"0" if i == 0 else "v[128:143]"}')
        a('v_and_b32 v12, 31, v1')
        a('v_lshlrev_b32 v12, 2, v12')
        a('s_mov_b64 exec, 0xffffffff')
        a(f'ds_add_f32 v12, v112 offset:{L_CS}')
        a(f'ds_add_f32 v12, v128 offset:{L_CS+128}')
        a('s_mov_b64 exec, -1')
        a('s_waitcnt lgkmcnt(0)')

    def ln_pre_instrs(self):
        I = []
        I += [f's_bitcmp1_b32 s{sLAYER}, 0', 's_cselect_b64 s[70:71], -1, 0',
              f'v_cndmask_b32 v116, v{vCSA}, v{vCSB}, s[70:71]', f'v_cndmask_b32 v117, v{vCSA+1}, v{vCSB+1}, s[70:71]']
        I += ['v_add_f32 v104, v104, v106', 'v_add_f32 v105, v105, v107', 'v_add_f32 v108, v108, v110', 'v_add_f32 v109, v109, v111',
              'v_add_f32 v112, v104, v108', 'v_add_f32 v113, v105, v109', 'v_mov_b32 v114, v112', 'v_mov_b32 v115, v113',
              'v_mov_b32 v122, 0', 'v_mov_b32 v123, 0',
              'v_permlane32_swap_b32 v112, v114', 'v_permlane32_swap_b32 v113, v115',
              'v_add_f32 v112, v112, v114', 'v_add_f32 v113, v113, v115', 's_mov_b32 s72, 0x3acccccd',
              'v_mul_f32 v112, s72, v112', 'v_mul_f32 v113, s72, v113', 'v_fma_f32 v113, -v112, v112, v113',
              'v_add_f32 v113, 0x3727c5ac, v113', 'v_rsq_f32 v132, v113',
              'v_sub_f32 v114, 0, v112', 'v_cvt_pk_bf16_f32 v120, v114, v114', 'v_lshlrev_b32 v115, 16, v120',
              'v_sub_f32 v115, v114, v115', 'v_cvt_pk_bf16_f32 v121, v115, v122',
              f'v_cndmask_b32 v120, v122, v120, {LO}', f'v_cndmask_b32 v121, v122, v121, {LO}']
        for src, dst in ((116, 124), (117, 128)):
            I += [f'v_cvt_pk_bf16_f32 v118, v{src}, v{src}', 'v_lshlrev_b32 v118, 16, v118', f'v_sub_f32 v119, v{src}, v118',
                  f'v_cvt_pk_bf16_f32 v{dst}, v118, v119', f'v_cvt_pk_bf16_f32 v{dst+1}, v118, v122',
                  f'v_cndmask_b32 v{dst}, v122, v{dst}, {LO}', f'v_cndmask_b32 v{dst+1}, v122, v{dst+1}, {LO}',
                  f'v_mov_b32 v{dst+2}, 0', f'v_mov_b32 v{dst+3}, 0']
        return I

    def ln_fix(self, packed):
        a = self.a
        A0, A1 = self.ACC0, self.ACC1
        a(f'{MF32} v[{A0}:{A0+15}], v[124:127], v[120:123], v[{A0}:{A0+15}]')
        a(f'{MF32} v[{A1}:{A1+15}], v[128:131], v[120:123], v[{A1}:{A1+15}]')
        a('v_mov_b32 v101, v132')

    def img_addr_regs(self):
        a = self.a
        a('v_and_b32 v10, 31, v1')
        a(f's_lshl_b32 s50, s{sRB}, 5')
        a('s_add_u32 s50, s50, 256')
        a('v_add_u32 v10, s50, v10')
        a('v_mul_u32_u24 v10, 48, v10')
        a('v_lshrrev_b32 v11, 5, v1')
        a('v_lshlrev_b32 v12, 4, v11')
        a('v_add_u32 v120, v10, v12')
        a('v_lshlrev_b32 v12, 3, v11')
        a('v_sub_u32 v121, v10, v12')
        a('v_add_u32 v121, 32, v121')
        a('v_add_u32 v122, v10, v12')
        a(f'v_add_u32 v122, {VIMG}, v122')
        a(f'v_mul_u32_u24 v12, {VIMG + 32 - 8}, v11')
        a('v_add_u32 v123, v10, v12')
        a('v_add_u32 v123, 8, v123')
        a(f'v_mul_u32_u24 v12, {VIMG}, v11')
        a('v_add_u32 v124, v10, v12')
        a('v_add_u32 v124, 40, v124')

    def setup_persistent(self):
        a = self.a
        self.img_addr_regs()
        for k in range(5): a(f'v_mov_b32 v{vPI[k]}, v{120+k}')
        self.attn_addr()
        for k in range(3): a(f'v_mov_b32 v{vPA[k]}, v{105+k}')
        self.o_addr_lane()
        for k in range(3): a(f'v_mov_b32 v{vPO[k]}, v{40+k}')
        L = self.if_wave('eq', 5)
        self.attn_masks_md(32)
        for q in range(4):
            a(f'ds_write_b128 v2, v[{32+4*q}:{35+4*q}] offset:{L_MD + q*1024}')
        a('s_waitcnt lgkmcnt(0)')
        a.label(L)

    def write_img(self, regs):
        a = self.a
        a(f'ds_write_b64 v{vPI[0]}, v[{regs["B1g0"]}:{regs["B1g0"]+1}]')
        a(f'ds_write_b64 v{vPI[1]}, v[{regs["B0g3"]}:{regs["B0g3"]+1}]')
        a(f'ds_write_b64 v{vPI[2]}, v[{regs["B1g1"]}:{regs["B1g1"]+1}]')
        a(f'ds_write_b64 v{vPI[2]}, v[{regs["B1g2"]}:{regs["B1g2"]+1}] offset:16')
        a(f'ds_write_b64 v{vPI[3]}, v[{regs["B1g3"]}:{regs["B1g3"]+1}]')
        a('v_mov_b32 v12, 0x3f80')
        a('v_mov_b32 v13, 0')
        a(f'v_cndmask_b32 v12, v12, v13, {LO}')
        a(f'ds_write_b64 v{vPI[4]}, v[12:13]')

    def wave_max(self, reg, tmp):
        a = self.a
        for ror in (8, 4, 2, 1):
            a(f'v_mov_b32_dpp v{tmp}, v{reg} row_ror:{ror} row_mask:0xf bank_mask:0xf')
            a(f'v_max_f32 v{reg}, v{reg}, v{tmp}')
        a(f'v_mov_b32 v{tmp}, v{reg}')
        a(f'v_permlane16_swap_b32 v{reg}, v{tmp}')
        a(f'v_max_f32 v{reg}, v{reg}, v{tmp}')
        a(f'v_mov_b32 v{tmp}, v{reg}')
        a(f'v_permlane32_swap_b32 v{reg}, v{tmp}')
        a(f'v_max_f32 v{reg}, v{reg}, v{tmp}')

    QA, QB = 96, 100
    vQN = 104
    def kvx_base(self, dst, wg_s):
        a = self.a
        a(f's_lshr_b32 {dst}, s{sLAYER}, 1')
        a(f's_mul_i32 {dst}, {dst}, {KVX_SZ}')
        a(f's_add_u32 {dst}, {dst}, {WS_KVX}')
        a(f's_mul_i32 s63, {wg_s}, 24576')
        a(f's_add_u32 {dst}, {dst}, s63')

    def export_own(self):
        a = self.a
        a(f's_mul_i32 s50, s{sRB}, 1536')
        a('v_add_u32 v60, s50, v2')
        a('v_add_u32 v62, 12800, v60')
        a('v_add_u32 v61, 1024, v60')
        a('v_add_u32 v63, 11776, v60')
        a(f'v_cndmask_b32 v61, v63, v61, {LO}')
        a('v_add_u32 v63, 12288, v61')
        a(f'v_add_u32 v10, {VIMG}, v61')
        a(f'v_cndmask_b32 v63, v10, v63, {LO}')
        a('ds_read_b128 v[48:51], v60 offset:12288')
        a('ds_read_b128 v[52:55], v63')
        a(f'ds_read_b128 v[56:59], v62 offset:{VIMG}')
        self.kvx_base('s51', 's2')
        a('s_waitcnt lgkmcnt(0)')
        a(f'buffer_store_dwordx4 v[48:51], v60, {srd(S_WS)}, s51 offen sc1')
        a(f'buffer_store_dwordx4 v[52:55], v61, {srd(S_WS)}, s51 offen sc1')
        a(f'buffer_store_dwordx4 v[56:59], v62, {srd(S_WS)}, s51 offen sc1')

    def set_block_flag(self):
        a = self.a
        a(f's_lshl_b32 s53, s{sRB}, 2')
        a('s_add_u32 s53, s53, 32')
        a(f's_add_u32 s54, s{sLAYER}, 1')
        self.set_xflag('s53', 's54')

    def epi_B(self):
        a = self.a
        A0, A1 = self.ACC0, self.ACC1
        QA, QB = self.QA, self.QB
        a(f's_mov_b32 s{sNEED}, 1')
        a('s_mov_b32 s52, 0x3ea52b5c')
        a('v_mul_f32 v102, s52, v101')
        for r in range(12, 16): a(f'v_mul_f32 v{A0+r}, v101, v{A0+r}')
        for r in range(16): a(f'v_mul_f32 v{A1+r}, v101, v{A1+r}')
        pk = {'B0g3': (106, A0+12), 'B1g0': (108, A1), 'B1g1': (110, A1+4), 'B1g2': (112, A1+8), 'B1g3': (114, A1+12)}
        for n, (d, s_) in pk.items():
            a(f'v_cvt_pk_bf16_f32 v{d}, v{s_}, v{s_+1}')
            a(f'v_cvt_pk_bf16_f32 v{d+1}, v{s_+2}, v{s_+3}')
        self.write_img({n: d for n, (d, _) in pk.items()})
        a(f'v_mul_f32 v118, v{A0+12}, v{A0+12}')
        for r in [A0+13, A0+14, A0+15, A1, A1+1, A1+2, A1+3]: a(f'v_fmac_f32 v118, v{r}, v{r}')
        a(f'v_mul_f32 v119, v{A1+12}, v{A1+12}')
        for r in range(13, 16): a(f'v_fmac_f32 v119, v{A1+r}, v{A1+r}')
        a('v_mov_b32 v13, 0')
        a(f'v_cndmask_b32 v119, v13, v119, {LO}')
        a('v_add_f32 v118, v118, v119')
        a('v_mov_b32 v119, v118')
        a('v_permlane32_swap_b32 v118, v119')
        a('v_add_f32 v118, v118, v119')
        a('s_waitcnt lgkmcnt(0)')
        NOEXP = a.newlabel('EB_NOEXP')
        a(f's_cmp_eq_u32 s{sJ}, 7')
        a(f's_cbranch_scc1 {NOEXP}')
        if self.args.fe: self.fstamp(53)
        self.export_own()
        if self.args.fe: self.fstamp(54)
        a.label(NOEXP)
        self.wave_max(118, 117)
        NOEXP2 = a.newlabel('EB_NOEXP2')
        a(f's_cmp_eq_u32 s{sJ}, 7')
        a(f's_cbranch_scc1 {NOEXP2}')
        a('s_lshl_b32 s52, s2, 6')
        a(f's_add_u32 s52, s52, {WS_XKN}')
        a(f's_lshl_b32 s53, s{sRB}, 2')
        a('v_mov_b32 v12, s53')
        a('s_mov_b64 exec, 1')
        a(f'buffer_store_dword v118, v12, {srd(S_WS)}, s52 offen sc1')
        a('s_mov_b64 exec, -1')
        a.label(NOEXP2)
        a(f's_lshl_b32 s50, s{sW}, 2')
        a('v_mov_b32 v12, s50')
        a('s_mov_b64 exec, 1')
        a(f'ds_write_b32 v12, v118 offset:{L_KN}')
        a('s_mov_b64 exec, -1')
        L = self.if_wave('eq', 0)
        a('v_lshlrev_b32 v12, 2, v1')
        a('v_mov_b32 v13, 0')
        a('s_mov_b64 exec, 0xff')
        a(f'ds_write_b32 v12, v13 offset:{L_KN+32}')
        a('s_mov_b64 exec, -1')
        a.label(L)
        L = self.if_wave('lt', 4)
        self.epi_B_q()
        a.label(L)
        for q in range(4):
            a(f'ds_read_b128 v[{self.AMD+4*q}:{self.AMD+4*q+3}], v2 offset:{L_MD + q*1024}')
        L = self.if_wave('lt', 4)
        LJ = a.newlabel('EB_J7')
        a(f's_cmp_eq_u32 s{sJ}, 7')
        a(f's_cbranch_scc1 {LJ}')
        if self.args.fe: self.fstamp(55)
        a('s_waitcnt vmcnt(0)')
        if self.args.fe: self.fstamp(56)
        self.set_block_flag()
        a.label(LJ)
        if self.args.maxtry > 0:
            L0 = self.if_wave('eq', 0)
            self.s1_issue(self.args.maxtry)
            a(f'v_mov_b32 v11, {L_SIG}')
            a(f'v_mov_b32 v12, s{sNEED}')
            a('ds_write_b32 v11, v12 offset:16')
            a.label(L0)
        a.label(L)
        if self.args.fe: self.fstamp(57)
        if self.args.fli < 0:
            L = self.if_wave('ge', 4)
            self.light_flag()
            a.label(L)
        a('s_waitcnt lgkmcnt(0)')
        a('s_barrier')

    def epi_B_q(self):
        a = self.a
        A0 = self.ACC0
        QA, QB = self.QA, self.QB
        for r in range(0, 12): a(f'v_mul_f32 v{A0+r}, v102, v{A0+r}')
        for j in range(4): a(f'v_cvt_pk_bf16_f32 v{QA+j}, v{A0+2*j}, v{A0+2*j+1}')
        a(f'v_cvt_pk_bf16_f32 v{QB}, v{A0+8}, v{A0+9}')
        a(f'v_cvt_pk_bf16_f32 v{QB+1}, v{A0+10}, v{A0+11}')
        a('v_mul_f32 v116, v16, v16')
        for r in range(1, 8): a(f'v_fmac_f32 v116, v{A0+r}, v{A0+r}')
        a(f'v_mul_f32 v117, v{A0+8}, v{A0+8}')
        for r in range(9, 12): a(f'v_fmac_f32 v117, v{A0+r}, v{A0+r}')
        a('v_mov_b32 v13, 0')
        a(f'v_mov_b32 v{QB+2}, 0x3f80')
        a(f'v_mov_b32 v{QB+3}, 0')
        for j in range(3): a(f'v_cndmask_b32 v{QB+j}, v13, v{QB+j}, {LO}')
        a(f'v_cndmask_b32 v117, v13, v117, {LO}')
        a('v_add_f32 v116, v116, v117')
        a('v_mov_b32 v117, v116')
        a('v_permlane32_swap_b32 v116, v117')
        a(f'v_add_f32 v{self.vQN}, v116, v117')
        self.wave_max(self.vQN, 116)

    def imp_addr(self, st):
        a = self.a
        half = 6144 if st == 1 else 0
        a('v_lshlrev_b32 v10, 4, v0')
        a(f'v_add_u32 v184, {half}, v10')
        a(f'v_add_u32 v185, {half + 4096}, v10')
        a(f'v_add_u32 v186, {12288 + half - 2048}, v10')
        a('v_cmp_gt_u32 vcc, 2048, v10')
        a('v_cndmask_b32 v185, v186, v185, vcc')
        a(f'v_add_u32 v186, {12288 + half + 2048}, v10')
        a(f'v_add_u32 v187, {VIMG - 12288}, v185')
        a('v_cndmask_b32 v187, v187, v185, vcc')

    def imp_flagload(self, st):
        a = self.a
        a('s_sub_u32 s54, s2, 1')
        self.xflag_addr('s52', 's54')
        a('v_and_b32 v11, 3, v1')
        a('v_lshlrev_b32 v11, 2, v11')
        a(f'v_add_u32 v11, {32 + (16 if st == 1 else 0)}, v11')
        a(f'buffer_load_dword v176, v11, {srd(S_WS)}, s52 offen sc1')

    def imp_loads(self, st):
        a = self.a
        a('s_sub_u32 s54, s2, 1')
        self.kvx_base('s51', 's54')
        a(f'buffer_load_dwordx4 v[160:163], v184, {srd(S_WS)}, s51 offen sc1')
        a(f'buffer_load_dwordx4 v[164:167], v185, {srd(S_WS)}, s51 offen sc1')
        a(f'buffer_load_dwordx4 v[168:171], v186, {srd(S_WS)}, s51 offen sc1')
        a('s_lshl_b32 s52, s54, 6')
        a(f's_add_u32 s52, s52, {WS_XKN + (16 if st == 1 else 0)}')
        a('v_and_b32 v11, 3, v1')
        a('v_lshlrev_b32 v11, 2, v11')
        a(f'buffer_load_dword v172, v11, {srd(S_WS)}, s52 offen sc1')

    def imp_try(self, st, nyounger):
        a = self.a
        N = a.newlabel('IT_NO'); E = a.newlabel('IT_E')
        a(f's_waitcnt vmcnt({nyounger})')
        a(f's_add_u32 s63, s{sNONCE}, s{sLAYER}')
        a('s_add_u32 s63, s63, 1')
        a('v_subrev_u32 v176, s63, v176')
        a('v_cmp_lt_u32 vcc, 7, v176')
        a('s_and_b32 s61, vcc_lo, 0xf')
        a('s_cmp_eq_u32 s61, 0')
        a(f's_cbranch_scc0 {N}')
        self.imp_addr(st)
        self.imp_loads(st)
        a(f's_mov_b32 s{sNEED}, 0')
        a(f's_branch {E}')
        a.label(N)
        a(f's_mov_b32 s{sNEED}, 1')
        a.label(E)

    def imp_fill_vals(self, nK, tsrc):
        pass

    def imp_finish(self, st):
        a = self.a
        FILL = a.newlabel('IM_FILL'); E = a.newlabel('IM_END')
        a(f's_cmp_eq_u32 s{sJ}, 0')
        a(f's_cbranch_scc1 {FILL}')
        a('s_sub_u32 s54, s2, 1')
        self.xflag_addr('s52', 's54')
        a(f's_add_u32 s53, s{sLAYER}, 1')
        a('v_and_b32 v11, 3, v1')
        a('v_lshlrev_b32 v11, 2, v11')
        a('v_add_u32 v11, 48, v11')
        self.poll('v11', 's52', 4, 's53')
        self.imp_addr(1)
        self.imp_loads(1)
        a('s_waitcnt vmcnt(0)')
        a('ds_write_b128 v184, v[160:163]')
        a('ds_write_b128 v187, v[164:167]')
        a(f'ds_write_b128 v186, v[168:171] offset:{VIMG - 12288}')
        for ror in (2, 1):
            a(f'v_mov_b32_dpp v173, v172 row_ror:{ror} row_mask:0xf bank_mask:0xf')
            a('v_max_f32 v172, v172, v173')
        a(f'v_mov_b32 v12, {L_KN + 32}')
        a('s_mov_b64 exec, 1')
        a('ds_write_b32 v12, v172')
        a('s_mov_b64 exec, -1')
        a(f's_branch {E}')
        a.label(FILL)
        self.imp_addr(1)
        a('v_lshlrev_b32 v10, 4, v0')
        for r in range(160, 172): a(f'v_mov_b32 v{r}, 0')
        for n, reg in ((0, 162), (1, 166)):
            a(f'v_lshrrev_b32 v11, 4, v10')
            a(f'v_add_u32 v11, {n*256}, v11')
            a('v_mul_u32_u24 v12, 21846, v11')
            a('v_lshrrev_b32 v12, 16, v12')
            a('v_mul_u32_u24 v12, 3, v12')
            a('v_sub_u32 v12, v11, v12')
            a('v_cmp_eq_u32 s[70:71], 2, v12')
            if n == 1:
                a('v_cmp_gt_u32 vcc, 2048, v10')
                a('s_and_b64 s[70:71], s[70:71], vcc')
            a('v_mov_b32 v13, 0xf14a')
            a(f'v_cndmask_b32 v{reg}, v{reg}, v13, s[70:71]')
        a('ds_write_b128 v184, v[160:163]')
        a('ds_write_b128 v187, v[164:167]')
        a(f'ds_write_b128 v186, v[168:171] offset:{VIMG - 12288}')
        a(f'v_mov_b32 v12, {L_KN + 32}')
        a('s_mov_b64 exec, 1')
        a('ds_write_b32 v12, v160')
        a('s_mov_b64 exec, -1')
        a.label(E)
        a('s_waitcnt lgkmcnt(0)')

    S1K = [160, 164, 168, 172, 184, 108]; S1V = [128, 132, 136, 140, 48, 52]
    def s1_issue(self, maxtry):
        a = self.a
        E = a.newlabel('S1_E'); Z = a.newlabel('S1_Z')
        a(f's_mov_b32 s{sNEED}, 0')
        a(f's_cmp_eq_u32 s{sJ}, 0')
        a(f's_cbranch_scc1 {E}')
        a('s_sub_u32 s54, s2, 1')
        self.xflag_addr('s52', 's54')
        a('v_and_b32 v11, 3, v1')
        a('v_lshlrev_b32 v11, 2, v11')
        a('v_add_u32 v11, 48, v11')
        if maxtry is None:
            a(f's_add_u32 s53, s{sLAYER}, 1')
            self.poll('v11', 's52', 4, 's53')
        else:
            L = a.newlabel('S1_TRY'); OK = a.newlabel('S1_OK')
            a('s_mov_b32 s60, 0')
            a(f's_add_u32 s63, s{sNONCE}, s{sLAYER}')
            a('s_add_u32 s63, s63, 1')
            a.label(L)
            a(f'buffer_load_dword v12, v11, {srd(S_WS)}, s52 offen sc1')
            a('s_waitcnt vmcnt(0)')
            a('v_subrev_u32 v12, s63, v12')
            a('v_cmp_lt_u32 vcc, 7, v12')
            a('s_and_b32 s61, vcc_lo, 0xf')
            a('s_cmp_eq_u32 s61, 0')
            a(f's_cbranch_scc1 {OK}')
            a('s_add_u32 s60, s60, 1')
            a(f's_cmp_lt_u32 s60, {maxtry}')
            a(f's_cbranch_scc1 {L}')
            a(f's_mov_b32 s{sNEED}, 1')
            a(f's_branch {E}')
            a.label(OK)
        self.kvx_base('s51', 's54')
        a(f's_add_u32 s55, s51, {12288 + 6144}')
        a('s_add_u32 s51, s51, 6144')
        a('s_lshl_b32 s52, s54, 6')
        a(f's_add_u32 s52, s52, {WS_XKN + 16}')
        a('v_and_b32 v11, 3, v1')
        a('v_lshlrev_b32 v11, 2, v11')
        a(f'buffer_load_dword v14, v11, {srd(S_WS)}, s52 offen sc1')
        for n in range(6):
            if n == 4: a('s_add_u32 s51, s51, 4096')
            r = self.S1K[n]
            a(f'buffer_load_dwordx4 v[{r}:{r+3}], v2, {srd(S_WS)}, s51 offen offset:{(n%4)*1024} sc1')
        for n in range(6):
            if n == 4: a('s_add_u32 s55, s55, 4096')
            r = self.S1V[n]
            a(f'buffer_load_dwordx4 v[{r}:{r+3}], v2, {srd(S_WS)}, s55 offen offset:{(n%4)*1024} sc1')
        a.label(E)

    def s1_finish(self):
        a = self.a
        FILL = a.newlabel('S1_FILL'); E = a.newlabel('S1_END')
        half = 6144
        a(f's_cmp_eq_u32 s{sJ}, 0')
        a(f's_cbranch_scc1 {FILL}')
        a('s_waitcnt vmcnt(12)')
        for ror in (2, 1):
            a(f'v_mov_b32_dpp v15, v14 row_ror:{ror} row_mask:0xf bank_mask:0xf')
            a('v_max_f32 v14, v14, v15')
        a(f'v_mov_b32 v12, {L_KN + 32}')
        a('s_mov_b64 exec, 1')
        a('ds_write_b32 v12, v14')
        a('s_mov_b64 exec, -1')
        for n in range(6):
            r = self.S1K[n]
            a(f's_waitcnt vmcnt({11 - n})')
            a(f'ds_write_b128 v2, v[{r}:{r+3}] offset:{KIMG + half + n*1024}')
        for n in range(6):
            r = self.S1V[n]
            a(f's_waitcnt vmcnt({5 - n})')
            a(f'ds_write_b128 v2, v[{r}:{r+3}] offset:{VIMG + half + n*1024}')
        a(f's_branch {E}')
        a.label(FILL)
        for r in range(160, 168): a(f'v_mov_b32 v{r}, 0')
        for n in range(6):
            a(f'v_add_u32 v11, {n*64}, v1')
            a('v_mul_u32_u24 v12, 21846, v11')
            a('v_lshrrev_b32 v12, 16, v12')
            a('v_mul_u32_u24 v12, 3, v12')
            a('v_sub_u32 v12, v11, v12')
            a('v_cmp_eq_u32 vcc, 2, v12')
            a('v_mov_b32 v13, 0xf14a')
            a('v_cndmask_b32 v162, v160, v13, vcc')
            a(f'ds_write_b128 v2, v[160:163] offset:{KIMG + half + n*1024}')
            a(f'ds_write_b128 v2, v[164:167] offset:{VIMG + half + n*1024}')
        a.label(E)
        a('s_waitcnt lgkmcnt(0)')
        self.cnt_inc(L_CNTA)
        a('s_waitcnt lgkmcnt(0)')

    I2R = [160, 164, 168, 172, 184, 108]
    def i2_flag(self):
        a = self.a
        a('s_sub_u32 s54, s2, 1')
        self.xflag_addr('s52', 's54')
        a('v_and_b32 v11, 3, v1')
        a('v_lshlrev_b32 v11, 2, v11')
        a('v_add_u32 v11, 32, v11')
        a(f'buffer_load_dword v182, v11, {srd(S_WS)}, s52 offen sc1')
    def i2_loads(self):
        a = self.a
        a('s_sub_u32 s54, s2, 1')
        self.kvx_base('s51', 's54')
        a(f's_sub_u32 s55, s{sW}, 6')
        a('s_mul_i32 s55, s55, 12288')
        a('s_add_u32 s51, s51, s55')
        a('s_lshl_b32 s52, s54, 6')
        a(f's_add_u32 s52, s52, {WS_XKN}')
        a('v_and_b32 v11, 3, v1')
        a('v_lshlrev_b32 v11, 2, v11')
        a(f'buffer_load_dword v183, v11, {srd(S_WS)}, s52 offen sc1')
        for n in range(6):
            r = self.I2R[n]
            if n == 4: a('s_add_u32 s51, s51, 4096')
            a(f'buffer_load_dwordx4 v[{r}:{r+3}], v2, {srd(S_WS)}, s51 offen offset:{(n%4)*1024} sc1')
    def i2_try(self):
        a = self.a
        N = a.newlabel('I2T_N'); E = a.newlabel('I2T_E')
        a('s_waitcnt vmcnt(0)')
        a(f's_add_u32 s63, s{sNONCE}, s{sLAYER}')
        a('s_add_u32 s63, s63, 1')
        a('v_subrev_u32 v182, s63, v182')
        a('v_cmp_lt_u32 vcc, 7, v182')
        a('s_and_b32 s61, vcc_lo, 0xf')
        a('s_cmp_eq_u32 s61, 0')
        a(f's_cbranch_scc0 {N}')
        self.i2_loads()
        a(f's_mov_b32 s{sNEED}, 0')
        a(f's_branch {E}')
        a.label(N)
        a(f's_mov_b32 s{sNEED}, 1')
        a.label(E)
    def i2_finish(self):
        a = self.a
        FILL = a.newlabel('I2F_FILL'); E = a.newlabel('I2F_E'); GO = a.newlabel('I2F_GO')
        a(f's_sub_u32 s55, s{sW}, 6')
        a(f's_mul_i32 s55, s55, {VIMG}')
        a('v_add_u32 v13, s55, v2')
        a(f's_cmp_eq_u32 s{sJ}, 0')
        a(f's_cbranch_scc1 {FILL}')
        a(f's_cmp_eq_u32 s{sNEED}, 0')
        a(f's_cbranch_scc1 {GO}')
        a('s_sub_u32 s54, s2, 1')
        self.xflag_addr('s52', 's54')
        a(f's_add_u32 s53, s{sLAYER}, 1')
        a('v_and_b32 v11, 3, v1')
        a('v_lshlrev_b32 v11, 2, v11')
        a('v_add_u32 v11, 32, v11')
        self.poll('v11', 's52', 4, 's53')
        self.i2_loads()
        a.label(GO)
        a('s_waitcnt vmcnt(0)')
        for n in range(6):
            r = self.I2R[n]
            a(f'ds_write_b128 v13, v[{r}:{r+3}] offset:{n*1024}')
        for ror in (2, 1):
            a(f'v_mov_b32_dpp v15, v183 row_ror:{ror} row_mask:0xf bank_mask:0xf')
            a('v_max_f32 v183, v183, v15')
        a(f'v_mov_b32 v12, {L_KN + 36}')
        a('s_mov_b64 exec, 1')
        a('ds_write_b32 v12, v183')
        a('s_mov_b64 exec, -1')
        a(f's_branch {E}')
        a.label(FILL)
        for r in range(160, 164): a(f'v_mov_b32 v{r}, 0')
        for n in range(6):
            a(f'v_add_u32 v11, {n*64}, v1')
            a('v_mul_u32_u24 v12, 21846, v11')
            a('v_lshrrev_b32 v12, 16, v12')
            a('v_mul_u32_u24 v12, 3, v12')
            a('v_sub_u32 v12, v11, v12')
            a('v_cmp_eq_u32 vcc, 2, v12')
            a(f's_cmp_eq_u32 s{sW}, 6')
            a('s_cselect_b32 s55, 0xf14a, 0')
            a('v_mov_b32 v14, s55')
            a('v_cndmask_b32 v162, v160, v14, vcc')
            a(f'ds_write_b128 v13, v[160:163] offset:{n*1024}')
        a.label(E)
        a('s_waitcnt lgkmcnt(0)')
        self.cnt_inc(L_CNTB)
        a('s_waitcnt lgkmcnt(0)')

    def cnt_inc(self, addr):
        a = self.a
        a(f'v_mov_b32 v11, {addr}')
        a('v_mov_b32 v12, 1')
        a('s_mov_b64 exec, 1')
        a('ds_add_u32 v11, v12')
        a('s_mov_b64 exec, -1')

    def cnt_wait(self, addr):
        a = self.a
        L = a.newlabel('CW'); D = a.newlabel('CWD')
        a(f's_add_u32 s62, s{sLAYER}, 1')
        if addr == L_CNTA: a('s_lshr_b32 s62, s62, 1')
        a(f'v_mov_b32 v11, {addr}')
        a('s_mov_b32 s60, 0')
        a.label(L)
        a('ds_read_b32 v12, v11')
        a('s_waitcnt lgkmcnt(0)')
        a('v_readfirstlane_b32 s61, v12')
        a('s_cmp_ge_u32 s61, s62')
        a(f's_cbranch_scc1 {D}')
        a('s_sleep 1')
        a('s_add_u32 s60, s60, 1')
        a('s_cmp_lt_u32 s60, 0x200000')
        a(f's_cbranch_scc1 {L}')
        a.label(D)

    def light_flag(self):
        a = self.a
        E = a.newlabel('LF_E')
        a(f's_cmp_eq_u32 s{sJ}, 7')
        a(f's_cbranch_scc1 {E}')
        a('s_waitcnt vmcnt(0)')
        self.set_block_flag()
        a.label(E)

    def attn_addr(self):
        a = self.a
        a('v_and_b32 v10, 31, v1')
        a(f's_lshl_b32 s50, s{sRB}, 5')
        a('v_add_u32 v10, s50, v10')
        a('v_mul_u32_u24 v10, 48, v10')
        a('v_lshrrev_b32 v11, 5, v1')
        a('v_lshlrev_b32 v12, 4, v11')
        a('v_add_u32 v105, v10, v12')
        a('v_add_u32 v106, 32, v10')
        a('v_bfe_u32 v12, v1, 2, 2')
        a('v_lshlrev_b32 v13, 2, v11')
        a('v_add_u32 v12, v12, v13')
        a('v_add_u32 v12, s50, v12')
        a('v_mul_u32_u24 v12, 48, v12')
        a('v_and_b32 v13, 3, v1')
        a('v_lshlrev_b32 v14, 3, v13')
        a('v_min_u32 v15, 1, v13')
        a('v_lshlrev_b32 v15, 3, v15')
        a('v_add_u32 v15, 32, v15')
        a('v_bfe_u32 v13, v1, 4, 1')
        a('v_cmp_eq_u32 vcc, 1, v13')
        a('v_cndmask_b32 v14, v14, v15, vcc')
        a('v_add_u32 v12, v12, v14')
        a(f'v_add_u32 v107, {VIMG}, v12')

    def attn_masks_md(self, MD):
        a = self.a
        a('v_and_b32 v10, 31, v1')
        a('v_lshrrev_b32 v11, 5, v1')
        a('v_lshlrev_b32 v13, 2, v11')
        a('v_sub_u32 v10, v10, v13')
        a('v_mov_b32 v14, 0xf149f2ca')
        a('v_mov_b32 v15, 0')
        conds = ['s[70:71]', 's[72:73]', 's[74:75]', 's[76:77]']
        for r0 in range(0, 16, 4):
            for q in range(4):
                r = r0 + q
                kk = 8 * (r >> 2) + (r & 3)
                a(f'v_cmp_le_i32 {conds[q]}, {kk}, v10')
            for q in range(4):
                r = r0 + q
                a(f'v_cndmask_b32 v{MD+r}, v14, v15, {conds[q]}')

    def make_mf(self, r0, r1):
        for r in range(r0, r1):
            self.a(f'v_sub_f32 v{self.AMF+r}, 0xf149f2ca, v{self.AMD+r}')

    def norm_check(self, fail_label):
        a = self.a
        a('v_and_b32 v11, 15, v1')
        a('v_lshlrev_b32 v11, 2, v11')
        a(f'ds_read_b32 v12, v11 offset:{L_KN}')
        a('s_waitcnt lgkmcnt(0)')
        for ror in (8, 4, 2, 1):
            a(f'v_mov_b32_dpp v13, v12 row_ror:{ror} row_mask:0xf bank_mask:0xf')
            a('v_max_f32 v12, v12, v13')
        a(f'v_mul_f32 v12, v{self.vQN}, v12')
        a(f's_mov_b32 s50, {self.args.t2hex}')
        a('v_mov_b32 v13, s50')
        a('v_cmp_nle_f32 vcc, v12, v13')
        a('s_cmp_lg_u64 vcc, 0')
        a(f's_cbranch_scc1 {fail_label}')

    AO, AMD, AMF, AVF, AKF, ASB, ANM = 16, 32, 48, 64, 80, 112, 160
    def at_kread(self, i):
        n = 8 - i; s = self.AKF + 8 * (i % 2)
        self.a(f'ds_read_b128 v[{s}:{s+3}], v{vPA[0]} offset:{n*1536}')
        self.a(f'ds_read_b128 v[{s+4}:{s+7}], v{vPA[1]} offset:{n*1536}')
    def at_vread(self, i):
        n = 8 - i; s = self.AVF + 8 * (i % 2)
        for s2 in range(2):
            for sx in range(2):
                self.a(f'ds_read_b64_tr_b16 v[{s+4*s2+2*sx}:{s+4*s2+2*sx+1}], v{vPA[2]} offset:{n*1536 + s2*768 + sx*384}')
    def at_smfma(self, i, part, cz):
        s = self.AKF + 8 * (i % 2); d = self.ASB + 16 * (i % 2)
        MD, MF, QA, QB = self.AMD, self.AMF, self.QA, self.QB
        if part == 0:
            c = f'v[{MD}:{MD+15}]' if i == 0 else f'v[{MF}:{MF+15}]' if i == 8 else cz
            self.a(f'{MF32} v[{d}:{d+15}], v[{s}:{s+3}], v[{QA}:{QA+3}], {c}')
        else:
            self.a(f'{MF32} v[{d}:{d+15}], v[{s+4}:{s+7}], v[{QB}:{QB+3}], v[{d}:{d+15}]')

    def attn_loop(self, cz, sync):
        a = self.a
        O, VF, SB = self.AO, self.AVF, self.ASB
        def pv(i, k):
            s = VF + 8 * (i % 2) + 4 * k; d = SB + 16 * (i % 2) + 4 * k
            c = '0' if (i == 0 and k == 0) else f'v[{O}:{O+15}]'
            a(f'{MF32} v[{O}:{O+15}], v[{s}:{s+3}], v[{d}:{d+3}], {c}')
        self.at_kread(0); self.at_vread(0)
        a('s_waitcnt lgkmcnt(4)')
        self.at_smfma(0, 0, cz); self.at_smfma(0, 1, cz)
        for i in range(9):
            d = SB + 16 * (i % 2)
            if sync and self.args.fi: self.fstamp(53 + i)
            ex = lambda r0, r1: [a(f'v_exp_f32 v{d+r}, v{d+r}') for r in range(r0, r1)]
            cv = lambda j0, j1: [a(f'v_cvt_pk_bf16_f32 v{d+j}, v{d+2*j}, v{d+2*j+1}') for j in range(j0, j1)]
            if i < 8:
                if sync: sync(i)
                self.at_kread(i + 1)
                ex(0, 4)
                if i > 0: pv(i - 1, 1)
                self.at_vread(i + 1)
                a('s_waitcnt lgkmcnt(4)')
                self.at_smfma(i + 1, 0, cz)
                ex(4, 8)
                if sync and i in (5, 6): self.make_mf(8 * (i - 5), 8 * (i - 5) + 8)
                cv(0, 2)
                ex(8, 12)
                self.at_smfma(i + 1, 1, cz)
                cv(2, 4)
                ex(12, 16)
                pv(i, 0)
                cv(4, 8)
            else:
                ex(0, 4)
                pv(i - 1, 1)
                ex(4, 8)
                cv(0, 2)
                ex(8, 12)
                cv(2, 4)
                a('s_waitcnt lgkmcnt(0)')
                ex(12, 16)
                pv(i, 0)
                cv(4, 8)
                pv(i, 1)

    def attn_true(self):
        a = self.a
        MD, MF, SB, NM = self.AMD, self.AMF, self.ASB, self.ANM
        self.make_mf(0, 16)
        a('v_mov_b32 v10, 0xff7fffff')
        a('v_mov_b32 v11, 0xff7fffff')
        self.at_kread(0)
        for i in range(9):
            if i < 8:
                self.at_kread(i + 1); a('s_waitcnt lgkmcnt(2)')
            else: a('s_waitcnt lgkmcnt(0)')
            self.at_smfma(i, 0, '0'); self.at_smfma(i, 1, '0')
            d = SB + 16 * (i % 2)
            for k in range(0, 16, 4):
                a(f'v_max3_f32 v10, v10, v{d+k}, v{d+k+1}')
                a(f'v_max3_f32 v11, v11, v{d+k+2}, v{d+k+3}')
        a('v_max_f32 v10, v10, v11')
        a('v_mov_b32 v11, v10')
        a('v_permlane32_swap_b32 v10, v11')
        a('v_max_f32 v10, v10, v11')
        for r in range(16):
            a(f'v_sub_f32 v{NM+r}, 0, v10')
            a(f'v_sub_f32 v{MD+r}, v{MD+r}, v10')
            a(f'v_sub_f32 v{MF+r}, v{MF+r}, v10')
        self.attn_loop(f'v[{NM}:{NM+15}]', None)

    def attn_B(self):
        a = self.a
        FB1 = a.newlabel('AT_FB1'); FB2 = a.newlabel('AT_FB2'); FB3 = a.newlabel('AT_FB3'); DONE = a.newlabel('AT_DONE')
        FB2L = a.newlabel('AT_FB2L')
        if self.args.aprio:
            L = self.if_wave('ge', 4)
            a(f's_setprio {self.args.aprio}')
            a.label(L)
        L = self.if_wave('eq', 0)
        LN = a.newlabel('AT_W0N')
        a(f's_cmp_lg_u32 s{sNEED}, 0')
        a(f's_cbranch_scc1 {LN}')
        a('s_call_b64 s[88:89], SUB_S1FIN')
        a.label(LN)
        a.label(L)
        if self.args.force_fallback:
            a(f's_branch {FB1}')
        self.norm_check(FB1)
        def stage1_if_needed():
            D = a.newlabel('S1_D')
            a(f'v_mov_b32 v11, {L_SIG}')
            a('ds_read_b32 v12, v11 offset:16')
            a('s_waitcnt lgkmcnt(0)')
            a('v_readfirstlane_b32 s61, v12')
            a('s_cmp_eq_u32 s61, 0')
            a(f's_cbranch_scc1 {D}')
            a('s_call_b64 s[88:89], SUB_IMPORT1')
            a.label(D)
        self.stage1_if_needed = stage1_if_needed
        def sync_point(i):
            if i == self.args.fli:
                SK = self.if_wave('ge', 4)
                self.light_flag()
                a.label(SK)
            if i == 0:
                SK = self.if_wave('eq', 4)
                stage1_if_needed()
                a.label(SK)
            SK = a.newlabel('AT_SY')
            a(f's_cmp_lg_u32 s{sRB}, {i}')
            a(f's_cbranch_scc1 {SK}')
            self.cnt_wait(L_CNTA)
            self.norm_check(FB2)
            a.label(SK)
            if i in (1, 2, 3, 4):
                SK = self.if_wave('ge', 6)
                if i == 1:
                    LJ = a.newlabel('AT_J0'); a(f's_cmp_eq_u32 s{sJ}, 0'); a(f's_cbranch_scc1 {LJ}')
                    self.i2_flag()
                    a.label(LJ)
                if i == 2:
                    LJ = a.newlabel('AT_J0'); a(f's_cmp_eq_u32 s{sJ}, 0'); a(f's_cbranch_scc1 {LJ}')
                    self.i2_try()
                    LR = a.newlabel('AT_R2'); a(f's_cmp_eq_u32 s{sNEED}, 0'); a(f's_cbranch_scc1 {LR}')
                    self.i2_flag()
                    a.label(LR)
                    a.label(LJ)
                if i == 3:
                    LJ = a.newlabel('AT_J0'); a(f's_cmp_eq_u32 s{sJ}, 0'); a(f's_cbranch_scc1 {LJ}')
                    a(f's_cmp_eq_u32 s{sNEED}, 0'); a(f's_cbranch_scc1 {LJ}')
                    self.i2_try()
                    a.label(LJ)
                if i == 4:
                    a('s_call_b64 s[88:89], SUB_IMPORT2')
                a.label(SK)
            if i == 4 and self.args.aprio:
                SK = self.if_wave('ge', 4)
                a('s_setprio 0')
                a.label(SK)
            if i >= 4:
                SK = a.newlabel('AT_SYB')
                a(f's_cmp_lg_u32 s{sRB}, {i-4}')
                a(f's_cbranch_scc1 {SK}')
                self.cnt_wait(L_CNTB)
                self.norm_check(FB3)
                a.label(SK)
        self.attn_loop('0', sync_point)
        a(f's_branch {DONE}')
        a.label(FB1)
        a('s_waitcnt lgkmcnt(0)')
        L = self.if_wave('ge', 4)
        if self.args.fli >= 0: self.light_flag()
        L4 = self.if_wave('eq', 4)
        stage1_if_needed()
        a.label(L4)
        a.label(L)
        self.cnt_wait(L_CNTA)
        a.label(FB2)
        L = self.if_wave('ge', 4)
        L6 = self.if_wave('ge', 6)
        a('s_waitcnt vmcnt(0)')
        a(f's_mov_b32 s{sNEED}, 1')
        a('s_call_b64 s[88:89], SUB_IMPORT2')
        a.label(L6)
        self.cnt_wait(L_CNTB)
        a.label(L)
        a.label(FB3)
        a('s_setprio 0')
        a('s_waitcnt vmcnt(0) lgkmcnt(0)')
        self.attn_true()
        a.label(DONE)

    def phi(self, r, tA, tB, sel_lo=False):
        a = self.a
        a(f'v_mul_f32 v{tA}, v102, v{r}')
        a(f'v_fma_f32 v{tB}, v101, v{r}, s52')
        a(f'v_exp_f32_e64 v{tA}, v{tA} clamp')
        a(f'v_max_f32 v{tB}, s52, v{tB}')
        if not sel_lo:
            a(f'v_add_f32 v{r}, v{tA}, v{tB}')
        else:
            a(f'v_add_f32 v{tA}, v{tA}, v{tB}')
            a(f'v_mul_f32 v{r}, v101, v{r}')
            a(f'v_cndmask_b32 v{r}, v{r}, v{tA}, {LO}')

    def epi_A(self):
        a = self.a
        A0, A1 = self.ACC0, self.ACC1
        QA, QB = self.QA, self.QB
        a('s_mov_b32 s53, 0x3fb8aa3b')
        a('v_mul_f32 v102, s53, v101')
        a('s_mov_b32 s52, 0x358637bd')
        t = 0
        def ph(r, sel=False):
            nonlocal t
            self.phi(r, 106 + 2 * (t % 4), 107 + 2 * (t % 4), sel); t += 1
        for r in list(range(A0 + 12, A0 + 16)) + list(range(A1, A1 + 4)): ph(r)
        for r in range(A1 + 4, A1 + 12): a(f'v_mul_f32 v{r}, v101, v{r}')
        for r in range(A1 + 12, A1 + 16): ph(r, True)
        pk = {'B0g3': (126, A0+12), 'B1g0': (128, A1), 'B1g1': (130, A1+4), 'B1g2': (132, A1+8), 'B1g3': (134, A1+12)}
        for n, (d, s_) in pk.items():
            a(f'v_cvt_pk_bf16_f32 v{d}, v{s_}, v{s_+1}')
            a(f'v_cvt_pk_bf16_f32 v{d+1}, v{s_+2}, v{s_+3}')
        self.write_img({n: d for n, (d, _) in pk.items()})
        a('s_waitcnt lgkmcnt(0)')
        a('s_barrier')

    def epi_A_q(self):
        a = self.a
        A0 = self.ACC0
        QA, QB = self.QA, self.QB
        a('s_mov_b32 s52, 0x358637bd')
        for t, r in enumerate(range(A0, A0 + 12)): self.phi(r, 106 + 2 * (t % 3), 107 + 2 * (t % 3))
        for j in range(4): a(f'v_cvt_pk_bf16_f32 v{QA+j}, v{A0+2*j}, v{A0+2*j+1}')
        a(f'v_cvt_pk_bf16_f32 v{QB}, v{A0+8}, v{A0+9}')
        a(f'v_cvt_pk_bf16_f32 v{QB+1}, v{A0+10}, v{A0+11}')
        a('v_mov_b32 v13, 0')
        a(f'v_mov_b32 v{QB+2}, 0')
        a(f'v_mov_b32 v{QB+3}, 0')
        for j in range(2): a(f'v_cndmask_b32 v{QB+j}, v13, v{QB+j}, {LO}')

    def linear_attn(self):
        a = self.a
        QA, QB = self.QA, self.QB
        L = self.if_wave('ge', 4)
        if self.args.wosig:
            a(f's_add_u32 s59, s{sLAYER}, 1')
            self.lds_wait('s59')
        if not self.args.nowo: self.dma_wo(0, 4)
        a.label(L)
        LS = a.newlabel('LA_ST')
        a(f's_cmp_lg_u32 s{sLAYER}, 0')
        a(f's_cbranch_scc1 {LS}')
        self.late_touch()
        L = self.if_wave('ge', 1)
        self.stash_load(1)
        a.label(L)
        a.label(LS)
        L = self.if_wave('ge', 1)
        self.epi_A_q()
        a.label(L)
        E = self.if_wave('eq', 0)
        a('v_lshrrev_b32 v11, 5, v1')
        a('v_bfe_u32 v12, v1, 2, 2')
        a('v_lshlrev_b32 v13, 2, v11')
        a('v_add_u32 v12, v12, v13')
        a('v_add_u32 v12, 256, v12')
        a('v_mul_u32_u24 v12, 48, v12')
        a('v_and_b32 v13, 3, v1')
        a('v_bfe_u32 v107, v1, 4, 1')
        a('v_min_u32 v15, 1, v13')
        a('v_lshlrev_b32 v15, 3, v15')
        a('v_add_u32 v15, 32, v15')
        a('v_lshlrev_b32 v14, 3, v13')
        a('v_and_b32 v106, 1, v13')
        a('v_lshlrev_b32 v106, 4, v106')
        a('v_lshrrev_b32 v108, 1, v13')
        a('v_lshlrev_b32 v108, 3, v108')
        a('v_add_u32 v106, v106, v108')
        a('v_cmp_eq_u32 vcc, 1, v107')
        a('v_cndmask_b32 v14, v14, v15, vcc')
        a('v_cndmask_b32 v106, v106, v15, vcc')
        a('v_add_u32 v104, v12, v106')
        a('v_add_u32 v105, v12, v14')
        a(f'v_add_u32 v105, {VIMG}, v105')
        D = 32
        NB = 4
        def rd(s2):
            s = 112 + 8 * (s2 % NB)
            a(f'ds_read_b64_tr_b16 v[{s}:{s+1}], v104 offset:{s2*768}')
            a(f'ds_read_b64_tr_b16 v[{s+2}:{s+3}], v104 offset:{s2*768+384}')
            a(f'ds_read_b64_tr_b16 v[{s+4}:{s+5}], v105 offset:{s2*768}')
            a(f'ds_read_b64_tr_b16 v[{s+6}:{s+7}], v105 offset:{s2*768+384}')
        for s2 in range(NB - 1): rd(s2)
        for s2 in range(16):
            if s2 + NB - 1 < 16: rd(s2 + NB - 1)
            pend = min(NB - 1, 15 - s2)
            a(f's_waitcnt lgkmcnt({4*pend})')
            s = 112 + 8 * (s2 % NB)
            a(f'{MF32} v[{D}:{D+15}], v[{s}:{s+3}], v[{s+4}:{s+7}], {"0" if s2 == 0 else f"v[{D}:{D+15}]"}')
        (None if self.args.fq else self.fstamp(53))
        a(f's_lshr_b32 s50, s{sLAYER}, 1')
        a(f's_mul_i32 s50, s50, {KVP_SZ}')
        a(f's_add_u32 s50, s50, {WS_KVP}')
        a(f's_lshl_b32 s51, s{sH}, 15')
        a('s_add_u32 s50, s50, s51')
        a(f's_lshl_b32 s51, s{sJ}, 12')
        a('s_add_u32 s51, s51, s50')
        a(f's_add_u32 s53, s{sLAYER}, 17')
        a(f's_add_u32 s53, s53, s{sNONCE}')
        for g in range(3):
            b = 48 + 4 * g
            a(f'v_cvt_pk_bf16_f32 v{b}, v{D+4*g}, v{D+4*g+1}')
            a(f'v_cvt_pk_bf16_f32 v{b+1}, v{D+4*g+2}, v{D+4*g+3}')
            a(f'v_mov_b32 v{b+2}, s53')
            a(f'v_mov_b32 v{b+3}, s53')
        for g in range(3):
            b = 48 + 4 * g
            a(f'buffer_store_dwordx4 v[{b}:{b+3}], v2, {srd(S_WS)}, s51 offen offset:{g*1024} sc1')
        (None if self.args.fq else self.fstamp(54))
        IB = [16, 28, 40, 52, 64, 76, 104, 116]
        PL = a.newlabel('KV_POLL'); PD = a.newlabel('KV_DONE')
        self.epi_A_q()
        if not self.args.noprepoll:
            PP = a.newlabel('KV_PP'); PPD = a.newlabel('KV_PPD')
            a('v_and_b32 v10, 7, v1')
            a('v_lshlrev_b32 v10, 12, v10')
            a('v_add_u32 v10, 2048, v10')
            a('s_mov_b32 s60, 0')
            a.label(PP)
            a(f'buffer_load_dwordx4 v[88:91], v10, {srd(S_WS)}, s50 offen sc1')
            a('s_waitcnt vmcnt(0)')
            a('v_mov_b32 v92, s53')
            a('v_bitop3_b32 v88, v90, v91, v92 bitop3:0x7e')
            a('v_cmp_ne_u32 vcc, 0, v88')
            a('s_and_b32 s61, vcc_lo, 0xff')
            a('s_cmp_eq_u32 s61, 0')
            a(f's_cbranch_scc1 {PPD}')
            a('s_add_u32 s60, s60, 1')
            a(f's_cmp_lt_u32 s60, {self.args.spin}')
            a(f's_cbranch_scc1 {PP}')
            a.label(PPD)
        a('s_mov_b32 s60, 0')
        a.label(PL)
        a('s_mov_b32 s54, s50')
        for j in range(8):
            for g in range(3):
                r = IB[j] + 4 * g
                a(f'buffer_load_dwordx4 v[{r}:{r+3}], v2, {srd(S_WS)}, s54 offen offset:{g*1024} sc1')
            if j < 7: a('s_add_u32 s54, s54, 4096')
        a('v_mov_b32 v88, 0')
        a('v_mov_b32 v89, s53')
        for j in range(8):
            a(f's_waitcnt vmcnt({3*(7-j)})')
            r = IB[j]
            a(f'v_bitop3_b32 v90, v{r+2}, v{r+3}, v89 bitop3:0x7e')
            a(f'v_bitop3_b32 v91, v{r+6}, v{r+7}, v89 bitop3:0x7e')
            a(f'v_bitop3_b32 v92, v{r+10}, v{r+11}, v89 bitop3:0x7e')
            a('v_or3_b32 v88, v88, v90, v91')
            a('v_or_b32 v88, v88, v92')
        a('v_cmp_ne_u32 vcc, 0, v88')
        a('s_cmp_eq_u64 vcc, 0')
        a(f's_cbranch_scc1 {PD}')
        a(f's_cmp_lg_u32 s{sDEAD}, 0')
        a(f's_cbranch_scc1 {PD}')
        a('s_add_u32 s60, s60, 1')
        a(f's_cmp_lt_u32 s60, {self.args.spin}')
        a(f's_cbranch_scc1 {PL}')
        a(f's_mov_b32 s{sDEAD}, 1')
        a.label(PD)
        (None if self.args.fq else self.fstamp(55))
        a(f's_add_u32 s59, s{sLAYER}, 1')
        self.lds_signal('s59')
        a('v_mov_b32 v88, 0x00003f80')
        a('v_mov_b32 v89, 0x3f800000')
        acc = [128 + k for k in range(12)]
        for k in range(12): a(f'v_mov_b32 v{acc[k]}, 0')
        for j in range(8):
            for g in range(3):
                for h2 in range(2):
                    src = IB[j] + 4 * g + h2
                    a(f'v_dot2c_f32_bf16 v{acc[4*g + 2*h2]}, v{src}, v88')
                    a(f'v_dot2c_f32_bf16 v{acc[4*g + 2*h2 + 1]}, v{src}, v89')
        (None if self.args.fq else self.fstamp(56))
        for j in range(6): a(f'v_cvt_pk_bf16_f32 v{64+j}, v{acc[2*j]}, v{acc[2*j+1]}')
        LS0 = a.newlabel('LA_ST0')
        a(f's_cmp_lg_u32 s{sLAYER}, 0')
        a(f's_cbranch_scc1 {LS0}')
        self.stash_load(1)
        a.label(LS0)
        a(f'ds_write_b128 v2, v[64:67] offset:{L_KV}')
        a('v_lshlrev_b32 v13, 3, v1')
        a(f'ds_write_b64 v13, v[68:69] offset:{L_KV+1024}')
        a.label(E)
        a('s_waitcnt lgkmcnt(0)')
        a('s_barrier')
        a('v_lshlrev_b32 v13, 3, v1')
        a(f'ds_read_b128 v[64:67], v2 offset:{L_KV}')
        a(f'ds_read_b64 v[68:69], v13 offset:{L_KV+1024}')
        a('v_mov_b32 v70, 0\nv_mov_b32 v71, 0')
        a('s_waitcnt lgkmcnt(0)')
        a(f'{MF32} v[16:31], v[64:67], v[{QA}:{QA+3}], 0')
        a(f'{MF32} v[16:31], v[68:71], v[{QB}:{QB+3}], v[16:31]')

    def o_addr_lane(self):
        a = self.a
        a('v_bfe_u32 v11, v1, 4, 1')
        a(f'v_mul_u32_u24 v11, {OBS}, v11')
        a('v_and_b32 v12, 15, v1')
        a('v_lshlrev_b32 v12, 4, v12')
        a('v_add_u32 v11, v11, v12')
        a('v_lshrrev_b32 v12, 5, v1')
        a(f's_mul_i32 s51, s{sH}, 5')
        a('v_add_u32 v12, s51, v12')
        def qoff(dst, q):
            a(f'v_lshrrev_b32 v14, 3, {q}')
            a(f'v_lshlrev_b32 {dst}, 10, v14')
            a(f'v_bfe_u32 v14, {q}, 2, 1')
            a('v_lshlrev_b32 v14, 9, v14')
            a(f'v_add_u32 {dst}, {dst}, v14')
            a(f'v_and_b32 v14, 1, {q}')
            a('v_lshlrev_b32 v14, 8, v14')
            a(f'v_add_u32 {dst}, {dst}, v14')
            a(f'v_bfe_u32 v14, {q}, 1, 1')
            a('v_lshlrev_b32 v14, 3, v14')
            a(f'v_add_u32 {dst}, {dst}, v14')
            a(f'v_add_u32 {dst}, {dst}, v11')
        qoff('v40', 'v12')
        a('v_add_u32 v13, 2, v12')
        qoff('v41', 'v13')
        a('s_add_u32 s51, s51, 4')
        a('v_mov_b32 v13, s51')
        qoff('v42', 'v13')

    def o_addr(self):
        a = self.a
        a(f's_lshl_b32 s50, s{sJ}, 4')
        a(f's_lshl_b32 s51, s{sRB}, 1')
        a('s_add_u32 s50, s50, s51')
        a(f's_mul_i32 s50, s50, {OBS}')
        a(f's_add_u32 s50, s50, s{sOF}')

    def finalize_o(self, eps):
        a = self.a
        self.o_addr()
        a(f'v_cndmask_b32 v10, v24, v28, {LO}')
        if eps: a('v_add_f32 v10, 0x358637bd, v10')
        a('v_rcp_f32 v10, v10')
        for r in range(12): a(f'v_mul_f32 v{16+r}, v10, v{16+r}')
        for j in range(6): a(f'v_cvt_pk_bf16_f32 v{32+j}, v{16+2*j}, v{17+2*j}')
        a(f'buffer_store_dwordx2 v[32:33], v{vPO[0]}, {srd(S_WS)}, s50 offen')
        a(f'buffer_store_dwordx2 v[34:35], v{vPO[1]}, {srd(S_WS)}, s50 offen')
        a('s_mov_b64 exec, 0xffffffff')
        a(f'buffer_store_dwordx2 v[36:37], v{vPO[2]}, {srd(S_WS)}, s50 offen')
        a('s_mov_b64 exec, -1')
        a('s_waitcnt vmcnt(0)')

    def qkv_pre(self):
        a = self.a
        self.set_layer_bases()
        a(f's_lshl_b32 s50, s{sJ}, 3')
        a(f's_add_u32 s50, s50, s{sRB}')
        a(f's_lshl_b32 s85, s50, 11')
        a(f's_add_u32 s85, s85, s{sST}')
        a(f's_mul_i32 s84, s50, {RBS}')
        a(f's_add_u32 s84, s84, s{sXF}')

    def wo_pre(self):
        a = self.a
        a(f's_lshr_b32 s50, s{sH}, 3')
        a(f's_and_b32 s51, s{sH}, 7')
        a(f's_and_b32 s52, s{sW}, 1')
        a(f's_lshr_b32 s53, s{sW}, 1')
        a(f's_lshl_b32 s54, s{sJ}, 4')
        a('s_lshl_b32 s55, s50, 2')
        a('s_add_u32 s54, s54, s55')
        a('s_lshl_b32 s55, s52, 1')
        a('s_add_u32 s54, s54, s55')
        a(f's_mul_i32 s55, s54, {OBS}')
        a('s_mul_i32 s56, s53, 10240')
        a('s_add_u32 s55, s55, s56')
        a(f's_add_u32 s55, s55, s{sOF}')
        a(f's_add_u32 s56, s55, {OBS}')
        a('s_cmp_eq_u32 s53, 0')
        a('s_cselect_b32 s57, s55, s56')
        a('s_cselect_b32 s56, s56, s55')
        a('s_mov_b32 s55, s57')
        a('s_mov_b32 s84, s51\ns_mov_b32 s85, s53\ns_mov_b32 s86, s54\ns_mov_b32 s87, s55\ns_mov_b32 s98, s56')

    def wo_phase(self):
        a = self.a
        OFR = 16; WF = 96; AC = 48; XOR_ = [88, 90, 92, 94, 136]
        HELP = a.newlabel('WO_HELP')
        a(f's_cmp_ge_u32 s{sW}, 4')
        a(f's_cbranch_scc1 {HELP}')
        a('s_mov_b32 s51, s84\ns_mov_b32 s53, s85\ns_mov_b32 s54, s86\ns_mov_b32 s55, s87\ns_mov_b32 s56, s98')
        vq = VQ()
        def oload(i):
            for aa in range(2):
                r = OFR + 8 * (i % 4) + 4 * aa
                sb = 's55' if aa == 0 else 's56'
                a(f'buffer_load_dwordx4 v[{r}:{r+3}], v2, {srd(S_WS)}, {sb} offen offset:{(i % 4) * 1024} sc1')
                vq.push(('o', i))
            if i % 4 == 3:
                a('s_add_u32 s55, s55, 4096\ns_add_u32 s56, s56, 4096')
        PF = 3
        for i in range(PF): oload(i)
        (self.fstamp(59) if self.args.flayer else None)
        a('s_mul_i32 s60, s53, 51200')
        a(f's_add_u32 s60, s60, {R_O}')
        a('v_add_u32 v11, s60, v2')
        def wrd1(i, c):
            s = WF + 20 * (i % 2)
            a(f'ds_read_b128 v[{s+4*c}:{s+4*c+3}], v11 offset:{(i*5 + c)*1024}')
        for c in range(5): wrd1(0, c)
        a('s_add_u32 s57, s54, s53')
        a('s_lshr_b32 s58, s57, 1')
        a(f's_mul_i32 s58, s58, {RBS}')
        a('s_mul_i32 s59, s51, 5120')
        a('s_add_u32 s58, s58, s59')
        a('s_and_b32 s59, s57, 1')
        a('s_lshl_b32 s59, s59, 8')
        a('s_add_u32 s58, s58, s59')
        a(f's_add_u32 s59, s58, s{sXF}')
        a('v_lshrrev_b32 v10, 5, v1')
        a('v_lshlrev_b32 v10, 9, v10')
        a('v_and_b32 v12, 15, v1')
        a('v_lshlrev_b32 v12, 4, v12')
        a('v_add_u32 v10, v10, v12')
        a('v_bfe_u32 v12, v1, 4, 1')
        a('v_lshlrev_b32 v12, 3, v12')
        a('v_add_u32 v10, v10, v12')
        (self.fstamp(60) if self.args.flayer else None)
        for i in range(10):
            s = WF + 20 * (i % 2)
            a(f's_waitcnt vmcnt({vq.cnt(("o", i))})')
            if i == 1 and self.args.flayer: self.fstamp(61)
            for c in range(5):
                lg = 4 if i < 9 else (4 - c)
                a(f's_waitcnt lgkmcnt({lg})')
                for aa in range(2):
                    d = AC + 20 * aa + 4 * c; o = OFR + 8 * (i % 4) + 4 * aa
                    cc = '0' if i == 0 else f'v[{d}:{d+3}]'
                    a(f'{MF16} v[{d}:{d+3}], v[{s+4*c}:{s+4*c+3}], v[{o}:{o+3}], {cc}')
                if i < 9: wrd1(i + 1, c)
                if c == 1 and i + PF < 10: oload(i + PF)
                if c == 3 and i >= 5:
                    cc = i - 5
                    if cc == 4: a('s_add_u32 s59, s59, 4096')
                    a(f'buffer_load_dwordx2 v[{XOR_[cc]}:{XOR_[cc]+1}], v10, {srd(S_WS)}, s59 offen offset:{(cc % 4) * 1024} sc1')
                    vq.push('res')
        (self.fstamp(62) if self.args.flayer else None)
        a(f's_mul_i32 s60, s{sW}, 5120')
        a(f's_add_u32 s60, s60, {SCR}')
        a('v_add_u32 v12, s60, v2')
        for c in range(5): a(f'ds_write_b128 v12, v[{AC+20+4*c}:{AC+20+4*c+3}] offset:{c*1024}')
        a('s_waitcnt vmcnt(0)')
        for c in range(5):
            x0, x1 = XOR_[c], XOR_[c] + 1
            b = 100 + 4 * c
            a(f'v_lshlrev_b32 v{b}, 16, v{x0}\nv_and_b32 v{b+1}, 0xffff0000, v{x0}\nv_lshlrev_b32 v{b+2}, 16, v{x1}\nv_and_b32 v{b+3}, 0xffff0000, v{x1}')
            for r in range(4): a(f'v_add_f32 v{AC+4*c+r}, v{AC+4*c+r}, v{b+r}')
        a('s_waitcnt lgkmcnt(0)')
        a.label(HELP)
        a('s_barrier')
        self.stamp(9, True)
        H2 = a.newlabel('WO_H2'); H3 = a.newlabel('WO_H3')
        a(f's_cmp_ge_u32 s{sW}, 4')
        a(f's_cbranch_scc1 {H2}')
        a(f's_xor_b32 s60, s{sW}, 2')
        a('s_mul_i32 s60, s60, 5120')
        a(f's_add_u32 s60, s60, {SCR}')
        a('v_add_u32 v12, s60, v2')
        for c in range(5): a(f'ds_read_b128 v[{16+4*c}:{19+4*c}], v12 offset:{c*1024}')
        a('s_waitcnt lgkmcnt(0)')
        for c in range(5):
            for r in (0, 2): a(f'v_pk_add_f32 v[{AC+4*c+r}:{AC+4*c+r+1}], v[{AC+4*c+r}:{AC+4*c+r+1}], v[{16+4*c+r}:{16+4*c+r+1}]')
            a(f'v_cvt_pk_bf16_f32 v{120+2*c}, v{AC+4*c}, v{AC+4*c+1}')
            a(f'v_cvt_pk_bf16_f32 v{121+2*c}, v{AC+4*c+2}, v{AC+4*c+3}')
        LAST = a.newlabel('WO_LAST')
        a(f's_cmp_eq_u32 s{sLAYER}, 3')
        a(f's_cbranch_scc1 {LAST}')
        a(f's_add_u32 s59, s58, s{sXFN}')
        for c in range(5):
            if c == 4: a('s_add_u32 s59, s59, 4096')
            a(f'buffer_store_dwordx2 v[{120+2*c}:{121+2*c}], v10, {srd(S_WS)}, s59 offen offset:{(c % 4) * 1024}')
        a(f'v_pk_add_f32 v[36:37], v[{AC}:{AC+1}], v[{AC+2}:{AC+3}]')
        a(f'v_pk_mul_f32 v[38:39], v[{AC}:{AC+1}], v[{AC}:{AC+1}]')
        a(f'v_pk_fma_f32 v[38:39], v[{AC+2}:{AC+3}], v[{AC+2}:{AC+3}], v[38:39]')
        for k in range(4, 20, 2):
            a(f'v_pk_add_f32 v[36:37], v[36:37], v[{AC+k}:{AC+k+1}]')
            a(f'v_pk_fma_f32 v[38:39], v[{AC+k}:{AC+k+1}], v[{AC+k}:{AC+k+1}], v[38:39]')
        a('v_add_f32 v40, v36, v37')
        a('v_add_f32 v41, v38, v39')
        a('v_mov_b32 v42, v40\nv_mov_b32 v43, v41')
        a('v_permlane16_swap_b32 v40, v42')
        a('v_permlane16_swap_b32 v41, v43')
        a('v_add_f32 v40, v40, v42\nv_add_f32 v41, v41, v43')
        a('v_mov_b32 v42, v40\nv_mov_b32 v43, v41')
        a('v_permlane32_swap_b32 v40, v42')
        a('v_permlane32_swap_b32 v41, v43')
        a('v_add_f32 v40, v40, v42\nv_add_f32 v41, v41, v43')
        a('s_lshr_b32 s60, s57, 1')
        a('s_lshl_b32 s60, s60, 11')
        a('s_and_b32 s61, s57, 1')
        a('s_lshl_b32 s61, s61, 8')
        a('s_add_u32 s60, s60, s61')
        a('s_bfe_u32 s61, s51, 0x10001')
        a('s_lshl_b32 s61, s61, 10')
        a('s_add_u32 s60, s60, s61')
        a('s_lshr_b32 s61, s51, 2')
        a('s_lshl_b32 s61, s61, 9')
        a('s_add_u32 s60, s60, s61')
        a('s_and_b32 s61, s51, 1')
        a('s_lshl_b32 s61, s61, 3')
        a('s_add_u32 s60, s60, s61')
        a(f's_add_u32 s60, s60, s{sSTN}')
        a('v_lshlrev_b32 v42, 4, v1')
        a('s_mov_b64 exec, 0xffff')
        a(f'buffer_store_dwordx2 v[40:41], v42, {srd(S_WS)}, s60 offen')
        a('s_mov_b64 exec, -1')
        a(f's_branch {H3}')
        a.label(LAST)
        a('s_mul_i32 s60, s57, 20480')
        a('s_mul_i32 s61, s51, 160')
        a('s_add_u32 s60, s60, s61')
        a('v_and_b32 v42, 15, v1')
        a('v_mul_u32_u24 v42, 1280, v42')
        a('v_lshrrev_b32 v43, 4, v1')
        a('v_lshlrev_b32 v43, 3, v43')
        a('v_add_u32 v42, v42, v43')
        for c in range(5):
            if self.args.e_noout: continue
            a(f'buffer_store_dwordx2 v[{120+2*c}:{121+2*c}], v42, {srd(S_OUT)}, s60 offen offset:{c*32} {self.args.outflag}')
        a(f's_branch {H3}')
        a.label(H2)
        self.stash_writeback()
        a('s_waitcnt lgkmcnt(0)')
        a.label(H3)

    def set_layer_bases(self):
        a = self.a
        if self.args.noreuse:
            a(f's_mul_i32 s50, s{sLAYER}, {XF_SZ}')
            a(f's_add_u32 s{sXF}, s50, {WS_XF}')
            a(f's_add_u32 s{sXFN}, s{sXF}, {XF_SZ}')
            a(f's_add_u32 s{sOF}, s50, {WS_OF}')
            a(f's_mul_i32 s50, s{sLAYER}, {ST_SZ}')
            a(f's_add_u32 s{sST}, s50, {WS_ST}')
            a(f's_add_u32 s{sSTN}, s{sST}, {ST_SZ}')
            return
        a(f's_and_b32 s51, s{sLAYER}, 1')
        a(f's_mul_i32 s50, s51, {XF_SZ}')
        a(f's_add_u32 s{sXF}, s50, {WS_XF}')
        a(f's_sub_u32 s{sXFN}, {2*WS_XF + XF_SZ}, s{sXF}')
        a(f's_mov_b32 s{sOF}, {WS_OF}')
        a(f's_mul_i32 s50, s51, {ST_SZ}')
        a(f's_add_u32 s{sST}, s50, {WS_ST}')
        a(f's_sub_u32 s{sSTN}, {2*WS_ST + ST_SZ}, s{sST}')

    def build(self):
        a = self.a
        args = self.args
        for _ in range(args.shift): a('s_nop 0')
        if args.prof: a('v_mov_b32 v9, 0')
        self.stamp(0)
        if args.prof:
            a('s_memtime s[100:101]')
            a('s_waitcnt lgkmcnt(0)')
        self.entry()
        self.p0()
        self.stamp(1)
        def between0():
            self.colsum_raw_others()
        self.first_sync()
        self.setup_persistent()
        self.stamp(2)
        a('s_waitcnt vmcnt(0)')
        self.fstamp(59)
        a('v_and_b32 v12, 31, v1')
        a('v_lshlrev_b32 v12, 2, v12')
        a('s_mov_b64 exec, 0xffffffff')
        a(f'ds_add_f32 v12, v160 offset:{L_CS}')
        a(f'ds_add_f32 v12, v161 offset:{L_CS+128}')
        a('s_mov_b64 exec, -1')
        self.stash_writeback(mat=0)
        self.qkv_pre()
        a('s_waitcnt lgkmcnt(0)')
        a('s_barrier')
        a(f'ds_read_b32 v{vCSA}, v12 offset:{L_CS}')
        a(f'ds_read_b32 v{vCSA+1}, v12 offset:{L_CS+128}')
        a(f'v_mov_b32 v11, {L_MODE}')
        a('ds_read_b32 v10, v11')
        a('s_waitcnt lgkmcnt(0)')
        a(f'v_readfirstlane_b32 s{sMODE}, v10')
        a.label('L_LAYER')
        self.qkv_main(packed=True)
        self.ln_fix(packed=True)
        L0 = a.newlabel('L0_CHK')
        a(f's_cmp_lg_u32 s{sLAYER}, 0')
        a(f's_cbranch_scc1 {L0}')
        L = self.if_wave('eq', 0)
        self.check_packs()
        a.label(L)
        a.label(L0)
        self.stamp(3, True)
        a.label('L_AFTERQKV')
        if args.stop == 'qkv':
            SK = a.newlabel('DBG')
            a(f's_cmp_lg_u32 s{sLAYER}, {args.layer}')
            a(f's_cbranch_scc1 {SK}')
            for r in range(16, 48): a(f'v_mul_f32 v{r}, v101, v{r}')
            self.dbg_dump(list(range(16, 48, 4)), 0)
            a('s_branch L_END')
            a.label(SK)
        a(f's_bitcmp1_b32 s{sLAYER}, 0')
        a('s_cbranch_scc1 L_BLAYER')
        self.epi_A()
        self.stamp(4, True)
        self.linear_attn()
        self.stamp(6, True)
        self.finalize_o(eps=True)
        LC = a.newlabel('CSB')
        a(f's_cmp_lg_u32 s{sLAYER}, 0')
        a(f's_cbranch_scc1 {LC}')
        self.stash_cs_sum(1)
        a.label(LC)
        a('s_branch L_ODONE')
        a.label('L_BLAYER')
        self.epi_B()
        L = self.if_wave('ge', 4)
        self.epi_B_q()
        a.label(L)
        self.stamp(4, True)
        self.cstamp(57)
        self.attn_B()
        self.cstamp(59)
        self.stamp(6, True)
        self.finalize_o(eps=False)
        L = self.if_wave('lt', 4)
        self.dma_wo(1, 0)
        a.label(L)
        self.wo_pre()
        self.stamp(7, True)
        self.lbar(poller=4, between=lambda: a('s_waitcnt vmcnt(0)'))
        a('s_branch L_BAR1DONE')
        a.label('L_ODONE')
        self.wo_pre()
        self.stamp(7, True)
        self.lbar(between=lambda: a('s_waitcnt vmcnt(0)'))
        a.label('L_BAR1DONE')
        self.stamp(8, True)
        if args.stop == 'o':
            a(f's_cmp_eq_u32 s{sLAYER}, {args.layer}')
            a('s_cbranch_scc1 L_END')
        self.wo_phase()
        self.stamp(10, True)
        a(f's_cmp_eq_u32 s{sLAYER}, 3')
        a('s_cbranch_scc1 L_FIN')
        L = self.if_wave('lt', 4)
        a('s_waitcnt vmcnt(0)')
        a.label(L)
        self.stamp(11, True)
        a(f's_add_u32 s{sLAYER}, s{sLAYER}, 1')
        self.qkv_pre()
        def bw2():
            L = self.if_wave('lt', 4)
            self.stash_writeback_next()
            a('s_waitcnt lgkmcnt(0)')
            a.label(L)
        self.lbar(between=bw2, poller=4)
        self.stamp(0, True)
        if args.stop == 'x':
            a(f's_cmp_eq_u32 s{sLAYER}, {args.layer + 1}')
            a('s_cbranch_scc1 L_END')
        a('s_branch L_LAYER')
        a.label('L_FIN')
        a('s_waitcnt vmcnt(0)')
        self.stamp(51)
        if args.prof:
            a('s_memtime s[82:83]')
            a('s_waitcnt lgkmcnt(0)')
            a('s_sub_u32 s82, s82, s100')
            a('v_writelane_b32 v9, s82, 52')
        self.stamp_out()
        a('L_END:')
        a('s_endpgm')
        a.label('SUB_IMPORT1')
        a('s_nop 4')
        self.s1_issue(None)
        a.label('SUB_S1FIN')
        a('s_nop 4')
        self.s1_finish()
        a('s_nop 4')
        a('s_setpc_b64 s[88:89]')
        a.label('SUB_IMPORT2')
        a('s_nop 4')
        self.i2_finish()
        a('s_nop 4')
        a('s_setpc_b64 s[88:89]')
        a.label('L_CODE_END')
        body = a.finalize(verbose=True)
        hdr = open("header.txt").read() + f"""; generated by my generator script gen/gen2.py (hand-designed persistent kernel)
; @launch grid=(256,1,1) block=(512,1,1) lds={LDS_BYTES}
.amdgcn_target "amdgcn-amd-amdhsa--gfx950"
.text
.globl {KNAME}
.p2align 8
.type {KNAME},@function
{KNAME}:
"""
        ftr = f""".section .rodata,"a"
.p2align 6
.amdhsa_kernel {KNAME}
  .amdhsa_next_free_vgpr 256
  .amdhsa_next_free_sgpr 102
  .amdhsa_accum_offset 256
  .amdhsa_group_segment_fixed_size 0
  .amdhsa_kernarg_size 72
  .amdhsa_user_sgpr_count 2
  .amdhsa_user_sgpr_kernarg_segment_ptr 1
  .amdhsa_system_sgpr_workgroup_id_x 1
  .amdhsa_float_denorm_mode_32 3
  .amdhsa_float_denorm_mode_16_64 3
.end_amdhsa_kernel
"""
        return hdr + body + ftr

    def between0(self):
        pass

    def first_sync(self):
        a = self.a
        a('s_barrier')
        a(f's_add_u32 s{sEPOCH}, s{sEPOCH}, 1')
        L = self.if_wave('eq', 0)
        self.stamp(60)
        self.check_hello()
        self.stamp(61)
        G1 = a.newlabel('LB_GEN'); G2 = a.newlabel('LB_ST')
        a(f's_lshl_b32 s50, s{sJ}, 8')
        a(f's_add_u32 s50, s50, {WS_LFLAG}')
        a(f's_lshl_b32 s51, s{sH}, 2')
        a('s_add_u32 s51, s51, s50')
        a(f's_add_u32 s62, s{sEPOCH}, s{sNONCE}')
        a('v_mov_b32 v10, s62')
        a('v_mov_b32 v11, 0')
        a(f's_cmp_lg_u32 s{sMODE}, 0')
        a(f's_cbranch_scc1 {G1}')
        a('s_mov_b64 exec, 1')
        a(f'buffer_store_dword v10, v11, {srd(S_WS)}, s51 offen')
        a('s_mov_b64 exec, -1')
        a(f's_branch {G2}')
        a.label(G1)
        a('buffer_wbl2 sc1')
        a('s_waitcnt vmcnt(0)')
        a('s_mov_b64 exec, 1')
        a(f'buffer_store_dword v10, v11, {srd(S_WS)}, s51 offen sc1')
        a('s_mov_b64 exec, -1')
        a.label(G2)
        a(f'v_mov_b32 v10, s{sMODE}')
        a(f'v_mov_b32 v11, {L_MODE}')
        a('ds_write_b32 v11, v10')
        a('s_waitcnt lgkmcnt(0)')
        a.label(L)
        L = self.if_wave('ge', 1)
        L23 = a.newlabel('FS_23')
        a(f's_sub_u32 s50, s{sW}, 2')
        a('s_cmp_lt_u32 s50, 2')
        a(f's_cbranch_scc1 {L23}')
        a.label(L)
        self.poll_packA()
        self.stashA_load()
        LX = a.newlabel('FS_X')
        a(f's_branch {LX}')
        a.label(L23)
        self.poll_packA()
        self.stashA_load()
        self.p0_packs()
        a.label(LX)
        L = self.if_wave('eq', 0)
        a(f's_lshl_b32 s50, s{sJ}, 8')
        a(f's_add_u32 s50, s50, {WS_LFLAG}')
        a('v_and_b32 v11, 31, v1')
        a('v_lshlrev_b32 v11, 2, v11')
        self.poll('v11', 's50', 32, f's{sEPOCH}')
        G3 = a.newlabel('LB_NOINV')
        a(f's_cmp_eq_u32 s{sMODE}, 0')
        a(f's_cbranch_scc1 {G3}')
        a('buffer_inv sc1')
        a('s_waitcnt vmcnt(0)')
        a.label(G3)
        self.stamp(62)
        a.label(L)

if __name__ == '__main__':
    import struct
    ap = argparse.ArgumentParser()
    ap.add_argument('-o', default='out.s')
    ap.add_argument('--stop', default='')
    ap.add_argument('--layer', type=int, default=0)
    ap.add_argument('--spin', type=int, default=20000)
    ap.add_argument('--flayer', type=int, default=1)
    ap.add_argument('--cyc', action='store_true')
    ap.add_argument('--prof', action='store_true')
    ap.add_argument('--noreuse', action='store_true')
    ap.add_argument('--wosig', action='store_true')
    ap.add_argument('--nocodepf', action='store_true')
    ap.add_argument('--fq', action='store_true')
    ap.add_argument('--xring', type=int, default=8)
    ap.add_argument('--prio', type=int, default=0)
    ap.add_argument('--kvsleep', type=int, default=6)
    ap.add_argument('--nowo', action='store_true')
    ap.add_argument('--fb', action='store_true')
    ap.add_argument('--npre', type=int, default=8)
    ap.add_argument('--clk', action='store_true')
    ap.add_argument('--e_now', action='store_true')
    ap.add_argument('--e_m16', action='store_true')
    ap.add_argument('--e_nox', action='store_true')
    ap.add_argument('--fe', action='store_true')
    ap.add_argument('--maxtry', type=int, default=2)
    ap.add_argument('--noprepoll', action='store_true')
    ap.add_argument('--e_half', action='store_true')
    ap.add_argument('--e_dummy', action='store_true')
    ap.add_argument('--fi', action='store_true')
    ap.add_argument('--e_noout', action='store_true')
    ap.add_argument('--outflag', default='')
    ap.add_argument('--permute', action='store_true')
    ap.add_argument('--shift', type=int, default=0)
    ap.add_argument('--pfast', type=int, default=1)
    ap.add_argument('--psleep', type=int, default=1)
    ap.add_argument('--aprio', type=int, default=1)
    ap.add_argument('--fli', type=int, default=0)
    ap.add_argument('--notouch', action='store_true')
    ap.add_argument('--force_generic', action='store_true')
    ap.add_argument('--force_fallback', action='store_true')
    ap.add_argument('--T', type=float, default=56.0)
    args = ap.parse_args()
    args.t2hex = hex(struct.unpack('<I', struct.pack('<f', args.T * args.T))[0])
    g = G(args)
    open(args.o, 'w').write(g.build())
```

```python
import sys, argparse
sys.path.insert(0, 'gen')
from asmlib import Asm

KNAME = "interleave_layers__linear_attn_block__sliding_block__prompt_kernel"

WS_LFLAG = 0x0000
WS_XFLAG = 0x4000
WS_XF = 0x100000;  XF_SZ = 0x2B0000
RBS = 41984
OBS = 21504
WS_OF = 0x1000000
WS_ST = 0x2000000; ST_SZ = 0x20000
WS_KVX = 0x2200000; KVX_SZ = 0x600000
WS_KVP = 0x3000000; KVP_SZ = 0x100000
WS_PW = 0x4000000; PW_SZ = 81920
WS_PCS = 0x4800000
WS_PO = 0x4900000; PO_SZ = 102400
WS_DBG = 0x8000000

KIMG, VIMG = 0, 24576
L_MISC = 49152
L_CS = L_MISC + 1024
L_KN = L_MISC + 2048
L_KV = L_MISC + 4096
L_MODE = 61424
R_O = 61440
PWL = 81920
RW0 = 71424
WK, WQ, WV = RW0, RW0 + 30768, RW0 + 61536
TK, TQ, TV = 0, 4096, 8192
TBOFF = 12288
SCR = 0
TO = 24576
L_SIG = L_MISC + 3072
L_CNTA = L_MISC + 3080
L_CNTB = L_MISC + 3084
L_MD = L_MISC + 6144
LDS_BYTES = 163840

S_WS, S_X0, S_WQA, S_WOA, S_WQB, S_WOB, S_OUT, S_DBG = 4, 8, 12, 16, 20, 24, 28, 32
sJ, sH, sW, sMODE, sDEAD, sEPOCH, sLAYER, sRB = 36, 37, 38, 39, 40, 41, 42, 43
sLO32 = 44
sXF, sOF, sST = 46, 47, 48
sXCC = 49
sXFN, sSTN = 90, 91
sNONCE = 93
sNEED = 96
sSH = 97
WS_GXCC = 0x2000
WS_XKN = 0x8000
L_NONCE = 61428
LO = f's[{sLO32}:{sLO32+1}]'

def srd(n): return f's[{n}:{n+3}]'

QUADS = {
    0: [(('q', 0), ('q', 1)), (('q', 2), ('q', 3)), (('q', 4), ('q', 5)), (('k', 4), ('k', 3))],
    1: [(('k', 0), ('k', 1)), (('v', 0), ('v', 1)), (('v', 2), ('v', 3)), (('k', 2), ('v', 4))],
}
def quad_off(sec, i, bases):
    bk, bq, bv = bases
    if sec == 'k': return bk + (i + 1) * 8
    if sec == 'q': return bq + i * 8
    return bv + i * 8

vCSA, vCSB = 188, 190
vPI = [4, 5, 6, 7, 8]
vPA = [176, 177, 178]
vPO = [179, 180, 181]
def stash_reg(mat, i):
    if mat == 0: return 192 + 4 * i
    return 144 + 4 * i if i < 4 else 232 + 4 * (i - 4)

MF32 = 'v_mfma_f32_32x32x16_bf16'
MF16 = 'v_mfma_f32_16x16x32_bf16'

class VQ:
    def __init__(self): self.q = []
    def push(self, tag): self.q.append(tag)
    def cnt(self, tag):
        i = max(k for k, t in enumerate(self.q) if t == tag)
        return min(63, len(self.q) - 1 - i)

class G:
    def __init__(self, args):
        self.a = Asm(); self.args = args

    def stamp(self, idx, per_layer=False):
        if not self.args.prof: return
        a = self.a
        a('s_memtime s[82:83]' if self.args.cyc else 's_memrealtime s[82:83]')
        a('s_waitcnt lgkmcnt(0)')
        if per_layer:
            a(f's_mul_i32 s99, s{sLAYER}, 12')
            a(f's_add_u32 s99, s99, {idx}')
            a('s_mov_b32 m0, s99')
            a('s_nop 1')
            a('v_writelane_b32 v9, s82, m0')
        else:
            a(f'v_writelane_b32 v9, s82, {idx}')
    def cstamp(self, idx):
        if not (self.args.prof and self.args.clk): return
        a = self.a
        SK = a.newlabel('CST')
        a(f's_cmp_lg_u32 s{sLAYER}, {self.args.flayer}')
        a(f's_cbranch_scc1 {SK}')
        a('s_memtime s[82:83]')
        a('s_waitcnt lgkmcnt(0)')
        a(f'v_writelane_b32 v9, s82, {idx}')
        a('s_memrealtime s[82:83]')
        a('s_waitcnt lgkmcnt(0)')
        a(f'v_writelane_b32 v9, s82, {idx+1}')
        a.label(SK)
    def fstamp(self, idx):
        if not self.args.prof or self.args.clk: return
        a = self.a
        SK = a.newlabel('FST')
        a(f's_cmp_lg_u32 s{sLAYER}, {self.args.flayer}')
        a(f's_cbranch_scc1 {SK}')
        self.stamp(idx)
        a.label(SK)
    def stamp_out(self):
        if not self.args.prof: return
        a = self.a
        a('s_lshl_b32 s50, s2, 3')
        a(f's_add_u32 s50, s50, s{sW}')
        a('s_lshl_b32 s50, s50, 8')
        a(f's_add_u32 s50, s50, {WS_DBG + 0x400000}')
        a('v_lshlrev_b32 v10, 2, v1')
        a(f'buffer_store_dword v9, v10, {srd(S_WS)}, s50 offen')
        a('s_waitcnt vmcnt(0)')
    def dbg_dump(self, regs, slot):
        a = self.a
        n = len(regs)
        a(f's_mul_i32 s50, s2, {8*n*1024}')
        a(f's_mul_i32 s51, s{sW}, {n*1024}')
        a('s_add_u32 s50, s50, s51')
        a(f's_add_u32 s50, s50, {WS_DBG + slot}')
        for i, r in enumerate(regs):
            a(f'buffer_store_dwordx4 v[{r}:{r+3}], v2, {srd(S_WS)}, s50 offen')
            a('s_add_u32 s50, s50, 1024')
        a('s_waitcnt vmcnt(0)')

    def if_wave(self, cond, val):
        a = self.a
        L = a.newlabel('W')
        inv = {'eq': 's_cmp_lg_u32', 'lt': 's_cmp_ge_u32', 'ge': 's_cmp_lt_u32'}[cond]
        a(f'{inv} s{sW}, {val}')
        a(f's_cbranch_scc1 {L}')
        return L

    def tr_bases(self, d0, d1, bases, tmp=10):
        a = self.a
        t, u, w = f'v{tmp}', f'v{tmp+1}', f'v{tmp+2}'
        a(f'v_bfe_u32 {t}, v1, 4, 1')
        a(f'v_lshlrev_b32 {t}, 2, {t}')
        a(f'v_and_b32 {u}, 3, v1')
        a(f'v_add_u32 {t}, {t}, {u}')
        for B, d in ((0, d0), (1, d1)):
            offs = [quad_off(*QUADS[B][x >> 1][x & 1], bases) for x in range(8)]
            a(f'v_mov_b32 v{d}, {offs[0]}')
            for x in range(1, 8):
                a(f'v_cmp_eq_u32 vcc, {x}, {t}')
                a(f'v_mov_b32 {w}, {offs[x]}')
                a(f'v_cndmask_b32 v{d}, v{d}, {w}, vcc')
        a(f'v_bfe_u32 {u}, v1, 2, 2')
        a(f'v_mul_u32_u24 {u}, 192, {u}')
        a(f'v_lshrrev_b32 {w}, 5, v1')
        a(f'v_mul_u32_u24 {w}, 96, {w}')
        a(f'v_add_u32 {u}, {u}, {w}')
        a(f'v_add_u32 v{d0}, v{d0}, {u}')
        a(f'v_add_u32 v{d1}, v{d1}, {u}')

    def raw_patterns(self):
        a = self.a
        a(f's_mul_i32 s50, s{sH}, 40')
        for u in range(3):
            d = f'v{4+u}'
            a(f'v_add_u32 v10, {64*u}, v1')
            a('v_mul_u32_u24 v11, 21846, v10')
            a('v_lshrrev_b32 v11, 16, v11')
            a('v_mul_u32_u24 v12, 3, v11')
            a('v_sub_u32 v12, v10, v12')
            a('v_lshlrev_b32 v12, 4, v12')
            a('v_and_b32 v13, 0x30, v11')
            a('v_and_b32 v14, 3, v11')
            a('v_lshlrev_b32 v14, 2, v14')
            a('v_add_u32 v13, v13, v14')
            a('v_bfe_u32 v14, v11, 2, 2')
            a('v_add_u32 v13, v13, v14')
            a('v_mul_u32_u24 v13, 3840, v13')
            a('v_add_u32 v13, v13, v12')
            a(f'v_add_u32 {d}, s50, v13')

    def entry(self):
        a = self.a
        a('s_cmp_ge_u32 s2, 256')
        a('s_cbranch_scc1 L_END')
        a('s_load_dwordx16 s[64:79], s[0:1], 0')
        a('s_load_dwordx2 s[80:81], s[0:1], 64')
        a(f's_getreg_b32 s{sXCC}, hwreg(HW_REG_XCC_ID, 0, 4)')
        if self.args.permute:
            a('s_lshr_b32 s50, s2, 5')
            a('s_and_b32 s51, s2, 31')
            a('s_lshl_b32 s51, s51, 3')
            a('s_add_u32 s2, s50, s51')
        a(f's_and_b32 s{sJ}, s2, 7')
        a(f's_lshr_b32 s{sH}, s2, 3')
        a('v_lshrrev_b32 v3, 6, v0')
        a('v_and_b32 v1, 63, v0')
        a(f'v_readfirstlane_b32 s{sW}, v3')
        a('v_lshlrev_b32 v2, 4, v1')
        a(f's_mov_b32 s{sLO32}, -1')
        a(f's_mov_b32 s{sLO32+1}, 0')
        a(f's_mov_b32 s{sMODE}, 0')
        a(f's_mov_b32 s{sDEAD}, 0')
        a(f's_mov_b32 s{sEPOCH}, 0')
        a(f's_mov_b32 s{sLAYER}, 0')
        a(f's_sub_u32 s50, 7, s{sW}')
        a(f's_sub_u32 s51, s{sW}, 4')
        a(f's_cmp_lt_u32 s{sW}, 4')
        a(f's_cselect_b32 s{sRB}, s50, s51')
        a(f's_add_u32 s{sSH}, s{sW}, s{sJ}')
        a(f's_and_b32 s{sSH}, s{sSH}, 7')
        self.raw_patterns()
        a('s_waitcnt lgkmcnt(0)')
        def mk(dst, src, size):
            a(f's_mov_b32 s{dst}, s{src}')
            a(f's_and_b32 s{dst+1}, s{src+1}, 0xffff')
            a(f's_mov_b32 s{dst+2}, {size}')
            a(f's_mov_b32 s{dst+3}, 0x20000')
        mk(S_DBG, 78, 256)
        a(f's_mov_b32 s{sNONCE}, 0')
        self.nonce_create()
        mk(S_X0, 64, 2621440)
        mk(S_WS, 80, 0x10000000)
        mk(S_WQA, 66, 2457600)
        L = self.if_wave('eq', 1)
        self.raw_part_dma(S_WQA, 0)
        a.label(L)
        self.p0_xloads()
        mk(S_WOA, 68, 819200)
        mk(S_WQB, 72, 2457600); mk(S_WOB, 74, 819200); mk(S_OUT, 76, 2621440)

    def nonce_create(self):
        a = self.a
        E = a.newlabel('NC_E')
        a(f's_or_b32 s50, s2, s{sW}')
        a('s_cmp_lg_u32 s50, 0')
        a(f's_cbranch_scc1 {E}')
        a('s_memrealtime s[50:51]')
        a('s_waitcnt lgkmcnt(0)')
        a('s_mul_i32 s50, s50, 0x9E3779B1')
        a('s_mul_i32 s51, s51, 0x85EBCA77')
        a('s_xor_b32 s50, s50, s51')
        a('s_lshr_b32 s51, s50, 15')
        a('s_xor_b32 s50, s50, s51')
        a('s_mul_i32 s50, s50, 0x2C1B3C6D')
        a('s_andn2_b32 s50, s50, 0x7f')
        a(f's_or_b32 s{sNONCE}, s50, 0x40')
        a(f'v_mov_b32 v10, s{sNONCE}')
        a('v_lshlrev_b32 v11, 6, v1')
        a('s_mov_b64 exec, 0xf')
        a(f'buffer_store_dword v10, v11, {srd(S_DBG)}, 0 offen sc1')
        a('s_mov_b64 exec, -1')
        a.label(E)

    def init_flags(self):
        a = self.a
        G = a.newlabel('NON_GET'); D = a.newlabel('NON_DONE'); L = a.newlabel('NON_POLL')
        a('s_cmp_lg_u32 s2, 0')
        a(f's_cbranch_scc0 {D}')
        a.label(G)
        a('s_mov_b32 s60, 0')
        a(f's_and_b32 s50, s{sH}, 3')
        a('s_lshl_b32 s50, s50, 6')
        a('v_mov_b32 v11, s50')
        a('s_waitcnt vmcnt(0)')
        a.label(L)
        a(f'buffer_load_dword v12, v11, {srd(S_DBG)}, 0 offen sc1')
        a('s_waitcnt vmcnt(0)')
        a(f'v_readfirstlane_b32 s{sNONCE}, v12')
        a(f's_cmp_lg_u32 s{sNONCE}, 0')
        a(f's_cbranch_scc1 {D}')
        a('s_sleep 4')
        a('s_add_u32 s60, s60, 1')
        a(f's_cmp_lt_u32 s60, {self.args.spin}')
        a(f's_cbranch_scc1 {L}')
        a(f's_mov_b32 s{sDEAD}, 1')
        a.label(D)
        a(f's_lshl_b32 s50, s{sJ}, 8')
        a(f's_lshl_b32 s51, s{sH}, 2')
        a('s_add_u32 s50, s50, s51')
        a(f's_add_u32 s50, s50, {WS_GXCC}')
        a(f's_and_b32 s51, s{sXCC}, 7')
        a(f's_add_u32 s51, s51, s{sNONCE}')
        a('s_add_u32 s51, s51, 8')
        a('v_mov_b32 v10, s51')
        a('v_mov_b32 v11, 0')
        a('s_mov_b64 exec, 1')
        a(f'buffer_store_dword v10, v11, {srd(S_WS)}, s50 offen sc1')
        a('s_mov_b64 exec, -1')
        a(f'v_mov_b32 v10, s{sNONCE}')
        a(f'v_mov_b32 v11, {L_NONCE}')
        a('ds_write_b32 v11, v10')

    def dma_raw(self, srdW, items):
        a = self.a
        base = {'k': WK, 'q': WQ, 'v': WV}
        soff = {'k': 1280 - 8, 'q': 0, 'v': 2560}
        for sec, Gi in items:
            a(f's_add_u32 s55, s92, {Gi}')
            a('s_cmp_ge_u32 s55, 10')
            a('s_cselect_b32 s56, 10, 0')
            a('s_sub_u32 s55, s55, s56')
            a(f's_mul_i32 s56, s55, {64*3840}')
            a(f's_add_u32 s50, s56, {soff[sec]}')
            a('s_mul_i32 s55, s55, 3072')
            for u in range(3):
                a(f's_add_u32 m0, s55, {base[sec] + u*1024}')
                a(f'buffer_load_dwordx4 v{4+u}, {srd(srdW)}, s50 offen lds')

    def dma_packed(self, nw, w0):
        a = self.a
        per = 80 // nw
        a(f's_add_u32 s50, s{sLAYER}, 1')
        a('s_and_b32 s50, s50, 1')
        a('s_lshl_b32 s50, s50, 5')
        a(f's_add_u32 s50, s50, s{sH}')
        a(f's_mul_i32 s50, s50, {PW_SZ}')
        a(f's_sub_u32 s51, s{sW}, {w0}')
        a(f's_mul_i32 s51, s51, {per*1024}')
        a('s_add_u32 s50, s50, s51')
        a(f's_add_u32 s50, s50, {WS_PW}')
        a(f's_add_u32 s51, s51, {PWL}')
        for i in range(per):
            a(f's_add_u32 m0, s51, {i*1024}')
            if i % 4 == 0 and i > 0: a('s_add_u32 s50, s50, 4096')
            a(f'buffer_load_dwordx4 v2, {srd(S_WS)}, s50 offen sc1 lds') if i % 4 == 0 else None
            if i % 4 != 0:
                a(f's_add_u32 s52, s50, {(i%4)*1024}')
                a(f'buffer_load_dwordx4 v2, {srd(S_WS)}, s52 offen sc1 lds')

    def dma_wo(self, mat, w0):
        a = self.a
        a(f's_and_b32 s50, s{sH}, 7')
        a(f's_add_u32 s50, s50, {mat*8}')
        a(f's_mul_i32 s50, s50, {PO_SZ}')
        a(f's_sub_u32 s51, s{sW}, {w0}')
        a('s_mul_i32 s51, s51, 25600')
        a('s_add_u32 s50, s50, s51')
        a(f's_add_u32 s50, s50, {WS_PO}')
        a(f's_add_u32 s51, s51, {R_O}')
        for i in range(25):
            a(f's_add_u32 m0, s51, {i*1024}')
            a(f's_add_u32 s52, s50, {i*1024}')
            a(f'buffer_load_dwordx4 v2, {srd(S_WS)}, s52 offen sc1 lds')

    def touch_w(self, w0, nw):
        a = self.a
        E = a.newlabel('TW_E')
        a(f's_cmp_eq_u32 s{sLAYER}, 3')
        a(f's_cbranch_scc1 {E}')
        a(f's_add_u32 s50, s{sLAYER}, 1')
        a('s_and_b32 s50, s50, 1')
        a('s_lshl_b32 s50, s50, 5')
        a(f's_add_u32 s50, s50, s{sH}')
        a(f's_mul_i32 s50, s50, {PW_SZ}')
        a(f's_add_u32 s50, s50, {WS_PW}')
        a('v_lshlrev_b32 v11, 7, v1')
        per = -(-10 // nw)
        for t in range(per):
            SK = a.newlabel('TW_SK')
            a(f's_sub_u32 s51, s{sW}, {w0}')
            a(f's_add_u32 s51, s51, {t*nw}')
            a('s_cmp_ge_u32 s51, 10')
            a(f's_cbranch_scc1 {SK}')
            a(f's_add_u32 s51, s51, s{sJ}')
            a('s_cmp_ge_u32 s51, 10')
            a('s_cselect_b32 s52, 10, 0')
            a('s_sub_u32 s51, s51, s52')
            a('s_lshl_b32 s51, s51, 13')
            a('s_add_u32 s51, s51, s50')
            a(f'buffer_load_dword v{250+t}, v11, {srd(S_WS)}, s51 offen sc1')
            a.label(SK)
        a.label(E)

    def check_packs(self):
        a = self.a
        a(f's_lshl_b32 s54, s{sH}, 3')
        self.xflag_addr('s52', 's54')
        a('v_and_b32 v11, 7, v1')
        a('v_lshlrev_b32 v11, 6, v11')
        a('v_add_u32 v11, 16, v11')
        a('s_mov_b32 s53, 1')
        self.poll('v11', 's52', 8, 's53')
        for mat in range(2):
            a(f's_and_b32 s50, s{sH}, 7')
            a(f's_add_u32 s50, s50, {mat*8}')
            a('s_mul_i32 s53, s50, 20')
            a('v_min_u32 v11, 19, v1')
            a('v_add_u32 v11, s53, v11')
            a('v_and_b32 v11, 255, v11')
            a('v_lshlrev_b32 v11, 6, v11')
            a(f's_mov_b32 s52, {WS_XFLAG + 24}')
            a('s_mov_b32 s53, 1')
            self.poll('v11', 's52', 20, 's53')

    def lds_signal(self, val_s):
        a = self.a
        a(f'v_mov_b32 v11, {L_SIG}')
        a(f'v_mov_b32 v12, {val_s}')
        a('ds_write_b32 v11, v12')
    def lds_wait(self, val_s):
        a = self.a
        L = a.newlabel('LW'); D = a.newlabel('LWD')
        a(f'v_mov_b32 v11, {L_SIG}')
        a('s_mov_b32 s60, 0')
        a.label(L)
        a('ds_read_b32 v12, v11')
        a('s_waitcnt lgkmcnt(0)')
        a('v_readfirstlane_b32 s61, v12')
        a(f's_cmp_eq_u32 s61, {val_s}')
        a(f's_cbranch_scc1 {D}')
        a('s_sleep 1')
        a('s_add_u32 s60, s60, 1')
        a('s_cmp_lt_u32 s60, 0x100000')
        a(f's_cbranch_scc1 {L}')
        a.label(D)

    def poll(self, vaddr, soff, nlanes, target_s, tmp='v12'):
        a = self.a
        L = a.newlabel('POLL'); D = a.newlabel('POLLD')
        a(f's_cmp_lg_u32 s{sDEAD}, 0')
        a(f's_cbranch_scc1 {D}')
        a('s_mov_b32 s60, 0')
        a(f's_add_u32 s63, s{sNONCE}, {target_s}')
        mask = (1 << nlanes) - 1
        a.label(L)
        a(f'buffer_load_dword {tmp}, {vaddr}, {srd(S_WS)}, {soff} offen sc1')
        a('s_waitcnt vmcnt(0)')
        a(f'v_subrev_u32 {tmp}, s63, {tmp}')
        a(f'v_cmp_lt_u32 vcc, 7, {tmp}')
        a(f's_and_b32 s61, vcc_lo, {hex(mask & 0xffffffff)}')
        a('s_cmp_eq_u32 s61, 0')
        a(f's_cbranch_scc1 {D}')
        a('s_add_u32 s60, s60, 1')
        a(f's_cmp_lt_u32 s60, {self.args.spin}')
        a(f's_cbranch_scc1 {L}')
        a(f's_mov_b32 s{sDEAD}, 1')
        a.label(D)

    def poll_fast(self, vaddr, soff, nlanes, target_s):
        a = self.a
        R = ['v182', 'v183', 'v186', 'v187']
        L = a.newlabel('PF'); D = a.newlabel('PFD')
        a(f's_cmp_lg_u32 s{sDEAD}, 0')
        a(f's_cbranch_scc1 {D}')
        a('s_mov_b32 s60, 0')
        a(f's_add_u32 s63, s{sNONCE}, {target_s}')
        mask = (1 << nlanes) - 1
        for k in range(4):
            a(f'buffer_load_dword {R[k]}, {vaddr}, {srd(S_WS)}, {soff} offen sc1')
            if k < 3 and self.args.psleep: a(f's_sleep {self.args.psleep}')
        a.label(L)
        for k in range(4):
            a('s_waitcnt vmcnt(3)')
            a(f'v_subrev_u32 v12, s63, {R[k]}')
            a('v_cmp_lt_u32 vcc, 7, v12')
            a(f's_and_b32 s61, vcc_lo, {hex(mask & 0xffffffff)}')
            a('s_cmp_eq_u32 s61, 0')
            a(f's_cbranch_scc1 {D}')
            a(f'buffer_load_dword {R[k]}, {vaddr}, {srd(S_WS)}, {soff} offen sc1')
        a('s_add_u32 s60, s60, 1')
        a(f's_cmp_lt_u32 s60, {self.args.spin // 2}')
        a(f's_cbranch_scc1 {L}')
        a(f's_mov_b32 s{sDEAD}, 1')
        a.label(D)

    def check_hello(self):
        a = self.a
        L = a.newlabel('HELLO'); D = a.newlabel('HELLOD')
        a('s_mov_b32 s60, 0')
        a('v_and_b32 v11, 31, v1')
        a('v_lshlrev_b32 v11, 2, v11')
        a(f's_lshl_b32 s50, s{sJ}, 8')
        a(f's_add_u32 s50, s50, {WS_GXCC}')
        a(f's_add_u32 s63, s{sNONCE}, 8')
        a.label(L)
        a(f'buffer_load_dword v12, v11, {srd(S_WS)}, s50 offen sc1')
        a('s_waitcnt vmcnt(0)')
        a('v_subrev_u32 v12, s63, v12')
        a('v_cmp_lt_u32 vcc, 7, v12')
        a('s_cmp_eq_u64 vcc, 0')
        a(f's_cbranch_scc1 {D}')
        a('s_add_u32 s60, s60, 1')
        a(f's_cmp_lt_u32 s60, {self.args.spin}')
        a(f's_cbranch_scc1 {L}')
        a(f's_mov_b32 s{sDEAD}, 1')
        a.label(D)
        a(f's_and_b32 s51, s{sXCC}, 7')
        a('v_cmp_ne_u32 vcc, s51, v12')
        a('s_cmp_lg_u64 vcc, 0')
        a(f's_cselect_b32 s{sMODE}, 1, 0')
        if self.args.force_generic:
            a(f's_mov_b32 s{sMODE}, 1')

    def lbar(self, first=False, between=None, poller=0, after_flag=None):
        a = self.a
        a('s_barrier')
        a(f's_add_u32 s{sEPOCH}, s{sEPOCH}, 1')
        W0 = a.newlabel('LB_NOT0'); E = a.newlabel('LB_END')
        a(f's_cmp_lg_u32 s{sW}, {poller}')
        a(f's_cbranch_scc1 {W0}')
        if first:
            self.stamp(60)
            self.check_hello()
            self.stamp(61)
        G1 = a.newlabel('LB_GEN'); G2 = a.newlabel('LB_ST')
        a(f's_lshl_b32 s50, s{sJ}, 8')
        a(f's_add_u32 s50, s50, {WS_LFLAG}')
        a(f's_lshl_b32 s51, s{sH}, 2')
        a('s_add_u32 s51, s51, s50')
        a(f's_add_u32 s62, s{sEPOCH}, s{sNONCE}')
        a('v_mov_b32 v10, s62')
        a('v_mov_b32 v11, 0')
        a(f's_cmp_lg_u32 s{sMODE}, 0')
        a(f's_cbranch_scc1 {G1}')
        a('s_mov_b64 exec, 1')
        a(f'buffer_store_dword v10, v11, {srd(S_WS)}, s51 offen')
        a('s_mov_b64 exec, -1')
        a(f's_branch {G2}')
        a.label(G1)
        a('buffer_wbl2 sc1')
        a('s_waitcnt vmcnt(0)')
        a('s_mov_b64 exec, 1')
        a(f'buffer_store_dword v10, v11, {srd(S_WS)}, s51 offen sc1')
        a('s_mov_b64 exec, -1')
        a.label(G2)
        if after_flag: after_flag()
        a('v_and_b32 v11, 31, v1')
        a('v_lshlrev_b32 v11, 2, v11')
        (self.poll_fast if (self.args.pfast and not first) else self.poll)('v11', 's50', 32, f's{sEPOCH}')
        if after_flag: a('s_waitcnt lgkmcnt(0)')
        if first: self.stamp(62)
        G3 = a.newlabel('LB_NOINV')
        a(f's_cmp_eq_u32 s{sMODE}, 0')
        a(f's_cbranch_scc1 {G3}')
        a('buffer_inv sc1')
        a('s_waitcnt vmcnt(0)')
        a.label(G3)
        if first:
            a(f'v_mov_b32 v10, s{sMODE}')
            a(f'v_mov_b32 v11, {L_MODE}')
            a('ds_write_b32 v11, v10')
            a('s_waitcnt lgkmcnt(0)')
        a(f's_branch {E}')
        a.label(W0)
        if between: between()
        a.label(E)
        a('s_barrier')
        if first:
            a(f'v_mov_b32 v11, {L_MODE}')
            a('ds_read_b32 v10, v11')
            a('s_waitcnt lgkmcnt(0)')
            a(f'v_readfirstlane_b32 s{sMODE}, v10')

    def xflag_addr(self, dst, wg_s):
        a = self.a
        a(f's_lshl_b32 {dst}, {wg_s}, 6')
        a(f's_add_u32 {dst}, {dst}, {WS_XFLAG}')

    def set_xflag(self, word, val_s, saddr='s52', vt=('v11', 'v12')):
        a = self.a
        self.xflag_addr(saddr, 's2')
        if isinstance(word, int): a(f's_add_u32 {saddr}, {saddr}, {word*4}')
        else: a(f's_add_u32 {saddr}, {saddr}, {word}')
        a(f's_add_u32 s63, s{sNONCE}, {val_s}')
        a(f'v_mov_b32 {vt[0]}, s63')
        a(f'v_mov_b32 {vt[1]}, 0')
        a('s_mov_b64 exec, 1')
        a(f'buffer_store_dword {vt[0]}, {vt[1]}, {srd(S_WS)}, {saddr} offen sc1')
        a('s_mov_b64 exec, -1')

    def pack5(self, vb0, vb1, imm0, mat, with_cs, fb=16):
        a = self.a
        a(f's_add_u32 s50, s{sH}, {mat*32}')
        a(f's_mul_i32 s50, s50, {PW_SZ}')
        a(f's_mul_i32 s51, s{sJ}, {5*2048}')
        a('s_add_u32 s50, s50, s51')
        a(f's_add_u32 s50, s50, {WS_PW}')
        for i in range(5):
            s = fb + 8 * i
            o = imm0(i)
            a(f'ds_read_b64_tr_b16 v[{s}:{s+1}], {vb0} offset:{o}')
            a(f'ds_read_b64_tr_b16 v[{s+2}:{s+3}], {vb0} offset:{o+48}')
            a(f'ds_read_b64_tr_b16 v[{s+4}:{s+5}], {vb1} offset:{o}')
            a(f'ds_read_b64_tr_b16 v[{s+6}:{s+7}], {vb1} offset:{o+48}')
        a('s_mov_b32 s74, 0x00f00000')
        a('s_mov_b32 s75, 0x00f00000')
        a('v_mov_b32 v104, 0')
        a('s_waitcnt lgkmcnt(0)')
        for i in range(5):
            s = fb + 8 * i
            for r in range(4): a(f'v_cndmask_b32 v{s+r}, v{s+r}, v104, s[74:75]')
        for i in range(5):
            s = fb + 8 * i
            a(f'buffer_store_dwordx4 v[{s}:{s+3}], v2, {srd(S_WS)}, s50 offen sc1')
            a(f'buffer_store_dwordx4 v[{s+4}:{s+7}], v2, {srd(S_WS)}, s50 offen offset:1024 sc1')
            a('s_add_u32 s50, s50, 2048')
        if with_cs:
            for r in range(108, 112): a(f'v_mov_b32 v{r}, 0x3f803f80')
            for i in range(5):
                s = fb + 8 * i
                a(f'{MF32} v[112:127], v[108:111], v[{s}:{s+3}], {"0" if i == 0 else "v[112:127]"}')
                a(f'{MF32} v[128:143], v[108:111], v[{s+4}:{s+7}], {"0" if i == 0 else "v[128:143]"}')
            a('v_mov_b32 v104, v112')
            a('v_mov_b32 v105, v128')
            self.store_cs(mat, 104)

    def store_cs(self, mat, r):
        a = self.a
        a(f's_add_u32 s50, s{sH}, {mat*32}')
        a('s_lshl_b32 s50, s50, 3')
        a(f's_add_u32 s50, s50, s{sJ}')
        a('s_lshl_b32 s50, s50, 8')
        a(f's_add_u32 s50, s50, {WS_PCS}')
        a('v_lshlrev_b32 v12, 3, v1')
        a('s_mov_b64 exec, 0xffffffff')
        a(f'buffer_store_dwordx2 v[{r}:{r+1}], v12, {srd(S_WS)}, s50 offen sc1')
        a('s_mov_b64 exec, -1')

    def stash_writeback(self, mat=None):
        a = self.a
        if mat is not None:
            a(f's_mul_i32 s62, s{sSH}, 10240')
            a(f's_add_u32 s62, s62, {PWL}')
            a('v_add_u32 v13, s62, v2')
            for i in range(10):
                r = stash_reg(mat, i)
                a(f'ds_write_b128 v13, v[{r}:{r+3}] offset:{i*1024}')
            return
        E = a.newlabel('SW_E'); LA = a.newlabel('SW_A')
        a(f's_cmp_eq_u32 s{sLAYER}, 3')
        a(f's_cbranch_scc1 {E}')
        a(f's_mul_i32 s62, s{sSH}, 10240')
        a(f's_add_u32 s62, s62, {PWL}')
        a('v_add_u32 v13, s62, v2')
        a(f's_bitcmp1_b32 s{sLAYER}, 0')
        a(f's_cbranch_scc1 {LA}')
        for i in range(10):
            r = stash_reg(1, i)
            a(f'ds_write_b128 v13, v[{r}:{r+3}] offset:{i*1024}')
        a(f's_branch {E}')
        a.label(LA)
        for i in range(10):
            r = stash_reg(0, i)
            a(f'ds_write_b128 v13, v[{r}:{r+3}] offset:{i*1024}')
        a.label(E)

    def stash_writeback_next(self):
        a = self.a
        E = a.newlabel('SWN_E'); LB = a.newlabel('SWN_B')
        a(f's_mul_i32 s62, s{sSH}, 10240')
        a(f's_add_u32 s62, s62, {PWL}')
        a('v_add_u32 v13, s62, v2')
        a(f's_bitcmp1_b32 s{sLAYER}, 0')
        a(f's_cbranch_scc1 {LB}')
        for i in range(10):
            r = stash_reg(0, i)
            a(f'ds_write_b128 v13, v[{r}:{r+3}] offset:{i*1024}')
        a(f's_branch {E}')
        a.label(LB)
        for i in range(10):
            r = stash_reg(1, i)
            a(f'ds_write_b128 v13, v[{r}:{r+3}] offset:{i*1024}')
        a.label(E)

    def stash_load(self, mat):
        a = self.a
        a(f's_add_u32 s50, s{sH}, {32*mat}')
        a(f's_mul_i32 s50, s50, {PW_SZ}')
        a(f's_mul_i32 s51, s{sSH}, 10240')
        a('s_add_u32 s50, s50, s51')
        a(f's_add_u32 s50, s50, {WS_PW}')
        for i in range(10):
            r = stash_reg(mat, i)
            if i % 4 == 0 and i > 0: a('s_add_u32 s50, s50, 4096')
            a(f'buffer_load_dwordx4 v[{r}:{r+3}], v2, {srd(S_WS)}, s50 offen offset:{(i%4)*1024} sc1')
        a('v_and_b32 v11, 31, v1')
        a('v_lshlrev_b32 v11, 3, v11')
        a(f's_add_u32 s52, s{sH}, {32*mat}')
        a('s_lshl_b32 s52, s52, 11')
        a(f's_add_u32 s52, s52, {WS_PCS}')
        for j in range(8):
            a(f'buffer_load_dwordx2 v[{160+2*j}:{161+2*j}], v11, {srd(S_WS)}, s52 offen offset:{j*256} sc1')

    def stash_cs_sum(self, mat):
        a = self.a
        d = vCSA if mat == 0 else vCSB
        a(f'v_add_f32 v{d}, v160, v162')
        a(f'v_add_f32 v{d+1}, v161, v163')
        for j in range(2, 8):
            a(f'v_add_f32 v{d}, v{d}, v{160+2*j}')
            a(f'v_add_f32 v{d+1}, v{d+1}, v{161+2*j}')

    def wait_hello(self):
        a = self.a
        L = a.newlabel('WH'); D = a.newlabel('WHD')
        a('s_mov_b32 s60, 0')
        a('v_lshlrev_b32 v11, 2, v1')
        a.label(L)
        a(f'buffer_load_dword v12, v11, {srd(S_DBG)}, 0 offen sc1')
        a('s_waitcnt vmcnt(0)')
        a('v_and_b32 v13, 0x80808080, v12')
        a('v_cmp_ne_u32 vcc, 0x80808080, v13')
        a('s_cmp_eq_u64 vcc, 0')
        a(f's_cbranch_scc1 {D}')
        a('s_sleep 2')
        a('s_add_u32 s60, s60, 1')
        a(f's_cmp_lt_u32 s60, {self.args.spin}')
        a(f's_cbranch_scc1 {L}')
        a(f's_mov_b32 s{sDEAD}, 1')
        a.label(D)

    def poll_packA(self):
        a = self.a
        a(f's_lshl_b32 s54, s{sH}, 3')
        a(f's_add_u32 s54, s54, s{sSH}')
        self.xflag_addr('s52', 's54')
        a('v_mov_b32 v11, 20')
        a('s_mov_b32 s53, 1')
        self.poll('v11', 's52', 1, 's53')

    def stashA_load(self):
        a = self.a
        a(f's_mul_i32 s50, s{sH}, {PW_SZ}')
        a(f's_mul_i32 s51, s{sSH}, 10240')
        a('s_add_u32 s50, s50, s51')
        a(f's_add_u32 s50, s50, {WS_PW}')
        a(f's_add_u32 s51, s51, {PWL}')
        for i in range(10):
            a(f's_add_u32 m0, s51, {i*1024}')
            a(f's_add_u32 s52, s50, {i*1024}')
            a(f'buffer_load_dwordx4 v2, {srd(S_WS)}, s52 offen sc1 lds')
        a('v_and_b32 v11, 31, v1')
        a('v_lshlrev_b32 v11, 3, v11')
        a(f's_lshl_b32 s52, s{sH}, 3')
        a(f's_add_u32 s52, s52, s{sSH}')
        a('s_lshl_b32 s52, s52, 8')
        a(f's_add_u32 s52, s52, {WS_PCS}')
        a(f'buffer_load_dwordx2 v[160:161], v11, {srd(S_WS)}, s52 offen sc1')

    def stashA_from_lds(self):
        a = self.a
        a(f's_mul_i32 s62, s{sSH}, 10240')
        a(f's_add_u32 s62, s62, {PWL}')
        a('v_add_u32 v13, s62, v2')
        for i in range(10):
            r = stash_reg(0, i)
            a(f'ds_read_b128 v[{r}:{r+3}], v13 offset:{i*1024}')

    def p0_xloads(self):
        a = self.a
        if not self.args.noreuse:
            L4 = self.if_wave('eq', 4)
            a(f's_lshl_b32 s52, s{sJ}, 3')
            a(f's_lshr_b32 s53, s{sH}, 2')
            a('s_add_u32 s52, s52, s53')
            a(f's_mul_i32 s52, s52, {RBS}')
            a(f's_and_b32 s53, s{sH}, 3')
            a('s_lshl_b32 s53, s53, 7')
            a('s_add_u32 s52, s52, s53')
            a(f's_add_u32 s52, s52, {WS_XF}')
            a('v_lshlrev_b32 v30, 9, v1')
            a(f'buffer_load_dword v31, v30, {srd(S_WS)}, s52 offen')
            a('s_add_u32 s52, s52, 32768')
            a('s_mov_b64 exec, 0xffff')
            a(f'buffer_load_dword v31, v30, {srd(S_WS)}, s52 offen')
            a(f's_lshl_b32 s52, s{sJ}, 3')
            a(f's_lshr_b32 s53, s{sH}, 2')
            a('s_add_u32 s52, s52, s53')
            a('s_lshl_b32 s52, s52, 11')
            a(f's_and_b32 s53, s{sH}, 3')
            a('s_lshl_b32 s53, s53, 7')
            a('s_add_u32 s52, s52, s53')
            a(f's_add_u32 s52, s52, {WS_ST}')
            a('v_lshlrev_b32 v30, 9, v1')
            a('s_mov_b64 exec, 0xf')
            a(f'buffer_load_dword v31, v30, {srd(S_WS)}, s52 offen')
            a('s_mov_b64 exec, -1')
            a.label(L4)
        if not self.args.nocodepf:
            L7 = self.if_wave('eq', 7)
            LC = a.newlabel('CPF')
            a(f's_cmp_ge_u32 s{sH}, 6')
            a(f's_cbranch_scc1 {LC}')
            a('s_getpc_b64 s[56:57]')
            a.label('L_PCREF')
            a(f's_sub_u32 s56, s56, L_PCREF-{KNAME}')
            a('s_subb_u32 s57, s57, 0')
            a(f's_lshl_b32 s53, s{sH}, 13')
            a('v_lshlrev_b32 v30, 7, v1')
            a('v_add_u32 v30, s53, v30')
            a(f's_mov_b32 s58, L_CODE_END-{KNAME}-4')
            a('v_min_u32 v30, s58, v30')
            a('global_load_dword v31, v30, s[56:57]')
            a.label(LC)
            a.label(L7)
        a(f's_lshl_b32 s50, s{sJ}, 8')
        a(f's_lshl_b32 s51, s{sH}, 3')
        a('s_add_u32 s50, s50, s51')
        a('s_mul_i32 s52, s50, 1280')
        a('v_and_b32 v10, 7, v0')
        a('v_lshrrev_b32 v11, 3, v0')
        a('v_mul_u32_u24 v12, 1280, v10')
        a('v_lshlrev_b32 v13, 4, v11')
        a('v_add_u32 v12, v12, v13')
        a(f'buffer_load_dwordx4 v[16:19], v12, {srd(S_X0)}, s52 offen')
        a('v_mov_b32 v20, 0\nv_mov_b32 v21, 0\nv_mov_b32 v22, 0\nv_mov_b32 v23, 0')
        L = self.if_wave('lt', 2)
        a(f'buffer_load_dwordx4 v[20:23], v12, {srd(S_X0)}, s52 offen offset:1024')
        a.label(L)

    def late_touch(self):
        a = self.a
        if self.args.noreuse: return
        a('v_lshlrev_b32 v13, 7, v1')
        for w in (6, 5):
            Lw = self.if_wave('eq', w)
            if w == 5:
                a(f's_lshl_b32 s52, s{sJ}, 3')
                a(f's_lshr_b32 s53, s{sH}, 2')
                a('s_add_u32 s52, s52, s53')
                a(f's_mul_i32 s52, s52, {RBS}')
                a(f's_and_b32 s53, s{sH}, 3')
                a('s_mul_i32 s53, s53, 10240')
                a('s_add_u32 s52, s52, s53')
                a(f's_add_u32 s52, s52, {WS_XF + XF_SZ}')
            else:
                a(f's_lshl_b32 s52, s{sJ}, 4')
                a(f's_lshr_b32 s53, s{sH}, 1')
                a('s_add_u32 s52, s52, s53')
                a(f's_mul_i32 s52, s52, {OBS}')
                a(f's_and_b32 s53, s{sH}, 1')
                a('s_mul_i32 s53, s53, 10240')
                a('s_add_u32 s52, s52, s53')
                a(f's_add_u32 s52, s52, {WS_OF}')
            a(f'buffer_load_dword v182, v13, {srd(S_WS)}, s52 offen')
            a('s_add_u32 s52, s52, 8192')
            a('s_mov_b64 exec, 0xffff')
            a(f'buffer_load_dword v182, v13, {srd(S_WS)}, s52 offen')
            a('s_mov_b64 exec, -1')
            a.label(Lw)
        L7 = self.if_wave('eq', 7)
        a(f's_lshl_b32 s52, s{sJ}, 14')
        a(f's_lshl_b32 s53, s{sH}, 9')
        a('s_add_u32 s52, s52, s53')
        a(f's_add_u32 s52, s52, {WS_ST + ST_SZ}')
        a('s_mov_b64 exec, 0xf')
        a(f'buffer_load_dword v182, v13, {srd(S_WS)}, s52 offen')
        a('s_mov_b64 exec, -1')
        a.label(L7)

    def wo_item_dma(self, n, item_s):
        a = self.a
        a(f's_mul_hi_u32 s55, {item_s}, 0xccccccd')
        a('s_mul_i32 s56, s55, 20')
        a(f's_sub_u32 s56, {item_s}, s56')
        a('s_and_b32 s57, s55, 7')
        a('s_mul_i32 s57, s57, 160')
        a('s_mul_i32 s56, s56, 40960')
        a('s_add_u32 s56, s56, s57')
        A = a.newlabel('WOI_A'); E = a.newlabel('WOI_E')
        a('s_cmp_lt_u32 s55, 8')
        a(f's_cbranch_scc1 {A}')
        for u in range(5):
            a(f's_mov_b32 m0, {TO + n*5120 + u*1024}')
            a(f'buffer_load_dwordx4 v{24+u}, {srd(S_WOB)}, s56 offen lds')
        a(f's_branch {E}')
        a.label(A)
        for u in range(5):
            a(f's_mov_b32 m0, {TO + n*5120 + u*1024}')
            a(f'buffer_load_dwordx4 v{24+u}, {srd(S_WOA)}, s56 offen lds')
        a.label(E)

    def wo_item_pack(self, n, item_s):
        a = self.a
        for c in range(5):
            for sx in range(2):
                a(f'ds_read_b64_tr_b16 v[{32+4*c+2*sx}:{33+4*c+2*sx}], v30 offset:{TO + n*5120 + sx*1280 + c*32}')
        a(f's_mul_i32 s55, {item_s}, 5120')
        a(f's_add_u32 s55, s55, {WS_PO}')
        a('s_waitcnt lgkmcnt(0)')
        for c in range(5):
            if c == 4: a('s_add_u32 s55, s55, 4096')
            a(f'buffer_store_dwordx4 v[{32+4*c}:{35+4*c}], v2, {srd(S_WS)}, s55 offen offset:{(c%4)*1024} sc1')

    def raw_part_dma(self, srdW, toff):
        a = self.a
        a(f's_mul_i32 s53, s{sJ}, {80*3840}')
        for sec, tb, so in (('k', TK, 1280 - 8), ('q', TQ, 0), ('v', TV, 2560)):
            for u in range(4):
                a(f's_mov_b32 m0, {toff + tb + u*1024}')
                a(f's_add_u32 s54, s53, {so + (64*3840 if u == 3 else 0)}')
                if u == 3: a('s_mov_b32 exec_hi, 0xffff')
                a(f'buffer_load_dwordx4 v{4 + (u % 3)}, {srd(srdW)}, s54 offen lds')
                if u == 3: a('s_mov_b64 exec, -1')

    def p0(self):
        a = self.a
        self.fstamp(53)
        self.fstamp(54)
        L = self.if_wave('eq', 0)
        self.init_flags()
        a.label(L)
        a(f's_lshl_b32 s53, s{sJ}, 3')
        a(f's_lshr_b32 s54, s{sH}, 2')
        a('s_add_u32 s53, s53, s54')
        a(f's_mul_i32 s53, s53, {RBS}')
        a(f's_and_b32 s54, s{sH}, 3')
        a('s_lshl_b32 s54, s54, 7')
        a('s_add_u32 s53, s53, s54')
        a(f's_add_u32 s53, s53, {WS_XF}')
        a('v_and_b32 v10, 7, v0')
        a('v_lshrrev_b32 v11, 3, v0')
        a('v_lshrrev_b32 v13, 1, v11')
        a('v_lshlrev_b32 v13, 10, v13')
        a('v_and_b32 v14, 1, v11')
        a('v_lshlrev_b32 v14, 9, v14')
        a('v_add_u32 v13, v13, v14')
        a('v_lshlrev_b32 v14, 4, v10')
        a('v_add_u32 v13, v13, v14')
        a('s_add_u32 s54, s53, 32768')
        L = self.if_wave('eq', 1)
        a('v_mov_b32 v40, v13')
        a('s_mov_b32 s94, s53')
        self.tr_bases(106, 107, (TK, TQ, TV))
        a('s_waitcnt vmcnt(2)')
        self.pack5('v106', 'v107', lambda i: i * 768, 0, True, fb=48)
        a('v_mov_b32 v13, v40')
        a('s_mov_b32 s53, s94')
        a('s_add_u32 s54, s53, 32768')
        a('s_waitcnt vmcnt(11)')
        a.label(L)
        Lw = a.newlabel('P0_XW')
        a(f's_cmp_eq_u32 s{sW}, 1')
        a(f's_cbranch_scc1 {Lw}')
        a('s_waitcnt vmcnt(0)')
        a.label(Lw)
        self.fstamp(55)
        a(f'buffer_store_dwordx4 v[16:19], v13, {srd(S_WS)}, s53 offen')
        L = self.if_wave('lt', 2)
        a(f'buffer_store_dwordx4 v[20:23], v13, {srd(S_WS)}, s54 offen')
        a.label(L)
        DD = a.newlabel('P0_DMAD')
        L = self.if_wave('eq', 2)
        a('s_mov_b32 s94, s53')
        a('s_mov_b32 s95, s54')
        self.raw_part_dma(S_WQB, TBOFF)
        a('s_mov_b32 s53, s94')
        a('s_mov_b32 s54, s95')
        a.label(L)
        L = self.if_wave('eq', 3)
        for u in range(5):
            d = f'v{24+u}'
            a(f'v_add_u32 v15, {64*u}, v1')
            a('v_mul_u32_u24 v3, 6554, v15')
            a('v_lshrrev_b32 v3, 16, v3')
            a(f'v_mul_u32_u24 {d}, 10, v3')
            a(f'v_sub_u32 {d}, v15, {d}')
            a(f'v_lshlrev_b32 {d}, 4, {d}')
            a('v_mul_u32_u24 v3, 1280, v3')
            a(f'v_add_u32 {d}, {d}, v3')
        a('s_mov_b32 s58, s2')
        self.wo_item_dma(0, 's58')
        L2 = a.newlabel('P0_NOI2')
        a('s_cmp_ge_u32 s2, 64')
        a(f's_cbranch_scc1 {L2}')
        a('s_add_u32 s59, s2, 256')
        self.wo_item_dma(1, 's59')
        a.label(L2)
        a.label(L)
        a('v_mov_b32 v34, 0\nv_mov_b32 v35, 0')
        for r in range(16, 24):
            a(f'v_lshlrev_b32 v36, 16, v{r}')
            a(f'v_and_b32 v37, 0xffff0000, v{r}')
            a('v_add_f32 v34, v34, v36')
            a('v_fmac_f32 v35, v36, v36')
            a('v_add_f32 v34, v34, v37')
            a('v_fmac_f32 v35, v37, v37')
        for reg in (34, 35):
            a(f'v_mov_b32_dpp v36, v{reg} row_ror:8 row_mask:0xf bank_mask:0xf')
            a(f'v_add_f32 v{reg}, v{reg}, v36')
            a(f'v_mov_b32 v36, v{reg}')
            a(f'v_permlane16_swap_b32 v{reg}, v36')
            a(f'v_add_f32 v{reg}, v{reg}, v36')
            a(f'v_mov_b32 v36, v{reg}')
            a(f'v_permlane32_swap_b32 v{reg}, v36')
            a(f'v_add_f32 v{reg}, v{reg}, v36')
        P0S = L_MISC
        a(f's_lshl_b32 s50, s{sW}, 6')
        a('v_lshlrev_b32 v36, 3, v1')
        a('v_add_u32 v36, s50, v36')
        a('s_mov_b64 exec, 0xff')
        a(f'ds_write_b64 v36, v[34:35] offset:{P0S}')
        a('s_mov_b64 exec, -1')
        a('v_mov_b32 v10, 0')
        a(f'v_mov_b32 v11, {L_SIG}')
        a('ds_write_b32 v11, v10')
        a(f'ds_write_b32 v11, v10 offset:{L_CNTA - L_SIG}')
        a(f'ds_write_b32 v11, v10 offset:{L_CNTB - L_SIG}')
        a('v_lshlrev_b32 v11, 2, v1')
        a(f'ds_write_b32 v11, v10 offset:{L_CS}')
        a('s_waitcnt lgkmcnt(0)')
        self.fstamp(56)
        a('s_barrier')
        self.fstamp(57)
        a(f'v_mov_b32 v11, {L_NONCE}')
        a('ds_read_b32 v10, v11')
        a('s_waitcnt lgkmcnt(0)')
        a(f'v_readfirstlane_b32 s{sNONCE}, v10')
        L = self.if_wave('eq', 0)
        a('v_lshrrev_b32 v10, 2, v1')
        a('v_and_b32 v10, 7, v10')
        a('v_lshlrev_b32 v11, 3, v10')
        for w in range(8):
            a(f'ds_read_b64 v[{28+2*w}:{29+2*w}], v11 offset:{P0S + w*64}')
        a('s_waitcnt lgkmcnt(0)')
        for w in range(1, 8):
            a(f'v_add_f32 v28, v28, v{28+2*w}')
            a(f'v_add_f32 v29, v29, v{29+2*w}')
        a('v_and_b32 v12, 3, v1')
        a('v_cmp_eq_u32 vcc, 0, v12')
        a('v_mov_b32 v30, 0\nv_mov_b32 v31, 0')
        a('v_cndmask_b32 v28, v30, v28, vcc')
        a('v_cndmask_b32 v29, v30, v29, vcc')
        a(f's_lshl_b32 s50, s{sJ}, 3')
        a(f's_lshr_b32 s51, s{sH}, 2')
        a('s_add_u32 s50, s50, s51')
        a('s_lshl_b32 s50, s50, 11')
        a(f's_and_b32 s51, s{sH}, 3')
        a('s_lshl_b32 s51, s51, 7')
        a('s_add_u32 s50, s50, s51')
        a(f's_add_u32 s50, s50, {WS_ST}')
        a('v_lshlrev_b32 v12, 9, v12')
        a('v_lshlrev_b32 v10, 4, v10')
        a('v_add_u32 v12, v12, v10')
        a('s_mov_b64 exec, 0xffffffff')
        a(f'buffer_store_dwordx4 v[28:31], v12, {srd(S_WS)}, s50 offen')
        a('s_mov_b64 exec, -1')
        a.label(L)
        for w, n in ((2, 12), (3, 5)):
            Lx = self.if_wave('eq', w)
            a(f's_waitcnt vmcnt({n})')
            a.label(Lx)
        Ly = a.newlabel('P0_W23')
        a(f's_sub_u32 s50, s{sW}, 2')
        a('s_cmp_lt_u32 s50, 2')
        a(f's_cbranch_scc1 {Ly}')
        a('s_waitcnt vmcnt(0)')
        a.label(Ly)
        L = self.if_wave('eq', 1)
        self.set_xflag(5, 1)
        a.label(L)
        self.fstamp(58)

    def p0_packs(self):
        a = self.a
        a('s_waitcnt vmcnt(11)')
        L = self.if_wave('eq', 2)
        self.tr_bases(106, 107, (TK + TBOFF, TQ + TBOFF, TV + TBOFF))
        self.pack5('v106', 'v107', lambda i: i * 768, 1, True)
        a.label(L)
        L = self.if_wave('eq', 3)
        a('v_bfe_u32 v30, v1, 5, 1')
        a('v_lshlrev_b32 v30, 4, v30')
        a('v_bfe_u32 v12, v1, 4, 1')
        a('v_lshlrev_b32 v12, 2, v12')
        a('v_add_u32 v30, v30, v12')
        a('v_bfe_u32 v12, v1, 2, 2')
        a('v_add_u32 v30, v30, v12')
        a('v_mul_u32_u24 v30, 160, v30')
        a('v_and_b32 v12, 3, v1')
        a('v_lshlrev_b32 v12, 3, v12')
        a('v_add_u32 v30, v30, v12')
        a('s_mov_b32 s58, s2')
        self.wo_item_pack(0, 's58')
        L2 = a.newlabel('P0_NOI2B')
        a('s_cmp_ge_u32 s2, 64')
        a(f's_cbranch_scc1 {L2}')
        a('s_add_u32 s59, s2, 256')
        self.wo_item_pack(1, 's59')
        a.label(L2)
        a.label(L)

    ACC0, ACC1 = 16, 32
    XR = 48
    WB = 80
    def qkv_main(self, packed):
        a = self.a
        A0, A1, XR, WB = self.ACC0, self.ACC1, self.XR, self.WB
        a.comment('QKV main ' + ('packed' if packed else 'raw'))
        self.cstamp(53)
        if self.args.prio:
            L = self.if_wave('ge', 4)
            a(f's_setprio {self.args.prio}')
            a.label(L)
        vq = VQ()
        a('s_mov_b32 s50, s84')
        def xload(ks):
            r = XR + 4 * (ks % 8)
            if ks % 4 == 0 and ks > 0: a('s_add_u32 s50, s50, 4096')
            a(f'buffer_load_dwordx4 v[{r}:{r+3}], v2, {srd(S_WS)}, s50 offen offset:{(ks % 4) * 1024} sc1')
            vq.push(('x', ks))
        NPRE = self.args.npre
        for ks in range(min(4, NPRE)): xload(ks)
        if packed:
            a(f'v_add_u32 v3, {PWL}, v2')
            a(f'v_add_u32 v15, {PWL + 40960}, v2')
            def wread(ks):
                s = WB + 8 * (ks % 3)
                b = 'v3' if ks < 20 else 'v15'
                o = (ks % 20) * 2048
                a(f'ds_read_b128 v[{s}:{s+3}], {b} offset:{o}')
                if not self.args.e_half: a(f'ds_read_b128 v[{s+4}:{s+7}], {b} offset:{o+1024}')
            nrd = 1 if self.args.e_half else 2
        else:
            def wread(ks):
                s = WB + 8 * (ks % 3)
                a(f'ds_read_b64_tr_b16 v[{s}:{s+1}], v7 offset:{ks*768}')
                a(f'ds_read_b64_tr_b16 v[{s+2}:{s+3}], v7 offset:{ks*768+48}')
                a(f'ds_read_b64_tr_b16 v[{s+4}:{s+5}], v8 offset:{ks*768}')
                a(f'ds_read_b64_tr_b16 v[{s+6}:{s+7}], v8 offset:{ks*768+48}')
            nrd = 4
        wread(0); wread(1)
        for ks in range(4, NPRE): xload(ks)
        nxt = [NPRE]
        a('s_mov_b32 s51, s85')
        late = [f'buffer_load_dwordx4 v[104:107], v2, {srd(S_WS)}, s51 offen sc1',
                f'buffer_load_dwordx4 v[108:111], v2, {srd(S_WS)}, s51 offen offset:1024 sc1']
        lnpre = self.ln_pre_instrs()
        if self.args.fq: self.fstamp(53)
        for ks in range(40):
            if self.args.fq and ks in (1, 8, 20, 39): self.fstamp({1: 54, 8: 55, 20: 56, 39: 57}[ks])
            if ks + 2 < 40 and not self.args.e_now: wread(ks + 2)
            lg = nrd * min(2, 39 - ks)
            a(f's_waitcnt vmcnt({vq.cnt(("x", ks))}) lgkmcnt({lg})')
            s = WB + 8 * (ks % 3); x = XR + 4 * (ks % 8)
            c0 = '0' if ks == 0 else f'v[{A0}:{A0+15}]'
            c1 = '0' if ks == 0 else f'v[{A1}:{A1+15}]'
            if self.args.e_m16:
                for q in range(2):
                    for (AA, so) in ((A0, s), (A1, s + 4)):
                        d = AA + 4 * q + 8 * (ks % 2)
                        a(f'{MF16} v[{d}:{d+3}], v[{so}:{so+3}], v[{x}:{x+3}], {"0" if ks < 2 else f"v[{d}:{d+3}]"}')
            else:
                sA = 140 if self.args.e_dummy else s
                a(f'{MF32} v[{A0}:{A0+15}], v[{sA}:{sA+3}], v[{x}:{x+3}], {c0}')
                s1 = s if self.args.e_half else (136 if self.args.e_dummy else s + 4)
                a(f'{MF32} v[{A1}:{A1+15}], v[{s1}:{s1+3}], v[{x}:{x+3}], {c1}')
            nis = 0
            while nxt[0] < 40 and nxt[0] <= ks + 8 and nis < 2:
                if self.args.e_nox:
                    vq.push(('x', nxt[0]))
                    vq.q.pop(); vq.q.insert(0, ('x', nxt[0]))
                else: xload(nxt[0])
                nxt[0] += 1; nis += 1
            if ks == 10:
                LF = a.newlabel('QK_FL')
                a(f's_cmp_lg_u32 s{sLAYER}, 0')
                a(f's_cbranch_scc1 {LF}')
                for w, word in ((2, 4), (3, 6)):
                    L = self.if_wave('eq', w)
                    self.set_xflag(word, 1, saddr='s54', vt=('v13', 'v14'))
                    a.label(L)
                a.label(LF)
            if ks >= 12 and ks % 2 == 0 and late:
                a(late.pop(0)); vq.push('late')
            if ks >= 25:
                n = -(-len(lnpre) // (39 - ks)) if ks < 39 else len(lnpre)
                for _ in range(min(n, len(lnpre))): a(lnpre.pop(0))
        assert not late and not lnpre
        self.cstamp(55)
        if self.args.prio: a('s_setprio 0')
        a('s_waitcnt vmcnt(0)')
        if self.args.fq: self.fstamp(58)

    def colsum_raw(self):
        a = self.a
        WB = self.WB
        a(f's_mul_i32 s52, s{sW}, 768')
        a('v_add_u32 v12, s52, v7')
        a('v_add_u32 v13, s52, v8')
        for r in range(108, 112): a(f'v_mov_b32 v{r}, 0x3f803f80')
        for i in range(5):
            s = 16 + 8 * i
            a(f'ds_read_b64_tr_b16 v[{s}:{s+1}], v12 offset:{i*6144}')
            a(f'ds_read_b64_tr_b16 v[{s+2}:{s+3}], v12 offset:{i*6144+48}')
            a(f'ds_read_b64_tr_b16 v[{s+4}:{s+5}], v13 offset:{i*6144}')
            a(f'ds_read_b64_tr_b16 v[{s+6}:{s+7}], v13 offset:{i*6144+48}')
        a('s_waitcnt lgkmcnt(0)')
        for i in range(5):
            s = 16 + 8 * i
            a(f'{MF32} v[112:127], v[108:111], v[{s}:{s+3}], {"0" if i == 0 else "v[112:127]"}')
            a(f'{MF32} v[128:143], v[108:111], v[{s+4}:{s+7}], {"0" if i == 0 else "v[128:143]"}')
        a('v_and_b32 v12, 31, v1')
        a('v_lshlrev_b32 v12, 2, v12')
        a('s_mov_b64 exec, 0xffffffff')
        a(f'ds_add_f32 v12, v112 offset:{L_CS}')
        a(f'ds_add_f32 v12, v128 offset:{L_CS+128}')
        a('s_mov_b64 exec, -1')
        a('s_waitcnt lgkmcnt(0)')

    def ln_pre_instrs(self):
        I = []
        I += [f's_bitcmp1_b32 s{sLAYER}, 0', 's_cselect_b64 s[70:71], -1, 0',
              f'v_cndmask_b32 v116, v{vCSA}, v{vCSB}, s[70:71]', f'v_cndmask_b32 v117, v{vCSA+1}, v{vCSB+1}, s[70:71]']
        I += ['v_add_f32 v104, v104, v106', 'v_add_f32 v105, v105, v107', 'v_add_f32 v108, v108, v110', 'v_add_f32 v109, v109, v111',
              'v_add_f32 v112, v104, v108', 'v_add_f32 v113, v105, v109', 'v_mov_b32 v114, v112', 'v_mov_b32 v115, v113',
              'v_mov_b32 v122, 0', 'v_mov_b32 v123, 0',
              'v_permlane32_swap_b32 v112, v114', 'v_permlane32_swap_b32 v113, v115',
              'v_add_f32 v112, v112, v114', 'v_add_f32 v113, v113, v115', 's_mov_b32 s72, 0x3acccccd',
              'v_mul_f32 v112, s72, v112', 'v_mul_f32 v113, s72, v113', 'v_fma_f32 v113, -v112, v112, v113',
              'v_add_f32 v113, 0x3727c5ac, v113', 'v_rsq_f32 v132, v113',
              'v_sub_f32 v114, 0, v112', 'v_cvt_pk_bf16_f32 v120, v114, v114', 'v_lshlrev_b32 v115, 16, v120',
              'v_sub_f32 v115, v114, v115', 'v_cvt_pk_bf16_f32 v121, v115, v122',
              f'v_cndmask_b32 v120, v122, v120, {LO}', f'v_cndmask_b32 v121, v122, v121, {LO}']
        for src, dst in ((116, 124), (117, 128)):
            I += [f'v_cvt_pk_bf16_f32 v118, v{src}, v{src}', 'v_lshlrev_b32 v118, 16, v118', f'v_sub_f32 v119, v{src}, v118',
                  f'v_cvt_pk_bf16_f32 v{dst}, v118, v119', f'v_cvt_pk_bf16_f32 v{dst+1}, v118, v122',
                  f'v_cndmask_b32 v{dst}, v122, v{dst}, {LO}', f'v_cndmask_b32 v{dst+1}, v122, v{dst+1}, {LO}',
                  f'v_mov_b32 v{dst+2}, 0', f'v_mov_b32 v{dst+3}, 0']
        return I

    def ln_fix(self, packed):
        a = self.a
        A0, A1 = self.ACC0, self.ACC1
        a(f'{MF32} v[{A0}:{A0+15}], v[124:127], v[120:123], v[{A0}:{A0+15}]')
        a(f'{MF32} v[{A1}:{A1+15}], v[128:131], v[120:123], v[{A1}:{A1+15}]')
        a('v_mov_b32 v101, v132')

    def img_addr_regs(self):
        a = self.a
        a('v_and_b32 v10, 31, v1')
        a(f's_lshl_b32 s50, s{sRB}, 5')
        a('s_add_u32 s50, s50, 256')
        a('v_add_u32 v10, s50, v10')
        a('v_mul_u32_u24 v10, 48, v10')
        a('v_lshrrev_b32 v11, 5, v1')
        a('v_lshlrev_b32 v12, 4, v11')
        a('v_add_u32 v120, v10, v12')
        a('v_lshlrev_b32 v12, 3, v11')
        a('v_sub_u32 v121, v10, v12')
        a('v_add_u32 v121, 32, v121')
        a('v_add_u32 v122, v10, v12')
        a(f'v_add_u32 v122, {VIMG}, v122')
        a(f'v_mul_u32_u24 v12, {VIMG + 32 - 8}, v11')
        a('v_add_u32 v123, v10, v12')
        a('v_add_u32 v123, 8, v123')
        a(f'v_mul_u32_u24 v12, {VIMG}, v11')
        a('v_add_u32 v124, v10, v12')
        a('v_add_u32 v124, 40, v124')

    def setup_persistent(self):
        a = self.a
        self.img_addr_regs()
        for k in range(5): a(f'v_mov_b32 v{vPI[k]}, v{120+k}')
        self.attn_addr()
        for k in range(3): a(f'v_mov_b32 v{vPA[k]}, v{105+k}')
        self.o_addr_lane()
        for k in range(3): a(f'v_mov_b32 v{vPO[k]}, v{40+k}')
        L = self.if_wave('eq', 5)
        self.attn_masks_md(32)
        for q in range(4):
            a(f'ds_write_b128 v2, v[{32+4*q}:{35+4*q}] offset:{L_MD + q*1024}')
        a('s_waitcnt lgkmcnt(0)')
        a.label(L)

    def write_img(self, regs):
        a = self.a
        a(f'ds_write_b64 v{vPI[0]}, v[{regs["B1g0"]}:{regs["B1g0"]+1}]')
        a(f'ds_write_b64 v{vPI[1]}, v[{regs["B0g3"]}:{regs["B0g3"]+1}]')
        a(f'ds_write_b64 v{vPI[2]}, v[{regs["B1g1"]}:{regs["B1g1"]+1}]')
        a(f'ds_write_b64 v{vPI[2]}, v[{regs["B1g2"]}:{regs["B1g2"]+1}] offset:16')
        a(f'ds_write_b64 v{vPI[3]}, v[{regs["B1g3"]}:{regs["B1g3"]+1}]')
        a('v_mov_b32 v12, 0x3f80')
        a('v_mov_b32 v13, 0')
        a(f'v_cndmask_b32 v12, v12, v13, {LO}')
        a(f'ds_write_b64 v{vPI[4]}, v[12:13]')

    def wave_max(self, reg, tmp):
        a = self.a
        for ror in (8, 4, 2, 1):
            a(f'v_mov_b32_dpp v{tmp}, v{reg} row_ror:{ror} row_mask:0xf bank_mask:0xf')
            a(f'v_max_f32 v{reg}, v{reg}, v{tmp}')
        a(f'v_mov_b32 v{tmp}, v{reg}')
        a(f'v_permlane16_swap_b32 v{reg}, v{tmp}')
        a(f'v_max_f32 v{reg}, v{reg}, v{tmp}')
        a(f'v_mov_b32 v{tmp}, v{reg}')
        a(f'v_permlane32_swap_b32 v{reg}, v{tmp}')
        a(f'v_max_f32 v{reg}, v{reg}, v{tmp}')

    QA, QB = 96, 100
    vQN = 104
    def kvx_base(self, dst, wg_s):
        a = self.a
        a(f's_lshr_b32 {dst}, s{sLAYER}, 1')
        a(f's_mul_i32 {dst}, {dst}, {KVX_SZ}')
        a(f's_add_u32 {dst}, {dst}, {WS_KVX}')
        a(f's_mul_i32 s63, {wg_s}, 24576')
        a(f's_add_u32 {dst}, {dst}, s63')

    def export_own(self):
        a = self.a
        a(f's_mul_i32 s50, s{sRB}, 1536')
        a('v_add_u32 v60, s50, v2')
        a('v_add_u32 v62, 12800, v60')
        a('v_add_u32 v61, 1024, v60')
        a('v_add_u32 v63, 11776, v60')
        a(f'v_cndmask_b32 v61, v63, v61, {LO}')
        a('v_add_u32 v63, 12288, v61')
        a(f'v_add_u32 v10, {VIMG}, v61')
        a(f'v_cndmask_b32 v63, v10, v63, {LO}')
        a('ds_read_b128 v[48:51], v60 offset:12288')
        a('ds_read_b128 v[52:55], v63')
        a(f'ds_read_b128 v[56:59], v62 offset:{VIMG}')
        self.kvx_base('s51', 's2')
        a('s_waitcnt lgkmcnt(0)')
        a(f'buffer_store_dwordx4 v[48:51], v60, {srd(S_WS)}, s51 offen sc1')
        a(f'buffer_store_dwordx4 v[52:55], v61, {srd(S_WS)}, s51 offen sc1')
        a(f'buffer_store_dwordx4 v[56:59], v62, {srd(S_WS)}, s51 offen sc1')

    def set_block_flag(self):
        a = self.a
        a(f's_lshl_b32 s53, s{sRB}, 2')
        a('s_add_u32 s53, s53, 32')
        a(f's_add_u32 s54, s{sLAYER}, 1')
        self.set_xflag('s53', 's54')

    def epi_B(self):
        a = self.a
        A0, A1 = self.ACC0, self.ACC1
        QA, QB = self.QA, self.QB
        a(f's_mov_b32 s{sNEED}, 1')
        a('s_mov_b32 s52, 0x3ea52b5c')
        a('v_mul_f32 v102, s52, v101')
        for r in range(12, 16): a(f'v_mul_f32 v{A0+r}, v101, v{A0+r}')
        for r in range(16): a(f'v_mul_f32 v{A1+r}, v101, v{A1+r}')
        pk = {'B0g3': (106, A0+12), 'B1g0': (108, A1), 'B1g1': (110, A1+4), 'B1g2': (112, A1+8), 'B1g3': (114, A1+12)}
        for n, (d, s_) in pk.items():
            a(f'v_cvt_pk_bf16_f32 v{d}, v{s_}, v{s_+1}')
            a(f'v_cvt_pk_bf16_f32 v{d+1}, v{s_+2}, v{s_+3}')
        self.write_img({n: d for n, (d, _) in pk.items()})
        a(f'v_mul_f32 v118, v{A0+12}, v{A0+12}')
        for r in [A0+13, A0+14, A0+15, A1, A1+1, A1+2, A1+3]: a(f'v_fmac_f32 v118, v{r}, v{r}')
        a(f'v_mul_f32 v119, v{A1+12}, v{A1+12}')
        for r in range(13, 16): a(f'v_fmac_f32 v119, v{A1+r}, v{A1+r}')
        a('v_mov_b32 v13, 0')
        a(f'v_cndmask_b32 v119, v13, v119, {LO}')
        a('v_add_f32 v118, v118, v119')
        a('v_mov_b32 v119, v118')
        a('v_permlane32_swap_b32 v118, v119')
        a('v_add_f32 v118, v118, v119')
        a('s_waitcnt lgkmcnt(0)')
        NOEXP = a.newlabel('EB_NOEXP')
        a(f's_cmp_eq_u32 s{sJ}, 7')
        a(f's_cbranch_scc1 {NOEXP}')
        if self.args.fe: self.fstamp(53)
        self.export_own()
        if self.args.fe: self.fstamp(54)
        a.label(NOEXP)
        self.wave_max(118, 117)
        NOEXP2 = a.newlabel('EB_NOEXP2')
        a(f's_cmp_eq_u32 s{sJ}, 7')
        a(f's_cbranch_scc1 {NOEXP2}')
        a('s_lshl_b32 s52, s2, 6')
        a(f's_add_u32 s52, s52, {WS_XKN}')
        a(f's_lshl_b32 s53, s{sRB}, 2')
        a('v_mov_b32 v12, s53')
        a('s_mov_b64 exec, 1')
        a(f'buffer_store_dword v118, v12, {srd(S_WS)}, s52 offen sc1')
        a('s_mov_b64 exec, -1')
        a.label(NOEXP2)
        a(f's_lshl_b32 s50, s{sW}, 2')
        a('v_mov_b32 v12, s50')
        a('s_mov_b64 exec, 1')
        a(f'ds_write_b32 v12, v118 offset:{L_KN}')
        a('s_mov_b64 exec, -1')
        L = self.if_wave('eq', 0)
        a('v_lshlrev_b32 v12, 2, v1')
        a('v_mov_b32 v13, 0')
        a('s_mov_b64 exec, 0xff')
        a(f'ds_write_b32 v12, v13 offset:{L_KN+32}')
        a('s_mov_b64 exec, -1')
        a.label(L)
        L = self.if_wave('lt', 4)
        self.epi_B_q()
        a.label(L)
        for q in range(4):
            a(f'ds_read_b128 v[{self.AMD+4*q}:{self.AMD+4*q+3}], v2 offset:{L_MD + q*1024}')
        L = self.if_wave('lt', 4)
        LJ = a.newlabel('EB_J7')
        a(f's_cmp_eq_u32 s{sJ}, 7')
        a(f's_cbranch_scc1 {LJ}')
        if self.args.fe: self.fstamp(55)
        a('s_waitcnt vmcnt(0)')
        if self.args.fe: self.fstamp(56)
        self.set_block_flag()
        a.label(LJ)
        if self.args.maxtry > 0:
            L0 = self.if_wave('eq', 0)
            self.s1_issue(self.args.maxtry)
            a(f'v_mov_b32 v11, {L_SIG}')
            a(f'v_mov_b32 v12, s{sNEED}')
            a('ds_write_b32 v11, v12 offset:16')
            a.label(L0)
        a.label(L)
        if self.args.fe: self.fstamp(57)
        if self.args.fli < 0:
            L = self.if_wave('ge', 4)
            self.light_flag()
            a.label(L)
        a('s_waitcnt lgkmcnt(0)')
        a('s_barrier')

    def epi_B_q(self):
        a = self.a
        A0 = self.ACC0
        QA, QB = self.QA, self.QB
        for r in range(0, 12): a(f'v_mul_f32 v{A0+r}, v102, v{A0+r}')
        for j in range(4): a(f'v_cvt_pk_bf16_f32 v{QA+j}, v{A0+2*j}, v{A0+2*j+1}')
        a(f'v_cvt_pk_bf16_f32 v{QB}, v{A0+8}, v{A0+9}')
        a(f'v_cvt_pk_bf16_f32 v{QB+1}, v{A0+10}, v{A0+11}')
        a('v_mul_f32 v116, v16, v16')
        for r in range(1, 8): a(f'v_fmac_f32 v116, v{A0+r}, v{A0+r}')
        a(f'v_mul_f32 v117, v{A0+8}, v{A0+8}')
        for r in range(9, 12): a(f'v_fmac_f32 v117, v{A0+r}, v{A0+r}')
        a('v_mov_b32 v13, 0')
        a(f'v_mov_b32 v{QB+2}, 0x3f80')
        a(f'v_mov_b32 v{QB+3}, 0')
        for j in range(3): a(f'v_cndmask_b32 v{QB+j}, v13, v{QB+j}, {LO}')
        a(f'v_cndmask_b32 v117, v13, v117, {LO}')
        a('v_add_f32 v116, v116, v117')
        a('v_mov_b32 v117, v116')
        a('v_permlane32_swap_b32 v116, v117')
        a(f'v_add_f32 v{self.vQN}, v116, v117')
        self.wave_max(self.vQN, 116)

    def imp_addr(self, st):
        a = self.a
        half = 6144 if st == 1 else 0
        a('v_lshlrev_b32 v10, 4, v0')
        a(f'v_add_u32 v184, {half}, v10')
        a(f'v_add_u32 v185, {half + 4096}, v10')
        a(f'v_add_u32 v186, {12288 + half - 2048}, v10')
        a('v_cmp_gt_u32 vcc, 2048, v10')
        a('v_cndmask_b32 v185, v186, v185, vcc')
        a(f'v_add_u32 v186, {12288 + half + 2048}, v10')
        a(f'v_add_u32 v187, {VIMG - 12288}, v185')
        a('v_cndmask_b32 v187, v187, v185, vcc')

    def imp_flagload(self, st):
        a = self.a
        a('s_sub_u32 s54, s2, 1')
        self.xflag_addr('s52', 's54')
        a('v_and_b32 v11, 3, v1')
        a('v_lshlrev_b32 v11, 2, v11')
        a(f'v_add_u32 v11, {32 + (16 if st == 1 else 0)}, v11')
        a(f'buffer_load_dword v176, v11, {srd(S_WS)}, s52 offen sc1')

    def imp_loads(self, st):
        a = self.a
        a('s_sub_u32 s54, s2, 1')
        self.kvx_base('s51', 's54')
        a(f'buffer_load_dwordx4 v[160:163], v184, {srd(S_WS)}, s51 offen sc1')
        a(f'buffer_load_dwordx4 v[164:167], v185, {srd(S_WS)}, s51 offen sc1')
        a(f'buffer_load_dwordx4 v[168:171], v186, {srd(S_WS)}, s51 offen sc1')
        a('s_lshl_b32 s52, s54, 6')
        a(f's_add_u32 s52, s52, {WS_XKN + (16 if st == 1 else 0)}')
        a('v_and_b32 v11, 3, v1')
        a('v_lshlrev_b32 v11, 2, v11')
        a(f'buffer_load_dword v172, v11, {srd(S_WS)}, s52 offen sc1')

    def imp_try(self, st, nyounger):
        a = self.a
        N = a.newlabel('IT_NO'); E = a.newlabel('IT_E')
        a(f's_waitcnt vmcnt({nyounger})')
        a(f's_add_u32 s63, s{sNONCE}, s{sLAYER}')
        a('s_add_u32 s63, s63, 1')
        a('v_subrev_u32 v176, s63, v176')
        a('v_cmp_lt_u32 vcc, 7, v176')
        a('s_and_b32 s61, vcc_lo, 0xf')
        a('s_cmp_eq_u32 s61, 0')
        a(f's_cbranch_scc0 {N}')
        self.imp_addr(st)
        self.imp_loads(st)
        a(f's_mov_b32 s{sNEED}, 0')
        a(f's_branch {E}')
        a.label(N)
        a(f's_mov_b32 s{sNEED}, 1')
        a.label(E)

    def imp_fill_vals(self, nK, tsrc):
        pass

    def imp_finish(self, st):
        a = self.a
        FILL = a.newlabel('IM_FILL'); E = a.newlabel('IM_END')
        a(f's_cmp_eq_u32 s{sJ}, 0')
        a(f's_cbranch_scc1 {FILL}')
        a('s_sub_u32 s54, s2, 1')
        self.xflag_addr('s52', 's54')
        a(f's_add_u32 s53, s{sLAYER}, 1')
        a('v_and_b32 v11, 3, v1')
        a('v_lshlrev_b32 v11, 2, v11')
        a('v_add_u32 v11, 48, v11')
        self.poll('v11', 's52', 4, 's53')
        self.imp_addr(1)
        self.imp_loads(1)
        a('s_waitcnt vmcnt(0)')
        a('ds_write_b128 v184, v[160:163]')
        a('ds_write_b128 v187, v[164:167]')
        a(f'ds_write_b128 v186, v[168:171] offset:{VIMG - 12288}')
        for ror in (2, 1):
            a(f'v_mov_b32_dpp v173, v172 row_ror:{ror} row_mask:0xf bank_mask:0xf')
            a('v_max_f32 v172, v172, v173')
        a(f'v_mov_b32 v12, {L_KN + 32}')
        a('s_mov_b64 exec, 1')
        a('ds_write_b32 v12, v172')
        a('s_mov_b64 exec, -1')
        a(f's_branch {E}')
        a.label(FILL)
        self.imp_addr(1)
        a('v_lshlrev_b32 v10, 4, v0')
        for r in range(160, 172): a(f'v_mov_b32 v{r}, 0')
        for n, reg in ((0, 162), (1, 166)):
            a(f'v_lshrrev_b32 v11, 4, v10')
            a(f'v_add_u32 v11, {n*256}, v11')
            a('v_mul_u32_u24 v12, 21846, v11')
            a('v_lshrrev_b32 v12, 16, v12')
            a('v_mul_u32_u24 v12, 3, v12')
            a('v_sub_u32 v12, v11, v12')
            a('v_cmp_eq_u32 s[70:71], 2, v12')
            if n == 1:
                a('v_cmp_gt_u32 vcc, 2048, v10')
                a('s_and_b64 s[70:71], s[70:71], vcc')
            a('v_mov_b32 v13, 0xf14a')
            a(f'v_cndmask_b32 v{reg}, v{reg}, v13, s[70:71]')
        a('ds_write_b128 v184, v[160:163]')
        a('ds_write_b128 v187, v[164:167]')
        a(f'ds_write_b128 v186, v[168:171] offset:{VIMG - 12288}')
        a(f'v_mov_b32 v12, {L_KN + 32}')
        a('s_mov_b64 exec, 1')
        a('ds_write_b32 v12, v160')
        a('s_mov_b64 exec, -1')
        a.label(E)
        a('s_waitcnt lgkmcnt(0)')

    S1K = [160, 164, 168, 172, 184, 108]; S1V = [128, 132, 136, 140, 48, 52]
    def s1_issue(self, maxtry):
        a = self.a
        E = a.newlabel('S1_E'); Z = a.newlabel('S1_Z')
        a(f's_mov_b32 s{sNEED}, 0')
        a(f's_cmp_eq_u32 s{sJ}, 0')
        a(f's_cbranch_scc1 {E}')
        a('s_sub_u32 s54, s2, 1')
        self.xflag_addr('s52', 's54')
        a('v_and_b32 v11, 3, v1')
        a('v_lshlrev_b32 v11, 2, v11')
        a('v_add_u32 v11, 48, v11')
        if maxtry is None:
            a(f's_add_u32 s53, s{sLAYER}, 1')
            self.poll('v11', 's52', 4, 's53')
        else:
            L = a.newlabel('S1_TRY'); OK = a.newlabel('S1_OK')
            a('s_mov_b32 s60, 0')
            a(f's_add_u32 s63, s{sNONCE}, s{sLAYER}')
            a('s_add_u32 s63, s63, 1')
            a.label(L)
            a(f'buffer_load_dword v12, v11, {srd(S_WS)}, s52 offen sc1')
            a('s_waitcnt vmcnt(0)')
            a('v_subrev_u32 v12, s63, v12')
            a('v_cmp_lt_u32 vcc, 7, v12')
            a('s_and_b32 s61, vcc_lo, 0xf')
            a('s_cmp_eq_u32 s61, 0')
            a(f's_cbranch_scc1 {OK}')
            a('s_add_u32 s60, s60, 1')
            a(f's_cmp_lt_u32 s60, {maxtry}')
            a(f's_cbranch_scc1 {L}')
            a(f's_mov_b32 s{sNEED}, 1')
            a(f's_branch {E}')
            a.label(OK)
        self.kvx_base('s51', 's54')
        a(f's_add_u32 s55, s51, {12288 + 6144}')
        a('s_add_u32 s51, s51, 6144')
        a('s_lshl_b32 s52, s54, 6')
        a(f's_add_u32 s52, s52, {WS_XKN + 16}')
        a('v_and_b32 v11, 3, v1')
        a('v_lshlrev_b32 v11, 2, v11')
        a(f'buffer_load_dword v14, v11, {srd(S_WS)}, s52 offen sc1')
        for n in range(6):
            if n == 4: a('s_add_u32 s51, s51, 4096')
            r = self.S1K[n]
            a(f'buffer_load_dwordx4 v[{r}:{r+3}], v2, {srd(S_WS)}, s51 offen offset:{(n%4)*1024} sc1')
        for n in range(6):
            if n == 4: a('s_add_u32 s55, s55, 4096')
            r = self.S1V[n]
            a(f'buffer_load_dwordx4 v[{r}:{r+3}], v2, {srd(S_WS)}, s55 offen offset:{(n%4)*1024} sc1')
        a.label(E)

    def s1_finish(self):
        a = self.a
        FILL = a.newlabel('S1_FILL'); E = a.newlabel('S1_END')
        half = 6144
        a(f's_cmp_eq_u32 s{sJ}, 0')
        a(f's_cbranch_scc1 {FILL}')
        a('s_waitcnt vmcnt(12)')
        for ror in (2, 1):
            a(f'v_mov_b32_dpp v15, v14 row_ror:{ror} row_mask:0xf bank_mask:0xf')
            a('v_max_f32 v14, v14, v15')
        a(f'v_mov_b32 v12, {L_KN + 32}')
        a('s_mov_b64 exec, 1')
        a('ds_write_b32 v12, v14')
        a('s_mov_b64 exec, -1')
        for n in range(6):
            r = self.S1K[n]
            a(f's_waitcnt vmcnt({11 - n})')
            a(f'ds_write_b128 v2, v[{r}:{r+3}] offset:{KIMG + half + n*1024}')
        for n in range(6):
            r = self.S1V[n]
            a(f's_waitcnt vmcnt({5 - n})')
            a(f'ds_write_b128 v2, v[{r}:{r+3}] offset:{VIMG + half + n*1024}')
        a(f's_branch {E}')
        a.label(FILL)
        for r in range(160, 168): a(f'v_mov_b32 v{r}, 0')
        for n in range(6):
            a(f'v_add_u32 v11, {n*64}, v1')
            a('v_mul_u32_u24 v12, 21846, v11')
            a('v_lshrrev_b32 v12, 16, v12')
            a('v_mul_u32_u24 v12, 3, v12')
            a('v_sub_u32 v12, v11, v12')
            a('v_cmp_eq_u32 vcc, 2, v12')
            a('v_mov_b32 v13, 0xf14a')
            a('v_cndmask_b32 v162, v160, v13, vcc')
            a(f'ds_write_b128 v2, v[160:163] offset:{KIMG + half + n*1024}')
            a(f'ds_write_b128 v2, v[164:167] offset:{VIMG + half + n*1024}')
        a.label(E)
        a('s_waitcnt lgkmcnt(0)')
        self.cnt_inc(L_CNTA)
        a('s_waitcnt lgkmcnt(0)')

    I2R = [160, 164, 168, 172, 184, 108]
    def i2_flag(self):
        a = self.a
        a('s_sub_u32 s54, s2, 1')
        self.xflag_addr('s52', 's54')
        a('v_and_b32 v11, 3, v1')
        a('v_lshlrev_b32 v11, 2, v11')
        a('v_add_u32 v11, 32, v11')
        a(f'buffer_load_dword v182, v11, {srd(S_WS)}, s52 offen sc1')
    def i2_loads(self):
        a = self.a
        a('s_sub_u32 s54, s2, 1')
        self.kvx_base('s51', 's54')
        a(f's_sub_u32 s55, s{sW}, 6')
        a('s_mul_i32 s55, s55, 12288')
        a('s_add_u32 s51, s51, s55')
        a('s_lshl_b32 s52, s54, 6')
        a(f's_add_u32 s52, s52, {WS_XKN}')
        a('v_and_b32 v11, 3, v1')
        a('v_lshlrev_b32 v11, 2, v11')
        a(f'buffer_load_dword v183, v11, {srd(S_WS)}, s52 offen sc1')
        for n in range(6):
            r = self.I2R[n]
            if n == 4: a('s_add_u32 s51, s51, 4096')
            a(f'buffer_load_dwordx4 v[{r}:{r+3}], v2, {srd(S_WS)}, s51 offen offset:{(n%4)*1024} sc1')
    def i2_try(self):
        a = self.a
        N = a.newlabel('I2T_N'); E = a.newlabel('I2T_E')
        a('s_waitcnt vmcnt(0)')
        a(f's_add_u32 s63, s{sNONCE}, s{sLAYER}')
        a('s_add_u32 s63, s63, 1')
        a('v_subrev_u32 v182, s63, v182')
        a('v_cmp_lt_u32 vcc, 7, v182')
        a('s_and_b32 s61, vcc_lo, 0xf')
        a('s_cmp_eq_u32 s61, 0')
        a(f's_cbranch_scc0 {N}')
        self.i2_loads()
        a(f's_mov_b32 s{sNEED}, 0')
        a(f's_branch {E}')
        a.label(N)
        a(f's_mov_b32 s{sNEED}, 1')
        a.label(E)
    def i2_finish(self):
        a = self.a
        FILL = a.newlabel('I2F_FILL'); E = a.newlabel('I2F_E'); GO = a.newlabel('I2F_GO')
        a(f's_sub_u32 s55, s{sW}, 6')
        a(f's_mul_i32 s55, s55, {VIMG}')
        a('v_add_u32 v13, s55, v2')
        a(f's_cmp_eq_u32 s{sJ}, 0')
        a(f's_cbranch_scc1 {FILL}')
        a(f's_cmp_eq_u32 s{sNEED}, 0')
        a(f's_cbranch_scc1 {GO}')
        a('s_sub_u32 s54, s2, 1')
        self.xflag_addr('s52', 's54')
        a(f's_add_u32 s53, s{sLAYER}, 1')
        a('v_and_b32 v11, 3, v1')
        a('v_lshlrev_b32 v11, 2, v11')
        a('v_add_u32 v11, 32, v11')
        self.poll('v11', 's52', 4, 's53')
        self.i2_loads()
        a.label(GO)
        a('s_waitcnt vmcnt(0)')
        for n in range(6):
            r = self.I2R[n]
            a(f'ds_write_b128 v13, v[{r}:{r+3}] offset:{n*1024}')
        for ror in (2, 1):
            a(f'v_mov_b32_dpp v15, v183 row_ror:{ror} row_mask:0xf bank_mask:0xf')
            a('v_max_f32 v183, v183, v15')
        a(f'v_mov_b32 v12, {L_KN + 36}')
        a('s_mov_b64 exec, 1')
        a('ds_write_b32 v12, v183')
        a('s_mov_b64 exec, -1')
        a(f's_branch {E}')
        a.label(FILL)
        for r in range(160, 164): a(f'v_mov_b32 v{r}, 0')
        for n in range(6):
            a(f'v_add_u32 v11, {n*64}, v1')
            a('v_mul_u32_u24 v12, 21846, v11')
            a('v_lshrrev_b32 v12, 16, v12')
            a('v_mul_u32_u24 v12, 3, v12')
            a('v_sub_u32 v12, v11, v12')
            a('v_cmp_eq_u32 vcc, 2, v12')
            a(f's_cmp_eq_u32 s{sW}, 6')
            a('s_cselect_b32 s55, 0xf14a, 0')
            a('v_mov_b32 v14, s55')
            a('v_cndmask_b32 v162, v160, v14, vcc')
            a(f'ds_write_b128 v13, v[160:163] offset:{n*1024}')
        a.label(E)
        a('s_waitcnt lgkmcnt(0)')
        self.cnt_inc(L_CNTB)
        a('s_waitcnt lgkmcnt(0)')

    def cnt_inc(self, addr):
        a = self.a
        a(f'v_mov_b32 v11, {addr}')
        a('v_mov_b32 v12, 1')
        a('s_mov_b64 exec, 1')
        a('ds_add_u32 v11, v12')
        a('s_mov_b64 exec, -1')

    def cnt_wait(self, addr):
        a = self.a
        L = a.newlabel('CW'); D = a.newlabel('CWD')
        a(f's_add_u32 s62, s{sLAYER}, 1')
        if addr == L_CNTA: a('s_lshr_b32 s62, s62, 1')
        a(f'v_mov_b32 v11, {addr}')
        a('s_mov_b32 s60, 0')
        a.label(L)
        a('ds_read_b32 v12, v11')
        a('s_waitcnt lgkmcnt(0)')
        a('v_readfirstlane_b32 s61, v12')
        a('s_cmp_ge_u32 s61, s62')
        a(f's_cbranch_scc1 {D}')
        a('s_sleep 1')
        a('s_add_u32 s60, s60, 1')
        a('s_cmp_lt_u32 s60, 0x200000')
        a(f's_cbranch_scc1 {L}')
        a.label(D)

    def light_flag(self):
        a = self.a
        E = a.newlabel('LF_E')
        a(f's_cmp_eq_u32 s{sJ}, 7')
        a(f's_cbranch_scc1 {E}')
        a('s_waitcnt vmcnt(0)')
        self.set_block_flag()
        a.label(E)

    def attn_addr(self):
        a = self.a
        a('v_and_b32 v10, 31, v1')
        a(f's_lshl_b32 s50, s{sRB}, 5')
        a('v_add_u32 v10, s50, v10')
        a('v_mul_u32_u24 v10, 48, v10')
        a('v_lshrrev_b32 v11, 5, v1')
        a('v_lshlrev_b32 v12, 4, v11')
        a('v_add_u32 v105, v10, v12')
        a('v_add_u32 v106, 32, v10')
        a('v_bfe_u32 v12, v1, 2, 2')
        a('v_lshlrev_b32 v13, 2, v11')
        a('v_add_u32 v12, v12, v13')
        a('v_add_u32 v12, s50, v12')
        a('v_mul_u32_u24 v12, 48, v12')
        a('v_and_b32 v13, 3, v1')
        a('v_lshlrev_b32 v14, 3, v13')
        a('v_min_u32 v15, 1, v13')
        a('v_lshlrev_b32 v15, 3, v15')
        a('v_add_u32 v15, 32, v15')
        a('v_bfe_u32 v13, v1, 4, 1')
        a('v_cmp_eq_u32 vcc, 1, v13')
        a('v_cndmask_b32 v14, v14, v15, vcc')
        a('v_add_u32 v12, v12, v14')
        a(f'v_add_u32 v107, {VIMG}, v12')

    def attn_masks_md(self, MD):
        a = self.a
        a('v_and_b32 v10, 31, v1')
        a('v_lshrrev_b32 v11, 5, v1')
        a('v_lshlrev_b32 v13, 2, v11')
        a('v_sub_u32 v10, v10, v13')
        a('v_mov_b32 v14, 0xf149f2ca')
        a('v_mov_b32 v15, 0')
        conds = ['s[70:71]', 's[72:73]', 's[74:75]', 's[76:77]']
        for r0 in range(0, 16, 4):
            for q in range(4):
                r = r0 + q
                kk = 8 * (r >> 2) + (r & 3)
                a(f'v_cmp_le_i32 {conds[q]}, {kk}, v10')
            for q in range(4):
                r = r0 + q
                a(f'v_cndmask_b32 v{MD+r}, v14, v15, {conds[q]}')

    def make_mf(self, r0, r1):
        for r in range(r0, r1):
            self.a(f'v_sub_f32 v{self.AMF+r}, 0xf149f2ca, v{self.AMD+r}')

    def norm_check(self, fail_label):
        a = self.a
        a('v_and_b32 v11, 15, v1')
        a('v_lshlrev_b32 v11, 2, v11')
        a(f'ds_read_b32 v12, v11 offset:{L_KN}')
        a('s_waitcnt lgkmcnt(0)')
        for ror in (8, 4, 2, 1):
            a(f'v_mov_b32_dpp v13, v12 row_ror:{ror} row_mask:0xf bank_mask:0xf')
            a('v_max_f32 v12, v12, v13')
        a(f'v_mul_f32 v12, v{self.vQN}, v12')
        a(f's_mov_b32 s50, {self.args.t2hex}')
        a('v_mov_b32 v13, s50')
        a('v_cmp_nle_f32 vcc, v12, v13')
        a('s_cmp_lg_u64 vcc, 0')
        a(f's_cbranch_scc1 {fail_label}')

    AO, AMD, AMF, AVF, AKF, ASB, ANM = 16, 32, 48, 64, 80, 112, 160
    def at_kread(self, i):
        n = 8 - i; s = self.AKF + 8 * (i % 2)
        self.a(f'ds_read_b128 v[{s}:{s+3}], v{vPA[0]} offset:{n*1536}')
        self.a(f'ds_read_b128 v[{s+4}:{s+7}], v{vPA[1]} offset:{n*1536}')
    def at_vread(self, i):
        n = 8 - i; s = self.AVF + 8 * (i % 2)
        for s2 in range(2):
            for sx in range(2):
                self.a(f'ds_read_b64_tr_b16 v[{s+4*s2+2*sx}:{s+4*s2+2*sx+1}], v{vPA[2]} offset:{n*1536 + s2*768 + sx*384}')
    def at_smfma(self, i, part, cz):
        s = self.AKF + 8 * (i % 2); d = self.ASB + 16 * (i % 2)
        MD, MF, QA, QB = self.AMD, self.AMF, self.QA, self.QB
        if part == 0:
            c = f'v[{MD}:{MD+15}]' if i == 0 else f'v[{MF}:{MF+15}]' if i == 8 else cz
            self.a(f'{MF32} v[{d}:{d+15}], v[{s}:{s+3}], v[{QA}:{QA+3}], {c}')
        else:
            self.a(f'{MF32} v[{d}:{d+15}], v[{s+4}:{s+7}], v[{QB}:{QB+3}], v[{d}:{d+15}]')

    def attn_loop(self, cz, sync):
        a = self.a
        O, VF, SB = self.AO, self.AVF, self.ASB
        def pv(i, k):
            s = VF + 8 * (i % 2) + 4 * k; d = SB + 16 * (i % 2) + 4 * k
            c = '0' if (i == 0 and k == 0) else f'v[{O}:{O+15}]'
            a(f'{MF32} v[{O}:{O+15}], v[{s}:{s+3}], v[{d}:{d+3}], {c}')
        self.at_kread(0); self.at_vread(0)
        a('s_waitcnt lgkmcnt(4)')
        self.at_smfma(0, 0, cz); self.at_smfma(0, 1, cz)
        for i in range(9):
            d = SB + 16 * (i % 2)
            if sync and self.args.fi: self.fstamp(53 + i)
            ex = lambda r0, r1: [a(f'v_exp_f32 v{d+r}, v{d+r}') for r in range(r0, r1)]
            cv = lambda j0, j1: [a(f'v_cvt_pk_bf16_f32 v{d+j}, v{d+2*j}, v{d+2*j+1}') for j in range(j0, j1)]
            if i < 8:
                if sync: sync(i)
                self.at_kread(i + 1)
                ex(0, 4)
                if i > 0: pv(i - 1, 1)
                self.at_vread(i + 1)
                a('s_waitcnt lgkmcnt(4)')
                self.at_smfma(i + 1, 0, cz)
                ex(4, 8)
                if sync and i in (5, 6): self.make_mf(8 * (i - 5), 8 * (i - 5) + 8)
                cv(0, 2)
                ex(8, 12)
                self.at_smfma(i + 1, 1, cz)
                cv(2, 4)
                ex(12, 16)
                pv(i, 0)
                cv(4, 8)
            else:
                ex(0, 4)
                pv(i - 1, 1)
                ex(4, 8)
                cv(0, 2)
                ex(8, 12)
                cv(2, 4)
                a('s_waitcnt lgkmcnt(0)')
                ex(12, 16)
                pv(i, 0)
                cv(4, 8)
                pv(i, 1)

    def attn_true(self):
        a = self.a
        MD, MF, SB, NM = self.AMD, self.AMF, self.ASB, self.ANM
        self.make_mf(0, 16)
        a('v_mov_b32 v10, 0xff7fffff')
        a('v_mov_b32 v11, 0xff7fffff')
        self.at_kread(0)
        for i in range(9):
            if i < 8:
                self.at_kread(i + 1); a('s_waitcnt lgkmcnt(2)')
            else: a('s_waitcnt lgkmcnt(0)')
            self.at_smfma(i, 0, '0'); self.at_smfma(i, 1, '0')
            d = SB + 16 * (i % 2)
            for k in range(0, 16, 4):
                a(f'v_max3_f32 v10, v10, v{d+k}, v{d+k+1}')
                a(f'v_max3_f32 v11, v11, v{d+k+2}, v{d+k+3}')
        a('v_max_f32 v10, v10, v11')
        a('v_mov_b32 v11, v10')
        a('v_permlane32_swap_b32 v10, v11')
        a('v_max_f32 v10, v10, v11')
        for r in range(16):
            a(f'v_sub_f32 v{NM+r}, 0, v10')
            a(f'v_sub_f32 v{MD+r}, v{MD+r}, v10')
            a(f'v_sub_f32 v{MF+r}, v{MF+r}, v10')
        self.attn_loop(f'v[{NM}:{NM+15}]', None)

    def attn_B(self):
        a = self.a
        FB1 = a.newlabel('AT_FB1'); FB2 = a.newlabel('AT_FB2'); FB3 = a.newlabel('AT_FB3'); DONE = a.newlabel('AT_DONE')
        FB2L = a.newlabel('AT_FB2L')
        if self.args.aprio:
            L = self.if_wave('ge', 4)
            a(f's_setprio {self.args.aprio}')
            a.label(L)
        L = self.if_wave('eq', 0)
        LN = a.newlabel('AT_W0N')
        a(f's_cmp_lg_u32 s{sNEED}, 0')
        a(f's_cbranch_scc1 {LN}')
        a('s_call_b64 s[88:89], SUB_S1FIN')
        a.label(LN)
        a.label(L)
        if self.args.force_fallback:
            a(f's_branch {FB1}')
        self.norm_check(FB1)
        def stage1_if_needed():
            D = a.newlabel('S1_D')
            a(f'v_mov_b32 v11, {L_SIG}')
            a('ds_read_b32 v12, v11 offset:16')
            a('s_waitcnt lgkmcnt(0)')
            a('v_readfirstlane_b32 s61, v12')
            a('s_cmp_eq_u32 s61, 0')
            a(f's_cbranch_scc1 {D}')
            a('s_call_b64 s[88:89], SUB_IMPORT1')
            a.label(D)
        self.stage1_if_needed = stage1_if_needed
        def sync_point(i):
            if i == self.args.fli:
                SK = self.if_wave('ge', 4)
                self.light_flag()
                a.label(SK)
            if i == 0:
                SK = self.if_wave('eq', 4)
                stage1_if_needed()
                a.label(SK)
            SK = a.newlabel('AT_SY')
            a(f's_cmp_lg_u32 s{sRB}, {i}')
            a(f's_cbranch_scc1 {SK}')
            self.cnt_wait(L_CNTA)
            self.norm_check(FB2)
            a.label(SK)
            if i in (1, 2, 3, 4):
                SK = self.if_wave('ge', 6)
                if i == 1:
                    LJ = a.newlabel('AT_J0'); a(f's_cmp_eq_u32 s{sJ}, 0'); a(f's_cbranch_scc1 {LJ}')
                    self.i2_flag()
                    a.label(LJ)
                if i == 2:
                    LJ = a.newlabel('AT_J0'); a(f's_cmp_eq_u32 s{sJ}, 0'); a(f's_cbranch_scc1 {LJ}')
                    self.i2_try()
                    LR = a.newlabel('AT_R2'); a(f's_cmp_eq_u32 s{sNEED}, 0'); a(f's_cbranch_scc1 {LR}')
                    self.i2_flag()
                    a.label(LR)
                    a.label(LJ)
                if i == 3:
                    LJ = a.newlabel('AT_J0'); a(f's_cmp_eq_u32 s{sJ}, 0'); a(f's_cbranch_scc1 {LJ}')
                    a(f's_cmp_eq_u32 s{sNEED}, 0'); a(f's_cbranch_scc1 {LJ}')
                    self.i2_try()
                    a.label(LJ)
                if i == 4:
                    a('s_call_b64 s[88:89], SUB_IMPORT2')
                a.label(SK)
            if i == 4 and self.args.aprio:
                SK = self.if_wave('ge', 4)
                a('s_setprio 0')
                a.label(SK)
            if i >= 4:
                SK = a.newlabel('AT_SYB')
                a(f's_cmp_lg_u32 s{sRB}, {i-4}')
                a(f's_cbranch_scc1 {SK}')
                self.cnt_wait(L_CNTB)
                self.norm_check(FB3)
                a.label(SK)
        self.attn_loop('0', sync_point)
        a(f's_branch {DONE}')
        a.label(FB1)
        a('s_waitcnt lgkmcnt(0)')
        L = self.if_wave('ge', 4)
        if self.args.fli >= 0: self.light_flag()
        L4 = self.if_wave('eq', 4)
        stage1_if_needed()
        a.label(L4)
        a.label(L)
        self.cnt_wait(L_CNTA)
        a.label(FB2)
        L = self.if_wave('ge', 4)
        L6 = self.if_wave('ge', 6)
        a('s_waitcnt vmcnt(0)')
        a(f's_mov_b32 s{sNEED}, 1')
        a('s_call_b64 s[88:89], SUB_IMPORT2')
        a.label(L6)
        self.cnt_wait(L_CNTB)
        a.label(L)
        a.label(FB3)
        a('s_setprio 0')
        a('s_waitcnt vmcnt(0) lgkmcnt(0)')
        self.attn_true()
        a.label(DONE)

    def phi(self, r, tA, tB, sel_lo=False):
        a = self.a
        a(f'v_mul_f32 v{tA}, v102, v{r}')
        a(f'v_fma_f32 v{tB}, v101, v{r}, s52')
        a(f'v_exp_f32_e64 v{tA}, v{tA} clamp')
        a(f'v_max_f32 v{tB}, s52, v{tB}')
        if not sel_lo:
            a(f'v_add_f32 v{r}, v{tA}, v{tB}')
        else:
            a(f'v_add_f32 v{tA}, v{tA}, v{tB}')
            a(f'v_mul_f32 v{r}, v101, v{r}')
            a(f'v_cndmask_b32 v{r}, v{r}, v{tA}, {LO}')

    def epi_A(self):
        a = self.a
        A0, A1 = self.ACC0, self.ACC1
        QA, QB = self.QA, self.QB
        a('s_mov_b32 s53, 0x3fb8aa3b')
        a('v_mul_f32 v102, s53, v101')
        a('s_mov_b32 s52, 0x358637bd')
        t = 0
        def ph(r, sel=False):
            nonlocal t
            self.phi(r, 106 + 2 * (t % 4), 107 + 2 * (t % 4), sel); t += 1
        for r in list(range(A0 + 12, A0 + 16)) + list(range(A1, A1 + 4)): ph(r)
        for r in range(A1 + 4, A1 + 12): a(f'v_mul_f32 v{r}, v101, v{r}')
        for r in range(A1 + 12, A1 + 16): ph(r, True)
        pk = {'B0g3': (126, A0+12), 'B1g0': (128, A1), 'B1g1': (130, A1+4), 'B1g2': (132, A1+8), 'B1g3': (134, A1+12)}
        for n, (d, s_) in pk.items():
            a(f'v_cvt_pk_bf16_f32 v{d}, v{s_}, v{s_+1}')
            a(f'v_cvt_pk_bf16_f32 v{d+1}, v{s_+2}, v{s_+3}')
        self.write_img({n: d for n, (d, _) in pk.items()})
        a('s_waitcnt lgkmcnt(0)')
        a('s_barrier')

    def epi_A_q(self):
        a = self.a
        A0 = self.ACC0
        QA, QB = self.QA, self.QB
        a('s_mov_b32 s52, 0x358637bd')
        for t, r in enumerate(range(A0, A0 + 12)): self.phi(r, 106 + 2 * (t % 3), 107 + 2 * (t % 3))
        for j in range(4): a(f'v_cvt_pk_bf16_f32 v{QA+j}, v{A0+2*j}, v{A0+2*j+1}')
        a(f'v_cvt_pk_bf16_f32 v{QB}, v{A0+8}, v{A0+9}')
        a(f'v_cvt_pk_bf16_f32 v{QB+1}, v{A0+10}, v{A0+11}')
        a('v_mov_b32 v13, 0')
        a(f'v_mov_b32 v{QB+2}, 0')
        a(f'v_mov_b32 v{QB+3}, 0')
        for j in range(2): a(f'v_cndmask_b32 v{QB+j}, v13, v{QB+j}, {LO}')

    def linear_attn(self):
        a = self.a
        QA, QB = self.QA, self.QB
        L = self.if_wave('ge', 4)
        if self.args.wosig:
            a(f's_add_u32 s59, s{sLAYER}, 1')
            self.lds_wait('s59')
        if not self.args.nowo: self.dma_wo(0, 4)
        a.label(L)
        LS = a.newlabel('LA_ST')
        a(f's_cmp_lg_u32 s{sLAYER}, 0')
        a(f's_cbranch_scc1 {LS}')
        self.late_touch()
        L = self.if_wave('ge', 1)
        self.stash_load(1)
        a.label(L)
        a.label(LS)
        L = self.if_wave('ge', 1)
        self.epi_A_q()
        a.label(L)
        E = self.if_wave('eq', 0)
        a('v_lshrrev_b32 v11, 5, v1')
        a('v_bfe_u32 v12, v1, 2, 2')
        a('v_lshlrev_b32 v13, 2, v11')
        a('v_add_u32 v12, v12, v13')
        a('v_add_u32 v12, 256, v12')
        a('v_mul_u32_u24 v12, 48, v12')
        a('v_and_b32 v13, 3, v1')
        a('v_bfe_u32 v107, v1, 4, 1')
        a('v_min_u32 v15, 1, v13')
        a('v_lshlrev_b32 v15, 3, v15')
        a('v_add_u32 v15, 32, v15')
        a('v_lshlrev_b32 v14, 3, v13')
        a('v_and_b32 v106, 1, v13')
        a('v_lshlrev_b32 v106, 4, v106')
        a('v_lshrrev_b32 v108, 1, v13')
        a('v_lshlrev_b32 v108, 3, v108')
        a('v_add_u32 v106, v106, v108')
        a('v_cmp_eq_u32 vcc, 1, v107')
        a('v_cndmask_b32 v14, v14, v15, vcc')
        a('v_cndmask_b32 v106, v106, v15, vcc')
        a('v_add_u32 v104, v12, v106')
        a('v_add_u32 v105, v12, v14')
        a(f'v_add_u32 v105, {VIMG}, v105')
        D = 32
        NB = 4
        def rd(s2):
            s = 112 + 8 * (s2 % NB)
            a(f'ds_read_b64_tr_b16 v[{s}:{s+1}], v104 offset:{s2*768}')
            a(f'ds_read_b64_tr_b16 v[{s+2}:{s+3}], v104 offset:{s2*768+384}')
            a(f'ds_read_b64_tr_b16 v[{s+4}:{s+5}], v105 offset:{s2*768}')
            a(f'ds_read_b64_tr_b16 v[{s+6}:{s+7}], v105 offset:{s2*768+384}')
        for s2 in range(NB - 1): rd(s2)
        for s2 in range(16):
            if s2 + NB - 1 < 16: rd(s2 + NB - 1)
            pend = min(NB - 1, 15 - s2)
            a(f's_waitcnt lgkmcnt({4*pend})')
            s = 112 + 8 * (s2 % NB)
            a(f'{MF32} v[{D}:{D+15}], v[{s}:{s+3}], v[{s+4}:{s+7}], {"0" if s2 == 0 else f"v[{D}:{D+15}]"}')
        (None if self.args.fq else self.fstamp(53))
        a(f's_lshr_b32 s50, s{sLAYER}, 1')
        a(f's_mul_i32 s50, s50, {KVP_SZ}')
        a(f's_add_u32 s50, s50, {WS_KVP}')
        a(f's_lshl_b32 s51, s{sH}, 15')
        a('s_add_u32 s50, s50, s51')
        a(f's_lshl_b32 s51, s{sJ}, 12')
        a('s_add_u32 s51, s51, s50')
        a(f's_add_u32 s53, s{sLAYER}, 17')
        a(f's_add_u32 s53, s53, s{sNONCE}')
        for g in range(3):
            b = 48 + 4 * g
            a(f'v_cvt_pk_bf16_f32 v{b}, v{D+4*g}, v{D+4*g+1}')
            a(f'v_cvt_pk_bf16_f32 v{b+1}, v{D+4*g+2}, v{D+4*g+3}')
            a(f'v_mov_b32 v{b+2}, s53')
            a(f'v_mov_b32 v{b+3}, s53')
        for g in range(3):
            b = 48 + 4 * g
            a(f'buffer_store_dwordx4 v[{b}:{b+3}], v2, {srd(S_WS)}, s51 offen offset:{g*1024} sc1')
        (None if self.args.fq else self.fstamp(54))
        IB = [16, 28, 40, 52, 64, 76, 104, 116]
        PL = a.newlabel('KV_POLL'); PD = a.newlabel('KV_DONE')
        self.epi_A_q()
        if not self.args.noprepoll:
            PP = a.newlabel('KV_PP'); PPD = a.newlabel('KV_PPD')
            a('v_and_b32 v10, 7, v1')
            a('v_lshlrev_b32 v10, 12, v10')
            a('v_add_u32 v10, 2048, v10')
            a('s_mov_b32 s60, 0')
            a.label(PP)
            a(f'buffer_load_dwordx4 v[88:91], v10, {srd(S_WS)}, s50 offen sc1')
            a('s_waitcnt vmcnt(0)')
            a('v_mov_b32 v92, s53')
            a('v_bitop3_b32 v88, v90, v91, v92 bitop3:0x7e')
            a('v_cmp_ne_u32 vcc, 0, v88')
            a('s_and_b32 s61, vcc_lo, 0xff')
            a('s_cmp_eq_u32 s61, 0')
            a(f's_cbranch_scc1 {PPD}')
            a('s_add_u32 s60, s60, 1')
            a(f's_cmp_lt_u32 s60, {self.args.spin}')
            a(f's_cbranch_scc1 {PP}')
            a.label(PPD)
        a('s_mov_b32 s60, 0')
        a.label(PL)
        a('s_mov_b32 s54, s50')
        for j in range(8):
            for g in range(3):
                r = IB[j] + 4 * g
                a(f'buffer_load_dwordx4 v[{r}:{r+3}], v2, {srd(S_WS)}, s54 offen offset:{g*1024} sc1')
            if j < 7: a('s_add_u32 s54, s54, 4096')
        a('v_mov_b32 v88, 0')
        a('v_mov_b32 v89, s53')
        for j in range(8):
            a(f's_waitcnt vmcnt({3*(7-j)})')
            r = IB[j]
            a(f'v_bitop3_b32 v90, v{r+2}, v{r+3}, v89 bitop3:0x7e')
            a(f'v_bitop3_b32 v91, v{r+6}, v{r+7}, v89 bitop3:0x7e')
            a(f'v_bitop3_b32 v92, v{r+10}, v{r+11}, v89 bitop3:0x7e')
            a('v_or3_b32 v88, v88, v90, v91')
            a('v_or_b32 v88, v88, v92')
        a('v_cmp_ne_u32 vcc, 0, v88')
        a('s_cmp_eq_u64 vcc, 0')
        a(f's_cbranch_scc1 {PD}')
        a(f's_cmp_lg_u32 s{sDEAD}, 0')
        a(f's_cbranch_scc1 {PD}')
        a('s_add_u32 s60, s60, 1')
        a(f's_cmp_lt_u32 s60, {self.args.spin}')
        a(f's_cbranch_scc1 {PL}')
        a(f's_mov_b32 s{sDEAD}, 1')
        a.label(PD)
        (None if self.args.fq else self.fstamp(55))
        a(f's_add_u32 s59, s{sLAYER}, 1')
        self.lds_signal('s59')
        a('v_mov_b32 v88, 0x00003f80')
        a('v_mov_b32 v89, 0x3f800000')
        acc = [128 + k for k in range(12)]
        for k in range(12): a(f'v_mov_b32 v{acc[k]}, 0')
        for j in range(8):
            for g in range(3):
                for h2 in range(2):
                    src = IB[j] + 4 * g + h2
                    a(f'v_dot2c_f32_bf16 v{acc[4*g + 2*h2]}, v{src}, v88')
                    a(f'v_dot2c_f32_bf16 v{acc[4*g + 2*h2 + 1]}, v{src}, v89')
        (None if self.args.fq else self.fstamp(56))
        for j in range(6): a(f'v_cvt_pk_bf16_f32 v{64+j}, v{acc[2*j]}, v{acc[2*j+1]}')
        LS0 = a.newlabel('LA_ST0')
        a(f's_cmp_lg_u32 s{sLAYER}, 0')
        a(f's_cbranch_scc1 {LS0}')
        self.stash_load(1)
        a.label(LS0)
        a(f'ds_write_b128 v2, v[64:67] offset:{L_KV}')
        a('v_lshlrev_b32 v13, 3, v1')
        a(f'ds_write_b64 v13, v[68:69] offset:{L_KV+1024}')
        a.label(E)
        a('s_waitcnt lgkmcnt(0)')
        a('s_barrier')
        a('v_lshlrev_b32 v13, 3, v1')
        a(f'ds_read_b128 v[64:67], v2 offset:{L_KV}')
        a(f'ds_read_b64 v[68:69], v13 offset:{L_KV+1024}')
        a('v_mov_b32 v70, 0\nv_mov_b32 v71, 0')
        a('s_waitcnt lgkmcnt(0)')
        a(f'{MF32} v[16:31], v[64:67], v[{QA}:{QA+3}], 0')
        a(f'{MF32} v[16:31], v[68:71], v[{QB}:{QB+3}], v[16:31]')

    def o_addr_lane(self):
        a = self.a
        a('v_bfe_u32 v11, v1, 4, 1')
        a(f'v_mul_u32_u24 v11, {OBS}, v11')
        a('v_and_b32 v12, 15, v1')
        a('v_lshlrev_b32 v12, 4, v12')
        a('v_add_u32 v11, v11, v12')
        a('v_lshrrev_b32 v12, 5, v1')
        a(f's_mul_i32 s51, s{sH}, 5')
        a('v_add_u32 v12, s51, v12')
        def qoff(dst, q):
            a(f'v_lshrrev_b32 v14, 3, {q}')
            a(f'v_lshlrev_b32 {dst}, 10, v14')
            a(f'v_bfe_u32 v14, {q}, 2, 1')
            a('v_lshlrev_b32 v14, 9, v14')
            a(f'v_add_u32 {dst}, {dst}, v14')
            a(f'v_and_b32 v14, 1, {q}')
            a('v_lshlrev_b32 v14, 8, v14')
            a(f'v_add_u32 {dst}, {dst}, v14')
            a(f'v_bfe_u32 v14, {q}, 1, 1')
            a('v_lshlrev_b32 v14, 3, v14')
            a(f'v_add_u32 {dst}, {dst}, v14')
            a(f'v_add_u32 {dst}, {dst}, v11')
        qoff('v40', 'v12')
        a('v_add_u32 v13, 2, v12')
        qoff('v41', 'v13')
        a('s_add_u32 s51, s51, 4')
        a('v_mov_b32 v13, s51')
        qoff('v42', 'v13')

    def o_addr(self):
        a = self.a
        a(f's_lshl_b32 s50, s{sJ}, 4')
        a(f's_lshl_b32 s51, s{sRB}, 1')
        a('s_add_u32 s50, s50, s51')
        a(f's_mul_i32 s50, s50, {OBS}')
        a(f's_add_u32 s50, s50, s{sOF}')

    def finalize_o(self, eps):
        a = self.a
        self.o_addr()
        a(f'v_cndmask_b32 v10, v24, v28, {LO}')
        if eps: a('v_add_f32 v10, 0x358637bd, v10')
        a('v_rcp_f32 v10, v10')
        for r in range(12): a(f'v_mul_f32 v{16+r}, v10, v{16+r}')
        for j in range(6): a(f'v_cvt_pk_bf16_f32 v{32+j}, v{16+2*j}, v{17+2*j}')
        a(f'buffer_store_dwordx2 v[32:33], v{vPO[0]}, {srd(S_WS)}, s50 offen')
        a(f'buffer_store_dwordx2 v[34:35], v{vPO[1]}, {srd(S_WS)}, s50 offen')
        a('s_mov_b64 exec, 0xffffffff')
        a(f'buffer_store_dwordx2 v[36:37], v{vPO[2]}, {srd(S_WS)}, s50 offen')
        a('s_mov_b64 exec, -1')
        a('s_waitcnt vmcnt(0)')

    def qkv_pre(self):
        a = self.a
        self.set_layer_bases()
        a(f's_lshl_b32 s50, s{sJ}, 3')
        a(f's_add_u32 s50, s50, s{sRB}')
        a(f's_lshl_b32 s85, s50, 11')
        a(f's_add_u32 s85, s85, s{sST}')
        a(f's_mul_i32 s84, s50, {RBS}')
        a(f's_add_u32 s84, s84, s{sXF}')

    def wo_pre(self):
        a = self.a
        a(f's_lshr_b32 s50, s{sH}, 3')
        a(f's_and_b32 s51, s{sH}, 7')
        a(f's_and_b32 s52, s{sW}, 1')
        a(f's_lshr_b32 s53, s{sW}, 1')
        a(f's_lshl_b32 s54, s{sJ}, 4')
        a('s_lshl_b32 s55, s50, 2')
        a('s_add_u32 s54, s54, s55')
        a('s_lshl_b32 s55, s52, 1')
        a('s_add_u32 s54, s54, s55')
        a(f's_mul_i32 s55, s54, {OBS}')
        a('s_mul_i32 s56, s53, 10240')
        a('s_add_u32 s55, s55, s56')
        a(f's_add_u32 s55, s55, s{sOF}')
        a(f's_add_u32 s56, s55, {OBS}')
        a('s_cmp_eq_u32 s53, 0')
        a('s_cselect_b32 s57, s55, s56')
        a('s_cselect_b32 s56, s56, s55')
        a('s_mov_b32 s55, s57')
        a('s_mov_b32 s84, s51\ns_mov_b32 s85, s53\ns_mov_b32 s86, s54\ns_mov_b32 s87, s55\ns_mov_b32 s98, s56')

    def wo_phase(self):
        a = self.a
        OFR = 16; WF = 96; AC = 48; XOR_ = [88, 90, 92, 94, 136]
        HELP = a.newlabel('WO_HELP')
        a(f's_cmp_ge_u32 s{sW}, 4')
        a(f's_cbranch_scc1 {HELP}')
        a('s_mov_b32 s51, s84\ns_mov_b32 s53, s85\ns_mov_b32 s54, s86\ns_mov_b32 s55, s87\ns_mov_b32 s56, s98')
        vq = VQ()
        def oload(i):
            for aa in range(2):
                r = OFR + 8 * (i % 4) + 4 * aa
                sb = 's55' if aa == 0 else 's56'
                a(f'buffer_load_dwordx4 v[{r}:{r+3}], v2, {srd(S_WS)}, {sb} offen offset:{(i % 4) * 1024} sc1')
                vq.push(('o', i))
            if i % 4 == 3:
                a('s_add_u32 s55, s55, 4096\ns_add_u32 s56, s56, 4096')
        PF = 3
        for i in range(PF): oload(i)
        (self.fstamp(59) if self.args.flayer else None)
        a('s_mul_i32 s60, s53, 51200')
        a(f's_add_u32 s60, s60, {R_O}')
        a('v_add_u32 v11, s60, v2')
        def wrd1(i, c):
            s = WF + 20 * (i % 2)
            a(f'ds_read_b128 v[{s+4*c}:{s+4*c+3}], v11 offset:{(i*5 + c)*1024}')
        for c in range(5): wrd1(0, c)
        a('s_add_u32 s57, s54, s53')
        a('s_lshr_b32 s58, s57, 1')
        a(f's_mul_i32 s58, s58, {RBS}')
        a('s_mul_i32 s59, s51, 5120')
        a('s_add_u32 s58, s58, s59')
        a('s_and_b32 s59, s57, 1')
        a('s_lshl_b32 s59, s59, 8')
        a('s_add_u32 s58, s58, s59')
        a(f's_add_u32 s59, s58, s{sXF}')
        a('v_lshrrev_b32 v10, 5, v1')
        a('v_lshlrev_b32 v10, 9, v10')
        a('v_and_b32 v12, 15, v1')
        a('v_lshlrev_b32 v12, 4, v12')
        a('v_add_u32 v10, v10, v12')
        a('v_bfe_u32 v12, v1, 4, 1')
        a('v_lshlrev_b32 v12, 3, v12')
        a('v_add_u32 v10, v10, v12')
        (self.fstamp(60) if self.args.flayer else None)
        for i in range(10):
            s = WF + 20 * (i % 2)
            a(f's_waitcnt vmcnt({vq.cnt(("o", i))})')
            if i == 1 and self.args.flayer: self.fstamp(61)
            for c in range(5):
                lg = 4 if i < 9 else (4 - c)
                a(f's_waitcnt lgkmcnt({lg})')
                for aa in range(2):
                    d = AC + 20 * aa + 4 * c; o = OFR + 8 * (i % 4) + 4 * aa
                    cc = '0' if i == 0 else f'v[{d}:{d+3}]'
                    a(f'{MF16} v[{d}:{d+3}], v[{s+4*c}:{s+4*c+3}], v[{o}:{o+3}], {cc}')
                if i < 9: wrd1(i + 1, c)
                if c == 1 and i + PF < 10: oload(i + PF)
                if c == 3 and i >= 5:
                    cc = i - 5
                    if cc == 4: a('s_add_u32 s59, s59, 4096')
                    a(f'buffer_load_dwordx2 v[{XOR_[cc]}:{XOR_[cc]+1}], v10, {srd(S_WS)}, s59 offen offset:{(cc % 4) * 1024} sc1')
                    vq.push('res')
        (self.fstamp(62) if self.args.flayer else None)
        a(f's_mul_i32 s60, s{sW}, 5120')
        a(f's_add_u32 s60, s60, {SCR}')
        a('v_add_u32 v12, s60, v2')
        for c in range(5): a(f'ds_write_b128 v12, v[{AC+20+4*c}:{AC+20+4*c+3}] offset:{c*1024}')
        a('s_waitcnt vmcnt(0)')
        for c in range(5):
            x0, x1 = XOR_[c], XOR_[c] + 1
            b = 100 + 4 * c
            a(f'v_lshlrev_b32 v{b}, 16, v{x0}\nv_and_b32 v{b+1}, 0xffff0000, v{x0}\nv_lshlrev_b32 v{b+2}, 16, v{x1}\nv_and_b32 v{b+3}, 0xffff0000, v{x1}')
            for r in range(4): a(f'v_add_f32 v{AC+4*c+r}, v{AC+4*c+r}, v{b+r}')
        a('s_waitcnt lgkmcnt(0)')
        a.label(HELP)
        a('s_barrier')
        self.stamp(9, True)
        H2 = a.newlabel('WO_H2'); H3 = a.newlabel('WO_H3')
        a(f's_cmp_ge_u32 s{sW}, 4')
        a(f's_cbranch_scc1 {H2}')
        a(f's_xor_b32 s60, s{sW}, 2')
        a('s_mul_i32 s60, s60, 5120')
        a(f's_add_u32 s60, s60, {SCR}')
        a('v_add_u32 v12, s60, v2')
        for c in range(5): a(f'ds_read_b128 v[{16+4*c}:{19+4*c}], v12 offset:{c*1024}')
        a('s_waitcnt lgkmcnt(0)')
        for c in range(5):
            for r in (0, 2): a(f'v_pk_add_f32 v[{AC+4*c+r}:{AC+4*c+r+1}], v[{AC+4*c+r}:{AC+4*c+r+1}], v[{16+4*c+r}:{16+4*c+r+1}]')
            a(f'v_cvt_pk_bf16_f32 v{120+2*c}, v{AC+4*c}, v{AC+4*c+1}')
            a(f'v_cvt_pk_bf16_f32 v{121+2*c}, v{AC+4*c+2}, v{AC+4*c+3}')
        LAST = a.newlabel('WO_LAST')
        a(f's_cmp_eq_u32 s{sLAYER}, 3')
        a(f's_cbranch_scc1 {LAST}')
        a(f's_add_u32 s59, s58, s{sXFN}')
        for c in range(5):
            if c == 4: a('s_add_u32 s59, s59, 4096')
            a(f'buffer_store_dwordx2 v[{120+2*c}:{121+2*c}], v10, {srd(S_WS)}, s59 offen offset:{(c % 4) * 1024}')
        a(f'v_pk_add_f32 v[36:37], v[{AC}:{AC+1}], v[{AC+2}:{AC+3}]')
        a(f'v_pk_mul_f32 v[38:39], v[{AC}:{AC+1}], v[{AC}:{AC+1}]')
        a(f'v_pk_fma_f32 v[38:39], v[{AC+2}:{AC+3}], v[{AC+2}:{AC+3}], v[38:39]')
        for k in range(4, 20, 2):
            a(f'v_pk_add_f32 v[36:37], v[36:37], v[{AC+k}:{AC+k+1}]')
            a(f'v_pk_fma_f32 v[38:39], v[{AC+k}:{AC+k+1}], v[{AC+k}:{AC+k+1}], v[38:39]')
        a('v_add_f32 v40, v36, v37')
        a('v_add_f32 v41, v38, v39')
        a('v_mov_b32 v42, v40\nv_mov_b32 v43, v41')
        a('v_permlane16_swap_b32 v40, v42')
        a('v_permlane16_swap_b32 v41, v43')
        a('v_add_f32 v40, v40, v42\nv_add_f32 v41, v41, v43')
        a('v_mov_b32 v42, v40\nv_mov_b32 v43, v41')
        a('v_permlane32_swap_b32 v40, v42')
        a('v_permlane32_swap_b32 v41, v43')
        a('v_add_f32 v40, v40, v42\nv_add_f32 v41, v41, v43')
        a('s_lshr_b32 s60, s57, 1')
        a('s_lshl_b32 s60, s60, 11')
        a('s_and_b32 s61, s57, 1')
        a('s_lshl_b32 s61, s61, 8')
        a('s_add_u32 s60, s60, s61')
        a('s_bfe_u32 s61, s51, 0x10001')
        a('s_lshl_b32 s61, s61, 10')
        a('s_add_u32 s60, s60, s61')
        a('s_lshr_b32 s61, s51, 2')
        a('s_lshl_b32 s61, s61, 9')
        a('s_add_u32 s60, s60, s61')
        a('s_and_b32 s61, s51, 1')
        a('s_lshl_b32 s61, s61, 3')
        a('s_add_u32 s60, s60, s61')
        a(f's_add_u32 s60, s60, s{sSTN}')
        a('v_lshlrev_b32 v42, 4, v1')
        a('s_mov_b64 exec, 0xffff')
        a(f'buffer_store_dwordx2 v[40:41], v42, {srd(S_WS)}, s60 offen')
        a('s_mov_b64 exec, -1')
        a(f's_branch {H3}')
        a.label(LAST)
        a('s_mul_i32 s60, s57, 20480')
        a('s_mul_i32 s61, s51, 160')
        a('s_add_u32 s60, s60, s61')
        a('v_and_b32 v42, 15, v1')
        a('v_mul_u32_u24 v42, 1280, v42')
        a('v_lshrrev_b32 v43, 4, v1')
        a('v_lshlrev_b32 v43, 3, v43')
        a('v_add_u32 v42, v42, v43')
        for c in range(5):
            if self.args.e_noout: continue
            a(f'buffer_store_dwordx2 v[{120+2*c}:{121+2*c}], v42, {srd(S_OUT)}, s60 offen offset:{c*32} {self.args.outflag}')
        a(f's_branch {H3}')
        a.label(H2)
        self.stash_writeback()
        a('s_waitcnt lgkmcnt(0)')
        a.label(H3)

    def set_layer_bases(self):
        a = self.a
        if self.args.noreuse:
            a(f's_mul_i32 s50, s{sLAYER}, {XF_SZ}')
            a(f's_add_u32 s{sXF}, s50, {WS_XF}')
            a(f's_add_u32 s{sXFN}, s{sXF}, {XF_SZ}')
            a(f's_add_u32 s{sOF}, s50, {WS_OF}')
            a(f's_mul_i32 s50, s{sLAYER}, {ST_SZ}')
            a(f's_add_u32 s{sST}, s50, {WS_ST}')
            a(f's_add_u32 s{sSTN}, s{sST}, {ST_SZ}')
            return
        a(f's_and_b32 s51, s{sLAYER}, 1')
        a(f's_mul_i32 s50, s51, {XF_SZ}')
        a(f's_add_u32 s{sXF}, s50, {WS_XF}')
        a(f's_sub_u32 s{sXFN}, {2*WS_XF + XF_SZ}, s{sXF}')
        a(f's_mov_b32 s{sOF}, {WS_OF}')
        a(f's_mul_i32 s50, s51, {ST_SZ}')
        a(f's_add_u32 s{sST}, s50, {WS_ST}')
        a(f's_sub_u32 s{sSTN}, {2*WS_ST + ST_SZ}, s{sST}')

    def build(self):
        a = self.a
        args = self.args
        for _ in range(args.shift): a('s_nop 0')
        if args.prof: a('v_mov_b32 v9, 0')
        self.stamp(0)
        if args.prof:
            a('s_memtime s[100:101]')
            a('s_waitcnt lgkmcnt(0)')
        self.entry()
        self.p0()
        self.stamp(1)
        def between0():
            self.colsum_raw_others()
        self.first_sync()
        self.setup_persistent()
        self.stamp(2)
        a('s_waitcnt vmcnt(0)')
        self.fstamp(59)
        a('v_and_b32 v12, 31, v1')
        a('v_lshlrev_b32 v12, 2, v12')
        a('s_mov_b64 exec, 0xffffffff')
        a(f'ds_add_f32 v12, v160 offset:{L_CS}')
        a(f'ds_add_f32 v12, v161 offset:{L_CS+128}')
        a('s_mov_b64 exec, -1')
        self.qkv_pre()
        a('s_waitcnt lgkmcnt(0)')
        a('s_barrier')
        a(f'ds_read_b32 v{vCSA}, v12 offset:{L_CS}')
        a(f'ds_read_b32 v{vCSA+1}, v12 offset:{L_CS+128}')
        a(f'v_mov_b32 v11, {L_MODE}')
        a('ds_read_b32 v10, v11')
        a('s_waitcnt lgkmcnt(0)')
        a(f'v_readfirstlane_b32 s{sMODE}, v10')
        a.label('L_LAYER')
        self.qkv_main(packed=True)
        self.ln_fix(packed=True)
        L0 = a.newlabel('L0_CHK')
        a(f's_cmp_lg_u32 s{sLAYER}, 0')
        a(f's_cbranch_scc1 {L0}')
        self.stashA_from_lds()
        L = self.if_wave('eq', 0)
        self.check_packs()
        a.label(L)
        a.label(L0)
        self.stamp(3, True)
        a.label('L_AFTERQKV')
        if args.stop == 'qkv':
            SK = a.newlabel('DBG')
            a(f's_cmp_lg_u32 s{sLAYER}, {args.layer}')
            a(f's_cbranch_scc1 {SK}')
            for r in range(16, 48): a(f'v_mul_f32 v{r}, v101, v{r}')
            self.dbg_dump(list(range(16, 48, 4)), 0)
            a('s_branch L_END')
            a.label(SK)
        a(f's_bitcmp1_b32 s{sLAYER}, 0')
        a('s_cbranch_scc1 L_BLAYER')
        self.epi_A()
        self.stamp(4, True)
        self.linear_attn()
        self.stamp(6, True)
        self.finalize_o(eps=True)
        LC = a.newlabel('CSB')
        a(f's_cmp_lg_u32 s{sLAYER}, 0')
        a(f's_cbranch_scc1 {LC}')
        self.stash_cs_sum(1)
        a.label(LC)
        a('s_branch L_ODONE')
        a.label('L_BLAYER')
        self.epi_B()
        L = self.if_wave('ge', 4)
        self.epi_B_q()
        a.label(L)
        self.stamp(4, True)
        self.cstamp(57)
        self.attn_B()
        self.cstamp(59)
        self.stamp(6, True)
        self.finalize_o(eps=False)
        L = self.if_wave('lt', 4)
        self.dma_wo(1, 0)
        a.label(L)
        self.wo_pre()
        self.stamp(7, True)
        self.lbar(poller=4, between=lambda: a('s_waitcnt vmcnt(0)'))
        a('s_branch L_BAR1DONE')
        a.label('L_ODONE')
        self.wo_pre()
        self.stamp(7, True)
        self.lbar(between=lambda: a('s_waitcnt vmcnt(0)'))
        a.label('L_BAR1DONE')
        self.stamp(8, True)
        if args.stop == 'o':
            a(f's_cmp_eq_u32 s{sLAYER}, {args.layer}')
            a('s_cbranch_scc1 L_END')
        self.wo_phase()
        self.stamp(10, True)
        a(f's_cmp_eq_u32 s{sLAYER}, 3')
        a('s_cbranch_scc1 L_FIN')
        L = self.if_wave('lt', 4)
        a('s_waitcnt vmcnt(0)')
        a.label(L)
        self.stamp(11, True)
        a(f's_add_u32 s{sLAYER}, s{sLAYER}, 1')
        self.qkv_pre()
        def bw2():
            L = self.if_wave('lt', 4)
            self.stash_writeback_next()
            a('s_waitcnt lgkmcnt(0)')
            a.label(L)
        self.lbar(between=bw2, poller=4)
        self.stamp(0, True)
        if args.stop == 'x':
            a(f's_cmp_eq_u32 s{sLAYER}, {args.layer + 1}')
            a('s_cbranch_scc1 L_END')
        a('s_branch L_LAYER')
        a.label('L_FIN')
        a('s_waitcnt vmcnt(0)')
        self.stamp(51)
        if args.prof:
            a('s_memtime s[82:83]')
            a('s_waitcnt lgkmcnt(0)')
            a('s_sub_u32 s82, s82, s100')
            a('v_writelane_b32 v9, s82, 52')
        self.stamp_out()
        a('L_END:')
        a('s_endpgm')
        a.label('SUB_IMPORT1')
        a('s_nop 4')
        self.s1_issue(None)
        a.label('SUB_S1FIN')
        a('s_nop 4')
        self.s1_finish()
        a('s_nop 4')
        a('s_setpc_b64 s[88:89]')
        a.label('SUB_IMPORT2')
        a('s_nop 4')
        self.i2_finish()
        a('s_nop 4')
        a('s_setpc_b64 s[88:89]')
        a.label('L_CODE_END')
        body = a.finalize(verbose=True)
        hdr = open("header.txt").read() + f"""; Persistent fused kernel (written with my own generator script, gen/gen44.py): 256 workgroups x 8 waves, one per CU.
; Group j = wg&7 owns rows [256j,256j+256); member h = wg>>3 owns head h (QKV / attention) and a 64x80 tile of the output projection.
; Hand-offs inside a group go through L2 (plain stores + flags) when all members report the same XCC id, otherwise
; through write-back / invalidate fences; hand-offs between groups use write-through stores and tagged flags.
; All flags carry a per-launch nonce published through d_debug, so stale workspace contents are never accepted.
; Softmax: exp2 without max subtraction only when |q|max*|k|max proves |score| <= 56; otherwise a true-max path runs.
; @launch grid=(256,1,1) block=(512,1,1) lds={LDS_BYTES}
.amdgcn_target "amdgcn-amd-amdhsa--gfx950"
.text
.globl {KNAME}
.p2align 8
.type {KNAME},@function
{KNAME}:
"""
        ftr = f""".section .rodata,"a"
.p2align 6
.amdhsa_kernel {KNAME}
  .amdhsa_next_free_vgpr 256
  .amdhsa_next_free_sgpr 102
  .amdhsa_accum_offset 256
  .amdhsa_group_segment_fixed_size 0
  .amdhsa_kernarg_size 72
  .amdhsa_user_sgpr_count 2
  .amdhsa_user_sgpr_kernarg_segment_ptr 1
  .amdhsa_system_sgpr_workgroup_id_x 1
  .amdhsa_float_denorm_mode_32 3
  .amdhsa_float_denorm_mode_16_64 3
.end_amdhsa_kernel
"""
        return hdr + body + ftr

    def between0(self):
        pass

    def first_sync(self):
        a = self.a
        a('s_barrier')
        a(f's_add_u32 s{sEPOCH}, s{sEPOCH}, 1')
        L = self.if_wave('eq', 0)
        self.stamp(60)
        self.check_hello()
        self.stamp(61)
        G1 = a.newlabel('LB_GEN'); G2 = a.newlabel('LB_ST')
        a(f's_lshl_b32 s50, s{sJ}, 8')
        a(f's_add_u32 s50, s50, {WS_LFLAG}')
        a(f's_lshl_b32 s51, s{sH}, 2')
        a('s_add_u32 s51, s51, s50')
        a(f's_add_u32 s62, s{sEPOCH}, s{sNONCE}')
        a('v_mov_b32 v10, s62')
        a('v_mov_b32 v11, 0')
        a(f's_cmp_lg_u32 s{sMODE}, 0')
        a(f's_cbranch_scc1 {G1}')
        a('s_mov_b64 exec, 1')
        a(f'buffer_store_dword v10, v11, {srd(S_WS)}, s51 offen')
        a('s_mov_b64 exec, -1')
        a(f's_branch {G2}')
        a.label(G1)
        a('buffer_wbl2 sc1')
        a('s_waitcnt vmcnt(0)')
        a('s_mov_b64 exec, 1')
        a(f'buffer_store_dword v10, v11, {srd(S_WS)}, s51 offen sc1')
        a('s_mov_b64 exec, -1')
        a.label(G2)
        a(f'v_mov_b32 v10, s{sMODE}')
        a(f'v_mov_b32 v11, {L_MODE}')
        a('ds_write_b32 v11, v10')
        a('s_waitcnt lgkmcnt(0)')
        a.label(L)
        L = self.if_wave('ge', 1)
        L23 = a.newlabel('FS_23')
        a(f's_sub_u32 s50, s{sW}, 2')
        a('s_cmp_lt_u32 s50, 2')
        a(f's_cbranch_scc1 {L23}')
        a.label(L)
        self.poll_packA()
        self.stashA_load()
        LX = a.newlabel('FS_X')
        a(f's_branch {LX}')
        a.label(L23)
        self.poll_packA()
        self.stashA_load()
        self.p0_packs()
        a.label(LX)
        L = self.if_wave('eq', 0)
        a(f's_lshl_b32 s50, s{sJ}, 8')
        a(f's_add_u32 s50, s50, {WS_LFLAG}')
        a('v_and_b32 v11, 31, v1')
        a('v_lshlrev_b32 v11, 2, v11')
        self.poll('v11', 's50', 32, f's{sEPOCH}')
        G3 = a.newlabel('LB_NOINV')
        a(f's_cmp_eq_u32 s{sMODE}, 0')
        a(f's_cbranch_scc1 {G3}')
        a('buffer_inv sc1')
        a('s_waitcnt vmcnt(0)')
        a.label(G3)
        self.stamp(62)
        a.label(L)

if __name__ == '__main__':
    import struct
    ap = argparse.ArgumentParser()
    ap.add_argument('-o', default='out.s')
    ap.add_argument('--stop', default='')
    ap.add_argument('--layer', type=int, default=0)
    ap.add_argument('--spin', type=int, default=20000)
    ap.add_argument('--flayer', type=int, default=1)
    ap.add_argument('--cyc', action='store_true')
    ap.add_argument('--prof', action='store_true')
    ap.add_argument('--noreuse', action='store_true')
    ap.add_argument('--wosig', action='store_true')
    ap.add_argument('--nocodepf', action='store_true')
    ap.add_argument('--fq', action='store_true')
    ap.add_argument('--xring', type=int, default=8)
    ap.add_argument('--prio', type=int, default=0)
    ap.add_argument('--kvsleep', type=int, default=6)
    ap.add_argument('--nowo', action='store_true')
    ap.add_argument('--fb', action='store_true')
    ap.add_argument('--npre', type=int, default=8)
    ap.add_argument('--clk', action='store_true')
    ap.add_argument('--e_now', action='store_true')
    ap.add_argument('--e_m16', action='store_true')
    ap.add_argument('--e_nox', action='store_true')
    ap.add_argument('--fe', action='store_true')
    ap.add_argument('--maxtry', type=int, default=2)
    ap.add_argument('--noprepoll', action='store_true')
    ap.add_argument('--e_half', action='store_true')
    ap.add_argument('--e_dummy', action='store_true')
    ap.add_argument('--fi', action='store_true')
    ap.add_argument('--e_noout', action='store_true')
    ap.add_argument('--outflag', default='')
    ap.add_argument('--permute', action='store_true')
    ap.add_argument('--shift', type=int, default=0)
    ap.add_argument('--pfast', type=int, default=1)
    ap.add_argument('--psleep', type=int, default=1)
    ap.add_argument('--aprio', type=int, default=1)
    ap.add_argument('--fli', type=int, default=0)
    ap.add_argument('--notouch', action='store_true')
    ap.add_argument('--force_generic', action='store_true')
    ap.add_argument('--force_fallback', action='store_true')
    ap.add_argument('--T', type=float, default=56.0)
    args = ap.parse_args()
    args.t2hex = hex(struct.unpack('<I', struct.pack('<f', args.T * args.T))[0])
    g = G(args)
    open(args.o, 'w').write(g.build())
```

```python
import sys, argparse
sys.path.insert(0, 'gen')
from asmlib import Asm

KNAME = "interleave_layers__linear_attn_block__sliding_block__prompt_kernel"

WS_LFLAG = 0x0000
WS_XFLAG = 0x4000
WS_XF = 0x100000;  XF_SZ = 0x2B0000
RBS = 41984
OBS = 21504
WS_OF = 0x1000000
WS_ST = 0x2000000; ST_SZ = 0x20000
WS_KVX = 0x2200000; KVX_SZ = 0x600000
WS_KVP = 0x3000000; KVP_SZ = 0x100000
WS_PW = 0x4000000; PW_SZ = 81920
WS_PCS = 0x4800000
WS_PO = 0x4900000; PO_SZ = 102400
WS_DBG = 0x8000000

KIMG, VIMG = 0, 24576
L_MISC = 49152
L_CS = L_MISC + 1024
L_KN = L_MISC + 2048
L_KV = L_MISC + 4096
L_MODE = 61424
R_O = 61440
PWL = 81920
RW0 = 71424
WK, WQ, WV = RW0, RW0 + 30768, RW0 + 61536
TK, TQ, TV = 0, 4096, 8192
TBOFF = 12288
SCR = 0
TO = 24576
L_SIG = L_MISC + 3072
L_CNTA = L_MISC + 3080
L_CNTB = L_MISC + 3084
L_MD = L_MISC + 6144
LDS_BYTES = 163840

S_WS, S_X0, S_WQA, S_WOA, S_WQB, S_WOB, S_OUT, S_DBG = 4, 8, 12, 16, 20, 24, 28, 32
sJ, sH, sW, sMODE, sDEAD, sEPOCH, sLAYER, sRB = 36, 37, 38, 39, 40, 41, 42, 43
sLO32 = 44
sXF, sOF, sST = 46, 47, 48
sXCC = 49
sXFN, sSTN = 90, 91
sNONCE = 93
sNEED = 96
sSH = 97
WS_GXCC = 0x2000
WS_XKN = 0x8000
L_NONCE = 61428
LO = f's[{sLO32}:{sLO32+1}]'

def srd(n): return f's[{n}:{n+3}]'

QUADS = {
    0: [(('q', 0), ('q', 1)), (('q', 2), ('q', 3)), (('q', 4), ('q', 5)), (('k', 4), ('k', 3))],
    1: [(('k', 0), ('k', 1)), (('v', 0), ('v', 1)), (('v', 2), ('v', 3)), (('k', 2), ('v', 4))],
}
def quad_off(sec, i, bases):
    bk, bq, bv = bases
    if sec == 'k': return bk + (i + 1) * 8
    if sec == 'q': return bq + i * 8
    return bv + i * 8

vCSA, vCSB = 188, 190
vPI = [4, 5, 6, 7, 8]
vPA = [176, 177, 178]
vPO = [179, 180, 181]
def stash_reg(mat, i):
    if mat == 0: return 192 + 4 * i
    return 144 + 4 * i if i < 4 else 232 + 4 * (i - 4)

MF32 = 'v_mfma_f32_32x32x16_bf16'
MF16 = 'v_mfma_f32_16x16x32_bf16'

class VQ:
    def __init__(self): self.q = []
    def push(self, tag): self.q.append(tag)
    def cnt(self, tag):
        i = max(k for k, t in enumerate(self.q) if t == tag)
        return min(63, len(self.q) - 1 - i)

class G:
    def __init__(self, args):
        self.a = Asm(); self.args = args

    def stamp(self, idx, per_layer=False):
        if not self.args.prof: return
        a = self.a
        a('s_memtime s[82:83]' if self.args.cyc else 's_memrealtime s[82:83]')
        a('s_waitcnt lgkmcnt(0)')
        if per_layer:
            a(f's_mul_i32 s99, s{sLAYER}, 12')
            a(f's_add_u32 s99, s99, {idx}')
            a('s_mov_b32 m0, s99')
            a('s_nop 1')
            a('v_writelane_b32 v9, s82, m0')
        else:
            a(f'v_writelane_b32 v9, s82, {idx}')
    def cstamp(self, idx):
        if not (self.args.prof and self.args.clk): return
        a = self.a
        SK = a.newlabel('CST')
        a(f's_cmp_lg_u32 s{sLAYER}, {self.args.flayer}')
        a(f's_cbranch_scc1 {SK}')
        a('s_memtime s[82:83]')
        a('s_waitcnt lgkmcnt(0)')
        a(f'v_writelane_b32 v9, s82, {idx}')
        a('s_memrealtime s[82:83]')
        a('s_waitcnt lgkmcnt(0)')
        a(f'v_writelane_b32 v9, s82, {idx+1}')
        a.label(SK)
    def fstamp(self, idx):
        if not self.args.prof or self.args.clk: return
        a = self.a
        SK = a.newlabel('FST')
        a(f's_cmp_lg_u32 s{sLAYER}, {self.args.flayer}')
        a(f's_cbranch_scc1 {SK}')
        self.stamp(idx)
        a.label(SK)
    def stamp_out(self):
        if not self.args.prof: return
        a = self.a
        a('s_lshl_b32 s50, s2, 3')
        a(f's_add_u32 s50, s50, s{sW}')
        a('s_lshl_b32 s50, s50, 8')
        a(f's_add_u32 s50, s50, {WS_DBG + 0x400000}')
        a('v_lshlrev_b32 v10, 2, v1')
        a(f'buffer_store_dword v9, v10, {srd(S_WS)}, s50 offen')
        a('s_waitcnt vmcnt(0)')
    def dbg_dump(self, regs, slot):
        a = self.a
        n = len(regs)
        a(f's_mul_i32 s50, s2, {8*n*1024}')
        a(f's_mul_i32 s51, s{sW}, {n*1024}')
        a('s_add_u32 s50, s50, s51')
        a(f's_add_u32 s50, s50, {WS_DBG + slot}')
        for i, r in enumerate(regs):
            a(f'buffer_store_dwordx4 v[{r}:{r+3}], v2, {srd(S_WS)}, s50 offen')
            a('s_add_u32 s50, s50, 1024')
        a('s_waitcnt vmcnt(0)')

    def if_wave(self, cond, val):
        a = self.a
        L = a.newlabel('W')
        inv = {'eq': 's_cmp_lg_u32', 'lt': 's_cmp_ge_u32', 'ge': 's_cmp_lt_u32'}[cond]
        a(f'{inv} s{sW}, {val}')
        a(f's_cbranch_scc1 {L}')
        return L

    def tr_bases(self, d0, d1, bases, tmp=10):
        a = self.a
        t, u, w = f'v{tmp}', f'v{tmp+1}', f'v{tmp+2}'
        a(f'v_bfe_u32 {t}, v1, 4, 1')
        a(f'v_lshlrev_b32 {t}, 2, {t}')
        a(f'v_and_b32 {u}, 3, v1')
        a(f'v_add_u32 {t}, {t}, {u}')
        for B, d in ((0, d0), (1, d1)):
            offs = [quad_off(*QUADS[B][x >> 1][x & 1], bases) for x in range(8)]
            a(f'v_mov_b32 v{d}, {offs[0]}')
            for x in range(1, 8):
                a(f'v_cmp_eq_u32 vcc, {x}, {t}')
                a(f'v_mov_b32 {w}, {offs[x]}')
                a(f'v_cndmask_b32 v{d}, v{d}, {w}, vcc')
        a(f'v_bfe_u32 {u}, v1, 2, 2')
        a(f'v_mul_u32_u24 {u}, 192, {u}')
        a(f'v_lshrrev_b32 {w}, 5, v1')
        a(f'v_mul_u32_u24 {w}, 96, {w}')
        a(f'v_add_u32 {u}, {u}, {w}')
        a(f'v_add_u32 v{d0}, v{d0}, {u}')
        a(f'v_add_u32 v{d1}, v{d1}, {u}')

    def raw_patterns(self):
        a = self.a
        a(f's_mul_i32 s50, s{sH}, 40')
        for u in range(3):
            d = f'v{4+u}'
            a(f'v_add_u32 v10, {64*u}, v1')
            a('v_mul_u32_u24 v11, 21846, v10')
            a('v_lshrrev_b32 v11, 16, v11')
            a('v_mul_u32_u24 v12, 3, v11')
            a('v_sub_u32 v12, v10, v12')
            a('v_lshlrev_b32 v12, 4, v12')
            a('v_and_b32 v13, 0x30, v11')
            a('v_and_b32 v14, 3, v11')
            a('v_lshlrev_b32 v14, 2, v14')
            a('v_add_u32 v13, v13, v14')
            a('v_bfe_u32 v14, v11, 2, 2')
            a('v_add_u32 v13, v13, v14')
            a('v_mul_u32_u24 v13, 3840, v13')
            a('v_add_u32 v13, v13, v12')
            a(f'v_add_u32 {d}, s50, v13')

    def entry(self):
        a = self.a
        a('s_cmp_ge_u32 s2, 256')
        a('s_cbranch_scc1 L_END')
        a('s_load_dwordx16 s[64:79], s[0:1], 0')
        a('s_load_dwordx2 s[80:81], s[0:1], 64')
        a(f's_getreg_b32 s{sXCC}, hwreg(HW_REG_XCC_ID, 0, 4)')
        if self.args.permute:
            a('s_lshr_b32 s50, s2, 5')
            a('s_and_b32 s51, s2, 31')
            a('s_lshl_b32 s51, s51, 3')
            a('s_add_u32 s2, s50, s51')
        a(f's_and_b32 s{sJ}, s2, 7')
        a(f's_lshr_b32 s{sH}, s2, 3')
        a('v_lshrrev_b32 v3, 6, v0')
        a('v_and_b32 v1, 63, v0')
        a(f'v_readfirstlane_b32 s{sW}, v3')
        a('v_lshlrev_b32 v2, 4, v1')
        a(f's_mov_b32 s{sLO32}, -1')
        a(f's_mov_b32 s{sLO32+1}, 0')
        a(f's_mov_b32 s{sMODE}, 0')
        a(f's_mov_b32 s{sDEAD}, 0')
        a(f's_mov_b32 s{sEPOCH}, 0')
        a(f's_mov_b32 s{sLAYER}, 0')
        a(f's_sub_u32 s50, 7, s{sW}')
        a(f's_sub_u32 s51, s{sW}, 4')
        a(f's_cmp_lt_u32 s{sW}, 4')
        a(f's_cselect_b32 s{sRB}, s50, s51')
        a(f's_add_u32 s{sSH}, s{sW}, s{sJ}')
        a(f's_and_b32 s{sSH}, s{sSH}, 7')
        self.raw_patterns()
        a('s_waitcnt lgkmcnt(0)')
        def mk(dst, src, size):
            a(f's_mov_b32 s{dst}, s{src}')
            a(f's_and_b32 s{dst+1}, s{src+1}, 0xffff')
            a(f's_mov_b32 s{dst+2}, {size}')
            a(f's_mov_b32 s{dst+3}, 0x20000')
        mk(S_DBG, 78, 256)
        a(f's_mov_b32 s{sNONCE}, 0')
        self.nonce_create()
        mk(S_X0, 64, 2621440)
        mk(S_WS, 80, 0x10000000)
        mk(S_WQA, 66, 2457600)
        L = self.if_wave('eq', 1)
        self.raw_part_dma(S_WQA, 0)
        a.label(L)
        self.p0_xloads()
        mk(S_WOA, 68, 819200)
        mk(S_WQB, 72, 2457600); mk(S_WOB, 74, 819200); mk(S_OUT, 76, 2621440)

    def nonce_create(self):
        a = self.a
        E = a.newlabel('NC_E')
        a(f's_or_b32 s50, s2, s{sW}')
        a('s_cmp_lg_u32 s50, 0')
        a(f's_cbranch_scc1 {E}')
        a('s_memrealtime s[50:51]')
        a('s_waitcnt lgkmcnt(0)')
        a('s_mul_i32 s50, s50, 0x9E3779B1')
        a('s_mul_i32 s51, s51, 0x85EBCA77')
        a('s_xor_b32 s50, s50, s51')
        a('s_lshr_b32 s51, s50, 15')
        a('s_xor_b32 s50, s50, s51')
        a('s_mul_i32 s50, s50, 0x2C1B3C6D')
        a('s_andn2_b32 s50, s50, 0x7f')
        a(f's_or_b32 s{sNONCE}, s50, 0x40')
        a(f'v_mov_b32 v10, s{sNONCE}')
        a('v_lshlrev_b32 v11, 6, v1')
        a('s_mov_b64 exec, 0xf')
        a(f'buffer_store_dword v10, v11, {srd(S_DBG)}, 0 offen sc1')
        a('s_mov_b64 exec, -1')
        a.label(E)

    def init_flags(self):
        a = self.a
        G = a.newlabel('NON_GET'); D = a.newlabel('NON_DONE'); L = a.newlabel('NON_POLL')
        a('s_cmp_lg_u32 s2, 0')
        a(f's_cbranch_scc0 {D}')
        a.label(G)
        a('s_mov_b32 s60, 0')
        a(f's_and_b32 s50, s{sH}, 3')
        a('s_lshl_b32 s50, s50, 6')
        a('v_mov_b32 v11, s50')
        a('s_waitcnt vmcnt(0)')
        a.label(L)
        a(f'buffer_load_dword v12, v11, {srd(S_DBG)}, 0 offen sc1')
        a('s_waitcnt vmcnt(0)')
        a(f'v_readfirstlane_b32 s{sNONCE}, v12')
        a(f's_cmp_lg_u32 s{sNONCE}, 0')
        a(f's_cbranch_scc1 {D}')
        a('s_sleep 4')
        a('s_add_u32 s60, s60, 1')
        a(f's_cmp_lt_u32 s60, {self.args.spin}')
        a(f's_cbranch_scc1 {L}')
        a(f's_mov_b32 s{sDEAD}, 1')
        a.label(D)
        a(f's_lshl_b32 s50, s{sJ}, 8')
        a(f's_lshl_b32 s51, s{sH}, 2')
        a('s_add_u32 s50, s50, s51')
        a(f's_add_u32 s50, s50, {WS_GXCC}')
        a(f's_and_b32 s51, s{sXCC}, 7')
        a(f's_add_u32 s51, s51, s{sNONCE}')
        a('s_add_u32 s51, s51, 8')
        a('v_mov_b32 v10, s51')
        a('v_mov_b32 v11, 0')
        a('s_mov_b64 exec, 1')
        a(f'buffer_store_dword v10, v11, {srd(S_WS)}, s50 offen sc1')
        a('s_mov_b64 exec, -1')
        a(f'v_mov_b32 v10, s{sNONCE}')
        a(f'v_mov_b32 v11, {L_NONCE}')
        a('ds_write_b32 v11, v10')

    def dma_raw(self, srdW, items):
        a = self.a
        base = {'k': WK, 'q': WQ, 'v': WV}
        soff = {'k': 1280 - 8, 'q': 0, 'v': 2560}
        for sec, Gi in items:
            a(f's_add_u32 s55, s92, {Gi}')
            a('s_cmp_ge_u32 s55, 10')
            a('s_cselect_b32 s56, 10, 0')
            a('s_sub_u32 s55, s55, s56')
            a(f's_mul_i32 s56, s55, {64*3840}')
            a(f's_add_u32 s50, s56, {soff[sec]}')
            a('s_mul_i32 s55, s55, 3072')
            for u in range(3):
                a(f's_add_u32 m0, s55, {base[sec] + u*1024}')
                a(f'buffer_load_dwordx4 v{4+u}, {srd(srdW)}, s50 offen lds')

    def dma_packed(self, nw, w0):
        a = self.a
        per = 80 // nw
        a(f's_add_u32 s50, s{sLAYER}, 1')
        a('s_and_b32 s50, s50, 1')
        a('s_lshl_b32 s50, s50, 5')
        a(f's_add_u32 s50, s50, s{sH}')
        a(f's_mul_i32 s50, s50, {PW_SZ}')
        a(f's_sub_u32 s51, s{sW}, {w0}')
        a(f's_mul_i32 s51, s51, {per*1024}')
        a('s_add_u32 s50, s50, s51')
        a(f's_add_u32 s50, s50, {WS_PW}')
        a(f's_add_u32 s51, s51, {PWL}')
        for i in range(per):
            a(f's_add_u32 m0, s51, {i*1024}')
            if i % 4 == 0 and i > 0: a('s_add_u32 s50, s50, 4096')
            a(f'buffer_load_dwordx4 v2, {srd(S_WS)}, s50 offen sc1 lds') if i % 4 == 0 else None
            if i % 4 != 0:
                a(f's_add_u32 s52, s50, {(i%4)*1024}')
                a(f'buffer_load_dwordx4 v2, {srd(S_WS)}, s52 offen sc1 lds')

    def dma_wo(self, mat, w0):
        a = self.a
        a(f's_and_b32 s50, s{sH}, 7')
        a(f's_add_u32 s50, s50, {mat*8}')
        a(f's_mul_i32 s50, s50, {PO_SZ}')
        a(f's_sub_u32 s51, s{sW}, {w0}')
        a('s_mul_i32 s51, s51, 25600')
        a('s_add_u32 s50, s50, s51')
        a(f's_add_u32 s50, s50, {WS_PO}')
        a(f's_add_u32 s51, s51, {R_O}')
        for i in range(25):
            a(f's_add_u32 m0, s51, {i*1024}')
            a(f's_add_u32 s52, s50, {i*1024}')
            a(f'buffer_load_dwordx4 v2, {srd(S_WS)}, s52 offen sc1 lds')

    def touch_w(self, w0, nw):
        a = self.a
        E = a.newlabel('TW_E')
        a(f's_cmp_eq_u32 s{sLAYER}, 3')
        a(f's_cbranch_scc1 {E}')
        a(f's_add_u32 s50, s{sLAYER}, 1')
        a('s_and_b32 s50, s50, 1')
        a('s_lshl_b32 s50, s50, 5')
        a(f's_add_u32 s50, s50, s{sH}')
        a(f's_mul_i32 s50, s50, {PW_SZ}')
        a(f's_add_u32 s50, s50, {WS_PW}')
        a('v_lshlrev_b32 v11, 7, v1')
        per = -(-10 // nw)
        for t in range(per):
            SK = a.newlabel('TW_SK')
            a(f's_sub_u32 s51, s{sW}, {w0}')
            a(f's_add_u32 s51, s51, {t*nw}')
            a('s_cmp_ge_u32 s51, 10')
            a(f's_cbranch_scc1 {SK}')
            a(f's_add_u32 s51, s51, s{sJ}')
            a('s_cmp_ge_u32 s51, 10')
            a('s_cselect_b32 s52, 10, 0')
            a('s_sub_u32 s51, s51, s52')
            a('s_lshl_b32 s51, s51, 13')
            a('s_add_u32 s51, s51, s50')
            a(f'buffer_load_dword v{250+t}, v11, {srd(S_WS)}, s51 offen sc1')
            a.label(SK)
        a.label(E)

    def check_packs(self):
        a = self.a
        a(f's_lshl_b32 s54, s{sH}, 3')
        self.xflag_addr('s52', 's54')
        a('v_and_b32 v11, 7, v1')
        a('v_lshlrev_b32 v11, 6, v11')
        a('v_add_u32 v11, 16, v11')
        a('s_mov_b32 s53, 1')
        self.poll('v11', 's52', 8, 's53')
        for mat in range(2):
            a(f's_and_b32 s50, s{sH}, 7')
            a(f's_add_u32 s50, s50, {mat*8}')
            a('s_mul_i32 s53, s50, 20')
            a('v_min_u32 v11, 19, v1')
            a('v_add_u32 v11, s53, v11')
            a('v_and_b32 v11, 255, v11')
            a('v_lshlrev_b32 v11, 6, v11')
            a(f's_mov_b32 s52, {WS_XFLAG + 24}')
            a('s_mov_b32 s53, 1')
            self.poll('v11', 's52', 20, 's53')

    def lds_signal(self, val_s):
        a = self.a
        a(f'v_mov_b32 v11, {L_SIG}')
        a(f'v_mov_b32 v12, {val_s}')
        a('ds_write_b32 v11, v12')
    def lds_wait(self, val_s):
        a = self.a
        L = a.newlabel('LW'); D = a.newlabel('LWD')
        a(f'v_mov_b32 v11, {L_SIG}')
        a('s_mov_b32 s60, 0')
        a.label(L)
        a('ds_read_b32 v12, v11')
        a('s_waitcnt lgkmcnt(0)')
        a('v_readfirstlane_b32 s61, v12')
        a(f's_cmp_eq_u32 s61, {val_s}')
        a(f's_cbranch_scc1 {D}')
        a('s_sleep 1')
        a('s_add_u32 s60, s60, 1')
        a('s_cmp_lt_u32 s60, 0x100000')
        a(f's_cbranch_scc1 {L}')
        a.label(D)

    def poll(self, vaddr, soff, nlanes, target_s, tmp='v12'):
        a = self.a
        L = a.newlabel('POLL'); D = a.newlabel('POLLD')
        a(f's_cmp_lg_u32 s{sDEAD}, 0')
        a(f's_cbranch_scc1 {D}')
        a('s_mov_b32 s60, 0')
        a(f's_add_u32 s63, s{sNONCE}, {target_s}')
        mask = (1 << nlanes) - 1
        a.label(L)
        a(f'buffer_load_dword {tmp}, {vaddr}, {srd(S_WS)}, {soff} offen sc1')
        a('s_waitcnt vmcnt(0)')
        a(f'v_subrev_u32 {tmp}, s63, {tmp}')
        a(f'v_cmp_lt_u32 vcc, 7, {tmp}')
        a(f's_and_b32 s61, vcc_lo, {hex(mask & 0xffffffff)}')
        a('s_cmp_eq_u32 s61, 0')
        a(f's_cbranch_scc1 {D}')
        a('s_add_u32 s60, s60, 1')
        a(f's_cmp_lt_u32 s60, {self.args.spin}')
        a(f's_cbranch_scc1 {L}')
        a(f's_mov_b32 s{sDEAD}, 1')
        a.label(D)

    def poll_fast(self, vaddr, soff, nlanes, target_s):
        a = self.a
        R = ['v182', 'v183', 'v186', 'v187']
        L = a.newlabel('PF'); D = a.newlabel('PFD')
        a(f's_cmp_lg_u32 s{sDEAD}, 0')
        a(f's_cbranch_scc1 {D}')
        a('s_mov_b32 s60, 0')
        a(f's_add_u32 s63, s{sNONCE}, {target_s}')
        mask = (1 << nlanes) - 1
        for k in range(4):
            a(f'buffer_load_dword {R[k]}, {vaddr}, {srd(S_WS)}, {soff} offen sc1')
            if k < 3 and self.args.psleep: a(f's_sleep {self.args.psleep}')
        a.label(L)
        for k in range(4):
            a('s_waitcnt vmcnt(3)')
            a(f'v_subrev_u32 v12, s63, {R[k]}')
            a('v_cmp_lt_u32 vcc, 7, v12')
            a(f's_and_b32 s61, vcc_lo, {hex(mask & 0xffffffff)}')
            a('s_cmp_eq_u32 s61, 0')
            a(f's_cbranch_scc1 {D}')
            a(f'buffer_load_dword {R[k]}, {vaddr}, {srd(S_WS)}, {soff} offen sc1')
        a('s_add_u32 s60, s60, 1')
        a(f's_cmp_lt_u32 s60, {self.args.spin // 2}')
        a(f's_cbranch_scc1 {L}')
        a(f's_mov_b32 s{sDEAD}, 1')
        a.label(D)

    def check_hello(self):
        a = self.a
        L = a.newlabel('HELLO'); D = a.newlabel('HELLOD')
        a('s_mov_b32 s60, 0')
        a('v_and_b32 v11, 31, v1')
        a('v_lshlrev_b32 v11, 2, v11')
        a(f's_lshl_b32 s50, s{sJ}, 8')
        a(f's_add_u32 s50, s50, {WS_GXCC}')
        a(f's_add_u32 s63, s{sNONCE}, 8')
        a.label(L)
        a(f'buffer_load_dword v12, v11, {srd(S_WS)}, s50 offen sc1')
        a('s_waitcnt vmcnt(0)')
        a('v_subrev_u32 v12, s63, v12')
        a('v_cmp_lt_u32 vcc, 7, v12')
        a('s_cmp_eq_u64 vcc, 0')
        a(f's_cbranch_scc1 {D}')
        a('s_add_u32 s60, s60, 1')
        a(f's_cmp_lt_u32 s60, {self.args.spin}')
        a(f's_cbranch_scc1 {L}')
        a(f's_mov_b32 s{sDEAD}, 1')
        a.label(D)
        a(f's_and_b32 s51, s{sXCC}, 7')
        a('v_cmp_ne_u32 vcc, s51, v12')
        a('s_cmp_lg_u64 vcc, 0')
        a(f's_cselect_b32 s{sMODE}, 1, 0')
        if self.args.force_generic:
            a(f's_mov_b32 s{sMODE}, 1')

    def lbar(self, first=False, between=None, poller=0, after_flag=None):
        a = self.a
        a('s_barrier')
        a(f's_add_u32 s{sEPOCH}, s{sEPOCH}, 1')
        W0 = a.newlabel('LB_NOT0'); E = a.newlabel('LB_END')
        a(f's_cmp_lg_u32 s{sW}, {poller}')
        a(f's_cbranch_scc1 {W0}')
        if first:
            self.stamp(60)
            self.check_hello()
            self.stamp(61)
        G1 = a.newlabel('LB_GEN'); G2 = a.newlabel('LB_ST')
        a(f's_lshl_b32 s50, s{sJ}, 8')
        a(f's_add_u32 s50, s50, {WS_LFLAG}')
        a(f's_lshl_b32 s51, s{sH}, 2')
        a('s_add_u32 s51, s51, s50')
        a(f's_add_u32 s62, s{sEPOCH}, s{sNONCE}')
        a('v_mov_b32 v10, s62')
        a('v_mov_b32 v11, 0')
        a(f's_cmp_lg_u32 s{sMODE}, 0')
        a(f's_cbranch_scc1 {G1}')
        a('s_mov_b64 exec, 1')
        a(f'buffer_store_dword v10, v11, {srd(S_WS)}, s51 offen')
        a('s_mov_b64 exec, -1')
        a(f's_branch {G2}')
        a.label(G1)
        a('buffer_wbl2 sc1')
        a('s_waitcnt vmcnt(0)')
        a('s_mov_b64 exec, 1')
        a(f'buffer_store_dword v10, v11, {srd(S_WS)}, s51 offen sc1')
        a('s_mov_b64 exec, -1')
        a.label(G2)
        if after_flag: after_flag()
        a('v_and_b32 v11, 31, v1')
        a('v_lshlrev_b32 v11, 2, v11')
        (self.poll_fast if (self.args.pfast and not first) else self.poll)('v11', 's50', 32, f's{sEPOCH}')
        if after_flag: a('s_waitcnt lgkmcnt(0)')
        if first: self.stamp(62)
        G3 = a.newlabel('LB_NOINV')
        a(f's_cmp_eq_u32 s{sMODE}, 0')
        a(f's_cbranch_scc1 {G3}')
        a('buffer_inv sc1')
        a('s_waitcnt vmcnt(0)')
        a.label(G3)
        if first:
            a(f'v_mov_b32 v10, s{sMODE}')
            a(f'v_mov_b32 v11, {L_MODE}')
            a('ds_write_b32 v11, v10')
            a('s_waitcnt lgkmcnt(0)')
        a(f's_branch {E}')
        a.label(W0)
        if between: between()
        a.label(E)
        a('s_barrier')
        if first:
            a(f'v_mov_b32 v11, {L_MODE}')
            a('ds_read_b32 v10, v11')
            a('s_waitcnt lgkmcnt(0)')
            a(f'v_readfirstlane_b32 s{sMODE}, v10')

    def xflag_addr(self, dst, wg_s):
        a = self.a
        a(f's_lshl_b32 {dst}, {wg_s}, 6')
        a(f's_add_u32 {dst}, {dst}, {WS_XFLAG}')

    def set_xflag(self, word, val_s, saddr='s52', vt=('v11', 'v12')):
        a = self.a
        self.xflag_addr(saddr, 's2')
        if isinstance(word, int): a(f's_add_u32 {saddr}, {saddr}, {word*4}')
        else: a(f's_add_u32 {saddr}, {saddr}, {word}')
        a(f's_add_u32 s63, s{sNONCE}, {val_s}')
        a(f'v_mov_b32 {vt[0]}, s63')
        a(f'v_mov_b32 {vt[1]}, 0')
        a('s_mov_b64 exec, 1')
        a(f'buffer_store_dword {vt[0]}, {vt[1]}, {srd(S_WS)}, {saddr} offen sc1')
        a('s_mov_b64 exec, -1')

    def pack5(self, vb0, vb1, imm0, mat, with_cs, fb=16):
        a = self.a
        a(f's_add_u32 s50, s{sH}, {mat*32}')
        a(f's_mul_i32 s50, s50, {PW_SZ}')
        a(f's_mul_i32 s51, s{sJ}, {5*2048}')
        a('s_add_u32 s50, s50, s51')
        a(f's_add_u32 s50, s50, {WS_PW}')
        for i in range(5):
            s = fb + 8 * i
            o = imm0(i)
            a(f'ds_read_b64_tr_b16 v[{s}:{s+1}], {vb0} offset:{o}')
            a(f'ds_read_b64_tr_b16 v[{s+2}:{s+3}], {vb0} offset:{o+48}')
            a(f'ds_read_b64_tr_b16 v[{s+4}:{s+5}], {vb1} offset:{o}')
            a(f'ds_read_b64_tr_b16 v[{s+6}:{s+7}], {vb1} offset:{o+48}')
        a('s_mov_b32 s74, 0x00f00000')
        a('s_mov_b32 s75, 0x00f00000')
        a('v_mov_b32 v104, 0')
        a('s_waitcnt lgkmcnt(0)')
        for i in range(5):
            s = fb + 8 * i
            for r in range(4): a(f'v_cndmask_b32 v{s+r}, v{s+r}, v104, s[74:75]')
        for i in range(5):
            s = fb + 8 * i
            a(f'buffer_store_dwordx4 v[{s}:{s+3}], v2, {srd(S_WS)}, s50 offen sc1')
            a(f'buffer_store_dwordx4 v[{s+4}:{s+7}], v2, {srd(S_WS)}, s50 offen offset:1024 sc1')
            a('s_add_u32 s50, s50, 2048')
        if with_cs:
            for r in range(108, 112): a(f'v_mov_b32 v{r}, 0x3f803f80')
            for i in range(5):
                s = fb + 8 * i
                a(f'{MF32} v[112:127], v[108:111], v[{s}:{s+3}], {"0" if i == 0 else "v[112:127]"}')
                a(f'{MF32} v[128:143], v[108:111], v[{s+4}:{s+7}], {"0" if i == 0 else "v[128:143]"}')
            a('v_mov_b32 v104, v112')
            a('v_mov_b32 v105, v128')
            self.store_cs(mat, 104)

    def store_cs(self, mat, r):
        a = self.a
        a(f's_add_u32 s50, s{sH}, {mat*32}')
        a('s_lshl_b32 s50, s50, 3')
        a(f's_add_u32 s50, s50, s{sJ}')
        a('s_lshl_b32 s50, s50, 8')
        a(f's_add_u32 s50, s50, {WS_PCS}')
        a('v_lshlrev_b32 v12, 3, v1')
        a('s_mov_b64 exec, 0xffffffff')
        a(f'buffer_store_dwordx2 v[{r}:{r+1}], v12, {srd(S_WS)}, s50 offen sc1')
        a('s_mov_b64 exec, -1')

    def stash_writeback(self, mat=None):
        a = self.a
        if mat is not None:
            a(f's_mul_i32 s62, s{sSH}, 10240')
            a(f's_add_u32 s62, s62, {PWL}')
            a('v_add_u32 v13, s62, v2')
            for i in range(10):
                r = stash_reg(mat, i)
                a(f'ds_write_b128 v13, v[{r}:{r+3}] offset:{i*1024}')
            return
        E = a.newlabel('SW_E'); LA = a.newlabel('SW_A')
        a(f's_cmp_eq_u32 s{sLAYER}, 3')
        a(f's_cbranch_scc1 {E}')
        a(f's_mul_i32 s62, s{sSH}, 10240')
        a(f's_add_u32 s62, s62, {PWL}')
        a('v_add_u32 v13, s62, v2')
        a(f's_bitcmp1_b32 s{sLAYER}, 0')
        a(f's_cbranch_scc1 {LA}')
        for i in range(10):
            r = stash_reg(1, i)
            a(f'ds_write_b128 v13, v[{r}:{r+3}] offset:{i*1024}')
        a(f's_branch {E}')
        a.label(LA)
        for i in range(10):
            r = stash_reg(0, i)
            a(f'ds_write_b128 v13, v[{r}:{r+3}] offset:{i*1024}')
        a.label(E)

    def stash_writeback_next(self):
        a = self.a
        E = a.newlabel('SWN_E'); LB = a.newlabel('SWN_B')
        a(f's_mul_i32 s62, s{sSH}, 10240')
        a(f's_add_u32 s62, s62, {PWL}')
        a('v_add_u32 v13, s62, v2')
        a(f's_bitcmp1_b32 s{sLAYER}, 0')
        a(f's_cbranch_scc1 {LB}')
        for i in range(10):
            r = stash_reg(0, i)
            a(f'ds_write_b128 v13, v[{r}:{r+3}] offset:{i*1024}')
        a(f's_branch {E}')
        a.label(LB)
        for i in range(10):
            r = stash_reg(1, i)
            a(f'ds_write_b128 v13, v[{r}:{r+3}] offset:{i*1024}')
        a.label(E)

    def stash_load(self, mat):
        a = self.a
        a(f's_add_u32 s50, s{sH}, {32*mat}')
        a(f's_mul_i32 s50, s50, {PW_SZ}')
        a(f's_mul_i32 s51, s{sSH}, 10240')
        a('s_add_u32 s50, s50, s51')
        a(f's_add_u32 s50, s50, {WS_PW}')
        for i in range(10):
            r = stash_reg(mat, i)
            if i % 4 == 0 and i > 0: a('s_add_u32 s50, s50, 4096')
            a(f'buffer_load_dwordx4 v[{r}:{r+3}], v2, {srd(S_WS)}, s50 offen offset:{(i%4)*1024} sc1')
        a('v_and_b32 v11, 31, v1')
        a('v_lshlrev_b32 v11, 3, v11')
        a(f's_add_u32 s52, s{sH}, {32*mat}')
        a('s_lshl_b32 s52, s52, 11')
        a(f's_add_u32 s52, s52, {WS_PCS}')
        for j in range(8):
            a(f'buffer_load_dwordx2 v[{160+2*j}:{161+2*j}], v11, {srd(S_WS)}, s52 offen offset:{j*256} sc1')

    def stash_cs_sum(self, mat):
        a = self.a
        d = vCSA if mat == 0 else vCSB
        a(f'v_add_f32 v{d}, v160, v162')
        a(f'v_add_f32 v{d+1}, v161, v163')
        for j in range(2, 8):
            a(f'v_add_f32 v{d}, v{d}, v{160+2*j}')
            a(f'v_add_f32 v{d+1}, v{d+1}, v{161+2*j}')

    def wait_hello(self):
        a = self.a
        L = a.newlabel('WH'); D = a.newlabel('WHD')
        a('s_mov_b32 s60, 0')
        a('v_lshlrev_b32 v11, 2, v1')
        a.label(L)
        a(f'buffer_load_dword v12, v11, {srd(S_DBG)}, 0 offen sc1')
        a('s_waitcnt vmcnt(0)')
        a('v_and_b32 v13, 0x80808080, v12')
        a('v_cmp_ne_u32 vcc, 0x80808080, v13')
        a('s_cmp_eq_u64 vcc, 0')
        a(f's_cbranch_scc1 {D}')
        a('s_sleep 2')
        a('s_add_u32 s60, s60, 1')
        a(f's_cmp_lt_u32 s60, {self.args.spin}')
        a(f's_cbranch_scc1 {L}')
        a(f's_mov_b32 s{sDEAD}, 1')
        a.label(D)

    def poll_packA(self):
        a = self.a
        a(f's_lshl_b32 s54, s{sH}, 3')
        a(f's_add_u32 s54, s54, s{sSH}')
        self.xflag_addr('s52', 's54')
        a('v_mov_b32 v11, 20')
        a('s_mov_b32 s53, 1')
        self.poll('v11', 's52', 1, 's53')

    def stashA_load(self):
        a = self.a
        a(f's_mul_i32 s50, s{sH}, {PW_SZ}')
        a(f's_mul_i32 s51, s{sSH}, 10240')
        a('s_add_u32 s50, s50, s51')
        a(f's_add_u32 s50, s50, {WS_PW}')
        a(f's_add_u32 s51, s51, {PWL}')
        for i in range(10):
            a(f's_add_u32 m0, s51, {i*1024}')
            a(f's_add_u32 s52, s50, {i*1024}')
            a(f'buffer_load_dwordx4 v2, {srd(S_WS)}, s52 offen sc1 lds')
        a('v_and_b32 v11, 31, v1')
        a('v_lshlrev_b32 v11, 3, v11')
        a(f's_lshl_b32 s52, s{sH}, 3')
        a(f's_add_u32 s52, s52, s{sSH}')
        a('s_lshl_b32 s52, s52, 8')
        a(f's_add_u32 s52, s52, {WS_PCS}')
        a(f'buffer_load_dwordx2 v[160:161], v11, {srd(S_WS)}, s52 offen sc1')

    def stashA_from_lds(self):
        a = self.a
        a(f's_mul_i32 s62, s{sSH}, 10240')
        a(f's_add_u32 s62, s62, {PWL}')
        a('v_add_u32 v13, s62, v2')
        for i in range(10):
            r = stash_reg(0, i)
            a(f'ds_read_b128 v[{r}:{r+3}], v13 offset:{i*1024}')

    def p0_xloads(self):
        a = self.a
        if not self.args.noreuse:
            L4 = self.if_wave('eq', 4)
            a(f's_lshl_b32 s52, s{sJ}, 3')
            a(f's_lshr_b32 s53, s{sH}, 2')
            a('s_add_u32 s52, s52, s53')
            a(f's_mul_i32 s52, s52, {RBS}')
            a(f's_and_b32 s53, s{sH}, 3')
            a('s_lshl_b32 s53, s53, 7')
            a('s_add_u32 s52, s52, s53')
            a(f's_add_u32 s52, s52, {WS_XF}')
            a('v_lshlrev_b32 v30, 9, v1')
            a(f'buffer_load_dword v31, v30, {srd(S_WS)}, s52 offen')
            a('s_add_u32 s52, s52, 32768')
            a('s_mov_b64 exec, 0xffff')
            a(f'buffer_load_dword v31, v30, {srd(S_WS)}, s52 offen')
            a(f's_lshl_b32 s52, s{sJ}, 3')
            a(f's_lshr_b32 s53, s{sH}, 2')
            a('s_add_u32 s52, s52, s53')
            a('s_lshl_b32 s52, s52, 11')
            a(f's_and_b32 s53, s{sH}, 3')
            a('s_lshl_b32 s53, s53, 7')
            a('s_add_u32 s52, s52, s53')
            a(f's_add_u32 s52, s52, {WS_ST}')
            a('v_lshlrev_b32 v30, 9, v1')
            a('s_mov_b64 exec, 0xf')
            a(f'buffer_load_dword v31, v30, {srd(S_WS)}, s52 offen')
            a('s_mov_b64 exec, -1')
            a.label(L4)
        if not self.args.nocodepf:
            L7 = self.if_wave('eq', 7)
            LC = a.newlabel('CPF')
            a(f's_cmp_ge_u32 s{sH}, 6')
            a(f's_cbranch_scc1 {LC}')
            a('s_getpc_b64 s[56:57]')
            a.label('L_PCREF')
            a(f's_sub_u32 s56, s56, L_PCREF-{KNAME}')
            a('s_subb_u32 s57, s57, 0')
            a(f's_lshl_b32 s53, s{sH}, 13')
            a('v_lshlrev_b32 v30, 7, v1')
            a('v_add_u32 v30, s53, v30')
            a(f's_mov_b32 s58, L_CODE_END-{KNAME}-4')
            a('v_min_u32 v30, s58, v30')
            a('global_load_dword v31, v30, s[56:57]')
            a.label(LC)
            a.label(L7)
        a(f's_lshl_b32 s50, s{sJ}, 8')
        a(f's_lshl_b32 s51, s{sH}, 3')
        a('s_add_u32 s50, s50, s51')
        a('s_mul_i32 s52, s50, 1280')
        a('v_and_b32 v10, 7, v0')
        a('v_lshrrev_b32 v11, 3, v0')
        a('v_mul_u32_u24 v12, 1280, v10')
        a('v_lshlrev_b32 v13, 4, v11')
        a('v_add_u32 v12, v12, v13')
        a(f'buffer_load_dwordx4 v[16:19], v12, {srd(S_X0)}, s52 offen')
        a('v_mov_b32 v20, 0\nv_mov_b32 v21, 0\nv_mov_b32 v22, 0\nv_mov_b32 v23, 0')
        L = self.if_wave('lt', 2)
        a(f'buffer_load_dwordx4 v[20:23], v12, {srd(S_X0)}, s52 offen offset:1024')
        a.label(L)

    def late_touch(self, which=('of', 'xf', 'st')):
        a = self.a
        if self.args.noreuse: return
        a('v_lshlrev_b32 v13, 7, v1')
        for w in (6, 5):
            if (w == 6 and 'of' not in which) or (w == 5 and 'xf' not in which): continue
            Lw = self.if_wave('eq', w)
            if w == 5:
                a(f's_lshl_b32 s52, s{sJ}, 3')
                a(f's_lshr_b32 s53, s{sH}, 2')
                a('s_add_u32 s52, s52, s53')
                a(f's_mul_i32 s52, s52, {RBS}')
                a(f's_and_b32 s53, s{sH}, 3')
                a('s_mul_i32 s53, s53, 10240')
                a('s_add_u32 s52, s52, s53')
                a(f's_add_u32 s52, s52, {WS_XF + XF_SZ}')
            else:
                a(f's_lshl_b32 s52, s{sJ}, 4')
                a(f's_lshr_b32 s53, s{sH}, 1')
                a('s_add_u32 s52, s52, s53')
                a(f's_mul_i32 s52, s52, {OBS}')
                a(f's_and_b32 s53, s{sH}, 1')
                a('s_mul_i32 s53, s53, 10240')
                a('s_add_u32 s52, s52, s53')
                a(f's_add_u32 s52, s52, {WS_OF}')
            a(f'buffer_load_dword v182, v13, {srd(S_WS)}, s52 offen')
            a('s_add_u32 s52, s52, 8192')
            a('s_mov_b64 exec, 0xffff')
            a(f'buffer_load_dword v182, v13, {srd(S_WS)}, s52 offen')
            a('s_mov_b64 exec, -1')
            a.label(Lw)
        if 'st' not in which: return
        L7 = self.if_wave('eq', 7)
        a(f's_lshl_b32 s52, s{sJ}, 14')
        a(f's_lshl_b32 s53, s{sH}, 9')
        a('s_add_u32 s52, s52, s53')
        a(f's_add_u32 s52, s52, {WS_ST + ST_SZ}')
        a('s_mov_b64 exec, 0xf')
        a(f'buffer_load_dword v182, v13, {srd(S_WS)}, s52 offen')
        a('s_mov_b64 exec, -1')
        a.label(L7)

    def wo_item_dma(self, n, item_s):
        a = self.a
        a(f's_mul_hi_u32 s55, {item_s}, 0xccccccd')
        a('s_mul_i32 s56, s55, 20')
        a(f's_sub_u32 s56, {item_s}, s56')
        a('s_and_b32 s57, s55, 7')
        a('s_mul_i32 s57, s57, 160')
        a('s_mul_i32 s56, s56, 40960')
        a('s_add_u32 s56, s56, s57')
        A = a.newlabel('WOI_A'); E = a.newlabel('WOI_E')
        a('s_cmp_lt_u32 s55, 8')
        a(f's_cbranch_scc1 {A}')
        for u in range(5):
            a(f's_mov_b32 m0, {TO + n*5120 + u*1024}')
            a(f'buffer_load_dwordx4 v{24+u}, {srd(S_WOB)}, s56 offen lds')
        a(f's_branch {E}')
        a.label(A)
        for u in range(5):
            a(f's_mov_b32 m0, {TO + n*5120 + u*1024}')
            a(f'buffer_load_dwordx4 v{24+u}, {srd(S_WOA)}, s56 offen lds')
        a.label(E)

    def wo_item_pack(self, n, item_s):
        a = self.a
        for c in range(5):
            for sx in range(2):
                a(f'ds_read_b64_tr_b16 v[{32+4*c+2*sx}:{33+4*c+2*sx}], v30 offset:{TO + n*5120 + sx*1280 + c*32}')
        a(f's_mul_i32 s55, {item_s}, 5120')
        a(f's_add_u32 s55, s55, {WS_PO}')
        a('s_waitcnt lgkmcnt(0)')
        for c in range(5):
            if c == 4: a('s_add_u32 s55, s55, 4096')
            a(f'buffer_store_dwordx4 v[{32+4*c}:{35+4*c}], v2, {srd(S_WS)}, s55 offen offset:{(c%4)*1024} sc1')

    def raw_part_dma(self, srdW, toff):
        a = self.a
        a(f's_mul_i32 s53, s{sJ}, {80*3840}')
        for sec, tb, so in (('k', TK, 1280 - 8), ('q', TQ, 0), ('v', TV, 2560)):
            for u in range(4):
                a(f's_mov_b32 m0, {toff + tb + u*1024}')
                a(f's_add_u32 s54, s53, {so + (64*3840 if u == 3 else 0)}')
                if u == 3: a('s_mov_b32 exec_hi, 0xffff')
                a(f'buffer_load_dwordx4 v{4 + (u % 3)}, {srd(srdW)}, s54 offen lds')
                if u == 3: a('s_mov_b64 exec, -1')

    def p0(self):
        a = self.a
        self.fstamp(53)
        self.fstamp(54)
        L = self.if_wave('eq', 0)
        self.init_flags()
        a.label(L)
        a(f's_lshl_b32 s53, s{sJ}, 3')
        a(f's_lshr_b32 s54, s{sH}, 2')
        a('s_add_u32 s53, s53, s54')
        a(f's_mul_i32 s53, s53, {RBS}')
        a(f's_and_b32 s54, s{sH}, 3')
        a('s_lshl_b32 s54, s54, 7')
        a('s_add_u32 s53, s53, s54')
        a(f's_add_u32 s53, s53, {WS_XF}')
        a('v_and_b32 v10, 7, v0')
        a('v_lshrrev_b32 v11, 3, v0')
        a('v_lshrrev_b32 v13, 1, v11')
        a('v_lshlrev_b32 v13, 10, v13')
        a('v_and_b32 v14, 1, v11')
        a('v_lshlrev_b32 v14, 9, v14')
        a('v_add_u32 v13, v13, v14')
        a('v_lshlrev_b32 v14, 4, v10')
        a('v_add_u32 v13, v13, v14')
        a('s_add_u32 s54, s53, 32768')
        L = self.if_wave('eq', 1)
        a('v_mov_b32 v40, v13')
        a('s_mov_b32 s94, s53')
        self.tr_bases(106, 107, (TK, TQ, TV))
        a('s_waitcnt vmcnt(2)')
        self.pack5('v106', 'v107', lambda i: i * 768, 0, True, fb=48)
        a('v_mov_b32 v13, v40')
        a('s_mov_b32 s53, s94')
        a('s_add_u32 s54, s53, 32768')
        a('s_waitcnt vmcnt(11)')
        a.label(L)
        Lw = a.newlabel('P0_XW')
        a(f's_cmp_eq_u32 s{sW}, 1')
        a(f's_cbranch_scc1 {Lw}')
        a('s_waitcnt vmcnt(0)')
        a.label(Lw)
        self.fstamp(55)
        a(f'buffer_store_dwordx4 v[16:19], v13, {srd(S_WS)}, s53 offen')
        L = self.if_wave('lt', 2)
        a(f'buffer_store_dwordx4 v[20:23], v13, {srd(S_WS)}, s54 offen')
        a.label(L)
        DD = a.newlabel('P0_DMAD')
        L = self.if_wave('eq', 2)
        a('s_mov_b32 s94, s53')
        a('s_mov_b32 s95, s54')
        self.raw_part_dma(S_WQB, TBOFF)
        a('s_mov_b32 s53, s94')
        a('s_mov_b32 s54, s95')
        a.label(L)
        L = self.if_wave('eq', 3)
        for u in range(5):
            d = f'v{24+u}'
            a(f'v_add_u32 v15, {64*u}, v1')
            a('v_mul_u32_u24 v3, 6554, v15')
            a('v_lshrrev_b32 v3, 16, v3')
            a(f'v_mul_u32_u24 {d}, 10, v3')
            a(f'v_sub_u32 {d}, v15, {d}')
            a(f'v_lshlrev_b32 {d}, 4, {d}')
            a('v_mul_u32_u24 v3, 1280, v3')
            a(f'v_add_u32 {d}, {d}, v3')
        a('s_mov_b32 s58, s2')
        self.wo_item_dma(0, 's58')
        L2 = a.newlabel('P0_NOI2')
        a('s_cmp_ge_u32 s2, 64')
        a(f's_cbranch_scc1 {L2}')
        a('s_add_u32 s59, s2, 256')
        self.wo_item_dma(1, 's59')
        a.label(L2)
        a.label(L)
        a('v_mov_b32 v34, 0\nv_mov_b32 v35, 0')
        for r in range(16, 24):
            a(f'v_lshlrev_b32 v36, 16, v{r}')
            a(f'v_and_b32 v37, 0xffff0000, v{r}')
            a('v_add_f32 v34, v34, v36')
            a('v_fmac_f32 v35, v36, v36')
            a('v_add_f32 v34, v34, v37')
            a('v_fmac_f32 v35, v37, v37')
        for reg in (34, 35):
            a(f'v_mov_b32_dpp v36, v{reg} row_ror:8 row_mask:0xf bank_mask:0xf')
            a(f'v_add_f32 v{reg}, v{reg}, v36')
            a(f'v_mov_b32 v36, v{reg}')
            a(f'v_permlane16_swap_b32 v{reg}, v36')
            a(f'v_add_f32 v{reg}, v{reg}, v36')
            a(f'v_mov_b32 v36, v{reg}')
            a(f'v_permlane32_swap_b32 v{reg}, v36')
            a(f'v_add_f32 v{reg}, v{reg}, v36')
        P0S = L_MISC
        a(f's_lshl_b32 s50, s{sW}, 6')
        a('v_lshlrev_b32 v36, 3, v1')
        a('v_add_u32 v36, s50, v36')
        a('s_mov_b64 exec, 0xff')
        a(f'ds_write_b64 v36, v[34:35] offset:{P0S}')
        a('s_mov_b64 exec, -1')
        a('v_mov_b32 v10, 0')
        a(f'v_mov_b32 v11, {L_SIG}')
        a('ds_write_b32 v11, v10')
        a(f'ds_write_b32 v11, v10 offset:{L_CNTA - L_SIG}')
        a(f'ds_write_b32 v11, v10 offset:{L_CNTB - L_SIG}')
        a('v_lshlrev_b32 v11, 2, v1')
        a(f'ds_write_b32 v11, v10 offset:{L_CS}')
        a('s_waitcnt lgkmcnt(0)')
        self.fstamp(56)
        a('s_barrier')
        self.fstamp(57)
        a(f'v_mov_b32 v11, {L_NONCE}')
        a('ds_read_b32 v10, v11')
        a('s_waitcnt lgkmcnt(0)')
        a(f'v_readfirstlane_b32 s{sNONCE}, v10')
        L = self.if_wave('eq', 0)
        a('v_lshrrev_b32 v10, 2, v1')
        a('v_and_b32 v10, 7, v10')
        a('v_lshlrev_b32 v11, 3, v10')
        for w in range(8):
            a(f'ds_read_b64 v[{28+2*w}:{29+2*w}], v11 offset:{P0S + w*64}')
        a('s_waitcnt lgkmcnt(0)')
        for w in range(1, 8):
            a(f'v_add_f32 v28, v28, v{28+2*w}')
            a(f'v_add_f32 v29, v29, v{29+2*w}')
        a('v_and_b32 v12, 3, v1')
        a('v_cmp_eq_u32 vcc, 0, v12')
        a('v_mov_b32 v30, 0\nv_mov_b32 v31, 0')
        a('v_cndmask_b32 v28, v30, v28, vcc')
        a('v_cndmask_b32 v29, v30, v29, vcc')
        a(f's_lshl_b32 s50, s{sJ}, 3')
        a(f's_lshr_b32 s51, s{sH}, 2')
        a('s_add_u32 s50, s50, s51')
        a('s_lshl_b32 s50, s50, 11')
        a(f's_and_b32 s51, s{sH}, 3')
        a('s_lshl_b32 s51, s51, 7')
        a('s_add_u32 s50, s50, s51')
        a(f's_add_u32 s50, s50, {WS_ST}')
        a('v_lshlrev_b32 v12, 9, v12')
        a('v_lshlrev_b32 v10, 4, v10')
        a('v_add_u32 v12, v12, v10')
        a('s_mov_b64 exec, 0xffffffff')
        a(f'buffer_store_dwordx4 v[28:31], v12, {srd(S_WS)}, s50 offen')
        a('s_mov_b64 exec, -1')
        a.label(L)
        for w, n in ((2, 12), (3, 5)):
            Lx = self.if_wave('eq', w)
            a(f's_waitcnt vmcnt({n})')
            a.label(Lx)
        Ly = a.newlabel('P0_W23')
        a(f's_sub_u32 s50, s{sW}, 2')
        a('s_cmp_lt_u32 s50, 2')
        a(f's_cbranch_scc1 {Ly}')
        a('s_waitcnt vmcnt(0)')
        a.label(Ly)
        L = self.if_wave('eq', 1)
        self.set_xflag(5, 1)
        a.label(L)
        self.fstamp(58)

    def p0_packs(self):
        a = self.a
        a('s_waitcnt vmcnt(11)')
        L = self.if_wave('eq', 2)
        self.tr_bases(106, 107, (TK + TBOFF, TQ + TBOFF, TV + TBOFF))
        self.pack5('v106', 'v107', lambda i: i * 768, 1, True)
        a.label(L)
        L = self.if_wave('eq', 3)
        a('v_bfe_u32 v30, v1, 5, 1')
        a('v_lshlrev_b32 v30, 4, v30')
        a('v_bfe_u32 v12, v1, 4, 1')
        a('v_lshlrev_b32 v12, 2, v12')
        a('v_add_u32 v30, v30, v12')
        a('v_bfe_u32 v12, v1, 2, 2')
        a('v_add_u32 v30, v30, v12')
        a('v_mul_u32_u24 v30, 160, v30')
        a('v_and_b32 v12, 3, v1')
        a('v_lshlrev_b32 v12, 3, v12')
        a('v_add_u32 v30, v30, v12')
        a('s_mov_b32 s58, s2')
        self.wo_item_pack(0, 's58')
        L2 = a.newlabel('P0_NOI2B')
        a('s_cmp_ge_u32 s2, 64')
        a(f's_cbranch_scc1 {L2}')
        a('s_add_u32 s59, s2, 256')
        self.wo_item_pack(1, 's59')
        a.label(L2)
        a.label(L)

    ACC0, ACC1 = 16, 32
    XR = 48
    WB = 80
    def qkv_main(self, packed):
        a = self.a
        A0, A1, XR, WB = self.ACC0, self.ACC1, self.XR, self.WB
        a.comment('QKV main ' + ('packed' if packed else 'raw'))
        self.cstamp(53)
        if self.args.prio:
            L = self.if_wave('ge', 4)
            a(f's_setprio {self.args.prio}')
            a.label(L)
        vq = VQ()
        a('s_mov_b32 s50, s84')
        def xload(ks):
            r = XR + 4 * (ks % 8)
            if ks % 4 == 0 and ks > 0: a('s_add_u32 s50, s50, 4096')
            a(f'buffer_load_dwordx4 v[{r}:{r+3}], v2, {srd(S_WS)}, s50 offen offset:{(ks % 4) * 1024} sc1')
            vq.push(('x', ks))
        NPRE = self.args.npre
        for ks in range(min(4, NPRE)): xload(ks)
        if packed:
            a(f'v_add_u32 v3, {PWL}, v2')
            a(f'v_add_u32 v15, {PWL + 40960}, v2')
            def wread(ks):
                s = WB + 8 * (ks % 3)
                b = 'v3' if ks < 20 else 'v15'
                o = (ks % 20) * 2048
                a(f'ds_read_b128 v[{s}:{s+3}], {b} offset:{o}')
                if not self.args.e_half: a(f'ds_read_b128 v[{s+4}:{s+7}], {b} offset:{o+1024}')
            nrd = 1 if self.args.e_half else 2
        else:
            def wread(ks):
                s = WB + 8 * (ks % 3)
                a(f'ds_read_b64_tr_b16 v[{s}:{s+1}], v7 offset:{ks*768}')
                a(f'ds_read_b64_tr_b16 v[{s+2}:{s+3}], v7 offset:{ks*768+48}')
                a(f'ds_read_b64_tr_b16 v[{s+4}:{s+5}], v8 offset:{ks*768}')
                a(f'ds_read_b64_tr_b16 v[{s+6}:{s+7}], v8 offset:{ks*768+48}')
            nrd = 4
        wread(0); wread(1)
        for ks in range(4, NPRE): xload(ks)
        nxt = [NPRE]
        a('s_mov_b32 s51, s85')
        late = [f'buffer_load_dwordx4 v[104:107], v2, {srd(S_WS)}, s51 offen sc1',
                f'buffer_load_dwordx4 v[108:111], v2, {srd(S_WS)}, s51 offen offset:1024 sc1']
        lnpre = self.ln_pre_instrs()
        if self.args.fq: self.fstamp(53)
        for ks in range(40):
            if self.args.fq and ks in (1, 8, 20, 39): self.fstamp({1: 54, 8: 55, 20: 56, 39: 57}[ks])
            if ks + 2 < 40 and not self.args.e_now: wread(ks + 2)
            lg = nrd * min(2, 39 - ks)
            a(f's_waitcnt vmcnt({vq.cnt(("x", ks))}) lgkmcnt({lg})')
            s = WB + 8 * (ks % 3); x = XR + 4 * (ks % 8)
            c0 = '0' if ks == 0 else f'v[{A0}:{A0+15}]'
            c1 = '0' if ks == 0 else f'v[{A1}:{A1+15}]'
            if self.args.e_m16:
                for q in range(2):
                    for (AA, so) in ((A0, s), (A1, s + 4)):
                        d = AA + 4 * q + 8 * (ks % 2)
                        a(f'{MF16} v[{d}:{d+3}], v[{so}:{so+3}], v[{x}:{x+3}], {"0" if ks < 2 else f"v[{d}:{d+3}]"}')
            else:
                sA = 140 if self.args.e_dummy else s
                a(f'{MF32} v[{A0}:{A0+15}], v[{sA}:{sA+3}], v[{x}:{x+3}], {c0}')
                s1 = s if self.args.e_half else (136 if self.args.e_dummy else s + 4)
                a(f'{MF32} v[{A1}:{A1+15}], v[{s1}:{s1+3}], v[{x}:{x+3}], {c1}')
            nis = 0
            while nxt[0] < 40 and nxt[0] <= ks + 8 and nis < 2:
                if self.args.e_nox:
                    vq.push(('x', nxt[0]))
                    vq.q.pop(); vq.q.insert(0, ('x', nxt[0]))
                else: xload(nxt[0])
                nxt[0] += 1; nis += 1
            if self.args.lprio and ks == self.args.lprio:
                LP = self.if_wave('ge', 4)
                a('s_setprio 1')
                a.label(LP)
            if ks == 10:
                LF = a.newlabel('QK_FL')
                a(f's_cmp_lg_u32 s{sLAYER}, 0')
                a(f's_cbranch_scc1 {LF}')
                for w, word in ((2, 4), (3, 6)):
                    L = self.if_wave('eq', w)
                    self.set_xflag(word, 1, saddr='s54', vt=('v13', 'v14'))
                    a.label(L)
                a.label(LF)
            if ks >= 12 and ks % 2 == 0 and late:
                a(late.pop(0)); vq.push('late')
            if ks >= 25:
                n = -(-len(lnpre) // (39 - ks)) if ks < 39 else len(lnpre)
                for _ in range(min(n, len(lnpre))): a(lnpre.pop(0))
        assert not late and not lnpre
        self.cstamp(55)
        if self.args.prio or self.args.lprio: a('s_setprio 0')
        a('s_waitcnt vmcnt(0)')
        if self.args.fq: self.fstamp(58)

    def colsum_raw(self):
        a = self.a
        WB = self.WB
        a(f's_mul_i32 s52, s{sW}, 768')
        a('v_add_u32 v12, s52, v7')
        a('v_add_u32 v13, s52, v8')
        for r in range(108, 112): a(f'v_mov_b32 v{r}, 0x3f803f80')
        for i in range(5):
            s = 16 + 8 * i
            a(f'ds_read_b64_tr_b16 v[{s}:{s+1}], v12 offset:{i*6144}')
            a(f'ds_read_b64_tr_b16 v[{s+2}:{s+3}], v12 offset:{i*6144+48}')
            a(f'ds_read_b64_tr_b16 v[{s+4}:{s+5}], v13 offset:{i*6144}')
            a(f'ds_read_b64_tr_b16 v[{s+6}:{s+7}], v13 offset:{i*6144+48}')
        a('s_waitcnt lgkmcnt(0)')
        for i in range(5):
            s = 16 + 8 * i
            a(f'{MF32} v[112:127], v[108:111], v[{s}:{s+3}], {"0" if i == 0 else "v[112:127]"}')
            a(f'{MF32} v[128:143], v[108:111], v[{s+4}:{s+7}], {"0" if i == 0 else "v[128:143]"}')
        a('v_and_b32 v12, 31, v1')
        a('v_lshlrev_b32 v12, 2, v12')
        a('s_mov_b64 exec, 0xffffffff')
        a(f'ds_add_f32 v12, v112 offset:{L_CS}')
        a(f'ds_add_f32 v12, v128 offset:{L_CS+128}')
        a('s_mov_b64 exec, -1')
        a('s_waitcnt lgkmcnt(0)')

    def ln_pre_instrs(self):
        I = []
        I += [f's_bitcmp1_b32 s{sLAYER}, 0', 's_cselect_b64 s[70:71], -1, 0',
              f'v_cndmask_b32 v116, v{vCSA}, v{vCSB}, s[70:71]', f'v_cndmask_b32 v117, v{vCSA+1}, v{vCSB+1}, s[70:71]']
        I += ['v_add_f32 v104, v104, v106', 'v_add_f32 v105, v105, v107', 'v_add_f32 v108, v108, v110', 'v_add_f32 v109, v109, v111',
              'v_add_f32 v112, v104, v108', 'v_add_f32 v113, v105, v109', 'v_mov_b32 v114, v112', 'v_mov_b32 v115, v113',
              'v_mov_b32 v122, 0', 'v_mov_b32 v123, 0',
              'v_permlane32_swap_b32 v112, v114', 'v_permlane32_swap_b32 v113, v115',
              'v_add_f32 v112, v112, v114', 'v_add_f32 v113, v113, v115', 's_mov_b32 s72, 0x3acccccd',
              'v_mul_f32 v112, s72, v112', 'v_mul_f32 v113, s72, v113', 'v_fma_f32 v113, -v112, v112, v113',
              'v_add_f32 v113, 0x3727c5ac, v113', 'v_rsq_f32 v132, v113',
              'v_sub_f32 v114, 0, v112', 'v_cvt_pk_bf16_f32 v120, v114, v114', 'v_lshlrev_b32 v115, 16, v120',
              'v_sub_f32 v115, v114, v115', 'v_cvt_pk_bf16_f32 v121, v115, v122',
              f'v_cndmask_b32 v120, v122, v120, {LO}', f'v_cndmask_b32 v121, v122, v121, {LO}']
        for src, dst in ((116, 124), (117, 128)):
            I += [f'v_cvt_pk_bf16_f32 v118, v{src}, v{src}', 'v_lshlrev_b32 v118, 16, v118', f'v_sub_f32 v119, v{src}, v118',
                  f'v_cvt_pk_bf16_f32 v{dst}, v118, v119', f'v_cvt_pk_bf16_f32 v{dst+1}, v118, v122',
                  f'v_cndmask_b32 v{dst}, v122, v{dst}, {LO}', f'v_cndmask_b32 v{dst+1}, v122, v{dst+1}, {LO}',
                  f'v_mov_b32 v{dst+2}, 0', f'v_mov_b32 v{dst+3}, 0']
        return I

    def ln_fix(self, packed):
        a = self.a
        A0, A1 = self.ACC0, self.ACC1
        a(f'{MF32} v[{A0}:{A0+15}], v[124:127], v[120:123], v[{A0}:{A0+15}]')
        a(f'{MF32} v[{A1}:{A1+15}], v[128:131], v[120:123], v[{A1}:{A1+15}]')
        a('v_mov_b32 v101, v132')

    def img_addr_regs(self):
        a = self.a
        a('v_and_b32 v10, 31, v1')
        a(f's_lshl_b32 s50, s{sRB}, 5')
        a('s_add_u32 s50, s50, 256')
        a('v_add_u32 v10, s50, v10')
        a('v_mul_u32_u24 v10, 48, v10')
        a('v_lshrrev_b32 v11, 5, v1')
        a('v_lshlrev_b32 v12, 4, v11')
        a('v_add_u32 v120, v10, v12')
        a('v_lshlrev_b32 v12, 3, v11')
        a('v_sub_u32 v121, v10, v12')
        a('v_add_u32 v121, 32, v121')
        a('v_add_u32 v122, v10, v12')
        a(f'v_add_u32 v122, {VIMG}, v122')
        a(f'v_mul_u32_u24 v12, {VIMG + 32 - 8}, v11')
        a('v_add_u32 v123, v10, v12')
        a('v_add_u32 v123, 8, v123')
        a(f'v_mul_u32_u24 v12, {VIMG}, v11')
        a('v_add_u32 v124, v10, v12')
        a('v_add_u32 v124, 40, v124')

    def setup_persistent(self):
        a = self.a
        self.img_addr_regs()
        for k in range(5): a(f'v_mov_b32 v{vPI[k]}, v{120+k}')
        self.attn_addr()
        for k in range(3): a(f'v_mov_b32 v{vPA[k]}, v{105+k}')
        self.o_addr_lane()
        for k in range(3): a(f'v_mov_b32 v{vPO[k]}, v{40+k}')
        L = self.if_wave('eq', 5)
        self.attn_masks_md(32)
        for q in range(4):
            a(f'ds_write_b128 v2, v[{32+4*q}:{35+4*q}] offset:{L_MD + q*1024}')
        a('s_waitcnt lgkmcnt(0)')
        a.label(L)

    def write_img(self, regs):
        a = self.a
        a(f'ds_write_b64 v{vPI[0]}, v[{regs["B1g0"]}:{regs["B1g0"]+1}]')
        a(f'ds_write_b64 v{vPI[1]}, v[{regs["B0g3"]}:{regs["B0g3"]+1}]')
        a(f'ds_write_b64 v{vPI[2]}, v[{regs["B1g1"]}:{regs["B1g1"]+1}]')
        a(f'ds_write_b64 v{vPI[2]}, v[{regs["B1g2"]}:{regs["B1g2"]+1}] offset:16')
        a(f'ds_write_b64 v{vPI[3]}, v[{regs["B1g3"]}:{regs["B1g3"]+1}]')
        a('v_mov_b32 v12, 0x3f80')
        a('v_mov_b32 v13, 0')
        a(f'v_cndmask_b32 v12, v12, v13, {LO}')
        a(f'ds_write_b64 v{vPI[4]}, v[12:13]')

    def wave_max(self, reg, tmp):
        a = self.a
        for ror in (8, 4, 2, 1):
            a(f'v_mov_b32_dpp v{tmp}, v{reg} row_ror:{ror} row_mask:0xf bank_mask:0xf')
            a(f'v_max_f32 v{reg}, v{reg}, v{tmp}')
        a(f'v_mov_b32 v{tmp}, v{reg}')
        a(f'v_permlane16_swap_b32 v{reg}, v{tmp}')
        a(f'v_max_f32 v{reg}, v{reg}, v{tmp}')
        a(f'v_mov_b32 v{tmp}, v{reg}')
        a(f'v_permlane32_swap_b32 v{reg}, v{tmp}')
        a(f'v_max_f32 v{reg}, v{reg}, v{tmp}')

    QA, QB = 96, 100
    vQN = 104
    def kvx_base(self, dst, wg_s):
        a = self.a
        a(f's_lshr_b32 {dst}, s{sLAYER}, 1')
        a(f's_mul_i32 {dst}, {dst}, {KVX_SZ}')
        a(f's_add_u32 {dst}, {dst}, {WS_KVX}')
        a(f's_mul_i32 s63, {wg_s}, 24576')
        a(f's_add_u32 {dst}, {dst}, s63')

    def export_own(self):
        a = self.a
        a(f's_mul_i32 s50, s{sRB}, 1536')
        a('v_add_u32 v60, s50, v2')
        a('v_add_u32 v62, 12800, v60')
        a('v_add_u32 v61, 1024, v60')
        a('v_add_u32 v63, 11776, v60')
        a(f'v_cndmask_b32 v61, v63, v61, {LO}')
        a('v_add_u32 v63, 12288, v61')
        a(f'v_add_u32 v10, {VIMG}, v61')
        a(f'v_cndmask_b32 v63, v10, v63, {LO}')
        a('ds_read_b128 v[48:51], v60 offset:12288')
        a('ds_read_b128 v[52:55], v63')
        a(f'ds_read_b128 v[56:59], v62 offset:{VIMG}')
        self.kvx_base('s51', 's2')
        a('s_waitcnt lgkmcnt(0)')
        a(f'buffer_store_dwordx4 v[48:51], v60, {srd(S_WS)}, s51 offen sc1')
        a(f'buffer_store_dwordx4 v[52:55], v61, {srd(S_WS)}, s51 offen sc1')
        a(f'buffer_store_dwordx4 v[56:59], v62, {srd(S_WS)}, s51 offen sc1')

    def set_block_flag(self):
        a = self.a
        a(f's_lshl_b32 s53, s{sRB}, 2')
        a('s_add_u32 s53, s53, 32')
        a(f's_add_u32 s54, s{sLAYER}, 1')
        self.set_xflag('s53', 's54')

    def epi_B(self):
        a = self.a
        A0, A1 = self.ACC0, self.ACC1
        QA, QB = self.QA, self.QB
        a(f's_mov_b32 s{sNEED}, 1')
        a('s_mov_b32 s52, 0x3ea52b5c')
        a('v_mul_f32 v102, s52, v101')
        for r in range(12, 16): a(f'v_mul_f32 v{A0+r}, v101, v{A0+r}')
        for r in range(16): a(f'v_mul_f32 v{A1+r}, v101, v{A1+r}')
        pk = {'B0g3': (106, A0+12), 'B1g0': (108, A1), 'B1g1': (110, A1+4), 'B1g2': (112, A1+8), 'B1g3': (114, A1+12)}
        for n, (d, s_) in pk.items():
            a(f'v_cvt_pk_bf16_f32 v{d}, v{s_}, v{s_+1}')
            a(f'v_cvt_pk_bf16_f32 v{d+1}, v{s_+2}, v{s_+3}')
        self.write_img({n: d for n, (d, _) in pk.items()})
        a(f'v_mul_f32 v118, v{A0+12}, v{A0+12}')
        for r in [A0+13, A0+14, A0+15, A1, A1+1, A1+2, A1+3]: a(f'v_fmac_f32 v118, v{r}, v{r}')
        a(f'v_mul_f32 v119, v{A1+12}, v{A1+12}')
        for r in range(13, 16): a(f'v_fmac_f32 v119, v{A1+r}, v{A1+r}')
        a('v_mov_b32 v13, 0')
        a(f'v_cndmask_b32 v119, v13, v119, {LO}')
        a('v_add_f32 v118, v118, v119')
        a('v_mov_b32 v119, v118')
        a('v_permlane32_swap_b32 v118, v119')
        a('v_add_f32 v118, v118, v119')
        a('s_waitcnt lgkmcnt(0)')
        NOEXP = a.newlabel('EB_NOEXP')
        a(f's_cmp_eq_u32 s{sJ}, 7')
        a(f's_cbranch_scc1 {NOEXP}')
        if self.args.fe: self.fstamp(53)
        self.export_own()
        if self.args.fe: self.fstamp(54)
        a.label(NOEXP)
        self.wave_max(118, 117)
        NOEXP2 = a.newlabel('EB_NOEXP2')
        a(f's_cmp_eq_u32 s{sJ}, 7')
        a(f's_cbranch_scc1 {NOEXP2}')
        a('s_lshl_b32 s52, s2, 6')
        a(f's_add_u32 s52, s52, {WS_XKN}')
        a(f's_lshl_b32 s53, s{sRB}, 2')
        a('v_mov_b32 v12, s53')
        a('s_mov_b64 exec, 1')
        a(f'buffer_store_dword v118, v12, {srd(S_WS)}, s52 offen sc1')
        a('s_mov_b64 exec, -1')
        a.label(NOEXP2)
        a(f's_lshl_b32 s50, s{sW}, 2')
        a('v_mov_b32 v12, s50')
        a('s_mov_b64 exec, 1')
        a(f'ds_write_b32 v12, v118 offset:{L_KN}')
        a('s_mov_b64 exec, -1')
        L = self.if_wave('eq', 0)
        a('v_lshlrev_b32 v12, 2, v1')
        a('v_mov_b32 v13, 0')
        a('s_mov_b64 exec, 0xff')
        a(f'ds_write_b32 v12, v13 offset:{L_KN+32}')
        a('s_mov_b64 exec, -1')
        a.label(L)
        L = self.if_wave('lt', 4)
        self.epi_B_q()
        a.label(L)
        for q in range(4):
            a(f'ds_read_b128 v[{self.AMD+4*q}:{self.AMD+4*q+3}], v2 offset:{L_MD + q*1024}')
        L = self.if_wave('lt', 4)
        LJ = a.newlabel('EB_J7')
        a(f's_cmp_eq_u32 s{sJ}, 7')
        a(f's_cbranch_scc1 {LJ}')
        if self.args.fe: self.fstamp(55)
        a('s_waitcnt vmcnt(0)')
        if self.args.fe: self.fstamp(56)
        self.set_block_flag()
        a.label(LJ)
        if self.args.maxtry > 0:
            L0 = self.if_wave('eq', 0)
            self.s1_issue(self.args.maxtry)
            a(f'v_mov_b32 v11, {L_SIG}')
            a(f'v_mov_b32 v12, s{sNEED}')
            a('ds_write_b32 v11, v12 offset:16')
            a.label(L0)
        a.label(L)
        if self.args.fe: self.fstamp(57)
        if self.args.fli < 0:
            L = self.if_wave('ge', 4)
            self.light_flag()
            a.label(L)
        a('s_waitcnt lgkmcnt(0)')
        a('s_barrier')

    def epi_B_q(self):
        a = self.a
        A0 = self.ACC0
        QA, QB = self.QA, self.QB
        for r in range(0, 12): a(f'v_mul_f32 v{A0+r}, v102, v{A0+r}')
        for j in range(4): a(f'v_cvt_pk_bf16_f32 v{QA+j}, v{A0+2*j}, v{A0+2*j+1}')
        a(f'v_cvt_pk_bf16_f32 v{QB}, v{A0+8}, v{A0+9}')
        a(f'v_cvt_pk_bf16_f32 v{QB+1}, v{A0+10}, v{A0+11}')
        a('v_mul_f32 v116, v16, v16')
        for r in range(1, 8): a(f'v_fmac_f32 v116, v{A0+r}, v{A0+r}')
        a(f'v_mul_f32 v117, v{A0+8}, v{A0+8}')
        for r in range(9, 12): a(f'v_fmac_f32 v117, v{A0+r}, v{A0+r}')
        a('v_mov_b32 v13, 0')
        a(f'v_mov_b32 v{QB+2}, 0x3f80')
        a(f'v_mov_b32 v{QB+3}, 0')
        for j in range(3): a(f'v_cndmask_b32 v{QB+j}, v13, v{QB+j}, {LO}')
        a(f'v_cndmask_b32 v117, v13, v117, {LO}')
        a('v_add_f32 v116, v116, v117')
        a('v_mov_b32 v117, v116')
        a('v_permlane32_swap_b32 v116, v117')
        a(f'v_add_f32 v{self.vQN}, v116, v117')
        self.wave_max(self.vQN, 116)

    def imp_addr(self, st):
        a = self.a
        half = 6144 if st == 1 else 0
        a('v_lshlrev_b32 v10, 4, v0')
        a(f'v_add_u32 v184, {half}, v10')
        a(f'v_add_u32 v185, {half + 4096}, v10')
        a(f'v_add_u32 v186, {12288 + half - 2048}, v10')
        a('v_cmp_gt_u32 vcc, 2048, v10')
        a('v_cndmask_b32 v185, v186, v185, vcc')
        a(f'v_add_u32 v186, {12288 + half + 2048}, v10')
        a(f'v_add_u32 v187, {VIMG - 12288}, v185')
        a('v_cndmask_b32 v187, v187, v185, vcc')

    def imp_flagload(self, st):
        a = self.a
        a('s_sub_u32 s54, s2, 1')
        self.xflag_addr('s52', 's54')
        a('v_and_b32 v11, 3, v1')
        a('v_lshlrev_b32 v11, 2, v11')
        a(f'v_add_u32 v11, {32 + (16 if st == 1 else 0)}, v11')
        a(f'buffer_load_dword v176, v11, {srd(S_WS)}, s52 offen sc1')

    def imp_loads(self, st):
        a = self.a
        a('s_sub_u32 s54, s2, 1')
        self.kvx_base('s51', 's54')
        a(f'buffer_load_dwordx4 v[160:163], v184, {srd(S_WS)}, s51 offen sc1')
        a(f'buffer_load_dwordx4 v[164:167], v185, {srd(S_WS)}, s51 offen sc1')
        a(f'buffer_load_dwordx4 v[168:171], v186, {srd(S_WS)}, s51 offen sc1')
        a('s_lshl_b32 s52, s54, 6')
        a(f's_add_u32 s52, s52, {WS_XKN + (16 if st == 1 else 0)}')
        a('v_and_b32 v11, 3, v1')
        a('v_lshlrev_b32 v11, 2, v11')
        a(f'buffer_load_dword v172, v11, {srd(S_WS)}, s52 offen sc1')

    def imp_try(self, st, nyounger):
        a = self.a
        N = a.newlabel('IT_NO'); E = a.newlabel('IT_E')
        a(f's_waitcnt vmcnt({nyounger})')
        a(f's_add_u32 s63, s{sNONCE}, s{sLAYER}')
        a('s_add_u32 s63, s63, 1')
        a('v_subrev_u32 v176, s63, v176')
        a('v_cmp_lt_u32 vcc, 7, v176')
        a('s_and_b32 s61, vcc_lo, 0xf')
        a('s_cmp_eq_u32 s61, 0')
        a(f's_cbranch_scc0 {N}')
        self.imp_addr(st)
        self.imp_loads(st)
        a(f's_mov_b32 s{sNEED}, 0')
        a(f's_branch {E}')
        a.label(N)
        a(f's_mov_b32 s{sNEED}, 1')
        a.label(E)

    def imp_fill_vals(self, nK, tsrc):
        pass

    def imp_finish(self, st):
        a = self.a
        FILL = a.newlabel('IM_FILL'); E = a.newlabel('IM_END')
        a(f's_cmp_eq_u32 s{sJ}, 0')
        a(f's_cbranch_scc1 {FILL}')
        a('s_sub_u32 s54, s2, 1')
        self.xflag_addr('s52', 's54')
        a(f's_add_u32 s53, s{sLAYER}, 1')
        a('v_and_b32 v11, 3, v1')
        a('v_lshlrev_b32 v11, 2, v11')
        a('v_add_u32 v11, 48, v11')
        self.poll('v11', 's52', 4, 's53')
        self.imp_addr(1)
        self.imp_loads(1)
        a('s_waitcnt vmcnt(0)')
        a('ds_write_b128 v184, v[160:163]')
        a('ds_write_b128 v187, v[164:167]')
        a(f'ds_write_b128 v186, v[168:171] offset:{VIMG - 12288}')
        for ror in (2, 1):
            a(f'v_mov_b32_dpp v173, v172 row_ror:{ror} row_mask:0xf bank_mask:0xf')
            a('v_max_f32 v172, v172, v173')
        a(f'v_mov_b32 v12, {L_KN + 32}')
        a('s_mov_b64 exec, 1')
        a('ds_write_b32 v12, v172')
        a('s_mov_b64 exec, -1')
        a(f's_branch {E}')
        a.label(FILL)
        self.imp_addr(1)
        a('v_lshlrev_b32 v10, 4, v0')
        for r in range(160, 172): a(f'v_mov_b32 v{r}, 0')
        for n, reg in ((0, 162), (1, 166)):
            a(f'v_lshrrev_b32 v11, 4, v10')
            a(f'v_add_u32 v11, {n*256}, v11')
            a('v_mul_u32_u24 v12, 21846, v11')
            a('v_lshrrev_b32 v12, 16, v12')
            a('v_mul_u32_u24 v12, 3, v12')
            a('v_sub_u32 v12, v11, v12')
            a('v_cmp_eq_u32 s[70:71], 2, v12')
            if n == 1:
                a('v_cmp_gt_u32 vcc, 2048, v10')
                a('s_and_b64 s[70:71], s[70:71], vcc')
            a('v_mov_b32 v13, 0xf14a')
            a(f'v_cndmask_b32 v{reg}, v{reg}, v13, s[70:71]')
        a('ds_write_b128 v184, v[160:163]')
        a('ds_write_b128 v187, v[164:167]')
        a(f'ds_write_b128 v186, v[168:171] offset:{VIMG - 12288}')
        a(f'v_mov_b32 v12, {L_KN + 32}')
        a('s_mov_b64 exec, 1')
        a('ds_write_b32 v12, v160')
        a('s_mov_b64 exec, -1')
        a.label(E)
        a('s_waitcnt lgkmcnt(0)')

    S1K = [160, 164, 168, 172, 184, 108]; S1V = [128, 132, 136, 140, 48, 52]
    def s1_issue(self, maxtry):
        a = self.a
        E = a.newlabel('S1_E'); Z = a.newlabel('S1_Z')
        a(f's_mov_b32 s{sNEED}, 0')
        a(f's_cmp_eq_u32 s{sJ}, 0')
        a(f's_cbranch_scc1 {E}')
        a('s_sub_u32 s54, s2, 1')
        self.xflag_addr('s52', 's54')
        a('v_and_b32 v11, 3, v1')
        a('v_lshlrev_b32 v11, 2, v11')
        a('v_add_u32 v11, 48, v11')
        if maxtry is None:
            a(f's_add_u32 s53, s{sLAYER}, 1')
            self.poll('v11', 's52', 4, 's53')
        else:
            L = a.newlabel('S1_TRY'); OK = a.newlabel('S1_OK')
            a('s_mov_b32 s60, 0')
            a(f's_add_u32 s63, s{sNONCE}, s{sLAYER}')
            a('s_add_u32 s63, s63, 1')
            a.label(L)
            a(f'buffer_load_dword v12, v11, {srd(S_WS)}, s52 offen sc1')
            a('s_waitcnt vmcnt(0)')
            a('v_subrev_u32 v12, s63, v12')
            a('v_cmp_lt_u32 vcc, 7, v12')
            a('s_and_b32 s61, vcc_lo, 0xf')
            a('s_cmp_eq_u32 s61, 0')
            a(f's_cbranch_scc1 {OK}')
            a('s_add_u32 s60, s60, 1')
            a(f's_cmp_lt_u32 s60, {maxtry}')
            a(f's_cbranch_scc1 {L}')
            a(f's_mov_b32 s{sNEED}, 1')
            a(f's_branch {E}')
            a.label(OK)
        self.kvx_base('s51', 's54')
        a(f's_add_u32 s55, s51, {12288 + 6144}')
        a('s_add_u32 s51, s51, 6144')
        a('s_lshl_b32 s52, s54, 6')
        a(f's_add_u32 s52, s52, {WS_XKN + 16}')
        a('v_and_b32 v11, 3, v1')
        a('v_lshlrev_b32 v11, 2, v11')
        a(f'buffer_load_dword v14, v11, {srd(S_WS)}, s52 offen sc1')
        for n in range(6):
            if n == 4: a('s_add_u32 s51, s51, 4096')
            r = self.S1K[n]
            a(f'buffer_load_dwordx4 v[{r}:{r+3}], v2, {srd(S_WS)}, s51 offen offset:{(n%4)*1024} sc1')
        for n in range(6):
            if n == 4: a('s_add_u32 s55, s55, 4096')
            r = self.S1V[n]
            a(f'buffer_load_dwordx4 v[{r}:{r+3}], v2, {srd(S_WS)}, s55 offen offset:{(n%4)*1024} sc1')
        a.label(E)

    def s1_finish(self):
        a = self.a
        FILL = a.newlabel('S1_FILL'); E = a.newlabel('S1_END')
        half = 6144
        a(f's_cmp_eq_u32 s{sJ}, 0')
        a(f's_cbranch_scc1 {FILL}')
        a('s_waitcnt vmcnt(12)')
        for ror in (2, 1):
            a(f'v_mov_b32_dpp v15, v14 row_ror:{ror} row_mask:0xf bank_mask:0xf')
            a('v_max_f32 v14, v14, v15')
        a(f'v_mov_b32 v12, {L_KN + 32}')
        a('s_mov_b64 exec, 1')
        a('ds_write_b32 v12, v14')
        a('s_mov_b64 exec, -1')
        for n in range(6):
            r = self.S1K[n]
            a(f's_waitcnt vmcnt({11 - n})')
            a(f'ds_write_b128 v2, v[{r}:{r+3}] offset:{KIMG + half + n*1024}')
        for n in range(6):
            r = self.S1V[n]
            a(f's_waitcnt vmcnt({5 - n})')
            a(f'ds_write_b128 v2, v[{r}:{r+3}] offset:{VIMG + half + n*1024}')
        a(f's_branch {E}')
        a.label(FILL)
        for r in range(160, 168): a(f'v_mov_b32 v{r}, 0')
        for n in range(6):
            a(f'v_add_u32 v11, {n*64}, v1')
            a('v_mul_u32_u24 v12, 21846, v11')
            a('v_lshrrev_b32 v12, 16, v12')
            a('v_mul_u32_u24 v12, 3, v12')
            a('v_sub_u32 v12, v11, v12')
            a('v_cmp_eq_u32 vcc, 2, v12')
            a('v_mov_b32 v13, 0xf14a')
            a('v_cndmask_b32 v162, v160, v13, vcc')
            a(f'ds_write_b128 v2, v[160:163] offset:{KIMG + half + n*1024}')
            a(f'ds_write_b128 v2, v[164:167] offset:{VIMG + half + n*1024}')
        a.label(E)
        a('s_waitcnt lgkmcnt(0)')
        self.cnt_inc(L_CNTA)
        a('s_waitcnt lgkmcnt(0)')

    I2R = [160, 164, 168, 172, 184, 108]
    def i2_flag(self):
        a = self.a
        a('s_sub_u32 s54, s2, 1')
        self.xflag_addr('s52', 's54')
        a('v_and_b32 v11, 3, v1')
        a('v_lshlrev_b32 v11, 2, v11')
        a('v_add_u32 v11, 32, v11')
        a(f'buffer_load_dword v182, v11, {srd(S_WS)}, s52 offen sc1')
    def i2_loads(self):
        a = self.a
        a('s_sub_u32 s54, s2, 1')
        self.kvx_base('s51', 's54')
        a(f's_sub_u32 s55, s{sW}, 6')
        a('s_mul_i32 s55, s55, 12288')
        a('s_add_u32 s51, s51, s55')
        a('s_lshl_b32 s52, s54, 6')
        a(f's_add_u32 s52, s52, {WS_XKN}')
        a('v_and_b32 v11, 3, v1')
        a('v_lshlrev_b32 v11, 2, v11')
        a(f'buffer_load_dword v183, v11, {srd(S_WS)}, s52 offen sc1')
        for n in range(6):
            r = self.I2R[n]
            if n == 4: a('s_add_u32 s51, s51, 4096')
            a(f'buffer_load_dwordx4 v[{r}:{r+3}], v2, {srd(S_WS)}, s51 offen offset:{(n%4)*1024} sc1')
    def i2_try(self):
        a = self.a
        N = a.newlabel('I2T_N'); E = a.newlabel('I2T_E')
        a('s_waitcnt vmcnt(0)')
        a(f's_add_u32 s63, s{sNONCE}, s{sLAYER}')
        a('s_add_u32 s63, s63, 1')
        a('v_subrev_u32 v182, s63, v182')
        a('v_cmp_lt_u32 vcc, 7, v182')
        a('s_and_b32 s61, vcc_lo, 0xf')
        a('s_cmp_eq_u32 s61, 0')
        a(f's_cbranch_scc0 {N}')
        self.i2_loads()
        a(f's_mov_b32 s{sNEED}, 0')
        a(f's_branch {E}')
        a.label(N)
        a(f's_mov_b32 s{sNEED}, 1')
        a.label(E)
    def i2_finish(self):
        a = self.a
        FILL = a.newlabel('I2F_FILL'); E = a.newlabel('I2F_E'); GO = a.newlabel('I2F_GO')
        a(f's_sub_u32 s55, s{sW}, 6')
        a(f's_mul_i32 s55, s55, {VIMG}')
        a('v_add_u32 v13, s55, v2')
        a(f's_cmp_eq_u32 s{sJ}, 0')
        a(f's_cbranch_scc1 {FILL}')
        a(f's_cmp_eq_u32 s{sNEED}, 0')
        a(f's_cbranch_scc1 {GO}')
        a('s_sub_u32 s54, s2, 1')
        self.xflag_addr('s52', 's54')
        a(f's_add_u32 s53, s{sLAYER}, 1')
        a('v_and_b32 v11, 3, v1')
        a('v_lshlrev_b32 v11, 2, v11')
        a('v_add_u32 v11, 32, v11')
        self.poll('v11', 's52', 4, 's53')
        self.i2_loads()
        a.label(GO)
        a('s_waitcnt vmcnt(0)')
        for n in range(6):
            r = self.I2R[n]
            a(f'ds_write_b128 v13, v[{r}:{r+3}] offset:{n*1024}')
        for ror in (2, 1):
            a(f'v_mov_b32_dpp v15, v183 row_ror:{ror} row_mask:0xf bank_mask:0xf')
            a('v_max_f32 v183, v183, v15')
        a(f'v_mov_b32 v12, {L_KN + 36}')
        a('s_mov_b64 exec, 1')
        a('ds_write_b32 v12, v183')
        a('s_mov_b64 exec, -1')
        a(f's_branch {E}')
        a.label(FILL)
        for r in range(160, 164): a(f'v_mov_b32 v{r}, 0')
        for n in range(6):
            a(f'v_add_u32 v11, {n*64}, v1')
            a('v_mul_u32_u24 v12, 21846, v11')
            a('v_lshrrev_b32 v12, 16, v12')
            a('v_mul_u32_u24 v12, 3, v12')
            a('v_sub_u32 v12, v11, v12')
            a('v_cmp_eq_u32 vcc, 2, v12')
            a(f's_cmp_eq_u32 s{sW}, 6')
            a('s_cselect_b32 s55, 0xf14a, 0')
            a('v_mov_b32 v14, s55')
            a('v_cndmask_b32 v162, v160, v14, vcc')
            a(f'ds_write_b128 v13, v[160:163] offset:{n*1024}')
        a.label(E)
        a('s_waitcnt lgkmcnt(0)')
        self.cnt_inc(L_CNTB)
        a('s_waitcnt lgkmcnt(0)')

    def cnt_inc(self, addr):
        a = self.a
        a(f'v_mov_b32 v11, {addr}')
        a('v_mov_b32 v12, 1')
        a('s_mov_b64 exec, 1')
        a('ds_add_u32 v11, v12')
        a('s_mov_b64 exec, -1')

    def cnt_wait(self, addr):
        a = self.a
        L = a.newlabel('CW'); D = a.newlabel('CWD')
        a(f's_add_u32 s62, s{sLAYER}, 1')
        if addr == L_CNTA: a('s_lshr_b32 s62, s62, 1')
        a(f'v_mov_b32 v11, {addr}')
        a('s_mov_b32 s60, 0')
        a.label(L)
        a('ds_read_b32 v12, v11')
        a('s_waitcnt lgkmcnt(0)')
        a('v_readfirstlane_b32 s61, v12')
        a('s_cmp_ge_u32 s61, s62')
        a(f's_cbranch_scc1 {D}')
        a('s_sleep 1')
        a('s_add_u32 s60, s60, 1')
        a('s_cmp_lt_u32 s60, 0x200000')
        a(f's_cbranch_scc1 {L}')
        a.label(D)

    def light_flag(self):
        a = self.a
        E = a.newlabel('LF_E')
        a(f's_cmp_eq_u32 s{sJ}, 7')
        a(f's_cbranch_scc1 {E}')
        a('s_waitcnt vmcnt(0)')
        self.set_block_flag()
        a.label(E)

    def attn_addr(self):
        a = self.a
        a('v_and_b32 v10, 31, v1')
        a(f's_lshl_b32 s50, s{sRB}, 5')
        a('v_add_u32 v10, s50, v10')
        a('v_mul_u32_u24 v10, 48, v10')
        a('v_lshrrev_b32 v11, 5, v1')
        a('v_lshlrev_b32 v12, 4, v11')
        a('v_add_u32 v105, v10, v12')
        a('v_add_u32 v106, 32, v10')
        a('v_bfe_u32 v12, v1, 2, 2')
        a('v_lshlrev_b32 v13, 2, v11')
        a('v_add_u32 v12, v12, v13')
        a('v_add_u32 v12, s50, v12')
        a('v_mul_u32_u24 v12, 48, v12')
        a('v_and_b32 v13, 3, v1')
        a('v_lshlrev_b32 v14, 3, v13')
        a('v_min_u32 v15, 1, v13')
        a('v_lshlrev_b32 v15, 3, v15')
        a('v_add_u32 v15, 32, v15')
        a('v_bfe_u32 v13, v1, 4, 1')
        a('v_cmp_eq_u32 vcc, 1, v13')
        a('v_cndmask_b32 v14, v14, v15, vcc')
        a('v_add_u32 v12, v12, v14')
        a(f'v_add_u32 v107, {VIMG}, v12')

    def attn_masks_md(self, MD):
        a = self.a
        a('v_and_b32 v10, 31, v1')
        a('v_lshrrev_b32 v11, 5, v1')
        a('v_lshlrev_b32 v13, 2, v11')
        a('v_sub_u32 v10, v10, v13')
        a('v_mov_b32 v14, 0xf149f2ca')
        a('v_mov_b32 v15, 0')
        conds = ['s[70:71]', 's[72:73]', 's[74:75]', 's[76:77]']
        for r0 in range(0, 16, 4):
            for q in range(4):
                r = r0 + q
                kk = 8 * (r >> 2) + (r & 3)
                a(f'v_cmp_le_i32 {conds[q]}, {kk}, v10')
            for q in range(4):
                r = r0 + q
                a(f'v_cndmask_b32 v{MD+r}, v14, v15, {conds[q]}')

    def make_mf(self, r0, r1):
        for r in range(r0, r1):
            self.a(f'v_sub_f32 v{self.AMF+r}, 0xf149f2ca, v{self.AMD+r}')

    def norm_check(self, fail_label):
        a = self.a
        a('v_and_b32 v11, 15, v1')
        a('v_lshlrev_b32 v11, 2, v11')
        a(f'ds_read_b32 v12, v11 offset:{L_KN}')
        a('s_waitcnt lgkmcnt(0)')
        for ror in (8, 4, 2, 1):
            a(f'v_mov_b32_dpp v13, v12 row_ror:{ror} row_mask:0xf bank_mask:0xf')
            a('v_max_f32 v12, v12, v13')
        a(f'v_mul_f32 v12, v{self.vQN}, v12')
        a(f's_mov_b32 s50, {self.args.t2hex}')
        a('v_mov_b32 v13, s50')
        a('v_cmp_nle_f32 vcc, v12, v13')
        a('s_cmp_lg_u64 vcc, 0')
        a(f's_cbranch_scc1 {fail_label}')

    AO, AMD, AMF, AVF, AKF, ASB, ANM = 16, 32, 48, 64, 80, 112, 160
    def at_kread(self, i):
        n = 8 - i; s = self.AKF + 8 * (i % 2)
        self.a(f'ds_read_b128 v[{s}:{s+3}], v{vPA[0]} offset:{n*1536}')
        self.a(f'ds_read_b128 v[{s+4}:{s+7}], v{vPA[1]} offset:{n*1536}')
    def at_vread(self, i):
        n = 8 - i; s = self.AVF + 8 * (i % 2)
        for s2 in range(2):
            for sx in range(2):
                self.a(f'ds_read_b64_tr_b16 v[{s+4*s2+2*sx}:{s+4*s2+2*sx+1}], v{vPA[2]} offset:{n*1536 + s2*768 + sx*384}')
    def at_smfma(self, i, part, cz):
        s = self.AKF + 8 * (i % 2); d = self.ASB + 16 * (i % 2)
        MD, MF, QA, QB = self.AMD, self.AMF, self.QA, self.QB
        if part == 0:
            c = f'v[{MD}:{MD+15}]' if i == 0 else f'v[{MF}:{MF+15}]' if i == 8 else cz
            self.a(f'{MF32} v[{d}:{d+15}], v[{s}:{s+3}], v[{QA}:{QA+3}], {c}')
        else:
            self.a(f'{MF32} v[{d}:{d+15}], v[{s+4}:{s+7}], v[{QB}:{QB+3}], v[{d}:{d+15}]')

    def attn_loop(self, cz, sync):
        a = self.a
        O, VF, SB = self.AO, self.AVF, self.ASB
        def pv(i, k):
            s = VF + 8 * (i % 2) + 4 * k; d = SB + 16 * (i % 2) + 4 * k
            c = '0' if (i == 0 and k == 0) else f'v[{O}:{O+15}]'
            a(f'{MF32} v[{O}:{O+15}], v[{s}:{s+3}], v[{d}:{d+3}], {c}')
        self.at_kread(0); self.at_vread(0)
        a('s_waitcnt lgkmcnt(4)')
        self.at_smfma(0, 0, cz); self.at_smfma(0, 1, cz)
        for i in range(9):
            d = SB + 16 * (i % 2)
            if sync and self.args.fi: self.fstamp(53 + i)
            ex = lambda r0, r1: [a(f'v_exp_f32 v{d+r}, v{d+r}') for r in range(r0, r1)]
            cv = lambda j0, j1: [a(f'v_cvt_pk_bf16_f32 v{d+j}, v{d+2*j}, v{d+2*j+1}') for j in range(j0, j1)]
            if i < 8:
                if sync: sync(i)
                self.at_kread(i + 1)
                ex(0, 4)
                if i > 0: pv(i - 1, 1)
                self.at_vread(i + 1)
                a('s_waitcnt lgkmcnt(4)')
                self.at_smfma(i + 1, 0, cz)
                ex(4, 8)
                if sync and i in (5, 6): self.make_mf(8 * (i - 5), 8 * (i - 5) + 8)
                cv(0, 2)
                ex(8, 12)
                self.at_smfma(i + 1, 1, cz)
                cv(2, 4)
                ex(12, 16)
                pv(i, 0)
                cv(4, 8)
            else:
                ex(0, 4)
                pv(i - 1, 1)
                ex(4, 8)
                cv(0, 2)
                ex(8, 12)
                cv(2, 4)
                a('s_waitcnt lgkmcnt(0)')
                ex(12, 16)
                pv(i, 0)
                cv(4, 8)
                pv(i, 1)

    def attn_true(self):
        a = self.a
        MD, MF, SB, NM = self.AMD, self.AMF, self.ASB, self.ANM
        self.make_mf(0, 16)
        a('v_mov_b32 v10, 0xff7fffff')
        a('v_mov_b32 v11, 0xff7fffff')
        self.at_kread(0)
        for i in range(9):
            if i < 8:
                self.at_kread(i + 1); a('s_waitcnt lgkmcnt(2)')
            else: a('s_waitcnt lgkmcnt(0)')
            self.at_smfma(i, 0, '0'); self.at_smfma(i, 1, '0')
            d = SB + 16 * (i % 2)
            for k in range(0, 16, 4):
                a(f'v_max3_f32 v10, v10, v{d+k}, v{d+k+1}')
                a(f'v_max3_f32 v11, v11, v{d+k+2}, v{d+k+3}')
        a('v_max_f32 v10, v10, v11')
        a('v_mov_b32 v11, v10')
        a('v_permlane32_swap_b32 v10, v11')
        a('v_max_f32 v10, v10, v11')
        for r in range(16):
            a(f'v_sub_f32 v{NM+r}, 0, v10')
            a(f'v_sub_f32 v{MD+r}, v{MD+r}, v10')
            a(f'v_sub_f32 v{MF+r}, v{MF+r}, v10')
        self.attn_loop(f'v[{NM}:{NM+15}]', None)

    def attn_B(self):
        a = self.a
        FB1 = a.newlabel('AT_FB1'); FB2 = a.newlabel('AT_FB2'); FB3 = a.newlabel('AT_FB3'); DONE = a.newlabel('AT_DONE')
        FB2L = a.newlabel('AT_FB2L')
        if self.args.aprio:
            L = self.if_wave('ge', 4)
            a(f's_setprio {self.args.aprio}')
            a.label(L)
        L = self.if_wave('eq', 0)
        LN = a.newlabel('AT_W0N')
        a(f's_cmp_lg_u32 s{sNEED}, 0')
        a(f's_cbranch_scc1 {LN}')
        a('s_call_b64 s[88:89], SUB_S1FIN')
        a.label(LN)
        a.label(L)
        if self.args.force_fallback:
            a(f's_branch {FB1}')
        self.norm_check(FB1)
        def stage1_if_needed():
            D = a.newlabel('S1_D')
            a(f'v_mov_b32 v11, {L_SIG}')
            a('ds_read_b32 v12, v11 offset:16')
            a('s_waitcnt lgkmcnt(0)')
            a('v_readfirstlane_b32 s61, v12')
            a('s_cmp_eq_u32 s61, 0')
            a(f's_cbranch_scc1 {D}')
            a('s_call_b64 s[88:89], SUB_IMPORT1')
            a.label(D)
        self.stage1_if_needed = stage1_if_needed
        def sync_point(i):
            if i == self.args.fli:
                SK = self.if_wave('ge', 4)
                self.light_flag()
                a.label(SK)
            if i == 0:
                SK = self.if_wave('eq', 4)
                stage1_if_needed()
                a.label(SK)
            SK = a.newlabel('AT_SY')
            a(f's_cmp_lg_u32 s{sRB}, {i}')
            a(f's_cbranch_scc1 {SK}')
            self.cnt_wait(L_CNTA)
            self.norm_check(FB2)
            a.label(SK)
            if i in (1, 2, 3, 4):
                SK = self.if_wave('ge', 6)
                if i == 1:
                    LJ = a.newlabel('AT_J0'); a(f's_cmp_eq_u32 s{sJ}, 0'); a(f's_cbranch_scc1 {LJ}')
                    self.i2_flag()
                    a.label(LJ)
                if i == 2:
                    LJ = a.newlabel('AT_J0'); a(f's_cmp_eq_u32 s{sJ}, 0'); a(f's_cbranch_scc1 {LJ}')
                    self.i2_try()
                    LR = a.newlabel('AT_R2'); a(f's_cmp_eq_u32 s{sNEED}, 0'); a(f's_cbranch_scc1 {LR}')
                    self.i2_flag()
                    a.label(LR)
                    a.label(LJ)
                if i == 3:
                    LJ = a.newlabel('AT_J0'); a(f's_cmp_eq_u32 s{sJ}, 0'); a(f's_cbranch_scc1 {LJ}')
                    a(f's_cmp_eq_u32 s{sNEED}, 0'); a(f's_cbranch_scc1 {LJ}')
                    self.i2_try()
                    a.label(LJ)
                if i == 4:
                    a('s_call_b64 s[88:89], SUB_IMPORT2')
                a.label(SK)
            if i == 4 and self.args.aprio:
                SK = self.if_wave('ge', 4)
                a('s_setprio 0')
                a.label(SK)
            if i >= 4:
                SK = a.newlabel('AT_SYB')
                a(f's_cmp_lg_u32 s{sRB}, {i-4}')
                a(f's_cbranch_scc1 {SK}')
                self.cnt_wait(L_CNTB)
                self.norm_check(FB3)
                a.label(SK)
        self.attn_loop('0', sync_point)
        a(f's_branch {DONE}')
        a.label(FB1)
        a('s_waitcnt lgkmcnt(0)')
        L = self.if_wave('ge', 4)
        if self.args.fli >= 0: self.light_flag()
        L4 = self.if_wave('eq', 4)
        stage1_if_needed()
        a.label(L4)
        a.label(L)
        self.cnt_wait(L_CNTA)
        a.label(FB2)
        L = self.if_wave('ge', 4)
        L6 = self.if_wave('ge', 6)
        a('s_waitcnt vmcnt(0)')
        a(f's_mov_b32 s{sNEED}, 1')
        a('s_call_b64 s[88:89], SUB_IMPORT2')
        a.label(L6)
        self.cnt_wait(L_CNTB)
        a.label(L)
        a.label(FB3)
        a('s_setprio 0')
        a('s_waitcnt vmcnt(0) lgkmcnt(0)')
        self.attn_true()
        a.label(DONE)

    def phi(self, r, tA, tB, sel_lo=False):
        a = self.a
        a(f'v_mul_f32 v{tA}, v102, v{r}')
        a(f'v_fma_f32 v{tB}, v101, v{r}, s52')
        a(f'v_exp_f32_e64 v{tA}, v{tA} clamp')
        a(f'v_max_f32 v{tB}, s52, v{tB}')
        if not sel_lo:
            a(f'v_add_f32 v{r}, v{tA}, v{tB}')
        else:
            a(f'v_add_f32 v{tA}, v{tA}, v{tB}')
            a(f'v_mul_f32 v{r}, v101, v{r}')
            a(f'v_cndmask_b32 v{r}, v{r}, v{tA}, {LO}')

    def epi_A(self):
        a = self.a
        A0, A1 = self.ACC0, self.ACC1
        QA, QB = self.QA, self.QB
        a('s_mov_b32 s53, 0x3fb8aa3b')
        a('v_mul_f32 v102, s53, v101')
        a('s_mov_b32 s52, 0x358637bd')
        t = 0
        def ph(r, sel=False):
            nonlocal t
            self.phi(r, 106 + 2 * (t % 4), 107 + 2 * (t % 4), sel); t += 1
        for r in list(range(A0 + 12, A0 + 16)) + list(range(A1, A1 + 4)): ph(r)
        for r in range(A1 + 4, A1 + 12): a(f'v_mul_f32 v{r}, v101, v{r}')
        for r in range(A1 + 12, A1 + 16): ph(r, True)
        pk = {'B0g3': (126, A0+12), 'B1g0': (128, A1), 'B1g1': (130, A1+4), 'B1g2': (132, A1+8), 'B1g3': (134, A1+12)}
        for n, (d, s_) in pk.items():
            a(f'v_cvt_pk_bf16_f32 v{d}, v{s_}, v{s_+1}')
            a(f'v_cvt_pk_bf16_f32 v{d+1}, v{s_+2}, v{s_+3}')
        self.write_img({n: d for n, (d, _) in pk.items()})
        a('s_waitcnt lgkmcnt(0)')
        a('s_barrier')

    def epi_A_q(self):
        a = self.a
        A0 = self.ACC0
        QA, QB = self.QA, self.QB
        a('s_mov_b32 s52, 0x358637bd')
        for t, r in enumerate(range(A0, A0 + 12)): self.phi(r, 106 + 2 * (t % 3), 107 + 2 * (t % 3))
        for j in range(4): a(f'v_cvt_pk_bf16_f32 v{QA+j}, v{A0+2*j}, v{A0+2*j+1}')
        a(f'v_cvt_pk_bf16_f32 v{QB}, v{A0+8}, v{A0+9}')
        a(f'v_cvt_pk_bf16_f32 v{QB+1}, v{A0+10}, v{A0+11}')
        a('v_mov_b32 v13, 0')
        a(f'v_mov_b32 v{QB+2}, 0')
        a(f'v_mov_b32 v{QB+3}, 0')
        for j in range(2): a(f'v_cndmask_b32 v{QB+j}, v13, v{QB+j}, {LO}')

    def linear_attn(self):
        a = self.a
        QA, QB = self.QA, self.QB
        L = self.if_wave('ge', 4)
        if self.args.wosig:
            a(f's_add_u32 s59, s{sLAYER}, 1')
            self.lds_wait('s59')
        if not self.args.nowo: self.dma_wo(0, 4)
        a.label(L)
        LS = a.newlabel('LA_ST')
        a(f's_cmp_lg_u32 s{sLAYER}, 0')
        a(f's_cbranch_scc1 {LS}')
        self.late_touch(('of',))
        L = self.if_wave('ge', 1)
        self.stash_load(1)
        a.label(L)
        a.label(LS)
        L = self.if_wave('ge', 1)
        self.epi_A_q()
        a.label(L)
        E = self.if_wave('eq', 0)
        a('v_lshrrev_b32 v11, 5, v1')
        a('v_bfe_u32 v12, v1, 2, 2')
        a('v_lshlrev_b32 v13, 2, v11')
        a('v_add_u32 v12, v12, v13')
        a('v_add_u32 v12, 256, v12')
        a('v_mul_u32_u24 v12, 48, v12')
        a('v_and_b32 v13, 3, v1')
        a('v_bfe_u32 v107, v1, 4, 1')
        a('v_min_u32 v15, 1, v13')
        a('v_lshlrev_b32 v15, 3, v15')
        a('v_add_u32 v15, 32, v15')
        a('v_lshlrev_b32 v14, 3, v13')
        a('v_and_b32 v106, 1, v13')
        a('v_lshlrev_b32 v106, 4, v106')
        a('v_lshrrev_b32 v108, 1, v13')
        a('v_lshlrev_b32 v108, 3, v108')
        a('v_add_u32 v106, v106, v108')
        a('v_cmp_eq_u32 vcc, 1, v107')
        a('v_cndmask_b32 v14, v14, v15, vcc')
        a('v_cndmask_b32 v106, v106, v15, vcc')
        a('v_add_u32 v104, v12, v106')
        a('v_add_u32 v105, v12, v14')
        a(f'v_add_u32 v105, {VIMG}, v105')
        D = 32
        NB = 4
        def rd(s2):
            s = 112 + 8 * (s2 % NB)
            a(f'ds_read_b64_tr_b16 v[{s}:{s+1}], v104 offset:{s2*768}')
            a(f'ds_read_b64_tr_b16 v[{s+2}:{s+3}], v104 offset:{s2*768+384}')
            a(f'ds_read_b64_tr_b16 v[{s+4}:{s+5}], v105 offset:{s2*768}')
            a(f'ds_read_b64_tr_b16 v[{s+6}:{s+7}], v105 offset:{s2*768+384}')
        for s2 in range(NB - 1): rd(s2)
        for s2 in range(16):
            if s2 + NB - 1 < 16: rd(s2 + NB - 1)
            pend = min(NB - 1, 15 - s2)
            a(f's_waitcnt lgkmcnt({4*pend})')
            s = 112 + 8 * (s2 % NB)
            a(f'{MF32} v[{D}:{D+15}], v[{s}:{s+3}], v[{s+4}:{s+7}], {"0" if s2 == 0 else f"v[{D}:{D+15}]"}')
        (None if self.args.fq else self.fstamp(53))
        a(f's_lshr_b32 s50, s{sLAYER}, 1')
        a(f's_mul_i32 s50, s50, {KVP_SZ}')
        a(f's_add_u32 s50, s50, {WS_KVP}')
        a(f's_lshl_b32 s51, s{sH}, 15')
        a('s_add_u32 s50, s50, s51')
        a(f's_lshl_b32 s51, s{sJ}, 12')
        a('s_add_u32 s51, s51, s50')
        a(f's_add_u32 s53, s{sLAYER}, 17')
        a(f's_add_u32 s53, s53, s{sNONCE}')
        for g in range(3):
            b = 48 + 4 * g
            a(f'v_cvt_pk_bf16_f32 v{b}, v{D+4*g}, v{D+4*g+1}')
            a(f'v_cvt_pk_bf16_f32 v{b+1}, v{D+4*g+2}, v{D+4*g+3}')
            a(f'v_mov_b32 v{b+2}, s53')
            a(f'v_mov_b32 v{b+3}, s53')
        for g in range(3):
            b = 48 + 4 * g
            a(f'buffer_store_dwordx4 v[{b}:{b+3}], v2, {srd(S_WS)}, s51 offen offset:{g*1024} sc1')
        (None if self.args.fq else self.fstamp(54))
        IB = [16, 28, 40, 52, 64, 76, 104, 116]
        PL = a.newlabel('KV_POLL'); PD = a.newlabel('KV_DONE')
        self.epi_A_q()
        if not self.args.noprepoll:
            PP = a.newlabel('KV_PP'); PPD = a.newlabel('KV_PPD')
            a('v_and_b32 v10, 7, v1')
            a('v_lshlrev_b32 v10, 12, v10')
            a('v_add_u32 v10, 2048, v10')
            a('s_mov_b32 s60, 0')
            a.label(PP)
            a(f'buffer_load_dwordx4 v[88:91], v10, {srd(S_WS)}, s50 offen sc1')
            a('s_waitcnt vmcnt(0)')
            a('v_mov_b32 v92, s53')
            a('v_bitop3_b32 v88, v90, v91, v92 bitop3:0x7e')
            a('v_cmp_ne_u32 vcc, 0, v88')
            a('s_and_b32 s61, vcc_lo, 0xff')
            a('s_cmp_eq_u32 s61, 0')
            a(f's_cbranch_scc1 {PPD}')
            a('s_add_u32 s60, s60, 1')
            a(f's_cmp_lt_u32 s60, {self.args.spin}')
            a(f's_cbranch_scc1 {PP}')
            a.label(PPD)
        a('s_mov_b32 s60, 0')
        a.label(PL)
        a('s_mov_b32 s54, s50')
        for j in range(8):
            for g in range(3):
                r = IB[j] + 4 * g
                a(f'buffer_load_dwordx4 v[{r}:{r+3}], v2, {srd(S_WS)}, s54 offen offset:{g*1024} sc1')
            if j < 7: a('s_add_u32 s54, s54, 4096')
        a('v_mov_b32 v88, 0')
        a('v_mov_b32 v89, s53')
        for j in range(8):
            a(f's_waitcnt vmcnt({3*(7-j)})')
            r = IB[j]
            a(f'v_bitop3_b32 v90, v{r+2}, v{r+3}, v89 bitop3:0x7e')
            a(f'v_bitop3_b32 v91, v{r+6}, v{r+7}, v89 bitop3:0x7e')
            a(f'v_bitop3_b32 v92, v{r+10}, v{r+11}, v89 bitop3:0x7e')
            a('v_or3_b32 v88, v88, v90, v91')
            a('v_or_b32 v88, v88, v92')
        a('v_cmp_ne_u32 vcc, 0, v88')
        a('s_cmp_eq_u64 vcc, 0')
        a(f's_cbranch_scc1 {PD}')
        a(f's_cmp_lg_u32 s{sDEAD}, 0')
        a(f's_cbranch_scc1 {PD}')
        a('s_add_u32 s60, s60, 1')
        a(f's_cmp_lt_u32 s60, {self.args.spin}')
        a(f's_cbranch_scc1 {PL}')
        a(f's_mov_b32 s{sDEAD}, 1')
        a.label(PD)
        (None if self.args.fq else self.fstamp(55))
        a(f's_add_u32 s59, s{sLAYER}, 1')
        self.lds_signal('s59')
        a('v_mov_b32 v88, 0x00003f80')
        a('v_mov_b32 v89, 0x3f800000')
        acc = [128 + k for k in range(12)]
        for k in range(12): a(f'v_mov_b32 v{acc[k]}, 0')
        for j in range(8):
            for g in range(3):
                for h2 in range(2):
                    src = IB[j] + 4 * g + h2
                    a(f'v_dot2c_f32_bf16 v{acc[4*g + 2*h2]}, v{src}, v88')
                    a(f'v_dot2c_f32_bf16 v{acc[4*g + 2*h2 + 1]}, v{src}, v89')
        (None if self.args.fq else self.fstamp(56))
        for j in range(6): a(f'v_cvt_pk_bf16_f32 v{64+j}, v{acc[2*j]}, v{acc[2*j+1]}')
        LS0 = a.newlabel('LA_ST0')
        a(f's_cmp_lg_u32 s{sLAYER}, 0')
        a(f's_cbranch_scc1 {LS0}')
        self.stash_load(1)
        a.label(LS0)
        a(f'ds_write_b128 v2, v[64:67] offset:{L_KV}')
        a('v_lshlrev_b32 v13, 3, v1')
        a(f'ds_write_b64 v13, v[68:69] offset:{L_KV+1024}')
        a.label(E)
        a('s_waitcnt lgkmcnt(0)')
        a('s_barrier')
        a('v_lshlrev_b32 v13, 3, v1')
        a(f'ds_read_b128 v[64:67], v2 offset:{L_KV}')
        a(f'ds_read_b64 v[68:69], v13 offset:{L_KV+1024}')
        a('v_mov_b32 v70, 0\nv_mov_b32 v71, 0')
        a('s_waitcnt lgkmcnt(0)')
        a(f'{MF32} v[16:31], v[64:67], v[{QA}:{QA+3}], 0')
        a(f'{MF32} v[16:31], v[68:71], v[{QB}:{QB+3}], v[16:31]')

    def o_addr_lane(self):
        a = self.a
        a('v_bfe_u32 v11, v1, 4, 1')
        a(f'v_mul_u32_u24 v11, {OBS}, v11')
        a('v_and_b32 v12, 15, v1')
        a('v_lshlrev_b32 v12, 4, v12')
        a('v_add_u32 v11, v11, v12')
        a('v_lshrrev_b32 v12, 5, v1')
        a(f's_mul_i32 s51, s{sH}, 5')
        a('v_add_u32 v12, s51, v12')
        def qoff(dst, q):
            a(f'v_lshrrev_b32 v14, 3, {q}')
            a(f'v_lshlrev_b32 {dst}, 10, v14')
            a(f'v_bfe_u32 v14, {q}, 2, 1')
            a('v_lshlrev_b32 v14, 9, v14')
            a(f'v_add_u32 {dst}, {dst}, v14')
            a(f'v_and_b32 v14, 1, {q}')
            a('v_lshlrev_b32 v14, 8, v14')
            a(f'v_add_u32 {dst}, {dst}, v14')
            a(f'v_bfe_u32 v14, {q}, 1, 1')
            a('v_lshlrev_b32 v14, 3, v14')
            a(f'v_add_u32 {dst}, {dst}, v14')
            a(f'v_add_u32 {dst}, {dst}, v11')
        qoff('v40', 'v12')
        a('v_add_u32 v13, 2, v12')
        qoff('v41', 'v13')
        a('s_add_u32 s51, s51, 4')
        a('v_mov_b32 v13, s51')
        qoff('v42', 'v13')

    def o_addr(self):
        a = self.a
        a(f's_lshl_b32 s50, s{sJ}, 4')
        a(f's_lshl_b32 s51, s{sRB}, 1')
        a('s_add_u32 s50, s50, s51')
        a(f's_mul_i32 s50, s50, {OBS}')
        a(f's_add_u32 s50, s50, s{sOF}')

    def finalize_o(self, eps):
        a = self.a
        self.o_addr()
        a(f'v_cndmask_b32 v10, v24, v28, {LO}')
        if eps: a('v_add_f32 v10, 0x358637bd, v10')
        a('v_rcp_f32 v10, v10')
        for r in range(12): a(f'v_mul_f32 v{16+r}, v10, v{16+r}')
        for j in range(6): a(f'v_cvt_pk_bf16_f32 v{32+j}, v{16+2*j}, v{17+2*j}')
        a(f'buffer_store_dwordx2 v[32:33], v{vPO[0]}, {srd(S_WS)}, s50 offen')
        a(f'buffer_store_dwordx2 v[34:35], v{vPO[1]}, {srd(S_WS)}, s50 offen')
        a('s_mov_b64 exec, 0xffffffff')
        a(f'buffer_store_dwordx2 v[36:37], v{vPO[2]}, {srd(S_WS)}, s50 offen')
        a('s_mov_b64 exec, -1')
        a('s_waitcnt vmcnt(0)')

    def qkv_pre(self):
        a = self.a
        self.set_layer_bases()
        a(f's_lshl_b32 s50, s{sJ}, 3')
        a(f's_add_u32 s50, s50, s{sRB}')
        a(f's_lshl_b32 s85, s50, 11')
        a(f's_add_u32 s85, s85, s{sST}')
        a(f's_mul_i32 s84, s50, {RBS}')
        a(f's_add_u32 s84, s84, s{sXF}')

    def wo_pre(self):
        a = self.a
        a(f's_lshr_b32 s50, s{sH}, 3')
        a(f's_and_b32 s51, s{sH}, 7')
        a(f's_and_b32 s52, s{sW}, 1')
        a(f's_lshr_b32 s53, s{sW}, 1')
        a(f's_lshl_b32 s54, s{sJ}, 4')
        a('s_lshl_b32 s55, s50, 2')
        a('s_add_u32 s54, s54, s55')
        a('s_lshl_b32 s55, s52, 1')
        a('s_add_u32 s54, s54, s55')
        a(f's_mul_i32 s55, s54, {OBS}')
        a('s_mul_i32 s56, s53, 10240')
        a('s_add_u32 s55, s55, s56')
        a(f's_add_u32 s55, s55, s{sOF}')
        a(f's_add_u32 s56, s55, {OBS}')
        a('s_cmp_eq_u32 s53, 0')
        a('s_cselect_b32 s57, s55, s56')
        a('s_cselect_b32 s56, s56, s55')
        a('s_mov_b32 s55, s57')
        a('s_mov_b32 s84, s51\ns_mov_b32 s85, s53\ns_mov_b32 s86, s54\ns_mov_b32 s87, s55\ns_mov_b32 s98, s56')

    def wo_phase(self):
        a = self.a
        OFR = 16; WF = 96; AC = 48; XOR_ = [88, 90, 92, 94, 136]
        HELP = a.newlabel('WO_HELP')
        a(f's_cmp_ge_u32 s{sW}, 4')
        a(f's_cbranch_scc1 {HELP}')
        a('s_mov_b32 s51, s84\ns_mov_b32 s53, s85\ns_mov_b32 s54, s86\ns_mov_b32 s55, s87\ns_mov_b32 s56, s98')
        vq = VQ()
        def oload(i):
            for aa in range(2):
                r = OFR + 8 * (i % 4) + 4 * aa
                sb = 's55' if aa == 0 else 's56'
                a(f'buffer_load_dwordx4 v[{r}:{r+3}], v2, {srd(S_WS)}, {sb} offen offset:{(i % 4) * 1024} sc1')
                vq.push(('o', i))
            if i % 4 == 3:
                a('s_add_u32 s55, s55, 4096\ns_add_u32 s56, s56, 4096')
        PF = 3
        for i in range(PF): oload(i)
        (self.fstamp(59) if self.args.flayer else None)
        a('s_mul_i32 s60, s53, 51200')
        a(f's_add_u32 s60, s60, {R_O}')
        a('v_add_u32 v11, s60, v2')
        def wrd1(i, c):
            s = WF + 20 * (i % 2)
            a(f'ds_read_b128 v[{s+4*c}:{s+4*c+3}], v11 offset:{(i*5 + c)*1024}')
        for c in range(5): wrd1(0, c)
        a('s_add_u32 s57, s54, s53')
        a('s_lshr_b32 s58, s57, 1')
        a(f's_mul_i32 s58, s58, {RBS}')
        a('s_mul_i32 s59, s51, 5120')
        a('s_add_u32 s58, s58, s59')
        a('s_and_b32 s59, s57, 1')
        a('s_lshl_b32 s59, s59, 8')
        a('s_add_u32 s58, s58, s59')
        a(f's_add_u32 s59, s58, s{sXF}')
        a('v_lshrrev_b32 v10, 5, v1')
        a('v_lshlrev_b32 v10, 9, v10')
        a('v_and_b32 v12, 15, v1')
        a('v_lshlrev_b32 v12, 4, v12')
        a('v_add_u32 v10, v10, v12')
        a('v_bfe_u32 v12, v1, 4, 1')
        a('v_lshlrev_b32 v12, 3, v12')
        a('v_add_u32 v10, v10, v12')
        (self.fstamp(60) if self.args.flayer else None)
        for i in range(10):
            s = WF + 20 * (i % 2)
            a(f's_waitcnt vmcnt({vq.cnt(("o", i))})')
            if i == 1 and self.args.flayer: self.fstamp(61)
            for c in range(5):
                lg = 4 if i < 9 else (4 - c)
                a(f's_waitcnt lgkmcnt({lg})')
                for aa in range(2):
                    d = AC + 20 * aa + 4 * c; o = OFR + 8 * (i % 4) + 4 * aa
                    cc = '0' if i == 0 else f'v[{d}:{d+3}]'
                    a(f'{MF16} v[{d}:{d+3}], v[{s+4*c}:{s+4*c+3}], v[{o}:{o+3}], {cc}')
                if i < 9: wrd1(i + 1, c)
                if c == 1 and i + PF < 10: oload(i + PF)
                if c == 3 and i >= 5:
                    cc = i - 5
                    if cc == 4: a('s_add_u32 s59, s59, 4096')
                    a(f'buffer_load_dwordx2 v[{XOR_[cc]}:{XOR_[cc]+1}], v10, {srd(S_WS)}, s59 offen offset:{(cc % 4) * 1024} sc1')
                    vq.push('res')
        (self.fstamp(62) if self.args.flayer else None)
        a(f's_mul_i32 s60, s{sW}, 5120')
        a(f's_add_u32 s60, s60, {SCR}')
        a('v_add_u32 v12, s60, v2')
        for c in range(5): a(f'ds_write_b128 v12, v[{AC+20+4*c}:{AC+20+4*c+3}] offset:{c*1024}')
        a('s_waitcnt vmcnt(0)')
        for c in range(5):
            x0, x1 = XOR_[c], XOR_[c] + 1
            b = 100 + 4 * c
            a(f'v_lshlrev_b32 v{b}, 16, v{x0}\nv_and_b32 v{b+1}, 0xffff0000, v{x0}\nv_lshlrev_b32 v{b+2}, 16, v{x1}\nv_and_b32 v{b+3}, 0xffff0000, v{x1}')
            for r in range(4): a(f'v_add_f32 v{AC+4*c+r}, v{AC+4*c+r}, v{b+r}')
        a('s_waitcnt lgkmcnt(0)')
        a.label(HELP)
        a('s_barrier')
        self.stamp(9, True)
        H2 = a.newlabel('WO_H2'); H3 = a.newlabel('WO_H3')
        a(f's_cmp_ge_u32 s{sW}, 4')
        a(f's_cbranch_scc1 {H2}')
        a(f's_xor_b32 s60, s{sW}, 2')
        a('s_mul_i32 s60, s60, 5120')
        a(f's_add_u32 s60, s60, {SCR}')
        a('v_add_u32 v12, s60, v2')
        for c in range(5): a(f'ds_read_b128 v[{16+4*c}:{19+4*c}], v12 offset:{c*1024}')
        a('s_waitcnt lgkmcnt(0)')
        for c in range(5):
            for r in (0, 2): a(f'v_pk_add_f32 v[{AC+4*c+r}:{AC+4*c+r+1}], v[{AC+4*c+r}:{AC+4*c+r+1}], v[{16+4*c+r}:{16+4*c+r+1}]')
            a(f'v_cvt_pk_bf16_f32 v{120+2*c}, v{AC+4*c}, v{AC+4*c+1}')
            a(f'v_cvt_pk_bf16_f32 v{121+2*c}, v{AC+4*c+2}, v{AC+4*c+3}')
        LAST = a.newlabel('WO_LAST')
        a(f's_cmp_eq_u32 s{sLAYER}, 3')
        a(f's_cbranch_scc1 {LAST}')
        a(f's_add_u32 s59, s58, s{sXFN}')
        for c in range(5):
            if c == 4: a('s_add_u32 s59, s59, 4096')
            a(f'buffer_store_dwordx2 v[{120+2*c}:{121+2*c}], v10, {srd(S_WS)}, s59 offen offset:{(c % 4) * 1024}')
        a(f'v_pk_add_f32 v[36:37], v[{AC}:{AC+1}], v[{AC+2}:{AC+3}]')
        a(f'v_pk_mul_f32 v[38:39], v[{AC}:{AC+1}], v[{AC}:{AC+1}]')
        a(f'v_pk_fma_f32 v[38:39], v[{AC+2}:{AC+3}], v[{AC+2}:{AC+3}], v[38:39]')
        for k in range(4, 20, 2):
            a(f'v_pk_add_f32 v[36:37], v[36:37], v[{AC+k}:{AC+k+1}]')
            a(f'v_pk_fma_f32 v[38:39], v[{AC+k}:{AC+k+1}], v[{AC+k}:{AC+k+1}], v[38:39]')
        a('v_add_f32 v40, v36, v37')
        a('v_add_f32 v41, v38, v39')
        a('v_mov_b32 v42, v40\nv_mov_b32 v43, v41')
        a('v_permlane16_swap_b32 v40, v42')
        a('v_permlane16_swap_b32 v41, v43')
        a('v_add_f32 v40, v40, v42\nv_add_f32 v41, v41, v43')
        a('v_mov_b32 v42, v40\nv_mov_b32 v43, v41')
        a('v_permlane32_swap_b32 v40, v42')
        a('v_permlane32_swap_b32 v41, v43')
        a('v_add_f32 v40, v40, v42\nv_add_f32 v41, v41, v43')
        a('s_lshr_b32 s60, s57, 1')
        a('s_lshl_b32 s60, s60, 11')
        a('s_and_b32 s61, s57, 1')
        a('s_lshl_b32 s61, s61, 8')
        a('s_add_u32 s60, s60, s61')
        a('s_bfe_u32 s61, s51, 0x10001')
        a('s_lshl_b32 s61, s61, 10')
        a('s_add_u32 s60, s60, s61')
        a('s_lshr_b32 s61, s51, 2')
        a('s_lshl_b32 s61, s61, 9')
        a('s_add_u32 s60, s60, s61')
        a('s_and_b32 s61, s51, 1')
        a('s_lshl_b32 s61, s61, 3')
        a('s_add_u32 s60, s60, s61')
        a(f's_add_u32 s60, s60, s{sSTN}')
        a('v_lshlrev_b32 v42, 4, v1')
        a('s_mov_b64 exec, 0xffff')
        a(f'buffer_store_dwordx2 v[40:41], v42, {srd(S_WS)}, s60 offen')
        a('s_mov_b64 exec, -1')
        a(f's_branch {H3}')
        a.label(LAST)
        a('s_mul_i32 s60, s57, 20480')
        a('s_mul_i32 s61, s51, 160')
        a('s_add_u32 s60, s60, s61')
        a('v_and_b32 v42, 15, v1')
        a('v_mul_u32_u24 v42, 1280, v42')
        a('v_lshrrev_b32 v43, 4, v1')
        a('v_lshlrev_b32 v43, 3, v43')
        a('v_add_u32 v42, v42, v43')
        for c in range(5):
            if self.args.e_noout: continue
            a(f'buffer_store_dwordx2 v[{120+2*c}:{121+2*c}], v42, {srd(S_OUT)}, s60 offen offset:{c*32} {self.args.outflag}')
        a(f's_branch {H3}')
        a.label(H2)
        self.stash_writeback()
        a('s_waitcnt lgkmcnt(0)')
        a.label(H3)

    def set_layer_bases(self):
        a = self.a
        if self.args.noreuse:
            a(f's_mul_i32 s50, s{sLAYER}, {XF_SZ}')
            a(f's_add_u32 s{sXF}, s50, {WS_XF}')
            a(f's_add_u32 s{sXFN}, s{sXF}, {XF_SZ}')
            a(f's_add_u32 s{sOF}, s50, {WS_OF}')
            a(f's_mul_i32 s50, s{sLAYER}, {ST_SZ}')
            a(f's_add_u32 s{sST}, s50, {WS_ST}')
            a(f's_add_u32 s{sSTN}, s{sST}, {ST_SZ}')
            return
        a(f's_mov_b32 s{sXF}, {WS_XF}')
        a(f's_mov_b32 s{sXFN}, {WS_XF}')
        a(f's_mov_b32 s{sOF}, {WS_OF}')
        a(f's_mov_b32 s{sST}, {WS_ST}')
        a(f's_mov_b32 s{sSTN}, {WS_ST}')

    def build(self):
        a = self.a
        args = self.args
        for _ in range(args.shift): a('s_nop 0')
        if args.prof: a('v_mov_b32 v9, 0')
        self.stamp(0)
        if args.prof:
            a('s_memtime s[100:101]')
            a('s_waitcnt lgkmcnt(0)')
        self.entry()
        self.p0()
        self.stamp(1)
        def between0():
            self.colsum_raw_others()
        self.first_sync()
        self.setup_persistent()
        self.stamp(2)
        a('s_waitcnt vmcnt(0)')
        self.fstamp(59)
        a('v_and_b32 v12, 31, v1')
        a('v_lshlrev_b32 v12, 2, v12')
        a('s_mov_b64 exec, 0xffffffff')
        a(f'ds_add_f32 v12, v160 offset:{L_CS}')
        a(f'ds_add_f32 v12, v161 offset:{L_CS+128}')
        a('s_mov_b64 exec, -1')
        self.qkv_pre()
        a('s_waitcnt lgkmcnt(0)')
        a('s_barrier')
        a(f'ds_read_b32 v{vCSA}, v12 offset:{L_CS}')
        a(f'ds_read_b32 v{vCSA+1}, v12 offset:{L_CS+128}')
        a(f'v_mov_b32 v11, {L_MODE}')
        a('ds_read_b32 v10, v11')
        a('s_waitcnt lgkmcnt(0)')
        a(f'v_readfirstlane_b32 s{sMODE}, v10')
        a.label('L_LAYER')
        self.qkv_main(packed=True)
        self.ln_fix(packed=True)
        L0 = a.newlabel('L0_CHK')
        a(f's_cmp_lg_u32 s{sLAYER}, 0')
        a(f's_cbranch_scc1 {L0}')
        self.stashA_from_lds()
        L = self.if_wave('eq', 0)
        self.check_packs()
        a.label(L)
        a.label(L0)
        self.stamp(3, True)
        a.label('L_AFTERQKV')
        if args.stop == 'qkv':
            SK = a.newlabel('DBG')
            a(f's_cmp_lg_u32 s{sLAYER}, {args.layer}')
            a(f's_cbranch_scc1 {SK}')
            for r in range(16, 48): a(f'v_mul_f32 v{r}, v101, v{r}')
            self.dbg_dump(list(range(16, 48, 4)), 0)
            a('s_branch L_END')
            a.label(SK)
        a(f's_bitcmp1_b32 s{sLAYER}, 0')
        a('s_cbranch_scc1 L_BLAYER')
        self.epi_A()
        self.stamp(4, True)
        self.linear_attn()
        self.stamp(6, True)
        self.finalize_o(eps=True)
        LC = a.newlabel('CSB')
        a(f's_cmp_lg_u32 s{sLAYER}, 0')
        a(f's_cbranch_scc1 {LC}')
        self.stash_cs_sum(1)
        a.label(LC)
        a('s_branch L_ODONE')
        a.label('L_BLAYER')
        self.epi_B()
        L = self.if_wave('ge', 4)
        self.epi_B_q()
        a.label(L)
        self.stamp(4, True)
        self.cstamp(57)
        self.attn_B()
        self.cstamp(59)
        self.stamp(6, True)
        self.finalize_o(eps=False)
        L = self.if_wave('lt', 4)
        self.dma_wo(1, 0)
        a.label(L)
        self.wo_pre()
        self.stamp(7, True)
        self.lbar(poller=4, between=lambda: a('s_waitcnt vmcnt(0)'))
        a('s_branch L_BAR1DONE')
        a.label('L_ODONE')
        self.wo_pre()
        self.stamp(7, True)
        self.lbar(between=lambda: a('s_waitcnt vmcnt(0)'))
        a.label('L_BAR1DONE')
        self.stamp(8, True)
        if args.stop == 'o':
            a(f's_cmp_eq_u32 s{sLAYER}, {args.layer}')
            a('s_cbranch_scc1 L_END')
        self.wo_phase()
        self.stamp(10, True)
        a(f's_cmp_eq_u32 s{sLAYER}, 3')
        a('s_cbranch_scc1 L_FIN')
        L = self.if_wave('lt', 4)
        a('s_waitcnt vmcnt(0)')
        a.label(L)
        self.stamp(11, True)
        a(f's_add_u32 s{sLAYER}, s{sLAYER}, 1')
        self.qkv_pre()
        def bw2():
            L = self.if_wave('lt', 4)
            self.stash_writeback_next()
            a('s_waitcnt lgkmcnt(0)')
            a.label(L)
        self.lbar(between=bw2, poller=4)
        self.stamp(0, True)
        if args.stop == 'x':
            a(f's_cmp_eq_u32 s{sLAYER}, {args.layer + 1}')
            a('s_cbranch_scc1 L_END')
        a('s_branch L_LAYER')
        a.label('L_FIN')
        a('s_waitcnt vmcnt(0)')
        self.stamp(51)
        if args.prof:
            a('s_memtime s[82:83]')
            a('s_waitcnt lgkmcnt(0)')
            a('s_sub_u32 s82, s82, s100')
            a('v_writelane_b32 v9, s82, 52')
        self.stamp_out()
        a('L_END:')
        a('s_endpgm')
        a.label('SUB_IMPORT1')
        a('s_nop 4')
        self.s1_issue(None)
        a.label('SUB_S1FIN')
        a('s_nop 4')
        self.s1_finish()
        a('s_nop 4')
        a('s_setpc_b64 s[88:89]')
        a.label('SUB_IMPORT2')
        a('s_nop 4')
        self.i2_finish()
        a('s_nop 4')
        a('s_setpc_b64 s[88:89]')
        a.label('L_CODE_END')
        body = a.finalize(verbose=True)
        hdr = open("header.txt").read() + f"""; Persistent fused kernel (written with my own generator script, gen/gen48.py): 256 workgroups x 8 waves, one per CU.
; Group j = wg&7 owns rows [256j,256j+256); member h = wg>>3 owns head h (QKV / attention) and a 64x80 tile of the output projection.
; Hand-offs inside a group go through L2 (plain stores + flags) when all members report the same XCC id, otherwise
; through write-back / invalidate fences; hand-offs between groups use write-through stores and tagged flags.
; All flags carry a per-launch nonce published through d_debug, so stale workspace contents are never accepted.
; Softmax: exp2 without max subtraction only when |q|max*|k|max proves |score| <= 56; otherwise a true-max path runs.
; @launch grid=(256,1,1) block=(512,1,1) lds={LDS_BYTES}
.amdgcn_target "amdgcn-amd-amdhsa--gfx950"
.text
.globl {KNAME}
.p2align 8
.type {KNAME},@function
{KNAME}:
"""
        ftr = f""".section .rodata,"a"
.p2align 6
.amdhsa_kernel {KNAME}
  .amdhsa_next_free_vgpr 256
  .amdhsa_next_free_sgpr 102
  .amdhsa_accum_offset 256
  .amdhsa_group_segment_fixed_size 0
  .amdhsa_kernarg_size 72
  .amdhsa_user_sgpr_count 2
  .amdhsa_user_sgpr_kernarg_segment_ptr 1
  .amdhsa_system_sgpr_workgroup_id_x 1
  .amdhsa_float_denorm_mode_32 3
  .amdhsa_float_denorm_mode_16_64 3
.end_amdhsa_kernel
"""
        return hdr + body + ftr

    def between0(self):
        pass

    def first_sync(self):
        a = self.a
        a('s_barrier')
        a(f's_add_u32 s{sEPOCH}, s{sEPOCH}, 1')
        L = self.if_wave('eq', 0)
        self.stamp(60)
        self.check_hello()
        self.stamp(61)
        G1 = a.newlabel('LB_GEN'); G2 = a.newlabel('LB_ST')
        a(f's_lshl_b32 s50, s{sJ}, 8')
        a(f's_add_u32 s50, s50, {WS_LFLAG}')
        a(f's_lshl_b32 s51, s{sH}, 2')
        a('s_add_u32 s51, s51, s50')
        a(f's_add_u32 s62, s{sEPOCH}, s{sNONCE}')
        a('v_mov_b32 v10, s62')
        a('v_mov_b32 v11, 0')
        a(f's_cmp_lg_u32 s{sMODE}, 0')
        a(f's_cbranch_scc1 {G1}')
        a('s_mov_b64 exec, 1')
        a(f'buffer_store_dword v10, v11, {srd(S_WS)}, s51 offen')
        a('s_mov_b64 exec, -1')
        a(f's_branch {G2}')
        a.label(G1)
        a('buffer_wbl2 sc1')
        a('s_waitcnt vmcnt(0)')
        a('s_mov_b64 exec, 1')
        a(f'buffer_store_dword v10, v11, {srd(S_WS)}, s51 offen sc1')
        a('s_mov_b64 exec, -1')
        a.label(G2)
        a(f'v_mov_b32 v10, s{sMODE}')
        a(f'v_mov_b32 v11, {L_MODE}')
        a('ds_write_b32 v11, v10')
        a('s_waitcnt lgkmcnt(0)')
        a.label(L)
        L = self.if_wave('ge', 1)
        L23 = a.newlabel('FS_23')
        a(f's_sub_u32 s50, s{sW}, 2')
        a('s_cmp_lt_u32 s50, 2')
        a(f's_cbranch_scc1 {L23}')
        a.label(L)
        self.poll_packA()
        self.stashA_load()
        LX = a.newlabel('FS_X')
        a(f's_branch {LX}')
        a.label(L23)
        self.poll_packA()
        self.stashA_load()
        self.p0_packs()
        a.label(LX)
        L = self.if_wave('eq', 0)
        a(f's_lshl_b32 s50, s{sJ}, 8')
        a(f's_add_u32 s50, s50, {WS_LFLAG}')
        a('v_and_b32 v11, 31, v1')
        a('v_lshlrev_b32 v11, 2, v11')
        self.poll('v11', 's50', 32, f's{sEPOCH}')
        G3 = a.newlabel('LB_NOINV')
        a(f's_cmp_eq_u32 s{sMODE}, 0')
        a(f's_cbranch_scc1 {G3}')
        a('buffer_inv sc1')
        a('s_waitcnt vmcnt(0)')
        a.label(G3)
        self.stamp(62)
        a.label(L)

if __name__ == '__main__':
    import struct
    ap = argparse.ArgumentParser()
    ap.add_argument('-o', default='out.s')
    ap.add_argument('--stop', default='')
    ap.add_argument('--layer', type=int, default=0)
    ap.add_argument('--spin', type=int, default=20000)
    ap.add_argument('--flayer', type=int, default=1)
    ap.add_argument('--cyc', action='store_true')
    ap.add_argument('--prof', action='store_true')
    ap.add_argument('--noreuse', action='store_true')
    ap.add_argument('--wosig', action='store_true')
    ap.add_argument('--nocodepf', action='store_true')
    ap.add_argument('--fq', action='store_true')
    ap.add_argument('--xring', type=int, default=8)
    ap.add_argument('--prio', type=int, default=0)
    ap.add_argument('--kvsleep', type=int, default=6)
    ap.add_argument('--nowo', action='store_true')
    ap.add_argument('--fb', action='store_true')
    ap.add_argument('--npre', type=int, default=8)
    ap.add_argument('--clk', action='store_true')
    ap.add_argument('--e_now', action='store_true')
    ap.add_argument('--e_m16', action='store_true')
    ap.add_argument('--e_nox', action='store_true')
    ap.add_argument('--fe', action='store_true')
    ap.add_argument('--maxtry', type=int, default=2)
    ap.add_argument('--noprepoll', action='store_true')
    ap.add_argument('--e_half', action='store_true')
    ap.add_argument('--e_dummy', action='store_true')
    ap.add_argument('--fi', action='store_true')
    ap.add_argument('--e_noout', action='store_true')
    ap.add_argument('--outflag', default='')
    ap.add_argument('--permute', action='store_true')
    ap.add_argument('--shift', type=int, default=0)
    ap.add_argument('--pfast', type=int, default=1)
    ap.add_argument('--psleep', type=int, default=1)
    ap.add_argument('--lprio', type=int, default=16)
    ap.add_argument('--aprio', type=int, default=1)
    ap.add_argument('--fli', type=int, default=0)
    ap.add_argument('--notouch', action='store_true')
    ap.add_argument('--force_generic', action='store_true')
    ap.add_argument('--force_fallback', action='store_true')
    ap.add_argument('--T', type=float, default=56.0)
    args = ap.parse_args()
    args.t2hex = hex(struct.unpack('<I', struct.pack('<f', args.T * args.T))[0])
    g = G(args)
    open(args.o, 'w').write(g.build())
```
